```python
import torch

def _softmax(x, axis=-1):
    return torch.softmax(x, dim=axis)
def _gelu(x):
    return torch.nn.functional.gelu(x, approximate="tanh")
def _silu(x):
    return torch.nn.functional.silu(x)
def _sigmoid(x):
    return torch.sigmoid(x)
def _layernorm(x, axis=-1, eps=1e-5):
    m = x.mean(dim=axis, keepdim=True)
    v = x.var(dim=axis, keepdim=True, unbiased=False)
    return (x - m) / torch.sqrt(v + eps)
def _scatter_add(tgt, idx, src, axis=0):
    return tgt.clone().index_add_(axis, idx, src)
def _segment_sum(src, seg, n):
    out = torch.zeros((n,) + src.shape[1:], dtype=src.dtype)
    return out.index_add_(0, seg, src)
def _pad(x, pw):
    flat = tuple(v for pair in reversed(pw) for v in pair)
    return torch.nn.functional.pad(x, flat)

kernel_name = 'interleave_layers__sliding_local_dilated__glu_gated_glu__prompt'

def setup_inputs():

    _w = (lambda a: (lambda t: t.to(torch.bfloat16) if t.is_floating_point() else t)(torch.as_tensor(a)))
    def _A_setup():
        B, S, D = 1, 2048, 512
        return {
            "x": _w((lambda *s: torch.randn(*s, dtype=torch.bfloat16) * 0.05)(B, S, D)),
            "wqkv": _w((lambda *s: torch.randn(*s, dtype=torch.bfloat16) * 0.05)(D, 3 * D)),
            "wo": _w((lambda *s: torch.randn(*s, dtype=torch.bfloat16) * 0.05)(D, D)),
        }
    _A_in = _A_setup()

    def _B_setup():
        B, S, D, F = 1, 2048, 512, 1792
        return {
            "x": _w((lambda *s: torch.randn(*s, dtype=torch.bfloat16) * 0.05)(B, S, D)),
            "w_gate": _w((lambda *s: torch.randn(*s, dtype=torch.bfloat16) * 0.05)(D, F)),
            "w_up": _w((lambda *s: torch.randn(*s, dtype=torch.bfloat16) * 0.05)(D, F)),
            "w_down": _w((lambda *s: torch.randn(*s, dtype=torch.bfloat16) * 0.05)(F, D)),
        }
    _B_in = _B_setup()

    return {
        "A_x": _A_in["x"],
        "A_wqkv": _A_in["wqkv"],
        "A_wo": _A_in["wo"],
        "B_x": _B_in["x"],
        "B_w_gate": _B_in["w_gate"],
        "B_w_up": _B_in["w_up"],
        "B_w_down": _B_in["w_down"],
    }

def reference(A_x, A_wqkv, A_wo, B_x, B_w_gate, B_w_up, B_w_down):
    def _A_ref(x, wqkv, wo):
        B, S, D = x.shape
        H = 32; Dh = D // H
        W, dil = 8, 2
        qkv = (lambda x, *d: x.permute(*d))((x @ wqkv).reshape(B, S, 3, H, Dh), 2, 0, 3, 1, 4)
        q, k, v = qkv[0], qkv[1], qkv[2]
        scale = Dh ** -0.5
        pos = torch.arange(S)
        off = torch.arange(W) * dil
        idx = pos[:, None] - off[None, :]
        mask = idx >= 0
        idx_c = torch.where(mask, idx, 0).reshape(-1)
        kg = k[:, :, idx_c, :].reshape(B, H, S, W, Dh)
        vg = v[:, :, idx_c, :].reshape(B, H, S, W, Dh)
        logits = torch.einsum("bhsd,bhswd->bhsw", q, kg) * scale
        logits = torch.where(mask[None, None, :, :], logits, -1e9)
        attn = _softmax(logits, axis=-1)
        o = torch.einsum("bhsw,bhswd->bhsd", attn, vg)
        return (lambda x, *d: x.permute(*d))(o, 0, 2, 1, 3).reshape(B, S, D) @ wo

    def _B_ref(x, w_gate, w_up, w_down):
        g = torch.einsum("bsd,df->bsf", x, w_gate)
        u = torch.einsum("bsd,df->bsf", x, w_up)
        h = _sigmoid(g) * u
        return torch.einsum("bsf,fd->bsd", h, w_down)

    x = A_x
    x = x + _A_ref(_layernorm(x, axis=-1), A_wqkv, A_wo)
    x = x + _B_ref(_layernorm(x, axis=-1), B_w_gate, B_w_up, B_w_down)
    x = x + _A_ref(_layernorm(x, axis=-1), A_wqkv, A_wo)
    x = x + _B_ref(_layernorm(x, axis=-1), B_w_gate, B_w_up, B_w_down)
    return x
```

```python
import re

def regs(op):
    op = op.strip()
    if op.startswith('-'): op = op[1:]
    if op.startswith('abs(') and op.endswith(')'): op = op[4:-1]
    if op.startswith('|') and op.endswith('|'): op = op[1:-1]
    m = re.fullmatch(r'([vas])(\d+)', op)
    if m: return [(m.group(1), int(m.group(2)))]
    m = re.fullmatch(r'([vas])\[(\d+):(\d+)\]', op)
    if m: return [(m.group(1), i) for i in range(int(m.group(2)), int(m.group(3)) + 1)]
    if op in ('vcc', 'vcc_lo', 'vcc_hi'): return [('s', 'vcc')]
    if op in ('exec', 'exec_lo', 'exec_hi'): return [('s', 'exec')]
    if op == 'm0': return [('s', 'm0')]
    return []

TRANS = ('v_exp_f32', 'v_log_f32', 'v_rcp_f32', 'v_rsq_f32', 'v_sqrt_f32')

class Ins:
    def __init__(self, text, lds=None, private=False, note=None):
        self.text = text.strip()
        self.lds = lds
        self.private = private
        self.done = False
        t = self.text
        sp = t.split(None, 1)
        mn = sp[0]
        self.mn = mn
        rest = sp[1] if len(sp) > 1 else ''
        ops = [o.strip() for o in rest.split(',')] if rest else []
        mods = ''
        if ops:
            parts = ops[-1].split()
            if parts:
                ops[-1] = parts[0]; mods = ' '.join(parts[1:])
        self.ops = ops; self.mods = mods
        rd, wr = [], []
        R = lambda lst: [x for o in lst for x in regs(o)]
        self.passes = 0
        self.dpp = ('row_' in mods or 'quad_perm' in mods or 'wave_' in mods)
        if mn.startswith('v_mfma'):
            self.kind = 'mfma'
            wr = R(ops[:1]); rd = R(ops[1:])
            self.ab = R(ops[1:3]); self.c = R(ops[3:4])
            self.passes = 8 if '32x32' in mn else 4
        elif mn.startswith('ds_read'):
            self.kind = 'dsrd'; wr = R(ops[:1]); rd = R(ops[1:])
        elif mn.startswith('ds_write') or mn.startswith('ds_add'):
            self.kind = 'dswr'; rd = R(ops)
        elif mn.startswith('buffer_load') or mn.startswith('global_load'):
            if ' lds' in ' ' + mods or 'load_lds' in mn:
                self.kind = 'dma'; rd = R(ops) + [('s', 'm0')]
            else:
                self.kind = 'vmld'; wr = R(ops[:1]); rd = R(ops[1:])
        elif mn.startswith('buffer_store') or mn.startswith('global_store'):
            self.kind = 'vmst'; rd = R(ops)
            self.data = R(ops[:1]) if mn.startswith('buffer') else R(ops[1:2])
            self.wide = ('x4' in mn or 'x3' in mn)
        elif mn.startswith('s_load') or mn.startswith('s_mem'):
            self.kind = 'smem'; wr = R(ops[:1]); rd = R(ops[1:])
        elif mn == 's_barrier': self.kind = 'barrier'
        elif mn == 's_waitcnt': self.kind = 'wait'
        elif mn == 's_nop': self.kind = 'nop'
        elif mn.endswith(':'): self.kind = 'label'
        elif mn.startswith('s_cbranch') or mn == 's_branch' or mn == 's_endpgm' or mn.startswith('s_set') or mn == 's_sleep':
            self.kind = 'ctl'
            if 'vcc' in mn: rd = [('s', 'vcc')]
        elif mn.startswith('s_cmp') or mn.startswith('s_bitcmp'):
            self.kind = 'salu'; rd = R(ops)
        elif mn.startswith('s_'):
            self.kind = 'salu'; wr = R(ops[:1]); rd = R(ops[1:])
            if 'saveexec' in mn: wr += [('s', 'exec')]
        elif mn.startswith('v_'):
            self.kind = 'trans' if mn.split('_e')[0] in TRANS or mn in TRANS else 'valu'
            if 'permlane' in mn and 'swap' in mn:
                wr = R(ops); rd = R(ops)
            elif mn.startswith('v_fmac') or mn.startswith('v_dot2c') or mn.startswith('v_writelane') or self.dpp:
                wr = R(ops[:1]); rd = R(ops)
            elif mn.startswith('v_add_co') or mn.startswith('v_addc_co') or mn.startswith('v_sub_co'):
                wr = R(ops[:2]); rd = R(ops[2:])
            else:
                wr = R(ops[:1]); rd = R(ops[1:])
        elif mn.startswith('.') or mn.startswith(';'):
            self.kind = 'dir'
        else:
            raise ValueError('unknown instruction ' + t)
        self.rd = set(rd); self.wr = set(wr)

class WaitTok:
    kind = 'waittok'
    def __init__(self, toks): self.toks = list(toks)

class Drained:
    kind = 'drained'
    def __init__(self, vm=True, lgkm=False): self.vm = vm; self.lgkm = lgkm

class Raw:
    mn = 'raw'
    kind = 'raw'
    def __init__(self, text, rd=(), wr=(), drains_vm=False, drains_lgkm=False, states=1):
        self.text = text; self.rd = set(x for o in rd for x in regs(o)); self.wr = set(x for o in wr for x in regs(o))
        self.drains_vm = drains_vm; self.drains_lgkm = drains_lgkm; self.states = states

class Alt:
    kind = 'alt'
    n = 0
    def __init__(self, sreg, a, b):
        self.sreg = sreg; self.a = a; self.b = b
        Alt.n += 1; self.id = Alt.n

class Prog:
    def __init__(self, check_lds=True):
        self.items = []
        self.check_lds = check_lds
    def __call__(self, x, **kw):
        if isinstance(x, str):
            out = None
            for line in x.split('\n'):
                line = line.strip()
                if not line: continue
                out = Ins(line, **kw); self.items.append(out)
            return out
        if isinstance(x, (list, tuple)):
            for y in x: self(y)
            return None
        self.items.append(x); return x

    def finalize(self):
        out = []
        vmq = []
        lgq = []
        pos = 0
        lastw = {}
        lastc = {}
        stdata = {}
        bar = 0
        G = 64
        NG = 163840 // G
        lw = [[] for _ in range(NG)]
        lr = [[] for _ in range(NG)]
        stats = dict(nop=0, wait=0, n=0)
        def complete(i):
            if not i.done:
                i.done = True; i.donebar = bar
        def do_wait(vm=None, lg=None):
            nonlocal pos
            w = []
            if vm is not None and vm < len(vmq):
                assert vm <= 63
                w.append(f'vmcnt({vm})')
                while len(vmq) > vm: complete(vmq.pop(0))
            if lg is not None and lg < len(lgq):
                if any(i.kind == 'smem' for i in lgq): lg = 0
                lg = min(lg, 15)
                w.append(f'lgkmcnt({lg})')
                while len(lgq) > lg: complete(lgq.pop(0))
            if w:
                out.append('s_waitcnt ' + ' '.join(w)); pos += 1; stats['wait'] += 1
        def need(queue, pred):
            idx = -1
            for n, i in enumerate(queue):
                if pred(i): idx = n
            return None if idx < 0 else len(queue) - 1 - idx
        def ranges(i):
            if i.lds is None: return []
            return i.lds if isinstance(i.lds, list) else [i.lds]
        def ldscheck(i):
            if not self.check_lds: return
            assert i.lds is not None, 'LDS range missing: ' + i.text
            for lo, hi in ranges(i):
                assert 0 <= lo < hi <= 163840, (lo, hi, i.text)
                for g in range(lo // G, (hi + G - 1) // G):
                    if i.kind == 'dsrd':
                        for wq in lw[g]:
                            if wq.private and i.private:
                                ok = wq.done or wq.kind == 'dswr'
                            else:
                                ok = wq.done and wq.donebar < bar
                            assert ok, f'LDS RAW: {i.text} @{g*G} vs {wq.text}'
                        lr[g].append(i)
                    else:
                        if lr[g]:
                            for rq in lr[g]:
                                if rq.private and i.private:
                                    ok = rq.done or i.kind == 'dswr'
                                else:
                                    ok = rq.done and rq.donebar < bar
                                assert ok, f'LDS WAR: {i.text} @{g*G} vs {rq.text}'
                            lr[g] = []; lw[g] = []
                        lw[g].append(i)
        def hazard(i):
            need_n = 0
            def req(p, n):
                nonlocal need_n
                need_n = max(need_n, n - (pos - p - 1))
            k = i.kind
            isv = k in ('valu', 'trans')
            for r in i.rd | i.wr:
                lw_ = lastw.get(r)
                if lw_:
                    p, j = lw_
                    if j.kind == 'mfma':
                        big = j.passes == 8
                        if k == 'mfma':
                            if r in i.ab: req(p, 12 if big else 8)
                            elif r in i.c:
                                if not (set(i.c) == j.wr and i.passes == j.passes): req(p, 10 if big else 6)
                            else: req(p, 12 if big else 8)
                        else: req(p, 12 if big else 8)
                    elif j.kind == 'valu' and j.mn.startswith('v_dot') and not (i.mn == j.mn and r in i.wr):
                        req(p, 3)
                    elif j.kind in ('valu', 'trans', 'raw') and r in i.rd:
                        if r[0] in 'va':
                            if k == 'mfma': req(p, 2)
                            if isv and getattr(i, 'dpp', False): req(p, 2)
                            if isv and 'permlane' in i.mn: req(p, 2)
                            if isv and (i.mn.startswith('v_readfirstlane') or i.mn.startswith('v_readlane')): req(p, 1)
                            if j.kind == 'trans' and isv: req(p, 1)
                            if j.kind == 'trans' and k in ('dswr', 'vmst'): req(p, 1)
                        else:
                            if isv: req(p, 2)
                            if k in ('vmld', 'vmst', 'dma'): req(p, 5)
                            if k in ('salu', 'ctl', 'smem'): req(p, 1)
                    elif j.kind == 'salu' and r == ('s', 'm0') and k == 'dma': req(p, 1)
            if isv or k in ('dsrd', 'vmld'):
                for r in i.wr:
                    if r in lastc:
                        p, ps = lastc[r]; req(p, 7 if ps == 8 else 3)
                    if r in stdata: req(stdata[r], 2)
            return need_n
        def issue(i):
            nonlocal pos, bar
            touched = i.rd | i.wr
            vm = need(vmq, lambda j: j.kind == 'vmld' and (j.wr & touched))
            lg = need(lgq, lambda j: j.kind in ('dsrd', 'smem') and (j.wr & touched))
            do_wait(vm, lg)
            n = hazard(i)
            if n > 0:
                stats['nop'] += n
                while n > 0:
                    c = min(n, 16); out.append(f's_nop {c-1}'); pos += c; n -= c
            if i.kind in ('dsrd', 'dswr', 'dma'): ldscheck(i)
            out.append(i.text); stats['n'] += 1
            if i.kind == 'dir' or i.kind == 'label': return
            for r in i.wr: lastw[r] = (pos, i)
            if i.kind == 'mfma':
                for r in i.c: lastc[r] = (pos, i.passes)
            if i.kind == 'vmst' and i.wide:
                for r in i.data: stdata[r] = pos
            if i.kind in ('vmld', 'vmst', 'dma'):
                vmq.append(i)
                if len(vmq) > 63: complete(vmq.pop(0))
            if i.kind in ('dsrd', 'dswr', 'smem'): lgq.append(i)
            if i.kind == 'barrier': bar += 1
            if i.kind == 'wait':
                m = re.search(r'vmcnt\((\d+)\)', i.text)
                if m:
                    while len(vmq) > int(m.group(1)): complete(vmq.pop(0))
                m = re.search(r'lgkmcnt\((\d+)\)', i.text)
                if m:
                    nn = int(m.group(1))
                    assert nn == 0 or not any(j.kind == 'smem' for j in lgq)
                    while len(lgq) > nn: complete(lgq.pop(0))
            if i.kind == 'nop': pos += int(i.ops[0])
            pos += 1
        for it in self.items:
            if it.kind == 'waittok':
                ids = set(id(t) for t in it.toks)
                do_wait(need(vmq, lambda j: id(j) in ids), need(lgq, lambda j: id(j) in ids))
            elif it.kind == 'drained':
                if it.vm:
                    while vmq: complete(vmq.pop(0))
                if it.lgkm:
                    while lgq: complete(lgq.pop(0))
            elif it.kind == 'raw':
                touched = it.rd | it.wr
                do_wait(need(vmq, lambda j: j.kind == 'vmld' and (j.wr & touched)), need(lgq, lambda j: j.kind in ('dsrd', 'smem') and (j.wr & touched)))
                n = 0
                for kind in ('valu', 'vmst'):
                    probe = Ins('v_mov_b32 v0, v0'); probe.kind = kind; probe.rd = it.rd; probe.wr = it.wr; probe.dpp = True; probe.mn = 'v_permlane'
                    n = max(n, hazard(probe))
                if n > 0: out.append(f's_nop {n-1}'); pos += n
                out.append(it.text)
                pos += it.states
                for r in it.wr: lastw[r] = (pos - 1, it)
                if it.drains_vm:
                    while vmq: complete(vmq.pop(0))
                if it.drains_lgkm:
                    while lgq: complete(lgq.pop(0))
            elif it.kind == 'alt':
                allr = set()
                for j in it.a + it.b: allr |= j.rd | j.wr
                do_wait(need(vmq, lambda j: j.kind == 'vmld' and (j.wr & allr)), need(lgq, lambda j: j.kind in ('dsrd', 'smem') and (j.wr & allr)))
                pos += 2
                n = max(hazard(j) for j in it.a + it.b)
                pos -= 2
                if n > 0: out.append(f's_nop {n-1}'); pos += n
                assert [j.kind for j in it.a] == [j.kind for j in it.b]
                out.append(f's_cmp_lg_u32 {it.sreg}, 0\ns_cbranch_scc1 Lalt{it.id}_b')
                pos += 2
                for j in it.a: issue(j)
                out.append(f'Lalt{it.id}_e:')
                self.tail = getattr(self, 'tail', [])
                self.tail.append(f'Lalt{it.id}_b:\n' + '\n'.join(j.text for j in it.b) + f'\ns_branch Lalt{it.id}_e')
            else:
                issue(it)
        self.stats = stats
        return '\n'.join(out) + '\n'

def weave(p, spine, fill):
    for x in fill.get(-1, []): p(x)
    for n, s in enumerate(spine):
        p(s)
        for x in fill.get(n, []): p(x)
    extra = sorted(k for k in fill if k >= len(spine))
    for k in extra:
        for x in fill[k]: p(x)

def put(fill, slot, *items):
    fill.setdefault(slot, []).extend(items)

def spread(fill, items, start, end):
    n = len(items)
    for i, it in enumerate(items):
        put(fill, start + (i * (end - start)) // max(n, 1), it)
```

```python
import sys
from asmlib import *

NAME = 'interleave_layers__sliding_local_dilated__glu_gated_glu__prompt'
MB = 1 << 20
WS_O = [0, 2*MB]; WS_X1 = [4*MB, 6*MB]; WS_X2 = 8*MB
WS_ST1 = [10*MB, 10*MB + (256 << 10)]; WS_ST2 = 10*MB + (512 << 10)
WS_HB = 11*MB; WS_HS = 12*MB; WS_FL = 13*MB; WS_TS = 14*MB
WS_H = [16*MB, 24*MB]

SX, SWQKV, SWO, SW3, SWD, SOUT, SWS, SDBG = 's[4:7]', 's[8:11]', 's[12:15]', 's[16:19]', 's[20:23]', 's[24:27]', 's[28:31]', 's[32:35]'
sW, sMODE, sT, sROW, sHALO, sG, sG16, sM16, sCB, sW1K, sW4K, sHASP, sPG = ['s%d' % i for i in range(36, 49)]
sIDLE = 's49'
sMK2, sMK4, sMK1 = 's[50:51]', 's[52:53]', 's[54:55]'
sA1, sRB, sSPIN, sT2 = 's56', 's57', 's58', 's59'
sXCC, sW2K = 's60', 's61'
vL, vL16, vA1e, vA1o, vW1d, vW1r0, vW1r1, vA1r0, vA1r1, vW2d, vW4d, vWown, vWoth, vRM, vFLp, vFLo = ['v%d' % i for i in range(16)]
RES = 16
CSQ, CSK, CSV = 24, 28, 32
vW3d, vW3r, vT0, vTS = 'v36', 'v37', 'v38', 'v39'
L_A1 = 0; L_A1H = 65536; L_R1 = 73728; L_TAB = 159744
L_W2 = L_TAB - 65536
L_XB = 0
L_STG = 16384
L_NM = L_TAB; L_RS = L_TAB + 320
L_T3 = L_TAB
L_CS3 = L_TAB + 2048
LOG2E = 1.4426950408889634
import struct
def f2u(x): return '0x%08x' % struct.unpack('<I', struct.pack('<f', x))[0]
def vr(a, n): return f'v[{a}:{a+n-1}]' if n > 1 else f'v{a}'
def ar(a, n): return f'a[{a}:{a+n-1}]'

class Gen:
    def __init__(self, ts=False, mimic=True, stop=None, force_global=False):
        self.p = Prog(); self.ts_on = ts; self.mimic = mimic; self.nts = 0; self.tsn = []
        self.slow = []; self.nlab = 0; self.stop = stop; self.force_global = force_global

    def lab(self, s):
        self.nlab += 1; return f'L{s}{self.nlab}'
    def ts(self, name):
        if not self.ts_on: return
        p = self.p
        p('s_memtime s[62:63]'); p(f'v_writelane_b32 {vTS}, s62, {self.nts}')
        self.tsn.append(name); self.nts += 1

    def dma(self, voff, srd, sbase, goff, lbase, loff, lds, sc1=False):
        a = Ins(f's_add_u32 m0, {lbase}, {loff}') if lbase else Ins(f's_mov_b32 m0, {loff}')
        b = Ins(f's_add_u32 {sT}, {sbase}, {goff}') if sbase else Ins(f's_mov_b32 {sT}, {goff}')
        c = Ins(f'buffer_load_dwordx4 {voff}, {srd}, {sT} offen{" sc1" if sc1 else ""} lds', lds=lds)
        return [a, b, c]
    def stores(self, texts):
        a = [Ins(t) for t in texts]; b = [Ins(t + ' sc1') for t in texts]
        return Alt(sMODE, a, b), a
    def post_flag(self, val, toks):
        p = self.p
        p(f'v_mov_b32 {vT0}, {val}')
        p(WaitTok(toks))
        p('s_mov_b64 exec, 1')
        alt, a = self.stores([f'buffer_store_dword {vT0}, {vFLo}, {SWS}, 0 offen'])
        p(alt)
        p('s_mov_b64 exec, -1')
    def poll_issue(self, vf):
        return Ins(f'buffer_load_dword {vf}, {vFLp}, {SWS}, 0 offen sc1')
    def poll_check(self, vf, val, mask):
        ls, lb = self.lab('ps'), self.lab('pb')
        items = [Ins(f'v_cmp_gt_u32 vcc, {val}, {vf}')]
        items.append(Ins(f's_and_b64 vcc, vcc, {mask}'))
        items.append(Ins(f's_cbranch_scc1 {ls}'))
        items.append(Ins(f'{lb}:'))
        self.slow.append(f"""{ls}:
s_mov_b32 {sSPIN}, 0
{ls}_l:
buffer_load_dword {vf}, {vFLp}, {SWS}, 0 offen sc1
s_add_u32 {sSPIN}, {sSPIN}, 1
s_cmp_gt_u32 {sSPIN}, 30000
s_cbranch_scc1 {ls}_x
s_waitcnt vmcnt(0)
v_cmp_gt_u32 vcc, {val}, {vf}
s_nop 0
s_and_b64 vcc, vcc, {mask}
s_cbranch_scc1 {ls}_l
{ls}_x:
s_waitcnt vmcnt(0)
s_branch {lb}""")
        return items
    def poll(self, val, mask):
        self.p(self.poll_issue(vT0)); self.p(self.poll_check(vT0, val, mask))

    def prologue(self):
        p = self.p
        p('s_cmp_ge_u32 s2, 256'); p('s_cbranch_scc1 L_end')
        p('s_load_dwordx16 s[64:79], s[0:1], 0'); p('s_load_dwordx4 s[80:83], s[0:1], 64')
        p(f'v_lshrrev_b32 v1, 6, v0\nv_and_b32 {vL}, 63, v0\nv_readfirstlane_b32 {sW}, v1')
        if self.ts_on:
            p(f'v_mov_b32 {vTS}, 0'); p('s_memrealtime s[62:63]'); p(f'v_writelane_b32 {vTS}, s62, 63')
        self.ts('start')
        p(f"""s_getreg_b32 {sXCC}, hwreg(HW_REG_XCC_ID)
s_and_b32 {sXCC}, {sXCC}, 15
s_add_u32 {sXCC}, {sXCC}, 1
s_and_b32 s84, s2, 7
s_lshr_b32 s85, s2, 3
s_lshr_b32 s86, s85, 3
s_and_b32 {sCB}, s85, 7
s_and_b32 {sM16}, s85, 15
s_lshl_b32 {sG}, s84, 2
s_add_u32 {sG}, {sG}, s86
s_lshr_b32 {sG16}, {sG}, 1
s_lshr_b32 s87, s84, 1
s_lshl_b32 s87, s87, 2
s_add_u32 s87, s87, s86
s_lshl_b32 {sROW}, s87, 17
s_and_b32 s88, s84, 1
s_lshl_b32 s88, s88, 10
s_add_u32 {sROW}, {sROW}, s88
s_cmp_eq_u32 s86, 0
s_cselect_b32 s88, 5, 1
s_sub_u32 {sPG}, {sG}, s88
s_cmp_eq_u32 s87, 0
s_cselect_b32 {sPG}, {sG}, {sPG}
s_cselect_b32 {sHASP}, 0, 1
s_cselect_b32 s88, 0, 16384
s_sub_u32 {sHALO}, {sROW}, s88
s_lshl_b32 {sW1K}, {sW}, 10
s_lshl_b32 {sW2K}, {sW}, 11
s_lshl_b32 {sW4K}, {sW}, 12
s_cmp_ge_u32 {sM16}, 14
s_cselect_b32 {sIDLE}, 1, 0
s_and_b32 s88, {sW}, 1
s_lshl_b32 {sRB}, {sG}, 1
s_add_u32 {sRB}, {sRB}, s88
s_lshl_b32 {sA1}, {sW}, 15
s_add_u32 {sA1}, {sA1}, {sROW}""")
        p(f"""s_and_b32 s88, s86, 1
s_lshl_b32 s88, s88, 5
s_lshr_b32 s89, {sW}, 1
s_mov_b32 s90, -1
s_mov_b32 s91, 0
s_lshl_b64 {sMK1}, s[90:91], s88
s_lshl_b32 s92, s89, 4
s_add_u32 s92, s92, s88
s_mov_b32 s90, 0xffff
s_lshl_b64 {sMK2}, s[90:91], s92
s_mul_i32 s92, s89, 28
s_mov_b32 s90, 0xfffffff
s_lshl_b64 {sMK4}, s[90:91], s92""")
        t = [f'v{i}' for i in range(40, 56)]
        p(f"""v_lshlrev_b32 {vL16}, 4, {vL}
v_lshrrev_b32 {t[0]}, 3, {vL}
v_and_b32 {t[1]}, 7, {vL}
v_lshrrev_b32 {t[2]}, 1, {t[0]}
v_xor_b32 {t[3]}, {t[1]}, {t[2]}
v_lshlrev_b32 {t[3]}, 4, {t[3]}
v_lshl_add_u32 {vA1e}, {t[0]}, 11, {t[3]}
v_xor_b32 {vA1o}, 64, {vA1e}
v_and_b32 {t[4]}, 1, {t[2]}""")
        p(f"""s_and_b32 s88, {sW}, 1
s_lshl_b32 s88, s88, 2
v_lshl_add_u32 {t[5]}, {t[4]}, 1, s88
v_xor_b32 {t[5]}, {t[5]}, {t[1]}
v_lshlrev_b32 {t[5]}, 4, {t[5]}
s_mul_i32 s88, {sW}, 24576
s_lshl_b32 s89, {sCB}, 7
s_add_u32 s88, s88, s89
v_mul_u32_u24 {t[6]}, 3072, {t[0]}
v_add3_u32 {vW1d}, {t[5]}, {t[6]}, s88
s_lshr_b32 s90, {sW}, 1
s_mul_i32 s88, s90, 28672
s_lshl_b32 s91, {sM16}, 8
s_add_u32 s88, s88, s91
v_mul_u32_u24 {t[6]}, 3584, {t[0]}
v_add3_u32 {vW3d}, {t[5]}, {t[6]}, s88""")
        p(f"""v_lshlrev_b32 {t[5]}, 2, {t[4]}
v_xor_b32 {t[5]}, {t[5]}, {t[1]}
v_lshlrev_b32 {t[5]}, 4, {t[5]}
v_lshl_add_u32 {t[5]}, {t[0]}, 10, {t[5]}
s_lshl_b32 s88, {sW}, 13
s_add_u32 s88, s88, s89
v_add_u32 {vW2d}, s88, {t[5]}
s_mul_i32 s88, s90, {7*128*1024}
s_and_b32 s91, {sW}, 1
s_lshl_b32 s91, s91, 15
s_add_u32 s88, s88, s91
s_add_u32 s88, s88, s89
v_add_u32 {vW4d}, s88, {t[5]}""")
        p(f"""v_lshrrev_b32 {t[0]}, 4, {vL}
v_and_b32 {t[1]}, 15, {vL}
v_lshrrev_b32 {t[2]}, 2, {t[1]}
v_and_b32 {t[3]}, 3, {vL}
v_lshrrev_b32 {t[4]}, 1, {t[2]}
v_and_b32 {t[5]}, 1, {t[0]}
v_lshl_add_u32 {t[6]}, {t[5]}, 1, {t[4]}
v_xor_b32 {t[6]}, {sW}, {t[6]}
v_lshlrev_b32 {t[6]}, 5, {t[6]}
v_lshl_add_u32 {t[6]}, {t[3]}, 3, {t[6]}
v_lshl_add_u32 {t[6]}, {t[2]}, 7, {t[6]}
v_lshl_add_u32 {t[6]}, {t[0]}, 10, {t[6]}
v_add_u32 {vW1r0}, {L_R1}, {t[6]}
v_add_u32 {vW1r1}, {L_R1 + 49152}, {t[6]}
v_lshrrev_b32 {t[6]}, 1, {t[1]}
v_xor_b32 {t[6]}, {t[6]}, {t[0]}
v_lshlrev_b32 {t[6]}, 4, {t[6]}
v_lshl_add_u32 {vA1r0}, {t[1]}, 7, {t[6]}
v_xor_b32 {vA1r1}, 64, {vA1r0}""")
        p(f"""v_lshrrev_b32 {t[7]}, 1, {t[0]}
v_lshrrev_b32 {t[8]}, 1, {t[3]}
v_and_b32 {t[9]}, 1, {t[3]}
v_lshl_add_u32 {t[10]}, {t[9]}, 1, {t[8]}
v_lshl_add_u32 {t[10]}, {t[5]}, 2, {t[10]}
v_lshlrev_b32 {t[10]}, 3, {t[10]}
v_xor_b32 {t[11]}, s90, {t[4]}
v_lshl_add_u32 {t[10]}, {t[11]}, 6, {t[10]}
v_lshl_add_u32 {t[10]}, {t[2]}, 7, {t[10]}
v_lshl_add_u32 {vWown}, {t[7]}, 10, {t[10]}
v_xor_b32 {vWoth}, 64, {vWown}
v_lshl_add_u32 {t[10]}, {t[9]}, 1, {t[5]}
v_lshlrev_b32 {t[10]}, 3, {t[10]}
v_lshl_add_u32 {t[11]}, {t[8]}, 1, {t[4]}
v_xor_b32 {t[11]}, {sW}, {t[11]}
v_lshl_add_u32 {t[10]}, {t[11]}, 5, {t[10]}
v_lshl_add_u32 {t[10]}, {t[2]}, 7, {t[10]}
v_lshl_add_u32 {t[10]}, {t[8]}, 10, {t[10]}
v_lshl_add_u32 {vW3r}, {t[7]}, 11, {t[10]}""")
        p(f"""v_and_b32 {t[0]}, 31, {vL}
v_lshrrev_b32 {t[1]}, 5, {vL}
v_lshlrev_b32 {t[1]}, 4, {t[1]}
v_lshl_add_u32 {t[0]}, {t[0]}, 11, {t[1]}
s_and_b32 s88, {sW}, 1
s_lshl_b32 s88, s88, 16
s_lshl_b32 s91, s90, 6
s_add_u32 s88, s88, s91
s_add_u32 s88, s88, s89
v_add_u32 {vRM}, s88, {t[0]}
s_lshl_b32 s88, {sG16}, 8
s_add_u32 s88, s88, {WS_FL}
v_lshl_add_u32 {vFLp}, {vL}, 2, s88
s_lshl_b32 s91, {sM16}, 2
s_add_u32 s91, s91, {sW}
s_lshl_b32 s91, s91, 2
s_add_u32 s88, s88, s91
v_mov_b32 {vFLo}, s88""")
        def srd(base, lo, size):
            p(f's_mov_b32 s{base}, s{lo}\ns_and_b32 s{base+1}, s{lo+1}, 0xffff\ns_mov_b32 s{base+2}, {size}\ns_mov_b32 s{base+3}, 0x20000')
        srd(4, 64, 2*MB); srd(8, 66, 512*3072); srd(12, 68, 512*1024)
        p(f's_bitcmp1_b32 {sW}, 0\ns_cselect_b32 s72, s74, s72\ns_cselect_b32 s73, s75, s73')
        srd(16, 72, 512*3584); srd(20, 76, 1792*1024); srd(24, 78, 2*MB); srd(28, 82, 256*MB); srd(32, 80, 256)
        c = 40
        p(f"""v_mov_b32 v{c}, -1
v_mov_b32 v{c+1}, -1
v_mov_b32 v{c+2}, -1
v_mov_b32 v{c+3}, -1
v_mov_b32 v{c+4}, 0
v_lshrrev_b32 v{c+5}, 3, {vL}
v_and_b32 v{c+6}, 7, {vL}
v_lshlrev_b32 v{c+6}, 4, v{c+6}
v_lshl_add_u32 v{c+5}, v{c+5}, 11, v{c+6}
s_lshl_b32 s88, {sG}, 14
s_add_u32 s88, s88, s89
s_add_u32 s88, s88, {sW4K}
s_add_u32 s88, s88, {WS_HB}
s_lshl_b32 s91, {sG}, 7
s_lshl_b32 s92, {sW}, 4
s_add_u32 s91, s91, s92
s_add_u32 s91, s91, {WS_HS}
s_cmp_eq_u32 {sCB}, 0
s_cselect_b32 s91, s91, 0x7ff00000
v_mov_b32 v{c+6}, s91
s_mov_b64 exec, 0xffff""")
        self.clr = [p(f'buffer_store_dwordx4 {vr(c,4)}, v{c+5}, {SWS}, s88 offen sc1')]
        p('s_mov_b64 exec, 1')
        self.clr.append(p(f'buffer_store_dwordx4 {vr(c,4)}, v{c+6}, {SWS}, 0 offen sc1'))
        self.clr.append(p(f'buffer_store_dword v{c+4}, {vFLo}, {SWS}, 0 offen sc1'))
        p('s_mov_b64 exec, -1')

    def publish_xcc(self):
        l = self.lab('px')
        self.p(Raw(f"""s_cmp_lg_u32 {sW}, 0
s_cbranch_scc1 {l}
s_lshl_b32 s88, {sG}, 3
s_add_u32 s88, s88, {sCB}
v_mov_b32 v124, {sXCC}
v_mov_b32 v125, s88
s_mov_b64 exec, 1
buffer_store_byte v124, v125, {SDBG}, 0 offen sc1
s_mov_b64 exec, -1
{l}:""", wr=['v124', 'v125', 's88'], states=2))
    def mode_issue(self, va, vd):
        p = self.p
        p(f"""s_lshl_b32 s88, {sG16}, 4
s_lshl_b32 s89, {sPG}, 3
s_sub_u32 s89, s89, 16
s_lshl_b32 s90, {sG}, 3
s_add_u32 s90, s90, {sCB}
v_add_u32 {va}, s88, {vL}
v_add_u32 {vd}, s89, {vL}
v_cmp_gt_u32 vcc, 16, {vL}
v_cndmask_b32 {va}, {vd}, {va}, vcc
v_mov_b32 {vd}, s90
v_cmp_gt_u32 vcc, 24, {vL}
v_cndmask_b32 {va}, {vd}, {va}, vcc""")
        p(f'buffer_load_ubyte {vd}, {va}, {SDBG}, 0 offen sc1')
    def mode_check(self, va, vd):
        p = self.p
        ls, lb = self.lab('ms'), self.lab('mb')
        p(f'v_cmp_eq_u32 vcc, 0, {vd}\ns_and_b64 vcc, vcc, exec\ns_cbranch_scc1 {ls}\n{lb}:')
        self.slow.append(f"""{ls}:
s_mov_b32 {sSPIN}, 0
{ls}_l:
buffer_load_ubyte {vd}, {va}, {SDBG}, 0 offen sc1
s_add_u32 {sSPIN}, {sSPIN}, 1
s_cmp_gt_u32 {sSPIN}, 30000
s_cbranch_scc1 {ls}_x
s_waitcnt vmcnt(0)
v_cmp_eq_u32 vcc, 0, {vd}
s_nop 0
s_and_b64 vcc, vcc, exec
s_cbranch_scc1 {ls}_l
{ls}_x:
s_waitcnt vmcnt(0)
s_branch {lb}""")
        p(f'v_cmp_ne_u32 vcc, {sXCC}, {vd}\ns_and_b32 {sMODE}, vcc_lo, 0xffff')
        if self.force_global: p(f's_mov_b32 {sMODE}, 1')

    def stats_final(self, S, Q, t):
        o = [f'v_mul_f32 {S}, {f2u(-1/512)}, {S}', f'v_mul_f32 {Q}, {f2u(1/512)}, {Q}', f'v_fma_f32 {Q}, -{S}, {S}, {Q}', f'v_max_f32 {Q}, 0, {Q}']
        rnd = lambda x: [f'v_cvt_pk_bf16_f32 {x}, {x}, {x}', f'v_and_b32 {x}, 0xffff0000, {x}']
        if self.mimic:
            o += rnd(S) + rnd(Q) + [f'v_add_f32 {Q}, {f2u(1e-5)}, {Q}'] + rnd(Q) + [f'v_sqrt_f32 {t}, {Q}'] + rnd(t) + [f'v_rcp_f32 {Q}, {t}']
        else:
            o += [f'v_add_f32 {Q}, {f2u(1e-5)}, {Q}', f'v_sqrt_f32 {t}, {Q}', f'v_rcp_f32 {Q}, {t}']
        return o
    def stats_partials_issue(self, base, sbase, r):
        o = [Ins(f's_add_u32 {sT}, {sbase}, {base}')]
        for i in range(4): o.append(Ins(f'buffer_load_dwordx4 {vr(r+4*i,4)}, {vL16}, {SWS}, {sT} offen offset:{1024*i} sc1'))
        return o
    def stats_partials_reduce(self, r):
        o = []
        for j in range(4): o.append(f'v_add_f32 v{r+j}, v{r+j}, v{r+4+j}')
        for j in range(4): o.append(f'v_add_f32 v{r+8+j}, v{r+8+j}, v{r+12+j}')
        for j in range(4): o.append(f'v_add_f32 v{r+j}, v{r+j}, v{r+8+j}')
        o += [f'v_permlane16_swap_b32 v{r}, v{r+2}', f'v_permlane16_swap_b32 v{r+1}, v{r+3}',
              f'v_add_f32 v{r}, v{r}, v{r+2}', f'v_add_f32 v{r+1}, v{r+1}, v{r+3}',
              f'v_permlane32_swap_b32 v{r}, v{r+1}', f'v_add_f32 v{r}, v{r}, v{r+1}', f'v_mov_b32 v{r+1}, v{r}',
              f'v_permlane32_swap_b32 v{r}, v{r+1}']
        return o

    def w1_stage(self, s):
        slot = L_R1 + (s % 7) * 12288
        return [self.dma(vW1d, SWQKV, None, part*1024 + s*32*3072, sW1K, slot + part*4096, (slot + part*4096, slot + part*4096 + 4096)) for part in range(3)]
    def w2_piece(self, i):
        return self.dma(vW2d, SWO, None, i*32768, sW1K, L_W2 + i*4096, (L_W2 + i*4096, L_W2 + i*4096 + 4096))
    W4SLOT = [8, 0, 1, 2, 3, 4, 5, 6, 7, 8, 0, 1, 2, 3]
    def w4_stage(self, s):
        c, j = divmod(s, 7)
        slot = self.W4SLOT[s] * 16384
        return [self.dma(vW4d, SWD, None, (128*j + 64*c + 8*i)*1024, sW4K, slot + i*1024, [(slot + q*4096 + i*1024, slot + q*4096 + i*1024 + 1024) for q in range(4)]) for i in range(4)]
    def w3_piece(self, c, ks, stg):
        return self.dma(vW3d, SW3, None, ks*16*3584 + c*128, sW1K, stg, (stg, stg + 4096))
    def w3_reads(self, c, ks, stg, vaddr, vbase):
        a = c*128 + ks*4
        return [Ins(f'ds_read_b64_tr_b16 {ar(a+2*rd,2)}, {vaddr} offset:{stg - vbase + rd*512}', lds=(stg, stg+4096)) for rd in range(2)]

    def p1(self, L, pre):
        p = self.p
        QA, KA, VA, AF, WQ, ONE, WK, WV = 40, 56, 76, 96, 112, 120, 128, 192
        srdA = SX if L == 0 else SWS
        abase = 0 if L == 0 else WS_X2
        wtok = dict(pre)
        if L == 1:
            self.poll(5, sMK1)
        self.ts(f'p1_go{L}')
        atok = []
        for kc in range(8):
            tk = []
            for o in range(2):
                d = self.dma(vA1o if o else vA1e, srdA, sA1, abase + o*16384 + kc*128, sW2K, kc*8192 + o*1024,
                             [(kc*8192 + q*2048 + o*1024, kc*8192 + q*2048 + o*1024 + 1024) for q in range(4)], sc1=(L == 1))
                p(d); tk.append(d[2])
            atok.append(tk)
        def halo_dma():
            out = []
            for u in range(2):
                out.append(self.dma(vA1o, srdA, 's93', u*128, sW2K, L_A1H + u*1024, [(L_A1H + q*2048 + u*1024, L_A1H + q*2048 + u*1024 + 1024) for q in range(4)], sc1=(L == 1)))
            return out
        p(f's_lshl_b32 s93, {sW}, 8')
        if L == 0:
            p(f's_add_u32 s93, s93, {sHALO}')
            hd = halo_dma(); p(hd); htok = [d[2] for d in hd]
            for i2 in range(2): p(f'buffer_load_dwordx4 {vr(RES+4*i2,4)}, {vRM}, {SX}, {sROW} offen offset:{32*i2}')
            for s in range(7):
                d = self.w1_stage(s); p(d); wtok[s] = [x[2] for x in d]
            p(WaitTok(self.clr + atok[7] + htok)); p('s_barrier')
            self.publish_xcc()
            self.ts('a1_landed')
            t0, t1 = 'v124', 'v125'
            p(f'v_add_u32 {t0}, {sW2K}, {vA1r0}\nv_xor_b32 {t1}, 64, {t0}')
            for ks in range(16):
                p(f'ds_read_b128 {vr(128+4*ks,4)}, {t1 if ks & 1 else t0} offset:{(ks>>1)*8192}', lds=((ks>>1)*8192, (ks>>1)*8192+8192))
            p(f"""v_lshrrev_b32 v126, 5, {vL}
v_lshlrev_b32 v126, 7, v126
v_and_b32 v127, 7, {vL}
v_lshl_add_u32 v126, v127, 4, v126
v_bfe_u32 v127, {vL}, 3, 2
v_lshl_add_u32 v126, v127, 10, v126
s_lshl_b32 s88, {sW}, 8
s_add_u32 s88, s88, {L_A1H}
v_add_u32 v126, s88, v126""")
            for u in range(2): p(f'ds_read_b128 {vr(192+4*u,4)}, v126 offset:{u*4096}', lds=(L_A1H, L_A1H+8192))
            for i in range(4): p(f'v_mov_b32 v{ONE+i}, 0x3f803f80')
            for i in range(8): p(f'v_mov_b32 v{96+i}, 0')
            for i in range(64):
                p(f'v_dot2c_f32_bf16 v{96+(i&1)}, v{128+i}, v{ONE}\nv_dot2c_f32_bf16 v{98+(i&1)}, v{128+i}, v{128+i}')
            for i in range(8):
                p(f'v_dot2c_f32_bf16 v{100+(i&1)}, v{192+i}, v{ONE}\nv_dot2c_f32_bf16 v{102+(i&1)}, v{192+i}, v{192+i}')
            p("""v_add_f32 v96, v96, v97
v_add_f32 v98, v98, v99
v_add_f32 v100, v100, v101
v_add_f32 v102, v102, v103
v_permlane16_swap_b32 v96, v98
v_add_f32 v96, v96, v98
v_mov_b32 v98, v96
v_permlane32_swap_b32 v96, v98
v_add_f32 v96, v96, v98
v_mov_b32 v98, v96
v_permlane16_swap_b32 v96, v98""")
            for sh in (8, 4, 2, 1):
                p(f'v_add_f32_dpp v100, v100, v100 row_ror:{sh} row_mask:0xf bank_mask:0xf\nv_add_f32_dpp v102, v102, v102 row_ror:{sh} row_mask:0xf bank_mask:0xf')
            p("""v_permlane16_swap_b32 v100, v102
v_add_f32 v100, v100, v102
v_mov_b32 v102, v100
v_permlane16_swap_b32 v100, v102""")
            p(self.stats_final('v96', 'v98', 'v97')); p(self.stats_final('v100', 'v102', 'v101'))
            p(f"""v_and_b32 v124, 15, {vL}
s_lshl_b32 s88, {sW}, 6
s_add_u32 s88, s88, {L_NM + 64}
v_lshl_add_u32 v124, v124, 2, s88
v_lshrrev_b32 v125, 5, {vL}
s_lshl_b32 s88, {sW}, 3
s_add_u32 s88, s88, {L_NM}
v_lshl_add_u32 v125, v125, 2, s88""")
            tabw = [p('ds_write_b32 v124, v96', lds=(L_NM+64, L_NM+320)), p('ds_write_b32 v124, v98 offset:320', lds=(L_RS+64, L_RS+320))]
            for o in (0, 32):
                tabw.append(p(f'ds_write_b32 v125, v100 offset:{o}', lds=(L_NM, L_NM+64)))
                tabw.append(p(f'ds_write_b32 v125, v102 offset:{o+320}', lds=(L_RS, L_RS+64)))
            p(WaitTok(tabw))
        else:
            p(f's_lshl_b32 s88, {sPG}, 14\ns_add_u32 s93, s93, s88\ns_add_u32 s93, s93, {WS_HB}')
            p(f's_lshl_b32 s88, {sRB}, 12')
            p(self.stats_partials_issue(WS_ST2, 's88', 128))
            lh = self.lab('hs')
            p(Raw(f"""s_bitcmp1_b32 {sW}, 0
s_cbranch_scc0 {lh}
s_lshl_b32 s88, {sG}, 14
s_add_u32 s88, s88, {WS_HB - 56*2048}
s_mov_b32 exec_lo, 0xff000000
s_mov_b32 exec_hi, 0xff000000
buffer_store_dwordx4 {vr(RES,4)}, {vRM}, {SWS}, s88 offen sc1
buffer_store_dwordx4 {vr(RES+4,4)}, {vRM}, {SWS}, s88 offen offset:32 sc1
s_mov_b64 exec, -1
{lh}:""", rd=[vr(RES, 8)], wr=['s88'], states=2))
            p(self.stats_partials_reduce(128))
            p(self.stats_final('v128', 'v129', 'v130'))
            p(f"""v_and_b32 v124, 15, {vL}
v_lshlrev_b32 v124, 3, v124
v_bfe_u32 v125, {vL}, 4, 1
v_lshl_add_u32 v124, v125, 2, v124
s_and_b32 s88, {sW}, 1
s_lshl_b32 s88, s88, 7
s_add_u32 s88, s88, {L_NM + 64}
v_add_u32 v125, s88, v124""")
            tabw = [p('ds_write_b32 v125, v128', lds=(L_NM+64, L_NM+320)), p('ds_write_b32 v125, v129 offset:320', lds=(L_RS+64, L_RS+320))]
            lh = self.lab('ht')
            p(Raw(f"""s_lshl_b32 s88, {sCB}, 2
s_add_u32 s88, s88, {sW}
s_cmp_lg_u32 s88, 1
s_cbranch_scc1 {lh}
s_lshl_b32 s88, {sG}, 7
s_add_u32 s88, s88, {WS_HS - 96}
s_mov_b32 exec_lo, 0xf000f000
s_mov_b32 exec_hi, 0
buffer_store_dword v128, v124, {SWS}, s88 offen sc1
buffer_store_dword v129, v124, {SWS}, s88 offen offset:32 sc1
s_mov_b64 exec, -1
{lh}:""", rd=['v128', 'v129', 'v124'], wr=['s88'], states=2))
            p(WaitTok(tabw))
        self.ts(f'p1_stats{L}')
        def wreads(s):
            slot = s % 7
            va, off = (vW1r0, slot*12288) if slot < 4 else (vW1r1, slot*12288 - 49152)
            lo = L_R1 + slot*12288
            out = []
            for part, dst in ((0, WQ + 4*(s & 1)), (1, WK + 4*s), (2, WV + 4*s)):
                for rd in range(2):
                    out.append(Ins(f'ds_read_b64_tr_b16 {vr(dst+2*rd,2)}, {va} offset:{off + part*4096 + rd*512}', lds=(lo + part*4096, lo + part*4096 + 4096)))
            return out
        def aread(s, t):
            o = (s >> 1)*8192 + t*2048
            return Ins(f'ds_read_b128 {vr(AF+4*t,4)}, {vA1r1 if s & 1 else vA1r0} offset:{o}', lds=(o, o+2048))
        p(WaitTok(wtok[0] + atok[0])); p('s_barrier')
        wr = wreads(0); p(wr)
        for t in range(4): p(aread(0, t))
        w2tok = []
        w2order = list(range(1, 16)) + [0]
        mode_at = 9
        for s in range(16):
            spine = []; fill = {}
            z = (s == 0)
            wq, wk, wv = vr(WQ + 4*(s & 1), 4), vr(WK + 4*s, 4), vr(WV + 4*s, 4)
            for t in range(4):
                a = vr(AF + 4*t, 4)
                q, k, v = vr(QA + 4*t, 4), vr(KA + 4 + 4*t, 4), vr(VA + 4 + 4*t, 4)
                spine.append(f'v_mfma_f32_16x16x32_bf16 {q}, {wq}, {a}, {0 if z else q}')
                spine.append(f'v_mfma_f32_16x16x32_bf16 {k}, {wk}, {a}, {0 if z else k}')
                spine.append(f'v_mfma_f32_16x16x32_bf16 {v}, {a}, {wv}, {0 if z else v}')
            if L == 0:
                one = vr(ONE, 4)
                for dst, x, y in ((CSQ, wq, one), (CSK, wk, one), (CSV, one, wv)):
                    spine.append(f'v_mfma_f32_16x16x32_bf16 {vr(dst,4)}, {x}, {y}, {0 if z else vr(dst,4)}')
            pre_toks = list(wr)
            if s < 15:
                pre_toks += wtok[s+1] + atok[(s+1) >> 1]
            if s == 15: pre_toks += htok
            put(fill, 0, WaitTok(pre_toks), 's_barrier')
            if s < 15:
                wr = wreads(s+1)
                for i, x in enumerate(wr): put(fill, 1 + i, x)
                for t in range(4): put(fill, 3*t + 2, aread(s+1, t))
            dm = []
            if s + 7 < 16:
                dm = self.w1_stage(s+7); wtok[s+7] = [x[2] for x in dm]
            else:
                n0 = (s - 9) * 3
                idx = w2order[n0:n0+3] if s < 15 else []
                if s == 14: idx = []
                if s == 15: idx = [0]
                dm = [self.w2_piece(i) for i in idx]; w2tok += [x[2] for x in dm]
            for i, x in enumerate(dm): put(fill, 7 + 2*i if 7 + 2*i < len(spine) else len(spine) - 1, x)
            if L == 1 and s == 8:
                hd = halo_dma(); htok = [d[2] for d in hd]
                put(fill, 4, hd[0]); put(fill, 6, hd[1])
                put(fill, 6, f's_lshl_b32 s88, {sPG}, 7', f's_add_u32 s94, s88, {WS_HS}', f'v_and_b32 v124, 15, {vL}', 'v_lshlrev_b32 v124, 2, v124',
                    f'buffer_load_dword v125, v124, {SWS}, s94 offen sc1')
            weave(p, spine, fill)
            if L == 0 and s == mode_at: self.mode_issue('v126', 'v127')
        self.ts(f'p1_loop{L}')
        def halo_pass(pp, check):
            pp(f"""v_and_b32 v112, 1023, {vA1r0}
v_not_b32 v113, {vL}
v_and_b32 v113, 8, v113
v_lshlrev_b32 v113, 3, v113
v_xor_b32 v112, v112, v113
v_add_u32 v112, {L_A1H}, v112
v_xor_b32 v113, 64, v112""")
            if check: pp('v_mov_b32 v114, 0')
            rd = lambda s: Ins(f'ds_read_b128 {vr(AF+4*(s&3),4)}, {"v113" if s & 1 else "v112"} offset:{(s>>1)*1024}', lds=(L_A1H + (s>>1)*1024, L_A1H + (s>>1)*1024 + 1024))
            for s in range(4): pp(rd(s))
            for s in range(16):
                a = vr(AF + 4*(s & 3), 4); k, v = vr(KA, 4), vr(VA, 4)
                pp(f'v_mfma_f32_16x16x32_bf16 {k}, {vr(WK+4*s,4)}, {a}, {0 if s == 0 else k}')
                if check: pp(f'v_max_u32 v114, v114, v{AF+4*(s&3)}')
                pp(f'v_mfma_f32_16x16x32_bf16 {v}, {a}, {vr(WV+4*s,4)}, {0 if s == 0 else v}')
                if s + 4 < 16: pp(rd(s+4))
        halo_pass(p, L == 1)
        if L == 1:
            ls, lb = self.lab('hs'), self.lab('hb')
            p(f'v_cmp_eq_u32 vcc, -1, v114\ns_and_b64 vcc, vcc, exec\ns_cbranch_scc1 {ls}\n{lb}:')
            q = Prog(check_lds=False)
            q(f'{ls}:\ns_mov_b32 {sSPIN}, 0\n{ls}_l:\ns_waitcnt vmcnt(0) lgkmcnt(0)\ns_nop 15\ns_barrier')
            q(halo_dma())
            q('s_waitcnt vmcnt(0)\ns_barrier')
            halo_pass(q, True)
            q(f's_add_u32 {sSPIN}, {sSPIN}, 1\ns_cmp_gt_u32 {sSPIN}, 5000\ns_cbranch_scc1 {ls}_x')
            q(f'v_cmp_eq_u32 vcc, -1, v114\ns_and_b64 vcc, vcc, exec\ns_cbranch_scc1 {ls}_l\n{ls}_x:\ns_nop 15\ns_branch {lb}')
            self.slow.append(q.finalize())
            ls, lb = self.lab('ss'), self.lab('sb')
            p(f'v_cmp_eq_u32 vcc, -1, v125\ns_and_b64 vcc, vcc, exec\ns_cbranch_scc1 {ls}\n{lb}:')
            self.slow.append(f"""{ls}:
s_mov_b32 {sSPIN}, 0
{ls}_l:
buffer_load_dword v125, v124, {SWS}, s94 offen sc1
s_add_u32 {sSPIN}, {sSPIN}, 1
s_cmp_gt_u32 {sSPIN}, 30000
s_cbranch_scc1 {ls}_x
s_waitcnt vmcnt(0)
v_cmp_eq_u32 vcc, -1, v125
s_nop 0
s_and_b64 vcc, vcc, exec
s_cbranch_scc1 {ls}_l
{ls}_x:
s_waitcnt vmcnt(0)
s_branch {lb}""")
            p(f"""v_and_b32 v126, 7, {vL}
v_lshlrev_b32 v126, 2, v126
v_bfe_u32 v127, {vL}, 3, 1
v_mul_u32_u24 v127, 320, v127
v_add_u32 v126, v126, v127
v_bfe_u32 v127, {vL}, 4, 1
v_lshl_add_u32 v126, v127, 5, v126
v_add_u32 v126, {L_NM}, v126""")
            x = p('ds_write_b32 v126, v125', lds=[(L_NM, L_NM+64), (L_RS, L_RS+64)])
            p(WaitTok([x])); p('s_barrier')
        if L == 0: self.mode_check('v126', 'v127')
        self.ts(f'p1_halo{L}')
        NM, RS, CQ, VS, QB, KB, VB, CA, CB, CB0, MA, SB, PP, OA, T = 128, 133, 138, 144, 184, 192, 202, 212, 216, 220, 224, 96, 228, 56, 244
        p(f"""v_and_b32 v{T}, 15, {vL}
v_lshrrev_b32 v{T+1}, 4, {vL}
v_lshlrev_b32 v{T+2}, 2, v{T}
v_add_u32 v{T+2}, {L_NM}, v{T+2}
v_lshlrev_b32 v{T+3}, 4, v{T+1}
v_add_u32 v{T+3}, {L_NM}, v{T+3}""")
        tab = (L_NM, L_NM + 640)
        for u in range(5):
            p(f'ds_read_b32 v{NM+u}, v{T+2} offset:{64*u}', lds=tab); p(f'ds_read_b32 v{RS+u}, v{T+2} offset:{64*u+320}', lds=tab)
        for u in range(5):
            p(f'ds_read_b128 {vr(VS+8*u,4)}, v{T+3} offset:{64*u}', lds=tab); p(f'ds_read_b128 {vr(VS+8*u+4,4)}, v{T+3} offset:{64*u+320}', lds=tab)
        p(f'v_lshlrev_b32 v{T+1}, 2, v{T+1}\nv_sub_u32 v{T}, v{T}, v{T+1}\nv_mov_b32 v{T+4}, 0xff800000\nv_mov_b32 v{T+5}, 0xffff\nv_mov_b32 v{T+6}, 0xffff0000')
        p(f's_cmp_eq_u32 {sHASP}, 0\ns_cselect_b64 s[88:89], 0, -1')
        for j in range(4):
            p(f"""v_subrev_u32 v{T+1}, {j}, v{T}
v_add_u32 v{T+7}, 16, v{T+1}
v_cmp_gt_u32 vcc, 8, v{T+1}
v_cmp_gt_u32 s[90:91], 8, v{T+7}
v_cndmask_b32 v{CA+j}, v{T+4}, 0, vcc
v_cndmask_b32 v{T+8+j}, 0, v{T+5+(j&1)}, vcc
v_cndmask_b32 v{CB+j}, v{T+4}, 0, s[90:91]
v_cndmask_b32 v{CB0+j}, v{T+4}, v{CB+j}, s[88:89]""")
        p(f'v_or_b32 v{MA}, v{T+8}, v{T+9}\nv_or_b32 v{MA+1}, v{T+10}, v{T+11}')
        for u in range(5):
            for j in range(4): p(f'v_fmac_f32 v{KA+4*u+j}, v{NM+u}, v{CSK+j}')
            for j in range(4): p(f'v_mul_f32 v{KA+4*u+j}, v{RS+u}, v{KA+4*u+j}')
            for j in range(2): p(f'v_cvt_pk_bf16_f32 v{KB+2*u+j}, v{KA+4*u+2*j}, v{KA+4*u+2*j+1}')
            if u:
                t = u - 1
                for j in range(4): p(f'v_fmac_f32 v{QA+4*t+j}, v{NM+u}, v{CSQ+j}')
                for j in range(2): p(f'v_cvt_pk_bf16_f32 v{QB+2*t+j}, v{QA+4*t+2*j}, v{QA+4*t+2*j+1}')
                p(f'v_mul_f32 v{CQ+t}, {f2u(0.25*LOG2E)}, v{RS+u}')
        for t in range(4):
            p(f'v_mfma_f32_16x16x16_bf16 {vr(QA+4*t,4)}, {vr(KB+2*(t+1),2)}, {vr(QB+2*t,2)}, {vr(CA,4)}')
            p(f'v_mfma_f32_16x16x16_bf16 {vr(SB+4*t,4)}, {vr(KB+2*t,2)}, {vr(QB+2*t,2)}, {vr(CB0 if t == 0 else CB,4)}')
        for u in range(5):
            for j in range(4): p(f'v_fmac_f32 v{VA+4*u+j}, v{VS+8*u+j}, v{CSV}')
            for j in range(4): p(f'v_mul_f32 v{VA+4*u+j}, v{VS+8*u+4+j}, v{VA+4*u+j}')
            for j in range(2): p(f'v_cvt_pk_bf16_f32 v{VB+2*u+j}, v{VA+4*u+2*j}, v{VA+4*u+2*j+1}')
        for t in range(4):
            for j in range(4): p(f'v_max_f32 v{QA+4*t+j}, v{QA+4*t+j}, v{SB+4*t+j}')
        for t in range(4): p(f'v_max3_f32 v{T+t}, v{QA+4*t}, v{QA+4*t+1}, v{QA+4*t+2}')
        for t in range(4): p(f'v_max_f32 v{T+t}, v{T+t}, v{QA+4*t+3}')
        def reduce4(op, extra=None):
            p(f"""v_permlane16_swap_b32 v{T}, v{T+1}
v_permlane16_swap_b32 v{T+2}, v{T+3}
{op} v{T}, v{T}, v{T+1}
{op} v{T+2}, v{T+2}, v{T+3}
v_permlane32_swap_b32 v{T}, v{T+2}
{op} v{T}, v{T}, v{T+2}""")
            if extra: p(extra)
            p(f"""v_mov_b32 v{T+2}, v{T}
v_permlane32_swap_b32 v{T}, v{T+2}
v_mov_b32 v{T+1}, v{T}
v_mov_b32 v{T+3}, v{T+2}
v_permlane16_swap_b32 v{T}, v{T+1}
v_permlane16_swap_b32 v{T+2}, v{T+3}""")
        reduce4('v_max_f32')
        for t in range(4): p(f'v_mul_f32 v{T+t}, v{T+t}, v{CQ+t}')
        for t in range(4):
            for j in range(4): p(f'v_fma_f32 v{QA+4*t+j}, v{QA+4*t+j}, v{CQ+t}, -v{T+t}')
        for t in range(4):
            for j in range(4): p(f'v_exp_f32 v{QA+4*t+j}, v{QA+4*t+j}')
        for t in range(4):
            p(f"""v_cvt_pk_bf16_f32 v{PP+4*t}, v{QA+4*t}, v{QA+4*t+1}
v_cvt_pk_bf16_f32 v{PP+4*t+1}, v{QA+4*t+2}, v{QA+4*t+3}
v_and_b32 v{PP+4*t+2}, v{MA}, v{PP+4*t}
v_and_b32 v{PP+4*t+3}, v{MA+1}, v{PP+4*t+1}
v_xor_b32 v{PP+4*t}, v{PP+4*t}, v{PP+4*t+2}
v_xor_b32 v{PP+4*t+1}, v{PP+4*t+1}, v{PP+4*t+3}""")
            p(f'v_add_f32 v{T+t}, v{QA+4*t}, v{QA+4*t+1}\nv_add_f32 v{T+4}, v{QA+4*t+2}, v{QA+4*t+3}\nv_add_f32 v{T+t}, v{T+t}, v{T+4}')
            p(f'v_mfma_f32_16x16x32_bf16 {vr(OA+4*t,4)}, {vr(VB+2*t,4)}, {vr(PP+4*t,4)}, 0')
        reduce4('v_add_f32', f'v_rcp_f32 v{T}, v{T}')
        for t in range(4):
            for j in range(4): p(f'v_mul_f32 v{OA+4*t+j}, v{T+t}, v{OA+4*t+j}')
        for tp in range(2):
            b = PP + 4*tp
            for h in range(2):
                t = 2*tp + h
                for j in range(2): p(f'v_cvt_pk_bf16_f32 v{b+2*h+j}, v{OA+4*t+2*j}, v{OA+4*t+2*j+1}')
            p(f'v_permlane16_swap_b32 v{b}, v{b+2}\nv_permlane16_swap_b32 v{b+1}, v{b+3}')
        p(f"""s_lshl_b32 s88, {sG}, 16
s_lshl_b32 s89, {sCB}, 12
s_add_u32 s88, s88, s89
s_add_u32 s88, s88, {sW1K}
s_add_u32 s88, s88, {WS_O[L]}
s_add_u32 s89, s88, 32768""")
        alt, st = self.stores([f'buffer_store_dwordx4 {vr(PP,4)}, {vL16}, {SWS}, s88 offen', f'buffer_store_dwordx4 {vr(PP+4,4)}, {vL16}, {SWS}, s89 offen'])
        p(alt)
        self.ts(f'p1_attn{L}')
        self.post_flag(1 + 5*L, st)
        self.ts(f'p1_end{L}')
        return w2tok

    def tile_epilogue(self, kind, L):
        p = self.p
        OWN, OTH, X = 40, 56, 104
        p(f'v_add_u32 v120, {sW4K}, {vL16}\nv_xor_b32 v121, 8192, v120')
        ws = [p(f'ds_write_b128 v120, {vr(OTH+4*q,4)} offset:{L_XB + q*1024}', lds=[(L_XB + w*4096 + q*1024, L_XB + w*4096 + q*1024 + 1024) for w in range(4)]) for q in range(4)]
        for i in range(8):
            p(f'v_lshlrev_b32 v{72+2*i}, 16, v{RES+i}\nv_and_b32 v{73+2*i}, 0xffff0000, v{RES+i}')
        for i in range(16): p(f'v_add_f32 v{OWN+i}, v{OWN+i}, v{72+i}')
        p(WaitTok(ws)); p('s_barrier')
        for q in range(4):
            p(f'ds_read_b128 {vr(X+4*q,4)}, v121 offset:{L_XB + q*1024}', lds=[(L_XB + w*4096 + q*1024, L_XB + w*4096 + q*1024 + 1024) for w in range(4)])
        for i in range(16): p(f'v_add_f32 v{OWN+i}, v{OWN+i}, v{X+i}')
        for i in range(8): p(f'v_cvt_pk_bf16_f32 v{RES+i}, v{OWN+2*i}, v{OWN+2*i+1}')
        if kind == 'out':
            p(f'buffer_store_dwordx4 {vr(RES,4)}, {vRM}, {SOUT}, {sROW} offen')
            p(f'buffer_store_dwordx4 {vr(RES+4,4)}, {vRM}, {SOUT}, {sROW} offen offset:32')
            return None
        if kind == 'x1':
            p(f"""s_lshl_b32 s88, {sRB}, 15
s_lshl_b32 s89, {sCB}, 12
s_add_u32 s88, s88, s89
s_lshr_b32 s89, {sW}, 1
s_lshl_b32 s89, s89, 11
s_add_u32 s88, s88, s89
s_add_u32 s88, s88, {WS_X1[L]}""")
            alt, st = self.stores([f'buffer_store_dwordx4 {vr(RES,4)}, {vL16}, {SWS}, s88 offen', f'buffer_store_dwordx4 {vr(RES+4,4)}, {vL16}, {SWS}, s88 offen offset:1024'])
            stb = WS_ST1[L]
        else:
            p(f's_add_u32 s88, {sROW}, {WS_X2}')
            alt, st = self.stores([f'buffer_store_dwordx4 {vr(RES,4)}, {vRM}, {SWS}, s88 offen', f'buffer_store_dwordx4 {vr(RES+4,4)}, {vRM}, {SWS}, s88 offen offset:32'])
            stb = WS_ST2
        p(alt)
        for i in range(8):
            p(f'v_lshlrev_b32 v{72+2*i}, 16, v{RES+i}\nv_and_b32 v{73+2*i}, 0xffff0000, v{RES+i}')
        p('v_add_f32 v104, v72, v73\nv_mul_f32 v105, v72, v72\nv_add_f32 v106, v74, v75\nv_mul_f32 v107, v73, v73')
        for i in range(2, 16):
            if i >= 4: p(f'v_add_f32 v{104+2*(i&1)}, v{104+2*(i&1)}, v{72+i}')
            p(f'v_fmac_f32 v{105+2*(i&1)}, v{72+i}, v{72+i}')
        p(f"""v_add_f32 v104, v104, v106
v_add_f32 v105, v105, v107
v_permlane32_swap_b32 v104, v105
v_add_f32 v104, v104, v105
v_and_b32 v106, 31, {vL}
v_lshlrev_b32 v106, 3, v106
v_lshrrev_b32 v107, 5, {vL}
v_lshl_add_u32 v106, v107, 2, v106
s_lshl_b32 s88, {sRB}, 12
s_lshl_b32 s89, {sCB}, 9
s_add_u32 s88, s88, s89
s_lshr_b32 s89, {sW}, 1
s_lshl_b32 s89, s89, 8
s_add_u32 s88, s88, s89
s_add_u32 s88, s88, {stb}""")
        alt2, st2 = self.stores([f'buffer_store_dword v104, v106, {SWS}, s88 offen'])
        p(alt2)
        return st + st2

    def wfrag_reads(self, k, base, va, vb, lo):
        WR = 72
        r = WR + 8*(k % 4)
        out = []
        for h, ad in ((0, va), (1, vb)):
            for rd in range(2):
                out.append(Ins(f'ds_read_b64_tr_b16 {vr(r+4*h+2*rd,2)}, {ad} offset:{base + rd*512}', lds=lo))
        return out
    def tile_mfmas(self, k, z):
        r = 72 + 8*(k % 4); a = vr(128 + 4*(k % 16), 4)
        return [f'v_mfma_f32_32x32x16_bf16 {vr(56,16)}, {vr(r+4,4)}, {a}, {0 if z else vr(56,16)}',
                f'v_mfma_f32_32x32x16_bf16 {vr(40,16)}, {vr(r,4)}, {a}, {0 if z else vr(40,16)}']

    def w3_load_simple(self, c, stg, nslot):
        p = self.p
        l = self.lab('w3')
        p(f'v_add_u32 v122, {stg}, {vW3r}')
        for k0 in range(0, 32, nslot):
            ks = list(range(k0, min(32, k0 + nslot)))
            d = [self.w3_piece(c, k, stg + (k - k0)*4096) for k in ks]
            p('s_barrier')
            p(d); p(WaitTok([x[2] for x in d])); p('s_barrier')
            rs = []
            for k in ks:
                r = self.w3_reads(c, k, stg + (k - k0)*4096, 'v122', stg); p(r); rs += r
            p(WaitTok(rs))
    def colsum3(self, c):
        p = self.p
        p(f"""v_lshrrev_b32 v168, 2, {vL}
v_lshrrev_b32 v169, 4, {vL}
v_xor_b32 v168, v168, v169
v_and_b32 v168, 1, v168
v_cmp_eq_u32 vcc, 0, v168
v_mov_b32 v169, 0x3f803f80
v_cndmask_b32 v164, 0, v169, vcc
v_mov_b32 v165, v164
v_mov_b32 v166, v164
v_mov_b32 v167, v164""")
        for ks in range(32):
            p(f'v_mfma_f32_16x16x32_bf16 v[160:163], v[164:167], {ar(c*128+4*ks,4)}, {0 if ks == 0 else "v[160:163]"}')
        p(f"""v_and_b32 v168, 31, {vL}
s_lshl_b32 s88, {sW}, 8
s_add_u32 s88, s88, {L_CS3 + c*128}
v_lshl_add_u32 v168, v168, 2, s88""")
        x = p('ds_write_b32 v168, v160', lds=(L_CS3, L_CS3 + 1024), private=True)
        p(WaitTok([x]))

    def p2(self, L, w2tok):
        p = self.p
        p(f"""s_lshr_b32 s88, {sW}, 1
s_lshl_b32 s89, s88, 15
s_add_u32 s89, s89, {L_W2}
v_add_u32 v122, s89, {vWown}
v_add_u32 v123, s89, {vWoth}
s_lshl_b32 s88, s88, 14
s_lshl_b32 s92, {sRB}, 15
s_add_u32 s92, s92, s88
s_add_u32 s92, s92, {WS_O[L]}""")
        p(WaitTok(w2tok)); p('s_barrier')
        rd = lambda k: self.wfrag_reads(k, k*2048, 'v122', 'v123', [(L_W2 + h*32768 + k*2048, L_W2 + h*32768 + k*2048 + 2048) for h in range(2)])
        for k in range(3): p(rd(k))
        self.poll(1 + 5*L, sMK2)
        self.ts(f'p2_go{L}')
        for k in range(16):
            if k % 4 == 0: p(f's_add_u32 {sT}, s92, {k*1024}')
            p(f'buffer_load_dwordx4 {vr(128+4*k,4)}, {vL16}, {SWS}, {sT} offen offset:{(k%4)*1024} sc1')
        spine = []; fill = {}
        for k in range(16):
            spine += self.tile_mfmas(k, k == 0)
            if k + 3 < 16:
                r = rd(k+3)
                put(fill, 2*k, r[0], r[1]); put(fill, 2*k+1, r[2], r[3])
        weave(p, spine, fill)
        self.ts(f'p2_mm{L}')
        st = self.tile_epilogue('x1', L)
        self.ts(f'p2_epi{L}')
        self.post_flag(2 + 5*L, st)
        self.ts(f'p2_end{L}')

    def p3(self, L):
        p = self.p
        ACC, AF, CS, TK, T, HO = 40, 72, 96, 112, 144, 136
        lskip = self.lab('p3skip')
        w4 = {}
        p('s_barrier')
        d = self.w4_stage(0); p(d); w4[0] = [x[2] for x in d]
        p(WaitTok(w4[0]))
        p(f's_cmp_lg_u32 {sIDLE}, 0\ns_cbranch_scc1 {lskip}')
        self.poll(2 + 5*L, 'exec')
        self.ts(f'p3_go{L}')
        p(f"""s_lshl_b32 s92, {sG16}, 17
s_add_u32 s92, s92, {sW2K}
s_lshl_b32 s88, {sG16}, 2
s_add_u32 s88, s88, {sW}
s_lshl_b32 s88, s88, 12""")
        atok = {}
        def adma(rb, s):
            o = rb*32768 + s*8192
            d = self.dma(vL16, SWS, 's92', WS_X1[L] + o, sW2K, o, [(o + q*2048, o + q*2048 + 1024) for q in range(4)], sc1=True)
            d2 = Ins(f'buffer_load_dwordx4 {vL16}, {SWS}, {sT} offen offset:1024 sc1 lds', lds=[(o + q*2048 + 1024, o + q*2048 + 2048) for q in range(4)])
            atok[(rb, s)] = [d[2], d2]
            return d + [d2]
        p(adma(0, 0))
        p(self.stats_partials_issue(WS_ST1[L], 's88', 176))
        for s in range(1, 4): p(adma(0, s))
        for s in range(4): p(adma(1, s))
        p(self.stats_partials_reduce(176))
        p(self.stats_final('v176', 'v177', 'v178'))
        p(f"""v_mul_f32 v179, {f2u(-LOG2E)}, v177
v_and_b32 v180, 15, {vL}
v_lshlrev_b32 v180, 5, v180
v_bfe_u32 v181, {vL}, 4, 1
v_lshl_add_u32 v180, v181, 4, v180
s_lshl_b32 s88, {sW}, 9
s_add_u32 s88, s88, {L_T3}
v_add_u32 v180, s88, v180""")
        tw = p('ds_write_b128 v180, v[176:179]', lds=(L_T3, L_T3 + 2048))
        p(f"""v_add_u32 v124, 65536, {vL16}
v_and_b32 v125, 31, {vL}
v_lshlrev_b32 v125, 4, v125
v_add_u32 v125, {L_T3}, v125
v_lshrrev_b32 v126, 5, {vL}
v_lshlrev_b32 v126, 4, v126
s_lshl_b32 s88, {sW}, 8
s_add_u32 s88, s88, {L_CS3}
v_add_u32 v126, s88, v126
s_lshl_b32 s93, {sG16}, 2
s_mul_i32 s93, s93, 114688
s_lshl_b32 s88, {sM16}, 13
s_add_u32 s93, s93, s88
s_add_u32 s93, s93, {sW1K}
s_add_u32 s93, s93, {WS_H[L]}""")
        tiles = [(c, rb) for c in range(2) for rb in range(4)]
        NR = 6
        def aread(n):
            ti, ks = divmod(n, 32); rb = tiles[ti][1]
            o = rb*32768 + ks*1024
            return Ins(f'ds_read_b128 {vr(AF+4*(n % NR),4)}, {"v124" if o >= 65536 else vL16} offset:{o % 65536}', lds=(o, o+1024))
        def epilogue(ti):
            c, rb = tiles[ti]
            A = ACC + 16*(ti & 1); tk = TK + 4*(ti & 1); ho = HO + 4*(ti & 1)
            o = []
            gi = lambda i: (i >> 2)*8 + (i & 3)
            for i in range(8): o.append(f'v_fmac_f32 v{A+gi(i)}, v{tk}, v{CS+gi(i)}')
            for i in range(8): o.append(f'v_mul_f32 v{A+gi(i)}, v{tk+3}, v{A+gi(i)}')
            for i in range(8):
                o.append(f'v_exp_f32 v{A+gi(i)}, v{A+gi(i)}'); o.append(f'v_fmac_f32 v{A+gi(i)+4}, v{tk}, v{CS+gi(i)+4}')
            for i in range(8): o.append(f'v_fma_f32 v{A+gi(i)}, v{A+gi(i)}, v{tk+2}, v{tk+2}')
            for i in range(8):
                o.append(f'v_rcp_f32 v{A+gi(i)}, v{A+gi(i)}')
                if i: o.append(f'v_mul_f32 v{A+gi(i-1)}, v{A+gi(i-1)}, v{A+gi(i-1)+4}')
            o.append(f's_add_u32 s94, s93, {rb*114688 + c*4096}')
            o.append(f'v_mul_f32 v{A+gi(7)}, v{A+gi(7)}, v{A+gi(7)+4}')
            for i in range(4): o.append(f'v_cvt_pk_bf16_f32 v{ho+i}, v{A+gi(2*i)}, v{A+gi(2*i+1)}')
            alt, st = self.stores([f'buffer_store_dwordx4 {vr(ho,4)}, {vL16}, {SWS}, s94 offen'])
            o.append(alt)
            return o, st
        def csreads(c):
            return [Ins(f'ds_read_b128 {vr(CS+4*i,4)}, v126 offset:{c*128 + i*32}', lds=(L_CS3, L_CS3+1024), private=True) for i in range(4)]
        p(WaitTok(atok[(0, 0)] + [tw])); p('s_barrier')
        for n in range(NR - 1): p(aread(n))
        p(csreads(0))
        sts = []
        for ti, (c, rb) in enumerate(tiles):
            spine = []; fill = {}
            A = vr(ACC + 16*(ti & 1), 16)
            for ks in range(32):
                n = ti*32 + ks
                spine.append(f'v_mfma_f32_32x32x16_bf16 {A}, {ar(c*128+4*ks,4)}, {vr(AF+4*(n % NR),4)}, {0 if ks == 0 else A}')
                m = n + NR - 1
                if m < 256:
                    mt, mk = divmod(m, 32)
                    if mt < 4 and mk % 8 == 0 and (mt == 0 or mk == 0):
                        need = atok[(mt, mk // 8)] if mt == 0 else sum((atok[(mt, s)] for s in range(4)), [])
                        put(fill, ks, WaitTok(need), 's_barrier')
                    put(fill, ks, aread(m))
            put(fill, 20, Ins(f'ds_read_b128 {vr(TK+4*(ti&1),4)}, v125 offset:{rb*512}', lds=(L_T3, L_T3+2048)))
            if ti in (0, 1):
                for s in range(4): put(fill, 2 + 6*s, adma(ti + 2, s))
            if ti > 0:
                e, st = epilogue(ti - 1); sts.append(st)
                spread(fill, e, 3, 30)
            if ti == 4: put(fill, 31, csreads(1))
            if ti == 5:
                fl = Prog(); sv = self.p; self.p = fl
                self.post_flag(3 + 5*L, sum(sts[:4], [])); self.p = sv
                put(fill, 8, fl.items)
            if ti >= 5:
                put(fill, 1, 's_barrier')
                dm = self.w4_stage(2*(ti-5) + 1) + self.w4_stage(2*(ti-5) + 2)
                w4[2*(ti-5)+1] = [x[2] for x in dm[:4]]; w4[2*(ti-5)+2] = [x[2] for x in dm[4:]]
                spread(fill, dm, 4, 28)
            if L == 0 and ti == 4:
                self.ts('p3_w3b_0')
                self.w3_load_simple(1, 147456, 3); self.colsum3(1)
                self.ts('p3_w3b_1')
            weave(p, spine, fill)
        self.ts(f'p3_mm{L}')
        e, st = epilogue(7); sts.append(st); p(e)
        self.ts(f'p3_epi{L}')
        self.post_flag(4 + 5*L, sum(sts[4:], []))
        lj = self.lab('p3join')
        p('s_waitcnt vmcnt(0)')
        p('s_barrier')
        p(f'{lj}:')
        q = Prog(check_lds=False)
        q(f'{lskip}:')
        for s in range(1, 7): q(self.w4_stage(s))
        q(f's_waitcnt vmcnt(0)\ns_barrier\ns_branch {lj}')
        self.slow.append(q.finalize())
        self.ts(f'p3_end{L}')
        return w4

    def p4(self, L, w4):
        p = self.p
        d = self.w4_stage(7) + self.w4_stage(8)
        w4[7] = [x[2] for x in d[:4]]; w4[8] = [x[2] for x in d[4:]]
        p(f"""s_lshr_b32 s88, {sW}, 1
s_lshl_b32 s89, s88, 13
v_add_u32 v122, s89, {vWown}
v_add_u32 v123, s89, {vWoth}
v_add_u32 v124, 65536, v122
v_add_u32 v125, 65536, v123
v_add_u32 v126, 131072, v122
v_add_u32 v127, 131072, v123
s_mul_i32 s88, s88, 57344
s_mul_i32 s92, {sRB}, 114688
s_add_u32 s92, s92, s88
s_add_u32 s92, s92, {WS_H[L]}""")
        self.poll(3 + 5*L, sMK4)
        self.ts(f'p4_go{L}')
        def aload(k):
            s, w = divmod(k, 4); c, j = divmod(s, 7)
            o = []
            if w == 0: o.append(Ins(f's_add_u32 s94, s92, {(8*j + 4*c)*1024}'))
            o.append(Ins(f'buffer_load_dwordx4 {vr(128+4*(k%16),4)}, {vL16}, {SWS}, s94 offen offset:{w*1024} sc1'))
            return o
        def rd(k):
            s, w = divmod(k, 4)
            b = self.W4SLOT[s]*16384 + w*2048
            va, vb = [('v122', 'v123'), ('v124', 'v125'), ('v126', 'v127')][b >> 16]
            return self.wfrag_reads(k, b & 65535, va, vb, [(b + h*8192, b + h*8192 + 2048) for h in range(2)])
        DA = 12
        for k in range(DA): p(aload(k))
        p(d)
        for k in range(3): p(rd(k))
        spine = []; fill = {}
        pre = {}
        allreads = {}
        for k in range(56):
            spine += self.tile_mfmas(k, k == 0)
            m = k + 3
            if m < 56:
                s, w = divmod(m, 4)
                if w == 0:
                    put(fill, 2*k, WaitTok(w4[s] + allreads.get(s-2, [])), 's_barrier')
                    ns = s + 7
                    if 9 <= ns < 14:
                        dm = self.w4_stage(ns); w4[ns] = [x[2] for x in dm]
                        for i, x in enumerate(dm): put(fill, 2*k + 1 + 2*i, x)
                    if L == 0 and s >= 9:
                        todo = {9: [0], 10: [1, 2], 11: [3, 6], 12: [4], 13: [5]}[s]
                        dm = []
                        for st_ in todo:
                            x = self.w1_stage(st_); pre[st_] = [y[2] for y in x]; dm += x
                        for i, x in enumerate(dm): put(fill, 2*k + 1 + i, x)
                r = rd(m); allreads.setdefault(s, []).extend(r)
                put(fill, 2*k, r[0], r[1]); put(fill, 2*k+1, r[2], r[3])
            m = k + DA
            if m == 28 - 4: put(fill, 2*k, self.poll_issue(vT0))
            if m == 28: put(fill, 2*k, self.poll_check(vT0, 4 + 5*L, sMK4))
            if m < 56: put(fill, 2*k + 1, aload(m))
        weave(p, spine, fill)
        self.ts(f'p4_mm{L}')
        p('s_barrier')
        st = self.tile_epilogue('x2' if L == 0 else 'out', L)
        self.ts(f'p4_epi{L}')
        if L == 0:
            self.post_flag(5, st)
            p('s_barrier')
        self.ts(f'p4_end{L}')
        return pre

    def build(self):
        p = self.p
        self.prologue()
        pre = {}
        for L in range(2):
            w2 = self.p1(L, pre)
            if self.stop == f'p1_{L}': break
            if L == 0:
                l = self.lab('w3a')
                p('s_waitcnt vmcnt(0) lgkmcnt(0)')
                p(f's_cmp_lg_u32 {sIDLE}, 0\ns_cbranch_scc1 {l}')
                self.w3_load_simple(0, L_STG, 14); self.colsum3(0)
                p(f's_nop 7\n{l}:')
                self.ts('w3a')
            self.p2(L, w2)
            if self.stop == f'p2_{L}': break
            w4 = self.p3(L)
            if self.stop == f'p3_{L}': break
            pre = self.p4(L, w4)
            if self.stop == f'p4_{L}': break
        if self.ts_on:
            self.ts('end')
            p(f's_lshl_b32 s88, s2, 2\ns_add_u32 s88, s88, {sW}\ns_lshl_b32 s88, s88, 8\ns_add_u32 s88, s88, {WS_TS}\nv_lshlrev_b32 v40, 2, {vL}')
            p(f'buffer_store_dword {vTS}, v40, {SWS}, s88 offen')
        p('s_waitcnt vmcnt(0)')
        body = p.finalize()
        head = open('cdna_kernels/' + NAME + '.s.ref').read().split('; Override launch')[0]
        txt = head + '; @launch grid=(256,1,1) block=(256,1,1) lds=163840\n'
        txt += f'.amdgcn_target "amdgcn-amd-amdhsa--gfx950"\n.text\n.globl {NAME}_kernel\n.p2align 8\n.type {NAME}_kernel,@function\n{NAME}_kernel:\n'
        txt += body + 'L_end:\ns_endpgm\n' + '\n'.join(getattr(p, 'tail', [])) + '\n' + '\n'.join(self.slow) + '\n'
        txt += f""".section .rodata,"a"
.p2align 6
.amdhsa_kernel {NAME}_kernel
  .amdhsa_next_free_vgpr 512
  .amdhsa_next_free_sgpr 102
  .amdhsa_accum_offset 256
  .amdhsa_group_segment_fixed_size 0
  .amdhsa_kernarg_size 80
  .amdhsa_user_sgpr_count 2
  .amdhsa_user_sgpr_kernarg_segment_ptr 1
  .amdhsa_system_sgpr_workgroup_id_x 1
  .amdhsa_float_denorm_mode_32 3
.end_amdhsa_kernel
"""
        return txt

if __name__ == '__main__':
    import argparse
    ap = argparse.ArgumentParser()
    ap.add_argument('-o', default='k.s'); ap.add_argument('--ts', action='store_true'); ap.add_argument('--stop'); ap.add_argument('--nomimic', action='store_true'); ap.add_argument('--glob', action='store_true')
    a = ap.parse_args()
    g = Gen(ts=a.ts, stop=a.stop, mimic=not a.nomimic, force_global=a.glob)
    open(a.o, 'w').write(g.build())
    if a.ts: open(a.o + '.ts', 'w').write('\n'.join(g.tsn))
    print(g.p.stats)
```

```python
import sys
from asmlib import *

NAME = 'interleave_layers__sliding_local_dilated__glu_gated_glu__prompt'
MB = 1 << 20
WS_O = [0, 2*MB]; WS_X1 = [4*MB, 6*MB]; WS_X2 = 8*MB
WS_ST1 = [10*MB, 10*MB + (256 << 10)]; WS_ST2 = 10*MB + (512 << 10)
WS_HB = 11*MB; WS_HS = 12*MB; WS_FL = 13*MB; WS_TS = 14*MB
WS_H = [16*MB, 24*MB]

SX, SWQKV, SWO, SW3, SWD, SOUT, SWS, SDBG = 's[4:7]', 's[8:11]', 's[12:15]', 's[16:19]', 's[20:23]', 's[24:27]', 's[28:31]', 's[32:35]'
sW, sMODE, sT, sROW, sHALO, sG, sG16, sM16, sCB, sW1K, sW4K, sHASP, sPG = ['s%d' % i for i in range(36, 49)]
sIDLE = 's49'
sMK2, sMK4, sMK1 = 's[50:51]', 's[52:53]', 's[54:55]'
sA1, sRB, sSPIN, sT2 = 's56', 's57', 's58', 's59'
sXCC, sW2K = 's60', 's61'
vL, vL16, vA1e, vA1o, vW1d, vW1r0, vW1r1, vA1r0, vA1r1, vW2d, vW4d, vWown, vWoth, vRM, vFLp, vFLo = ['v%d' % i for i in range(16)]
RES = 16
CSQ, CSK, CSV = 24, 28, 32
vW3d, vW3r, vT0, vTS = 'v36', 'v37', 'v38', 'v39'
L_A1 = 0; L_A1H = 65536; L_R1 = 73728; L_TAB = 159744
L_W2 = L_TAB - 65536
L_XB = 0
L_STG = 16384
L_NM = L_TAB; L_RS = L_TAB + 320
L_T3 = L_TAB
L_CS3 = L_TAB + 2048
LOG2E = 1.4426950408889634
import struct
def f2u(x): return '0x%08x' % struct.unpack('<I', struct.pack('<f', x))[0]
def vr(a, n): return f'v[{a}:{a+n-1}]' if n > 1 else f'v{a}'
def ar(a, n): return f'a[{a}:{a+n-1}]'

class Gen:
    def __init__(self, ts=False, mimic=True, stop=None, force_global=False, fine=None):
        self.fine = fine; self.dbgts = None; self.dbgwg = 0
        self.p = Prog(); self.ts_on = ts; self.mimic = mimic; self.nts = 0; self.tsn = []
        self.slow = []; self.nlab = 0; self.stop = stop; self.force_global = force_global

    def lab(self, s):
        self.nlab += 1; return f'L{s}{self.nlab}'
    def ts(self, name):
        if not self.ts_on: return
        p = self.p
        p('s_memtime s[62:63]'); p(f'v_writelane_b32 {vTS}, s62, {self.nts}')
        self.tsn.append(name); self.nts += 1

    def dma(self, voff, srd, sbase, goff, lbase, loff, lds, sc1=False):
        a = Ins(f's_add_u32 m0, {lbase}, {loff}') if lbase else Ins(f's_mov_b32 m0, {loff}')
        b = Ins(f's_add_u32 {sT}, {sbase}, {goff}') if sbase else Ins(f's_mov_b32 {sT}, {goff}')
        c = Ins(f'buffer_load_dwordx4 {voff}, {srd}, {sT} offen{" sc1" if sc1 else ""} lds', lds=lds)
        return [a, b, c]
    def stores(self, texts):
        a = [Ins(t) for t in texts]; b = [Ins(t + ' sc1') for t in texts]
        return Alt(sMODE, a, b), a
    def post_flag(self, val, toks):
        p = self.p
        p(f'v_mov_b32 {vT0}, {val}')
        p(WaitTok(toks))
        p('s_mov_b64 exec, 1')
        alt, a = self.stores([f'buffer_store_dword {vT0}, {vFLo}, {SWS}, 0 offen'])
        p(alt)
        p('s_mov_b64 exec, -1')
    def poll_issue(self, vf):
        return Ins(f'buffer_load_dword {vf}, {vFLp}, {SWS}, 0 offen sc1')
    def poll_check(self, vf, val, mask):
        ls, lb = self.lab('ps'), self.lab('pb')
        items = [Ins(f'v_cmp_gt_u32 vcc, {val}, {vf}')]
        items.append(Ins(f's_and_b64 vcc, vcc, {mask}'))
        items.append(Ins(f's_cbranch_scc1 {ls}'))
        items.append(Ins(f'{lb}:'))
        self.slow.append(f"""{ls}:
s_mov_b32 {sSPIN}, 0
{ls}_l:
buffer_load_dword {vf}, {vFLp}, {SWS}, 0 offen sc1
s_add_u32 {sSPIN}, {sSPIN}, 1
s_cmp_gt_u32 {sSPIN}, 30000
s_cbranch_scc1 {ls}_x
s_waitcnt vmcnt(0)
v_cmp_gt_u32 vcc, {val}, {vf}
s_nop 0
s_and_b64 vcc, vcc, {mask}
s_cbranch_scc1 {ls}_l
{ls}_x:
s_waitcnt vmcnt(0)
s_branch {lb}""")
        return items
    def poll(self, val, mask):
        self.p(self.poll_issue(vT0)); self.p(self.poll_check(vT0, val, mask))

    def prologue(self):
        p = self.p
        p('s_cmp_ge_u32 s2, 256'); p('s_cbranch_scc1 L_end')
        p('s_load_dwordx16 s[64:79], s[0:1], 0'); p('s_load_dwordx4 s[80:83], s[0:1], 64')
        p(f'v_lshrrev_b32 v1, 6, v0\nv_and_b32 {vL}, 63, v0\nv_readfirstlane_b32 {sW}, v1')
        if self.ts_on:
            p(f'v_mov_b32 {vTS}, 0'); p('s_memrealtime s[62:63]'); p(f'v_writelane_b32 {vTS}, s62, 63')
        self.ts('start')
        p(f"""s_getreg_b32 {sXCC}, hwreg(HW_REG_XCC_ID)
s_and_b32 {sXCC}, {sXCC}, 15
s_add_u32 {sXCC}, {sXCC}, 1
s_and_b32 s84, s2, 7
s_lshr_b32 s85, s2, 3
s_lshr_b32 s86, s85, 3
s_and_b32 {sCB}, s85, 7
s_and_b32 {sM16}, s85, 15
s_lshl_b32 {sG}, s84, 2
s_add_u32 {sG}, {sG}, s86
s_lshr_b32 {sG16}, {sG}, 1
s_lshr_b32 s87, s84, 1
s_lshl_b32 s87, s87, 2
s_add_u32 s87, s87, s86
s_lshl_b32 {sROW}, s87, 17
s_and_b32 s88, s84, 1
s_lshl_b32 s88, s88, 10
s_add_u32 {sROW}, {sROW}, s88
s_cmp_eq_u32 s86, 0
s_cselect_b32 s88, 5, 1
s_sub_u32 {sPG}, {sG}, s88
s_cmp_eq_u32 s87, 0
s_cselect_b32 {sPG}, {sG}, {sPG}
s_cselect_b32 {sHASP}, 0, 1
s_cselect_b32 s88, 0, 16384
s_sub_u32 {sHALO}, {sROW}, s88
s_lshl_b32 {sW1K}, {sW}, 10
s_lshl_b32 {sW2K}, {sW}, 11
s_lshl_b32 {sW4K}, {sW}, 12
s_cmp_ge_u32 {sM16}, 14
s_cselect_b32 {sIDLE}, 1, 0
s_and_b32 s88, {sW}, 1
s_lshl_b32 {sRB}, {sG}, 1
s_add_u32 {sRB}, {sRB}, s88
s_lshl_b32 {sA1}, {sW}, 15
s_add_u32 {sA1}, {sA1}, {sROW}""")
        p(f"""s_and_b32 s88, s86, 1
s_lshl_b32 s88, s88, 5
s_lshr_b32 s89, {sW}, 1
s_mov_b32 s90, -1
s_mov_b32 s91, 0
s_lshl_b64 {sMK1}, s[90:91], s88
s_lshl_b32 s92, s89, 4
s_add_u32 s92, s92, s88
s_mov_b32 s90, 0xffff
s_lshl_b64 {sMK2}, s[90:91], s92
s_mul_i32 s92, s89, 28
s_mov_b32 s90, 0xfffffff
s_lshl_b64 {sMK4}, s[90:91], s92""")
        t = [f'v{i}' for i in range(40, 56)]
        p(f"""v_lshlrev_b32 {vL16}, 4, {vL}
v_lshrrev_b32 {t[0]}, 3, {vL}
v_and_b32 {t[1]}, 7, {vL}
v_lshrrev_b32 {t[2]}, 1, {t[0]}
v_xor_b32 {t[3]}, {t[1]}, {t[2]}
v_lshlrev_b32 {t[3]}, 4, {t[3]}
v_lshl_add_u32 {vA1e}, {t[0]}, 11, {t[3]}
v_xor_b32 {vA1o}, 64, {vA1e}
v_and_b32 {t[4]}, 1, {t[2]}""")
        p(f"""s_and_b32 s88, {sW}, 1
s_lshl_b32 s88, s88, 2
v_lshl_add_u32 {t[5]}, {t[4]}, 1, s88
v_xor_b32 {t[5]}, {t[5]}, {t[1]}
v_lshlrev_b32 {t[5]}, 4, {t[5]}
s_mul_i32 s88, {sW}, 24576
s_lshl_b32 s89, {sCB}, 7
s_add_u32 s88, s88, s89
v_mul_u32_u24 {t[6]}, 3072, {t[0]}
v_add3_u32 {vW1d}, {t[5]}, {t[6]}, s88
s_lshr_b32 s90, {sW}, 1
s_mul_i32 s88, s90, 28672
s_lshl_b32 s91, {sM16}, 8
s_add_u32 s88, s88, s91
v_mul_u32_u24 {t[6]}, 3584, {t[0]}
v_add3_u32 {vW3d}, {t[5]}, {t[6]}, s88""")
        p(f"""v_lshlrev_b32 {t[5]}, 2, {t[4]}
v_xor_b32 {t[5]}, {t[5]}, {t[1]}
v_lshlrev_b32 {t[5]}, 4, {t[5]}
v_lshl_add_u32 {t[5]}, {t[0]}, 10, {t[5]}
s_lshl_b32 s88, {sW}, 13
s_add_u32 s88, s88, s89
v_add_u32 {vW2d}, s88, {t[5]}
s_mul_i32 s88, s90, {7*128*1024}
s_and_b32 s91, {sW}, 1
s_lshl_b32 s91, s91, 15
s_add_u32 s88, s88, s91
s_add_u32 s88, s88, s89
v_add_u32 {vW4d}, s88, {t[5]}""")
        p(f"""v_lshrrev_b32 {t[0]}, 4, {vL}
v_and_b32 {t[1]}, 15, {vL}
v_lshrrev_b32 {t[2]}, 2, {t[1]}
v_and_b32 {t[3]}, 3, {vL}
v_lshrrev_b32 {t[4]}, 1, {t[2]}
v_and_b32 {t[5]}, 1, {t[0]}
v_lshl_add_u32 {t[6]}, {t[5]}, 1, {t[4]}
v_xor_b32 {t[6]}, {sW}, {t[6]}
v_lshlrev_b32 {t[6]}, 5, {t[6]}
v_lshl_add_u32 {t[6]}, {t[3]}, 3, {t[6]}
v_lshl_add_u32 {t[6]}, {t[2]}, 7, {t[6]}
v_lshl_add_u32 {t[6]}, {t[0]}, 10, {t[6]}
v_add_u32 {vW1r0}, {L_R1}, {t[6]}
v_add_u32 {vW1r1}, {L_R1 + 49152}, {t[6]}
v_lshrrev_b32 {t[6]}, 1, {t[1]}
v_xor_b32 {t[6]}, {t[6]}, {t[0]}
v_lshlrev_b32 {t[6]}, 4, {t[6]}
v_lshl_add_u32 {vA1r0}, {t[1]}, 7, {t[6]}
v_xor_b32 {vA1r1}, 64, {vA1r0}""")
        p(f"""v_lshrrev_b32 {t[7]}, 1, {t[0]}
v_lshrrev_b32 {t[8]}, 1, {t[3]}
v_and_b32 {t[9]}, 1, {t[3]}
v_lshl_add_u32 {t[10]}, {t[9]}, 1, {t[8]}
v_lshl_add_u32 {t[10]}, {t[5]}, 2, {t[10]}
v_lshlrev_b32 {t[10]}, 3, {t[10]}
v_xor_b32 {t[11]}, s90, {t[4]}
v_lshl_add_u32 {t[10]}, {t[11]}, 6, {t[10]}
v_lshl_add_u32 {t[10]}, {t[2]}, 7, {t[10]}
v_lshl_add_u32 {vWown}, {t[7]}, 10, {t[10]}
v_xor_b32 {vWoth}, 64, {vWown}
v_lshl_add_u32 {t[10]}, {t[9]}, 1, {t[5]}
v_lshlrev_b32 {t[10]}, 3, {t[10]}
v_lshl_add_u32 {t[11]}, {t[8]}, 1, {t[4]}
v_xor_b32 {t[11]}, {sW}, {t[11]}
v_lshl_add_u32 {t[10]}, {t[11]}, 5, {t[10]}
v_lshl_add_u32 {t[10]}, {t[2]}, 7, {t[10]}
v_lshl_add_u32 {t[10]}, {t[8]}, 10, {t[10]}
v_lshl_add_u32 {vW3r}, {t[7]}, 11, {t[10]}""")
        p(f"""v_and_b32 {t[0]}, 31, {vL}
v_lshrrev_b32 {t[1]}, 5, {vL}
v_lshlrev_b32 {t[1]}, 4, {t[1]}
v_lshl_add_u32 {t[0]}, {t[0]}, 11, {t[1]}
s_and_b32 s88, {sW}, 1
s_lshl_b32 s88, s88, 16
s_lshl_b32 s91, s90, 6
s_add_u32 s88, s88, s91
s_add_u32 s88, s88, s89
v_add_u32 {vRM}, s88, {t[0]}
s_lshl_b32 s88, {sG16}, 8
s_add_u32 s88, s88, {WS_FL}
v_lshl_add_u32 {vFLp}, {vL}, 2, s88
s_lshl_b32 s91, {sM16}, 2
s_add_u32 s91, s91, {sW}
s_lshl_b32 s91, s91, 2
s_add_u32 s88, s88, s91
v_mov_b32 {vFLo}, s88""")
        def srd(base, lo, size):
            p(f's_mov_b32 s{base}, s{lo}\ns_and_b32 s{base+1}, s{lo+1}, 0xffff\ns_mov_b32 s{base+2}, {size}\ns_mov_b32 s{base+3}, 0x20000')
        srd(4, 64, 2*MB); srd(8, 66, 512*3072); srd(12, 68, 512*1024)
        p(f's_bitcmp1_b32 {sW}, 0\ns_cselect_b32 s72, s74, s72\ns_cselect_b32 s73, s75, s73')
        srd(16, 72, 512*3584); srd(20, 76, 1792*1024); srd(24, 78, 2*MB); srd(28, 82, 256*MB); srd(32, 80, 256)
        c = 40
        p(f"""v_mov_b32 v{c}, -1
v_mov_b32 v{c+1}, -1
v_mov_b32 v{c+2}, -1
v_mov_b32 v{c+3}, -1
v_mov_b32 v{c+4}, 0
v_lshrrev_b32 v{c+5}, 3, {vL}
v_and_b32 v{c+6}, 7, {vL}
v_lshlrev_b32 v{c+6}, 4, v{c+6}
v_lshl_add_u32 v{c+5}, v{c+5}, 11, v{c+6}
s_lshl_b32 s88, {sG}, 14
s_add_u32 s88, s88, s89
s_add_u32 s88, s88, {sW4K}
s_add_u32 s88, s88, {WS_HB}
s_lshl_b32 s91, {sG}, 7
s_lshl_b32 s92, {sW}, 4
s_add_u32 s91, s91, s92
s_add_u32 s91, s91, {WS_HS}
s_cmp_eq_u32 {sCB}, 0
s_cselect_b32 s91, s91, 0x7ff00000
v_mov_b32 v{c+6}, s91
s_mov_b64 exec, 0xffff""")
        self.clr = [p(f'buffer_store_dwordx4 {vr(c,4)}, v{c+5}, {SWS}, s88 offen sc1')]
        p('s_mov_b64 exec, 1')
        self.clr.append(p(f'buffer_store_dwordx4 {vr(c,4)}, v{c+6}, {SWS}, 0 offen sc1'))
        self.clr.append(p(f'buffer_store_dword v{c+4}, {vFLo}, {SWS}, 0 offen sc1'))
        p('s_mov_b64 exec, -1')

    def publish_xcc(self):
        l = self.lab('px')
        self.p(Raw(f"""s_cmp_lg_u32 {sW}, 0
s_cbranch_scc1 {l}
s_lshl_b32 s88, {sG}, 3
s_add_u32 s88, s88, {sCB}
v_mov_b32 v124, {sXCC}
v_mov_b32 v125, s88
s_mov_b64 exec, 1
buffer_store_byte v124, v125, {SDBG}, 0 offen sc1
s_mov_b64 exec, -1
{l}:""", wr=['v124', 'v125', 's88'], states=2))
    def mode_issue(self, va, vd):
        p = self.p
        p(f"""s_lshl_b32 s88, {sG16}, 4
s_lshl_b32 s89, {sPG}, 3
s_sub_u32 s89, s89, 16
s_lshl_b32 s90, {sG}, 3
s_add_u32 s90, s90, {sCB}
v_add_u32 {va}, s88, {vL}
v_add_u32 {vd}, s89, {vL}
v_cmp_gt_u32 vcc, 16, {vL}
v_cndmask_b32 {va}, {vd}, {va}, vcc
v_mov_b32 {vd}, s90
v_cmp_gt_u32 vcc, 24, {vL}
v_cndmask_b32 {va}, {vd}, {va}, vcc""")
        p(f'buffer_load_ubyte {vd}, {va}, {SDBG}, 0 offen sc1')
    def mode_check(self, va, vd):
        p = self.p
        ls, lb = self.lab('ms'), self.lab('mb')
        p(f'v_cmp_eq_u32 vcc, 0, {vd}\ns_and_b64 vcc, vcc, exec\ns_cbranch_scc1 {ls}\n{lb}:')
        self.slow.append(f"""{ls}:
s_mov_b32 {sSPIN}, 0
{ls}_l:
buffer_load_ubyte {vd}, {va}, {SDBG}, 0 offen sc1
s_add_u32 {sSPIN}, {sSPIN}, 1
s_cmp_gt_u32 {sSPIN}, 30000
s_cbranch_scc1 {ls}_x
s_waitcnt vmcnt(0)
v_cmp_eq_u32 vcc, 0, {vd}
s_nop 0
s_and_b64 vcc, vcc, exec
s_cbranch_scc1 {ls}_l
{ls}_x:
s_waitcnt vmcnt(0)
s_branch {lb}""")
        p(f'v_cmp_ne_u32 vcc, {sXCC}, {vd}\ns_and_b32 {sMODE}, vcc_lo, 0xffff')
        if self.force_global: p(f's_mov_b32 {sMODE}, 1')

    def stats_final(self, S, Q, t):
        o = [f'v_mul_f32 {S}, {f2u(-1/512)}, {S}', f'v_mul_f32 {Q}, {f2u(1/512)}, {Q}', f'v_fma_f32 {Q}, -{S}, {S}, {Q}', f'v_max_f32 {Q}, 0, {Q}']
        rnd = lambda x: [f'v_cvt_pk_bf16_f32 {x}, {x}, {x}', f'v_and_b32 {x}, 0xffff0000, {x}']
        if self.mimic:
            o += rnd(S) + rnd(Q) + [f'v_add_f32 {Q}, {f2u(1e-5)}, {Q}'] + rnd(Q) + [f'v_sqrt_f32 {t}, {Q}'] + rnd(t) + [f'v_rcp_f32 {Q}, {t}']
        else:
            o += [f'v_add_f32 {Q}, {f2u(1e-5)}, {Q}', f'v_sqrt_f32 {t}, {Q}', f'v_rcp_f32 {Q}, {t}']
        return o
    def stats_partials_issue(self, base, sbase, r):
        o = [Ins(f's_add_u32 {sT}, {sbase}, {base}')]
        for i in range(4): o.append(Ins(f'buffer_load_dwordx4 {vr(r+4*i,4)}, {vL16}, {SWS}, {sT} offen offset:{1024*i} sc1'))
        return o
    def stats_partials_reduce(self, r):
        o = []
        for j in range(4): o.append(f'v_add_f32 v{r+j}, v{r+j}, v{r+4+j}')
        for j in range(4): o.append(f'v_add_f32 v{r+8+j}, v{r+8+j}, v{r+12+j}')
        for j in range(4): o.append(f'v_add_f32 v{r+j}, v{r+j}, v{r+8+j}')
        o += [f'v_permlane16_swap_b32 v{r}, v{r+2}', f'v_permlane16_swap_b32 v{r+1}, v{r+3}',
              f'v_add_f32 v{r}, v{r}, v{r+2}', f'v_add_f32 v{r+1}, v{r+1}, v{r+3}',
              f'v_permlane32_swap_b32 v{r}, v{r+1}', f'v_add_f32 v{r}, v{r}, v{r+1}', f'v_mov_b32 v{r+1}, v{r}',
              f'v_permlane32_swap_b32 v{r}, v{r+1}']
        return o

    def w1_stage(self, s):
        slot = L_R1 + (s % 7) * 12288
        return [self.dma(vW1d, SWQKV, None, part*1024 + s*32*3072, sW1K, slot + part*4096, (slot + part*4096, slot + part*4096 + 4096)) for part in range(3)]
    def w2_piece(self, i):
        return self.dma(vW2d, SWO, None, i*32768, sW1K, L_W2 + i*4096, (L_W2 + i*4096, L_W2 + i*4096 + 4096))
    W4SLOT = [8, 0, 1, 2, 3, 4, 5, 6, 7, 8, 0, 1, 2, 3]
    def w4_stage(self, s):
        c, j = divmod(s, 7)
        slot = self.W4SLOT[s] * 16384
        return [self.dma(vW4d, SWD, None, (128*j + 64*c + 8*i)*1024, sW4K, slot + i*1024, [(slot + q*4096 + i*1024, slot + q*4096 + i*1024 + 1024) for q in range(4)]) for i in range(4)]
    def w3_piece(self, c, ks, stg):
        return self.dma(vW3d, SW3, None, ks*16*3584 + c*128, sW1K, stg, (stg, stg + 4096))
    def w3_reads(self, c, ks, stg, vaddr, vbase):
        a = c*128 + ks*4
        return [Ins(f'ds_read_b64_tr_b16 {ar(a+2*rd,2)}, {vaddr} offset:{stg - vbase + rd*512}', lds=(stg, stg+4096)) for rd in range(2)]

    def p1(self, L, pre):
        p = self.p
        QA, KA, VA, AF, WQ, ONE, WK, WV = 40, 56, 76, 96, 112, 120, 128, 192
        srdA = SX if L == 0 else SWS
        abase = 0 if L == 0 else WS_X2
        wtok = dict(pre)
        if L == 1:
            self.poll(5, sMK1)
        self.ts(f'p1_go{L}')
        atok = []
        for kc in range(8):
            tk = []
            for o in range(2):
                d = self.dma(vA1o if o else vA1e, srdA, sA1, abase + o*16384 + kc*128, sW2K, kc*8192 + o*1024,
                             [(kc*8192 + q*2048 + o*1024, kc*8192 + q*2048 + o*1024 + 1024) for q in range(4)], sc1=(L == 1))
                p(d); tk.append(d[2])
            atok.append(tk)
        def halo_dma():
            out = []
            for u in range(2):
                out.append(self.dma(vA1o, srdA, 's93', u*128, sW2K, L_A1H + u*1024, [(L_A1H + q*2048 + u*1024, L_A1H + q*2048 + u*1024 + 1024) for q in range(4)], sc1=(L == 1)))
            return out
        p(f's_lshl_b32 s93, {sW}, 8')
        if L == 0:
            p(f's_add_u32 s93, s93, {sHALO}')
            hd = halo_dma(); p(hd); htok = [d[2] for d in hd]
            for i2 in range(2): p(f'buffer_load_dwordx4 {vr(RES+4*i2,4)}, {vRM}, {SX}, {sROW} offen offset:{32*i2}')
            for s in range(7):
                d = self.w1_stage(s); p(d); wtok[s] = [x[2] for x in d]
            if self.fine == 'p10':
                self.ts('issued'); p(WaitTok(self.clr)); self.ts('clr'); p(WaitTok(atok[0])); self.ts('a0')
            p(WaitTok(self.clr + atok[7] + htok)); p('s_barrier')
            self.publish_xcc()
            self.ts('a1_landed')
            t0, t1 = 'v124', 'v125'
            p(f'v_add_u32 {t0}, {sW2K}, {vA1r0}\nv_xor_b32 {t1}, 64, {t0}')
            for ks in range(16):
                p(f'ds_read_b128 {vr(128+4*ks,4)}, {t1 if ks & 1 else t0} offset:{(ks>>1)*8192}', lds=((ks>>1)*8192, (ks>>1)*8192+8192))
            p(f"""v_lshrrev_b32 v126, 5, {vL}
v_lshlrev_b32 v126, 7, v126
v_and_b32 v127, 7, {vL}
v_lshl_add_u32 v126, v127, 4, v126
v_bfe_u32 v127, {vL}, 3, 2
v_lshl_add_u32 v126, v127, 10, v126
s_lshl_b32 s88, {sW}, 8
s_add_u32 s88, s88, {L_A1H}
v_add_u32 v126, s88, v126""")
            for u in range(2): p(f'ds_read_b128 {vr(192+4*u,4)}, v126 offset:{u*4096}', lds=(L_A1H, L_A1H+8192))
            for i in range(4): p(f'v_mov_b32 v{ONE+i}, 0x3f803f80')
            for i in range(8): p(f'v_mov_b32 v{96+i}, 0')
            for i in range(64):
                p(f'v_dot2c_f32_bf16 v{96+(i&1)}, v{128+i}, v{ONE}\nv_dot2c_f32_bf16 v{98+(i&1)}, v{128+i}, v{128+i}')
            for i in range(8):
                p(f'v_dot2c_f32_bf16 v{100+(i&1)}, v{192+i}, v{ONE}\nv_dot2c_f32_bf16 v{102+(i&1)}, v{192+i}, v{192+i}')
            p("""v_add_f32 v96, v96, v97
v_add_f32 v98, v98, v99
v_add_f32 v100, v100, v101
v_add_f32 v102, v102, v103
v_permlane16_swap_b32 v96, v98
v_add_f32 v96, v96, v98
v_mov_b32 v98, v96
v_permlane32_swap_b32 v96, v98
v_add_f32 v96, v96, v98
v_mov_b32 v98, v96
v_permlane16_swap_b32 v96, v98""")
            for sh in (8, 4, 2, 1):
                p(f'v_add_f32_dpp v100, v100, v100 row_ror:{sh} row_mask:0xf bank_mask:0xf\nv_add_f32_dpp v102, v102, v102 row_ror:{sh} row_mask:0xf bank_mask:0xf')
            p("""v_permlane16_swap_b32 v100, v102
v_add_f32 v100, v100, v102
v_mov_b32 v102, v100
v_permlane16_swap_b32 v100, v102""")
            p(self.stats_final('v96', 'v98', 'v97')); p(self.stats_final('v100', 'v102', 'v101'))
            p(f"""v_and_b32 v124, 15, {vL}
s_lshl_b32 s88, {sW}, 6
s_add_u32 s88, s88, {L_NM + 64}
v_lshl_add_u32 v124, v124, 2, s88
v_lshrrev_b32 v125, 5, {vL}
s_lshl_b32 s88, {sW}, 3
s_add_u32 s88, s88, {L_NM}
v_lshl_add_u32 v125, v125, 2, s88""")
            tabw = [p('ds_write_b32 v124, v96', lds=(L_NM+64, L_NM+320)), p('ds_write_b32 v124, v98 offset:320', lds=(L_RS+64, L_RS+320))]
            for o in (0, 32):
                tabw.append(p(f'ds_write_b32 v125, v100 offset:{o}', lds=(L_NM, L_NM+64)))
                tabw.append(p(f'ds_write_b32 v125, v102 offset:{o+320}', lds=(L_RS, L_RS+64)))
            p(WaitTok(tabw))
        else:
            p(f's_lshl_b32 s88, {sPG}, 14\ns_add_u32 s93, s93, s88\ns_add_u32 s93, s93, {WS_HB}')
            p(f's_lshl_b32 s88, {sRB}, 12')
            p(self.stats_partials_issue(WS_ST2, 's88', 128))
            lh = self.lab('hs')
            p(Raw(f"""s_bitcmp1_b32 {sW}, 0
s_cbranch_scc0 {lh}
s_lshl_b32 s88, {sG}, 14
s_add_u32 s88, s88, {WS_HB - 56*2048}
s_mov_b32 exec_lo, 0xff000000
s_mov_b32 exec_hi, 0xff000000
buffer_store_dwordx4 {vr(RES,4)}, {vRM}, {SWS}, s88 offen sc1
buffer_store_dwordx4 {vr(RES+4,4)}, {vRM}, {SWS}, s88 offen offset:32 sc1
s_mov_b64 exec, -1
{lh}:""", rd=[vr(RES, 8)], wr=['s88'], states=2))
            p(self.stats_partials_reduce(128))
            p(self.stats_final('v128', 'v129', 'v130'))
            p(f"""v_and_b32 v124, 15, {vL}
v_lshlrev_b32 v124, 3, v124
v_bfe_u32 v125, {vL}, 4, 1
v_lshl_add_u32 v124, v125, 2, v124
s_and_b32 s88, {sW}, 1
s_lshl_b32 s88, s88, 7
s_add_u32 s88, s88, {L_NM + 64}
v_add_u32 v125, s88, v124""")
            tabw = [p('ds_write_b32 v125, v128', lds=(L_NM+64, L_NM+320)), p('ds_write_b32 v125, v129 offset:320', lds=(L_RS+64, L_RS+320))]
            lh = self.lab('ht')
            p(Raw(f"""s_lshl_b32 s88, {sCB}, 2
s_add_u32 s88, s88, {sW}
s_cmp_lg_u32 s88, 1
s_cbranch_scc1 {lh}
s_lshl_b32 s88, {sG}, 7
s_add_u32 s88, s88, {WS_HS - 96}
s_mov_b32 exec_lo, 0xf000f000
s_mov_b32 exec_hi, 0
buffer_store_dword v128, v124, {SWS}, s88 offen sc1
buffer_store_dword v129, v124, {SWS}, s88 offen offset:32 sc1
s_mov_b64 exec, -1
{lh}:""", rd=['v128', 'v129', 'v124'], wr=['s88'], states=2))
            p(WaitTok(tabw))
        self.ts(f'p1_stats{L}')
        def wreads(s):
            slot = s % 7
            va, off = (vW1r0, slot*12288) if slot < 4 else (vW1r1, slot*12288 - 49152)
            lo = L_R1 + slot*12288
            out = []
            for part, dst in ((0, WQ + 4*(s & 1)), (1, WK + 4*s), (2, WV + 4*s)):
                for rd in range(2):
                    out.append(Ins(f'ds_read_b64_tr_b16 {vr(dst+2*rd,2)}, {va} offset:{off + part*4096 + rd*512}', lds=(lo + part*4096, lo + part*4096 + 4096)))
            return out
        def aread(s, t):
            o = (s >> 1)*8192 + t*2048
            return Ins(f'ds_read_b128 {vr(AF+4*t,4)}, {vA1r1 if s & 1 else vA1r0} offset:{o}', lds=(o, o+2048))
        p(WaitTok(wtok[0] + atok[0])); p('s_barrier')
        wr = wreads(0); p(wr)
        for t in range(4): p(aread(0, t))
        w2tok = []
        w2order = list(range(1, 16)) + [0]
        mode_at = 9
        for s in range(16):
            spine = []; fill = {}
            z = (s == 0)
            wq, wk, wv = vr(WQ + 4*(s & 1), 4), vr(WK + 4*s, 4), vr(WV + 4*s, 4)
            for t in range(4):
                a = vr(AF + 4*t, 4)
                q, k, v = vr(QA + 4*t, 4), vr(KA + 4 + 4*t, 4), vr(VA + 4 + 4*t, 4)
                spine.append(f'v_mfma_f32_16x16x32_bf16 {q}, {wq}, {a}, {0 if z else q}')
                spine.append(f'v_mfma_f32_16x16x32_bf16 {k}, {wk}, {a}, {0 if z else k}')
                spine.append(f'v_mfma_f32_16x16x32_bf16 {v}, {a}, {wv}, {0 if z else v}')
            if L == 0:
                one = vr(ONE, 4)
                for dst, x, y in ((CSQ, wq, one), (CSK, wk, one), (CSV, one, wv)):
                    spine.append(f'v_mfma_f32_16x16x32_bf16 {vr(dst,4)}, {x}, {y}, {0 if z else vr(dst,4)}')
            pre_toks = list(wr)
            if s < 15:
                pre_toks += wtok[s+1] + atok[(s+1) >> 1]
            if s == 15: pre_toks += htok
            put(fill, 0, WaitTok(pre_toks), 's_barrier')
            if s < 15:
                wr = wreads(s+1)
                for i, x in enumerate(wr): put(fill, 1 + i, x)
                for t in range(4): put(fill, 3*t + 2, aread(s+1, t))
            dm = []
            if s + 7 < 16:
                dm = self.w1_stage(s+7); wtok[s+7] = [x[2] for x in dm]
            else:
                n0 = (s - 9) * 3
                idx = w2order[n0:n0+3] if s < 15 else []
                if s == 14: idx = []
                if s == 15: idx = [0]
                dm = [self.w2_piece(i) for i in idx]; w2tok += [x[2] for x in dm]
            for i, x in enumerate(dm): put(fill, 7 + 2*i if 7 + 2*i < len(spine) else len(spine) - 1, x)
            if L == 1 and s == 8:
                hd = halo_dma(); htok = [d[2] for d in hd]
                put(fill, 4, hd[0]); put(fill, 6, hd[1])
                put(fill, 6, f's_lshl_b32 s88, {sPG}, 7', f's_add_u32 s94, s88, {WS_HS}', f'v_and_b32 v124, 15, {vL}', 'v_lshlrev_b32 v124, 2, v124',
                    f'buffer_load_dword v125, v124, {SWS}, s94 offen sc1')
            if self.fine == f'p1{L}': self.ts(f'k{s}')
            weave(p, spine, fill)
            if L == 0 and s == mode_at: self.mode_issue('v126', 'v127')
        self.ts(f'p1_loop{L}')
        def halo_pass(pp, check):
            pp(f"""v_and_b32 v112, 1023, {vA1r0}
v_not_b32 v113, {vL}
v_and_b32 v113, 8, v113
v_lshlrev_b32 v113, 3, v113
v_xor_b32 v112, v112, v113
v_add_u32 v112, {L_A1H}, v112
v_xor_b32 v113, 64, v112""")
            if check: pp('v_mov_b32 v114, 0')
            rd = lambda s: Ins(f'ds_read_b128 {vr(AF+4*(s&3),4)}, {"v113" if s & 1 else "v112"} offset:{(s>>1)*1024}', lds=(L_A1H + (s>>1)*1024, L_A1H + (s>>1)*1024 + 1024))
            for s in range(4): pp(rd(s))
            for s in range(16):
                a = vr(AF + 4*(s & 3), 4); k, v = vr(KA, 4), vr(VA, 4)
                pp(f'v_mfma_f32_16x16x32_bf16 {k}, {vr(WK+4*s,4)}, {a}, {0 if s == 0 else k}')
                if check: pp(f'v_max_u32 v114, v114, v{AF+4*(s&3)}')
                pp(f'v_mfma_f32_16x16x32_bf16 {v}, {a}, {vr(WV+4*s,4)}, {0 if s == 0 else v}')
                if s + 4 < 16: pp(rd(s+4))
        halo_pass(p, L == 1)
        if L == 1:
            ls, lb = self.lab('hs'), self.lab('hb')
            p(f'v_cmp_eq_u32 vcc, -1, v114\ns_and_b64 vcc, vcc, exec\ns_cbranch_scc1 {ls}\n{lb}:')
            q = Prog(check_lds=False)
            q(f'{ls}:\ns_mov_b32 {sSPIN}, 0\n{ls}_l:\ns_waitcnt vmcnt(0) lgkmcnt(0)\ns_nop 15\ns_barrier')
            q(halo_dma())
            q('s_waitcnt vmcnt(0)\ns_barrier')
            halo_pass(q, True)
            q(f's_add_u32 {sSPIN}, {sSPIN}, 1\ns_cmp_gt_u32 {sSPIN}, 5000\ns_cbranch_scc1 {ls}_x')
            q(f'v_cmp_eq_u32 vcc, -1, v114\ns_and_b64 vcc, vcc, exec\ns_cbranch_scc1 {ls}_l\n{ls}_x:\ns_nop 15\ns_branch {lb}')
            self.slow.append(q.finalize())
            ls, lb = self.lab('ss'), self.lab('sb')
            p(f'v_cmp_eq_u32 vcc, -1, v125\ns_and_b64 vcc, vcc, exec\ns_cbranch_scc1 {ls}\n{lb}:')
            self.slow.append(f"""{ls}:
s_mov_b32 {sSPIN}, 0
{ls}_l:
buffer_load_dword v125, v124, {SWS}, s94 offen sc1
s_add_u32 {sSPIN}, {sSPIN}, 1
s_cmp_gt_u32 {sSPIN}, 30000
s_cbranch_scc1 {ls}_x
s_waitcnt vmcnt(0)
v_cmp_eq_u32 vcc, -1, v125
s_nop 0
s_and_b64 vcc, vcc, exec
s_cbranch_scc1 {ls}_l
{ls}_x:
s_waitcnt vmcnt(0)
s_branch {lb}""")
            p(f"""v_and_b32 v126, 7, {vL}
v_lshlrev_b32 v126, 2, v126
v_bfe_u32 v127, {vL}, 3, 1
v_mul_u32_u24 v127, 320, v127
v_add_u32 v126, v126, v127
v_bfe_u32 v127, {vL}, 4, 1
v_lshl_add_u32 v126, v127, 5, v126
v_add_u32 v126, {L_NM}, v126""")
            x = p('ds_write_b32 v126, v125', lds=[(L_NM, L_NM+64), (L_RS, L_RS+64)])
            p(WaitTok([x])); p('s_barrier')
        if L == 0: self.mode_check('v126', 'v127')
        self.ts(f'p1_halo{L}')
        NM, RS, CQ, VS, QB, KB, VB, CA, CB, CB0, MA, SB, PP, OA, T = 128, 133, 138, 144, 184, 192, 202, 212, 216, 220, 224, 96, 228, 56, 244
        p(f"""v_and_b32 v{T}, 15, {vL}
v_lshrrev_b32 v{T+1}, 4, {vL}
v_lshlrev_b32 v{T+2}, 2, v{T}
v_add_u32 v{T+2}, {L_NM}, v{T+2}
v_lshlrev_b32 v{T+3}, 4, v{T+1}
v_add_u32 v{T+3}, {L_NM}, v{T+3}""")
        tab = (L_NM, L_NM + 640)
        for u in range(5):
            p(f'ds_read_b32 v{NM+u}, v{T+2} offset:{64*u}', lds=tab); p(f'ds_read_b32 v{RS+u}, v{T+2} offset:{64*u+320}', lds=tab)
        for u in range(5):
            p(f'ds_read_b128 {vr(VS+8*u,4)}, v{T+3} offset:{64*u}', lds=tab); p(f'ds_read_b128 {vr(VS+8*u+4,4)}, v{T+3} offset:{64*u+320}', lds=tab)
        p(f'v_lshlrev_b32 v{T+1}, 2, v{T+1}\nv_sub_u32 v{T}, v{T}, v{T+1}\nv_mov_b32 v{T+4}, 0xff800000\nv_mov_b32 v{T+5}, 0xffff\nv_mov_b32 v{T+6}, 0xffff0000')
        p(f's_cmp_eq_u32 {sHASP}, 0\ns_cselect_b64 s[88:89], 0, -1')
        for j in range(4):
            p(f"""v_subrev_u32 v{T+1}, {j}, v{T}
v_add_u32 v{T+7}, 16, v{T+1}
v_cmp_gt_u32 vcc, 8, v{T+1}
v_cmp_gt_u32 s[90:91], 8, v{T+7}
v_cndmask_b32 v{CA+j}, v{T+4}, 0, vcc
v_cndmask_b32 v{T+8+j}, 0, v{T+5+(j&1)}, vcc
v_cndmask_b32 v{CB+j}, v{T+4}, 0, s[90:91]
v_cndmask_b32 v{CB0+j}, v{T+4}, v{CB+j}, s[88:89]""")
        p(f'v_or_b32 v{MA}, v{T+8}, v{T+9}\nv_or_b32 v{MA+1}, v{T+10}, v{T+11}')
        for u in range(5):
            for j in range(4): p(f'v_fmac_f32 v{KA+4*u+j}, v{NM+u}, v{CSK+j}')
            for j in range(4): p(f'v_mul_f32 v{KA+4*u+j}, v{RS+u}, v{KA+4*u+j}')
            for j in range(2): p(f'v_cvt_pk_bf16_f32 v{KB+2*u+j}, v{KA+4*u+2*j}, v{KA+4*u+2*j+1}')
            if u:
                t = u - 1
                for j in range(4): p(f'v_fmac_f32 v{QA+4*t+j}, v{NM+u}, v{CSQ+j}')
                for j in range(2): p(f'v_cvt_pk_bf16_f32 v{QB+2*t+j}, v{QA+4*t+2*j}, v{QA+4*t+2*j+1}')
                p(f'v_mul_f32 v{CQ+t}, {f2u(0.25*LOG2E)}, v{RS+u}')
        for t in range(4):
            p(f'v_mfma_f32_16x16x16_bf16 {vr(QA+4*t,4)}, {vr(KB+2*(t+1),2)}, {vr(QB+2*t,2)}, {vr(CA,4)}')
            p(f'v_mfma_f32_16x16x16_bf16 {vr(SB+4*t,4)}, {vr(KB+2*t,2)}, {vr(QB+2*t,2)}, {vr(CB0 if t == 0 else CB,4)}')
        for u in range(5):
            for j in range(4): p(f'v_fmac_f32 v{VA+4*u+j}, v{VS+8*u+j}, v{CSV}')
            for j in range(4): p(f'v_mul_f32 v{VA+4*u+j}, v{VS+8*u+4+j}, v{VA+4*u+j}')
            for j in range(2): p(f'v_cvt_pk_bf16_f32 v{VB+2*u+j}, v{VA+4*u+2*j}, v{VA+4*u+2*j+1}')
        for t in range(4):
            for j in range(4): p(f'v_max_f32 v{QA+4*t+j}, v{QA+4*t+j}, v{SB+4*t+j}')
        for t in range(4): p(f'v_max3_f32 v{T+t}, v{QA+4*t}, v{QA+4*t+1}, v{QA+4*t+2}')
        for t in range(4): p(f'v_max_f32 v{T+t}, v{T+t}, v{QA+4*t+3}')
        def reduce4(op, extra=None):
            p(f"""v_permlane16_swap_b32 v{T}, v{T+1}
v_permlane16_swap_b32 v{T+2}, v{T+3}
{op} v{T}, v{T}, v{T+1}
{op} v{T+2}, v{T+2}, v{T+3}
v_permlane32_swap_b32 v{T}, v{T+2}
{op} v{T}, v{T}, v{T+2}""")
            if extra: p(extra)
            p(f"""v_mov_b32 v{T+2}, v{T}
v_permlane32_swap_b32 v{T}, v{T+2}
v_mov_b32 v{T+1}, v{T}
v_mov_b32 v{T+3}, v{T+2}
v_permlane16_swap_b32 v{T}, v{T+1}
v_permlane16_swap_b32 v{T+2}, v{T+3}""")
        reduce4('v_max_f32')
        for t in range(4): p(f'v_mul_f32 v{T+t}, v{T+t}, v{CQ+t}')
        for t in range(4):
            for j in range(4): p(f'v_fma_f32 v{QA+4*t+j}, v{QA+4*t+j}, v{CQ+t}, -v{T+t}')
        for t in range(4):
            for j in range(4): p(f'v_exp_f32 v{QA+4*t+j}, v{QA+4*t+j}')
        for t in range(4):
            p(f"""v_cvt_pk_bf16_f32 v{PP+4*t}, v{QA+4*t}, v{QA+4*t+1}
v_cvt_pk_bf16_f32 v{PP+4*t+1}, v{QA+4*t+2}, v{QA+4*t+3}
v_and_b32 v{PP+4*t+2}, v{MA}, v{PP+4*t}
v_and_b32 v{PP+4*t+3}, v{MA+1}, v{PP+4*t+1}
v_xor_b32 v{PP+4*t}, v{PP+4*t}, v{PP+4*t+2}
v_xor_b32 v{PP+4*t+1}, v{PP+4*t+1}, v{PP+4*t+3}""")
            p(f'v_add_f32 v{T+t}, v{QA+4*t}, v{QA+4*t+1}\nv_add_f32 v{T+4}, v{QA+4*t+2}, v{QA+4*t+3}\nv_add_f32 v{T+t}, v{T+t}, v{T+4}')
            p(f'v_mfma_f32_16x16x32_bf16 {vr(OA+4*t,4)}, {vr(VB+2*t,4)}, {vr(PP+4*t,4)}, 0')
        reduce4('v_add_f32', f'v_rcp_f32 v{T}, v{T}')
        for t in range(4):
            for j in range(4): p(f'v_mul_f32 v{OA+4*t+j}, v{T+t}, v{OA+4*t+j}')
        for tp in range(2):
            b = PP + 4*tp
            for h in range(2):
                t = 2*tp + h
                for j in range(2): p(f'v_cvt_pk_bf16_f32 v{b+2*h+j}, v{OA+4*t+2*j}, v{OA+4*t+2*j+1}')
            p(f'v_permlane16_swap_b32 v{b}, v{b+2}\nv_permlane16_swap_b32 v{b+1}, v{b+3}')
        p(f"""s_lshl_b32 s88, {sG}, 16
s_lshl_b32 s89, {sCB}, 12
s_add_u32 s88, s88, s89
s_add_u32 s88, s88, {sW1K}
s_add_u32 s88, s88, {WS_O[L]}
s_add_u32 s89, s88, 32768""")
        alt, st = self.stores([f'buffer_store_dwordx4 {vr(PP,4)}, {vL16}, {SWS}, s88 offen', f'buffer_store_dwordx4 {vr(PP+4,4)}, {vL16}, {SWS}, s89 offen'])
        p(alt)
        self.ts(f'p1_attn{L}')
        self.post_flag(1 + 5*L, st)
        self.ts(f'p1_end{L}')
        return w2tok

    def tile_epilogue(self, kind, L):
        p = self.p
        OWN, OTH, X = 40, 56, 104
        p(f'v_add_u32 v120, {sW4K}, {vL16}\nv_xor_b32 v121, 8192, v120')
        ws = [p(f'ds_write_b128 v120, {vr(OTH+4*q,4)} offset:{L_XB + q*1024}', lds=[(L_XB + w*4096 + q*1024, L_XB + w*4096 + q*1024 + 1024) for w in range(4)]) for q in range(4)]
        for i in range(8):
            p(f'v_lshlrev_b32 v{72+2*i}, 16, v{RES+i}\nv_and_b32 v{73+2*i}, 0xffff0000, v{RES+i}')
        for i in range(16): p(f'v_add_f32 v{OWN+i}, v{OWN+i}, v{72+i}')
        p(WaitTok(ws)); p('s_barrier')
        for q in range(4):
            p(f'ds_read_b128 {vr(X+4*q,4)}, v121 offset:{L_XB + q*1024}', lds=[(L_XB + w*4096 + q*1024, L_XB + w*4096 + q*1024 + 1024) for w in range(4)])
        for i in range(16): p(f'v_add_f32 v{OWN+i}, v{OWN+i}, v{X+i}')
        for i in range(8): p(f'v_cvt_pk_bf16_f32 v{RES+i}, v{OWN+2*i}, v{OWN+2*i+1}')
        if kind == 'out':
            p(f'buffer_store_dwordx4 {vr(RES,4)}, {vRM}, {SOUT}, {sROW} offen')
            p(f'buffer_store_dwordx4 {vr(RES+4,4)}, {vRM}, {SOUT}, {sROW} offen offset:32')
            return None
        if kind == 'x1':
            p(f"""s_lshl_b32 s88, {sRB}, 15
s_lshl_b32 s89, {sCB}, 12
s_add_u32 s88, s88, s89
s_lshr_b32 s89, {sW}, 1
s_lshl_b32 s89, s89, 11
s_add_u32 s88, s88, s89
s_add_u32 s88, s88, {WS_X1[L]}""")
            alt, st = self.stores([f'buffer_store_dwordx4 {vr(RES,4)}, {vL16}, {SWS}, s88 offen', f'buffer_store_dwordx4 {vr(RES+4,4)}, {vL16}, {SWS}, s88 offen offset:1024'])
            stb = WS_ST1[L]
        else:
            p(f's_add_u32 s88, {sROW}, {WS_X2}')
            alt, st = self.stores([f'buffer_store_dwordx4 {vr(RES,4)}, {vRM}, {SWS}, s88 offen', f'buffer_store_dwordx4 {vr(RES+4,4)}, {vRM}, {SWS}, s88 offen offset:32'])
            stb = WS_ST2
        p(alt)
        for i in range(8):
            p(f'v_lshlrev_b32 v{72+2*i}, 16, v{RES+i}\nv_and_b32 v{73+2*i}, 0xffff0000, v{RES+i}')
        p('v_add_f32 v104, v72, v73\nv_mul_f32 v105, v72, v72\nv_add_f32 v106, v74, v75\nv_mul_f32 v107, v73, v73')
        for i in range(2, 16):
            if i >= 4: p(f'v_add_f32 v{104+2*(i&1)}, v{104+2*(i&1)}, v{72+i}')
            p(f'v_fmac_f32 v{105+2*(i&1)}, v{72+i}, v{72+i}')
        p(f"""v_add_f32 v104, v104, v106
v_add_f32 v105, v105, v107
v_permlane32_swap_b32 v104, v105
v_add_f32 v104, v104, v105
v_and_b32 v106, 31, {vL}
v_lshlrev_b32 v106, 3, v106
v_lshrrev_b32 v107, 5, {vL}
v_lshl_add_u32 v106, v107, 2, v106
s_lshl_b32 s88, {sRB}, 12
s_lshl_b32 s89, {sCB}, 9
s_add_u32 s88, s88, s89
s_lshr_b32 s89, {sW}, 1
s_lshl_b32 s89, s89, 8
s_add_u32 s88, s88, s89
s_add_u32 s88, s88, {stb}""")
        alt2, st2 = self.stores([f'buffer_store_dword v104, v106, {SWS}, s88 offen'])
        p(alt2)
        return st + st2

    def wfrag_reads(self, k, base, va, vb, lo):
        WR = 72
        r = WR + 8*(k % 4)
        out = []
        for h, ad in ((0, va), (1, vb)):
            for rd in range(2):
                out.append(Ins(f'ds_read_b64_tr_b16 {vr(r+4*h+2*rd,2)}, {ad} offset:{base + rd*512}', lds=lo))
        return out
    def tile_mfmas(self, k, z):
        r = 72 + 8*(k % 4); a = vr(128 + 4*(k % 16), 4)
        return [f'v_mfma_f32_32x32x16_bf16 {vr(56,16)}, {vr(r+4,4)}, {a}, {0 if z else vr(56,16)}',
                f'v_mfma_f32_32x32x16_bf16 {vr(40,16)}, {vr(r,4)}, {a}, {0 if z else vr(40,16)}']

    def w3_load_simple(self, c, stg, nslot):
        p = self.p
        l = self.lab('w3')
        p(f'v_add_u32 v122, {stg}, {vW3r}')
        for k0 in range(0, 32, nslot):
            ks = list(range(k0, min(32, k0 + nslot)))
            d = [self.w3_piece(c, k, stg + (k - k0)*4096) for k in ks]
            p('s_barrier')
            p(d); p(WaitTok([x[2] for x in d])); p('s_barrier')
            rs = []
            for k in ks:
                r = self.w3_reads(c, k, stg + (k - k0)*4096, 'v122', stg); p(r); rs += r
            p(WaitTok(rs))
    def colsum3(self, c):
        p = self.p
        p(f"""v_lshrrev_b32 v168, 2, {vL}
v_lshrrev_b32 v169, 4, {vL}
v_xor_b32 v168, v168, v169
v_and_b32 v168, 1, v168
v_cmp_eq_u32 vcc, 0, v168
v_mov_b32 v169, 0x3f803f80
v_cndmask_b32 v164, 0, v169, vcc
v_mov_b32 v165, v164
v_mov_b32 v166, v164
v_mov_b32 v167, v164""")
        for ks in range(32):
            p(f'v_mfma_f32_16x16x32_bf16 v[160:163], v[164:167], {ar(c*128+4*ks,4)}, {0 if ks == 0 else "v[160:163]"}')
        p(f"""v_and_b32 v168, 31, {vL}
s_lshl_b32 s88, {sW}, 8
s_add_u32 s88, s88, {L_CS3 + c*128}
v_lshl_add_u32 v168, v168, 2, s88""")
        x = p('ds_write_b32 v168, v160', lds=(L_CS3, L_CS3 + 1024), private=True)
        p(WaitTok([x]))

    def p2(self, L, w2tok):
        p = self.p
        p(f"""s_lshr_b32 s88, {sW}, 1
s_lshl_b32 s89, s88, 15
s_add_u32 s89, s89, {L_W2}
v_add_u32 v122, s89, {vWown}
v_add_u32 v123, s89, {vWoth}
s_lshl_b32 s88, s88, 14
s_lshl_b32 s92, {sRB}, 15
s_add_u32 s92, s92, s88
s_add_u32 s92, s92, {WS_O[L]}""")
        p(WaitTok(w2tok)); p('s_barrier')
        rd = lambda k: self.wfrag_reads(k, k*2048, 'v122', 'v123', [(L_W2 + h*32768 + k*2048, L_W2 + h*32768 + k*2048 + 2048) for h in range(2)])
        for k in range(3): p(rd(k))
        self.poll(1 + 5*L, sMK2)
        self.ts(f'p2_go{L}')
        for k in range(16):
            if k % 4 == 0: p(f's_add_u32 {sT}, s92, {k*1024}')
            p(f'buffer_load_dwordx4 {vr(128+4*k,4)}, {vL16}, {SWS}, {sT} offen offset:{(k%4)*1024} sc1')
        spine = []; fill = {}
        for k in range(16):
            spine += self.tile_mfmas(k, k == 0)
            if k + 3 < 16:
                r = rd(k+3)
                put(fill, 2*k, r[0], r[1]); put(fill, 2*k+1, r[2], r[3])
        weave(p, spine, fill)
        self.ts(f'p2_mm{L}')
        st = self.tile_epilogue('x1', L)
        self.ts(f'p2_epi{L}')
        self.post_flag(2 + 5*L, st)
        self.ts(f'p2_end{L}')

    def p3(self, L):
        p = self.p
        ACC, AF, CS, TK, T, HO = 40, 72, 96, 112, 144, 136
        lskip = self.lab('p3skip')
        w4 = {}
        p('s_barrier')
        d = self.w4_stage(0); p(d); w4[0] = [x[2] for x in d]
        p(WaitTok(w4[0]))
        p(f's_cmp_lg_u32 {sIDLE}, 0\ns_cbranch_scc1 {lskip}')
        self.poll(2 + 5*L, 'exec')
        self.ts(f'p3_go{L}')
        p(f"""s_lshl_b32 s92, {sG16}, 17
s_add_u32 s92, s92, {sW2K}
s_lshl_b32 s88, {sG16}, 2
s_add_u32 s88, s88, {sW}
s_lshl_b32 s88, s88, 12""")
        atok = {}
        def adma(rb, s):
            o = rb*32768 + s*8192
            d = self.dma(vL16, SWS, 's92', WS_X1[L] + o, sW2K, o, [(o + q*2048, o + q*2048 + 1024) for q in range(4)], sc1=True)
            d2 = Ins(f'buffer_load_dwordx4 {vL16}, {SWS}, {sT} offen offset:1024 sc1 lds', lds=[(o + q*2048 + 1024, o + q*2048 + 2048) for q in range(4)])
            atok[(rb, s)] = [d[2], d2]
            return d + [d2]
        p(adma(0, 0))
        p(self.stats_partials_issue(WS_ST1[L], 's88', 176))
        for s in range(1, 4): p(adma(0, s))
        for s in range(4): p(adma(1, s))
        if self.fine == 'p3' and L == 1: self.ts('issued')
        p(self.stats_partials_reduce(176))
        p(self.stats_final('v176', 'v177', 'v178'))
        p(f"""v_mul_f32 v179, {f2u(-LOG2E)}, v177
v_and_b32 v180, 15, {vL}
v_lshlrev_b32 v180, 5, v180
v_bfe_u32 v181, {vL}, 4, 1
v_lshl_add_u32 v180, v181, 4, v180
s_lshl_b32 s88, {sW}, 9
s_add_u32 s88, s88, {L_T3}
v_add_u32 v180, s88, v180""")
        tw = p('ds_write_b128 v180, v[176:179]', lds=(L_T3, L_T3 + 2048))
        p(f"""v_add_u32 v124, 65536, {vL16}
v_and_b32 v125, 31, {vL}
v_lshlrev_b32 v125, 4, v125
v_add_u32 v125, {L_T3}, v125
v_lshrrev_b32 v126, 5, {vL}
v_lshlrev_b32 v126, 4, v126
s_lshl_b32 s88, {sW}, 8
s_add_u32 s88, s88, {L_CS3}
v_add_u32 v126, s88, v126
s_lshl_b32 s93, {sG16}, 2
s_mul_i32 s93, s93, 114688
s_lshl_b32 s88, {sM16}, 13
s_add_u32 s93, s93, s88
s_add_u32 s93, s93, {sW1K}
s_add_u32 s93, s93, {WS_H[L]}""")
        tiles = [(c, rb) for c in range(2) for rb in range(4)]
        NR = 6
        def aread(n):
            ti, ks = divmod(n, 32); rb = tiles[ti][1]
            o = rb*32768 + ks*1024
            return Ins(f'ds_read_b128 {vr(AF+4*(n % NR),4)}, {"v124" if o >= 65536 else vL16} offset:{o % 65536}', lds=(o, o+1024))
        def epilogue(ti):
            c, rb = tiles[ti]
            A = ACC + 16*(ti & 1); tk = TK + 4*(ti & 1); ho = HO + 4*(ti & 1)
            o = []
            gi = lambda i: (i >> 2)*8 + (i & 3)
            for i in range(8): o.append(f'v_fmac_f32 v{A+gi(i)}, v{tk}, v{CS+gi(i)}')
            for i in range(8): o.append(f'v_mul_f32 v{A+gi(i)}, v{tk+3}, v{A+gi(i)}')
            for i in range(8):
                o.append(f'v_exp_f32 v{A+gi(i)}, v{A+gi(i)}'); o.append(f'v_fmac_f32 v{A+gi(i)+4}, v{tk}, v{CS+gi(i)+4}')
            for i in range(8): o.append(f'v_fma_f32 v{A+gi(i)}, v{A+gi(i)}, v{tk+2}, v{tk+2}')
            for i in range(8):
                o.append(f'v_rcp_f32 v{A+gi(i)}, v{A+gi(i)}')
                if i: o.append(f'v_mul_f32 v{A+gi(i-1)}, v{A+gi(i-1)}, v{A+gi(i-1)+4}')
            o.append(f's_add_u32 s94, s93, {rb*114688 + c*4096}')
            o.append(f'v_mul_f32 v{A+gi(7)}, v{A+gi(7)}, v{A+gi(7)+4}')
            for i in range(4): o.append(f'v_cvt_pk_bf16_f32 v{ho+i}, v{A+gi(2*i)}, v{A+gi(2*i+1)}')
            alt, st = self.stores([f'buffer_store_dwordx4 {vr(ho,4)}, {vL16}, {SWS}, s94 offen'])
            o.append(alt)
            return o, st
        def csreads(c):
            return [Ins(f'ds_read_b128 {vr(CS+4*i,4)}, v126 offset:{c*128 + i*32}', lds=(L_CS3, L_CS3+1024), private=True) for i in range(4)]
        if self.fine == 'p3' and L == 1: self.ts('stats')
        p(WaitTok(atok[(0, 0)] + [tw])); p('s_barrier')
        for n in range(NR - 1): p(aread(n))
        p(csreads(0))
        sts = []
        for ti, (c, rb) in enumerate(tiles):
            spine = []; fill = {}
            A = vr(ACC + 16*(ti & 1), 16)
            for ks in range(32):
                n = ti*32 + ks
                spine.append(f'v_mfma_f32_32x32x16_bf16 {A}, {ar(c*128+4*ks,4)}, {vr(AF+4*(n % NR),4)}, {0 if ks == 0 else A}')
                m = n + NR - 1
                if m < 256:
                    mt, mk = divmod(m, 32)
                    if mt < 4 and mk % 8 == 0 and (mt == 0 or mk == 0):
                        need = atok[(mt, mk // 8)] if mt == 0 else sum((atok[(mt, s)] for s in range(4)), [])
                        put(fill, ks, WaitTok(need), 's_barrier')
                    put(fill, ks, aread(m))
            put(fill, 20, Ins(f'ds_read_b128 {vr(TK+4*(ti&1),4)}, v125 offset:{rb*512}', lds=(L_T3, L_T3+2048)))
            if ti in (0, 1):
                for s in range(4): put(fill, 2 + 6*s, adma(ti + 2, s))
            if ti > 0:
                e, st = epilogue(ti - 1); sts.append(st)
                spread(fill, e, 3, 30)
            if ti == 4: put(fill, 31, csreads(1))
            if ti == 5:
                fl = Prog(); sv = self.p; self.p = fl
                self.post_flag(3 + 5*L, sum(sts[:4], [])); self.p = sv
                put(fill, 8, fl.items)
            if ti >= 5:
                put(fill, 1, 's_barrier')
                dm = self.w4_stage(2*(ti-5) + 1) + self.w4_stage(2*(ti-5) + 2)
                w4[2*(ti-5)+1] = [x[2] for x in dm[:4]]; w4[2*(ti-5)+2] = [x[2] for x in dm[4:]]
                spread(fill, dm, 4, 28)
            if L == 0 and ti == 4:
                self.ts('p3_w3b_0')
                self.w3_load_simple(1, 147456, 3); self.colsum3(1)
                self.ts('p3_w3b_1')
            if self.fine == 'p3' and L == 1: self.ts(f't{ti}')
            weave(p, spine, fill)
        self.ts(f'p3_mm{L}')
        e, st = epilogue(7); sts.append(st); p(e)
        self.ts(f'p3_epi{L}')
        self.post_flag(4 + 5*L, sum(sts[4:], []))
        lj = self.lab('p3join')
        p('s_waitcnt vmcnt(0)')
        p('s_barrier')
        p(f'{lj}:')
        q = Prog(check_lds=False)
        q(f'{lskip}:')
        for s in range(1, 7): q(self.w4_stage(s))
        q(f's_waitcnt vmcnt(0)\ns_barrier\ns_branch {lj}')
        self.slow.append(q.finalize())
        self.ts(f'p3_end{L}')
        return w4

    def p4(self, L, w4):
        p = self.p
        d = self.w4_stage(7) + self.w4_stage(8)
        w4[7] = [x[2] for x in d[:4]]; w4[8] = [x[2] for x in d[4:]]
        p(f"""s_lshr_b32 s88, {sW}, 1
s_lshl_b32 s89, s88, 13
v_add_u32 v122, s89, {vWown}
v_add_u32 v123, s89, {vWoth}
v_add_u32 v124, 65536, v122
v_add_u32 v125, 65536, v123
v_add_u32 v126, 131072, v122
v_add_u32 v127, 131072, v123
s_mul_i32 s88, s88, 57344
s_mul_i32 s92, {sRB}, 114688
s_add_u32 s92, s92, s88
s_add_u32 s92, s92, {WS_H[L]}""")
        self.poll(3 + 5*L, sMK4)
        self.ts(f'p4_go{L}')
        def aload(k):
            s, w = divmod(k, 4); c, j = divmod(s, 7)
            o = []
            if w == 0: o.append(Ins(f's_add_u32 s94, s92, {(8*j + 4*c)*1024}'))
            o.append(Ins(f'buffer_load_dwordx4 {vr(128+4*(k%16),4)}, {vL16}, {SWS}, s94 offen offset:{w*1024} sc1'))
            return o
        def rd(k):
            s, w = divmod(k, 4)
            b = self.W4SLOT[s]*16384 + w*2048
            va, vb = [('v122', 'v123'), ('v124', 'v125'), ('v126', 'v127')][b >> 16]
            return self.wfrag_reads(k, b & 65535, va, vb, [(b + h*8192, b + h*8192 + 2048) for h in range(2)])
        DA = 12
        for k in range(DA): p(aload(k))
        p(d)
        for k in range(3): p(rd(k))
        spine = []; fill = {}
        pre = {}
        allreads = {}
        for k in range(56):
            spine += self.tile_mfmas(k, k == 0)
            m = k + 3
            if m < 56:
                s, w = divmod(m, 4)
                if w == 0:
                    put(fill, 2*k, WaitTok(w4[s] + allreads.get(s-2, [])), 's_barrier')
                    ns = s + 7
                    if 9 <= ns < 14:
                        dm = self.w4_stage(ns); w4[ns] = [x[2] for x in dm]
                        for i, x in enumerate(dm): put(fill, 2*k + 1 + 2*i, x)
                    if L == 0 and s >= 9:
                        todo = {9: [0], 10: [1, 2], 11: [3, 6], 12: [4], 13: [5]}[s]
                        dm = []
                        for st_ in todo:
                            x = self.w1_stage(st_); pre[st_] = [y[2] for y in x]; dm += x
                        for i, x in enumerate(dm): put(fill, 2*k + 1 + i, x)
                r = rd(m); allreads.setdefault(s, []).extend(r)
                put(fill, 2*k, r[0], r[1]); put(fill, 2*k+1, r[2], r[3])
            m = k + DA
            if m == 28 - 4: put(fill, 2*k, self.poll_issue(vT0))
            if m == 28: put(fill, 2*k, self.poll_check(vT0, 4 + 5*L, sMK4))
            if m < 56: put(fill, 2*k + 1, aload(m))
            if self.fine == f'p4{L}' and k % 4 == 0:
                fl = Prog(); sv = self.p; self.p = fl; self.ts(f's{k//4}'); self.p = sv
                put(fill, 2*k, fl.items)
        weave(p, spine, fill)
        self.ts(f'p4_mm{L}')
        p('s_barrier')
        st = self.tile_epilogue('x2' if L == 0 else 'out', L)
        self.ts(f'p4_epi{L}')
        if L == 0:
            self.post_flag(5, st)
            p('s_barrier')
        self.ts(f'p4_end{L}')
        return pre

    def build(self):
        p = self.p
        self.prologue()
        pre = {}
        for L in range(2):
            w2 = self.p1(L, pre)
            if self.stop == f'p1_{L}': break
            if L == 0:
                l = self.lab('w3a')
                p('s_waitcnt vmcnt(0) lgkmcnt(0)')
                p(f's_cmp_lg_u32 {sIDLE}, 0\ns_cbranch_scc1 {l}')
                self.w3_load_simple(0, L_STG, 14); self.colsum3(0)
                p(f's_nop 7\n{l}:')
                self.ts('w3a')
            self.p2(L, w2)
            if self.stop == f'p2_{L}': break
            w4 = self.p3(L)
            if self.stop == f'p3_{L}': break
            pre = self.p4(L, w4)
            if self.stop == f'p4_{L}': break
        if self.ts_on:
            self.ts('end')
            p(f's_lshl_b32 s88, s2, 2\ns_add_u32 s88, s88, {sW}\ns_lshl_b32 s88, s88, 8\ns_add_u32 s88, s88, {WS_TS}\nv_lshlrev_b32 v40, 2, {vL}')
            p('s_memrealtime s[62:63]'); p(f'v_writelane_b32 {vTS}, s62, 62')
            p(f'buffer_store_dword {vTS}, v40, {SWS}, s88 offen')
            if self.dbgts:
                sel = [self.tsn.index(n) for n in self.dbgts] + [62, 63]
                l = self.lab('dbg')
                p(f's_lshl_b32 s88, s2, 2\ns_add_u32 s88, s88, {sW}\ns_cmp_lg_u32 s88, {self.dbgwg*4}\ns_cbranch_scc1 {l}')
                p(f'v_readlane_b32 s89, {vTS}, 0')
                for i, s in enumerate(sel):
                    p(f'v_readlane_b32 s88, {vTS}, {s}')
                    if s < 62: p('s_sub_u32 s88, s88, s89')
                    p(f'v_writelane_b32 v41, s88, {i}')
                p(f's_mov_b64 exec, 0xffff\nbuffer_store_dword v41, v40, {SDBG}, 0 offen sc1\ns_mov_b64 exec, -1\n{l}:')
        p('s_waitcnt vmcnt(0)')
        body = p.finalize()
        head = open('cdna_kernels/' + NAME + '.s.ref').read().split('; Override launch')[0]
        txt = head + '; @launch grid=(256,1,1) block=(256,1,1) lds=163840\n'
        txt += f'.amdgcn_target "amdgcn-amd-amdhsa--gfx950"\n.text\n.globl {NAME}_kernel\n.p2align 8\n.type {NAME}_kernel,@function\n{NAME}_kernel:\n'
        txt += body + 'L_end:\ns_endpgm\n' + '\n'.join(getattr(p, 'tail', [])) + '\n' + '\n'.join(self.slow) + '\n'
        txt += f""".section .rodata,"a"
.p2align 6
.amdhsa_kernel {NAME}_kernel
  .amdhsa_next_free_vgpr 512
  .amdhsa_next_free_sgpr 102
  .amdhsa_accum_offset 256
  .amdhsa_group_segment_fixed_size 0
  .amdhsa_kernarg_size 80
  .amdhsa_user_sgpr_count 2
  .amdhsa_user_sgpr_kernarg_segment_ptr 1
  .amdhsa_system_sgpr_workgroup_id_x 1
  .amdhsa_float_denorm_mode_32 3
.end_amdhsa_kernel
"""
        return txt

if __name__ == '__main__':
    import argparse
    ap = argparse.ArgumentParser()
    ap.add_argument('-o', default='k.s'); ap.add_argument('--ts', action='store_true'); ap.add_argument('--stop'); ap.add_argument('--nomimic', action='store_true'); ap.add_argument('--glob', action='store_true'); ap.add_argument('--fine'); ap.add_argument('--dbg')
    a = ap.parse_args()
    g = Gen(ts=a.ts, stop=a.stop, mimic=not a.nomimic, force_global=a.glob, fine=a.fine)
    if a.dbg: g.dbgts = a.dbg.split(',')
    open(a.o, 'w').write(g.build())
    if a.ts: open(a.o + '.ts', 'w').write('\n'.join(g.tsn))
    print(g.p.stats)
```

```python
import sys
from asmlib import *

NAME = 'interleave_layers__sliding_local_dilated__glu_gated_glu__prompt'
MB = 1 << 20
WS_O = [0, 2*MB]; WS_X1 = [4*MB, 6*MB]; WS_X2 = 8*MB
WS_ST1 = [10*MB, 10*MB + (256 << 10)]; WS_ST2 = 10*MB + (512 << 10)
WS_HB = 11*MB; WS_HS = 12*MB; WS_FL = 13*MB; WS_TS = 14*MB
WS_H = [16*MB, 24*MB]

SX, SWQKV, SWO, SW3, SWD, SOUT, SWS, SDBG = 's[4:7]', 's[8:11]', 's[12:15]', 's[16:19]', 's[20:23]', 's[24:27]', 's[28:31]', 's[32:35]'
sW, sMODE, sT, sROW, sHALO, sG, sG16, sM16, sCB, sW1K, sW4K, sHASP, sPG = ['s%d' % i for i in range(36, 49)]
sIDLE = 's49'
sMK2, sMK4, sMK1 = 's[50:51]', 's[52:53]', 's[54:55]'
sA1, sRB, sSPIN, sT2 = 's56', 's57', 's58', 's59'
sXCC, sW2K = 's60', 's61'
vL, vL16, vA1e, vA1o, vW1d, vW1r0, vW1r1, vA1r0, vA1r1, vW2d, vW4d, vWown, vWoth, vRM, vFLp, vFLo = ['v%d' % i for i in range(16)]
RES = 16
CSQ, CSK, CSV = 24, 28, 32
vW3d, vW3r, vT0, vTS = 'v36', 'v37', 'v38', 'v39'
L_A1 = 0; L_A1H = 65536; L_R1 = 73728; L_TAB = 159744
L_W2 = L_TAB - 65536
L_XB = 0
L_STG = 16384
L_NM = L_TAB; L_RS = L_TAB + 320
L_T3 = L_TAB
L_CS3 = L_TAB + 2048
LOG2E = 1.4426950408889634
import struct
def f2u(x): return '0x%08x' % struct.unpack('<I', struct.pack('<f', x))[0]
def vr(a, n): return f'v[{a}:{a+n-1}]' if n > 1 else f'v{a}'
def ar(a, n): return f'a[{a}:{a+n-1}]'

class Gen:
    def __init__(self, ts=False, mimic=True, stop=None, force_global=False, fine=None):
        self.fine = fine; self.amp = None; self.dbgts = None; self.dbgwg = 0
        self.p = Prog(); self.ts_on = ts; self.mimic = mimic; self.nts = 0; self.tsn = []
        self.slow = []; self.nlab = 0; self.stop = stop; self.force_global = force_global

    def lab(self, s):
        self.nlab += 1; return f'L{s}{self.nlab}'
    def ts(self, name):
        if self.amp and name == self.amp[0]: self.p('s_memrealtime s[96:97]\ns_waitcnt lgkmcnt(0)')
        if self.amp and name == self.amp[1]: self.p('s_memrealtime s[98:99]\ns_waitcnt lgkmcnt(0)')
        if not self.ts_on: return
        p = self.p
        p('s_memtime s[62:63]'); p(f'v_writelane_b32 {vTS}, s62, {self.nts}')
        self.tsn.append(name); self.nts += 1

    def dma(self, voff, srd, sbase, goff, lbase, loff, lds, sc1=False):
        a = Ins(f's_add_u32 m0, {lbase}, {loff}') if lbase else Ins(f's_mov_b32 m0, {loff}')
        b = Ins(f's_add_u32 {sT}, {sbase}, {goff}') if sbase else Ins(f's_mov_b32 {sT}, {goff}')
        c = Ins(f'buffer_load_dwordx4 {voff}, {srd}, {sT} offen{" sc1" if sc1 else ""} lds', lds=lds)
        return [a, b, c]
    def stores(self, texts):
        a = [Ins(t) for t in texts]; b = [Ins(t + ' sc1') for t in texts]
        return Alt(sMODE, a, b), a
    def post_flag(self, val, toks):
        p = self.p
        p(f'v_mov_b32 {vT0}, {val}')
        p(WaitTok(toks))
        p('s_mov_b64 exec, 1')
        alt, a = self.stores([f'buffer_store_dword {vT0}, {vFLo}, {SWS}, 0 offen'])
        p(alt)
        p('s_mov_b64 exec, -1')
    def poll_issue(self, vf):
        return Ins(f'buffer_load_dword {vf}, {vFLp}, {SWS}, 0 offen sc1')
    def poll_check(self, vf, val, mask):
        ls, lb = self.lab('ps'), self.lab('pb')
        items = [Ins(f'v_cmp_gt_u32 vcc, {val}, {vf}')]
        items.append(Ins(f's_and_b64 vcc, vcc, {mask}'))
        items.append(Ins(f's_cbranch_scc1 {ls}'))
        items.append(Ins(f'{lb}:'))
        self.slow.append(f"""{ls}:
s_mov_b32 {sSPIN}, 0
{ls}_l:
buffer_load_dword {vf}, {vFLp}, {SWS}, 0 offen sc1
s_add_u32 {sSPIN}, {sSPIN}, 1
s_cmp_gt_u32 {sSPIN}, 30000
s_cbranch_scc1 {ls}_x
s_waitcnt vmcnt(0)
v_cmp_gt_u32 vcc, {val}, {vf}
s_nop 0
s_and_b64 vcc, vcc, {mask}
s_cbranch_scc1 {ls}_l
{ls}_x:
s_waitcnt vmcnt(0)
s_branch {lb}""")
        return items
    def poll(self, val, mask):
        self.p(self.poll_issue(vT0)); self.p(self.poll_check(vT0, val, mask))

    def prologue(self):
        p = self.p
        p('s_cmp_ge_u32 s2, 256'); p('s_cbranch_scc1 L_end')
        p('s_load_dwordx16 s[64:79], s[0:1], 0'); p('s_load_dwordx4 s[80:83], s[0:1], 64')
        p(f'v_lshrrev_b32 v1, 6, v0\nv_and_b32 {vL}, 63, v0\nv_readfirstlane_b32 {sW}, v1')
        if self.ts_on:
            p(f'v_mov_b32 {vTS}, 0'); p('s_memrealtime s[62:63]'); p(f'v_writelane_b32 {vTS}, s62, 63')
        self.ts('start')
        p(f"""s_getreg_b32 {sXCC}, hwreg(HW_REG_XCC_ID)
s_and_b32 {sXCC}, {sXCC}, 15
s_add_u32 {sXCC}, {sXCC}, 1
s_and_b32 s84, s2, 7
s_lshr_b32 s85, s2, 3
s_lshr_b32 s86, s85, 3
s_and_b32 {sCB}, s85, 7
s_and_b32 {sM16}, s85, 15
s_lshl_b32 {sG}, s84, 2
s_add_u32 {sG}, {sG}, s86
s_lshr_b32 {sG16}, {sG}, 1
s_lshr_b32 s87, s84, 1
s_lshl_b32 s87, s87, 2
s_add_u32 s87, s87, s86
s_lshl_b32 {sROW}, s87, 17
s_and_b32 s88, s84, 1
s_lshl_b32 s88, s88, 10
s_add_u32 {sROW}, {sROW}, s88
s_cmp_eq_u32 s86, 0
s_cselect_b32 s88, 5, 1
s_sub_u32 {sPG}, {sG}, s88
s_cmp_eq_u32 s87, 0
s_cselect_b32 {sPG}, {sG}, {sPG}
s_cselect_b32 {sHASP}, 0, 1
s_cselect_b32 s88, 0, 16384
s_sub_u32 {sHALO}, {sROW}, s88
s_lshl_b32 {sW1K}, {sW}, 10
s_lshl_b32 {sW2K}, {sW}, 11
s_lshl_b32 {sW4K}, {sW}, 12
s_cmp_ge_u32 {sM16}, 14
s_cselect_b32 {sIDLE}, 1, 0
s_and_b32 s88, {sW}, 1
s_lshl_b32 {sRB}, {sG}, 1
s_add_u32 {sRB}, {sRB}, s88
s_lshl_b32 {sA1}, {sW}, 15
s_add_u32 {sA1}, {sA1}, {sROW}""")
        p(f"""s_and_b32 s88, s86, 1
s_lshl_b32 s88, s88, 5
s_lshr_b32 s89, {sW}, 1
s_mov_b32 s90, -1
s_mov_b32 s91, 0
s_lshl_b64 {sMK1}, s[90:91], s88
s_lshl_b32 s92, s89, 4
s_add_u32 s92, s92, s88
s_mov_b32 s90, 0xffff
s_lshl_b64 {sMK2}, s[90:91], s92
s_mul_i32 s92, s89, 28
s_mov_b32 s90, 0xfffffff
s_lshl_b64 {sMK4}, s[90:91], s92""")
        t = [f'v{i}' for i in range(40, 56)]
        p(f"""v_lshlrev_b32 {vL16}, 4, {vL}
v_lshrrev_b32 {t[0]}, 3, {vL}
v_and_b32 {t[1]}, 7, {vL}
v_lshrrev_b32 {t[2]}, 1, {t[0]}
v_xor_b32 {t[3]}, {t[1]}, {t[2]}
v_lshlrev_b32 {t[3]}, 4, {t[3]}
v_lshl_add_u32 {vA1e}, {t[0]}, 11, {t[3]}
v_xor_b32 {vA1o}, 64, {vA1e}
v_and_b32 {t[4]}, 1, {t[2]}""")
        p(f"""s_and_b32 s88, {sW}, 1
s_lshl_b32 s88, s88, 2
v_lshl_add_u32 {t[5]}, {t[4]}, 1, s88
v_xor_b32 {t[5]}, {t[5]}, {t[1]}
v_lshlrev_b32 {t[5]}, 4, {t[5]}
s_mul_i32 s88, {sW}, 24576
s_lshl_b32 s89, {sCB}, 7
s_add_u32 s88, s88, s89
v_mul_u32_u24 {t[6]}, 3072, {t[0]}
v_add3_u32 {vW1d}, {t[5]}, {t[6]}, s88
s_lshr_b32 s90, {sW}, 1
s_mul_i32 s88, s90, 28672
s_lshl_b32 s91, {sM16}, 8
s_add_u32 s88, s88, s91
v_mul_u32_u24 {t[6]}, 3584, {t[0]}
v_add3_u32 {vW3d}, {t[5]}, {t[6]}, s88""")
        p(f"""v_lshlrev_b32 {t[5]}, 2, {t[4]}
v_xor_b32 {t[5]}, {t[5]}, {t[1]}
v_lshlrev_b32 {t[5]}, 4, {t[5]}
v_lshl_add_u32 {t[5]}, {t[0]}, 10, {t[5]}
s_lshl_b32 s88, {sW}, 13
s_add_u32 s88, s88, s89
v_add_u32 {vW2d}, s88, {t[5]}
s_mul_i32 s88, s90, {7*128*1024}
s_and_b32 s91, {sW}, 1
s_lshl_b32 s91, s91, 15
s_add_u32 s88, s88, s91
s_add_u32 s88, s88, s89
v_add_u32 {vW4d}, s88, {t[5]}""")
        p(f"""v_lshrrev_b32 {t[0]}, 4, {vL}
v_and_b32 {t[1]}, 15, {vL}
v_lshrrev_b32 {t[2]}, 2, {t[1]}
v_and_b32 {t[3]}, 3, {vL}
v_lshrrev_b32 {t[4]}, 1, {t[2]}
v_and_b32 {t[5]}, 1, {t[0]}
v_lshl_add_u32 {t[6]}, {t[5]}, 1, {t[4]}
v_xor_b32 {t[6]}, {sW}, {t[6]}
v_lshlrev_b32 {t[6]}, 5, {t[6]}
v_lshl_add_u32 {t[6]}, {t[3]}, 3, {t[6]}
v_lshl_add_u32 {t[6]}, {t[2]}, 7, {t[6]}
v_lshl_add_u32 {t[6]}, {t[0]}, 10, {t[6]}
v_add_u32 {vW1r0}, {L_R1}, {t[6]}
v_add_u32 {vW1r1}, {L_R1 + 49152}, {t[6]}
v_lshrrev_b32 {t[6]}, 1, {t[1]}
v_xor_b32 {t[6]}, {t[6]}, {t[0]}
v_lshlrev_b32 {t[6]}, 4, {t[6]}
v_lshl_add_u32 {vA1r0}, {t[1]}, 7, {t[6]}
v_xor_b32 {vA1r1}, 64, {vA1r0}""")
        p(f"""v_lshrrev_b32 {t[7]}, 1, {t[0]}
v_lshrrev_b32 {t[8]}, 1, {t[3]}
v_and_b32 {t[9]}, 1, {t[3]}
v_lshl_add_u32 {t[10]}, {t[9]}, 1, {t[8]}
v_lshl_add_u32 {t[10]}, {t[5]}, 2, {t[10]}
v_lshlrev_b32 {t[10]}, 3, {t[10]}
v_xor_b32 {t[11]}, s90, {t[4]}
v_lshl_add_u32 {t[10]}, {t[11]}, 6, {t[10]}
v_lshl_add_u32 {t[10]}, {t[2]}, 7, {t[10]}
v_lshl_add_u32 {vWown}, {t[7]}, 10, {t[10]}
v_xor_b32 {vWoth}, 64, {vWown}
v_lshl_add_u32 {t[10]}, {t[9]}, 1, {t[5]}
v_lshlrev_b32 {t[10]}, 3, {t[10]}
v_lshl_add_u32 {t[11]}, {t[8]}, 1, {t[4]}
v_xor_b32 {t[11]}, {sW}, {t[11]}
v_lshl_add_u32 {t[10]}, {t[11]}, 5, {t[10]}
v_lshl_add_u32 {t[10]}, {t[2]}, 7, {t[10]}
v_lshl_add_u32 {t[10]}, {t[8]}, 10, {t[10]}
v_lshl_add_u32 {vW3r}, {t[7]}, 11, {t[10]}""")
        p(f"""v_and_b32 {t[0]}, 31, {vL}
v_lshrrev_b32 {t[1]}, 5, {vL}
v_lshlrev_b32 {t[1]}, 4, {t[1]}
v_lshl_add_u32 {t[0]}, {t[0]}, 11, {t[1]}
s_and_b32 s88, {sW}, 1
s_lshl_b32 s88, s88, 16
s_lshl_b32 s91, s90, 6
s_add_u32 s88, s88, s91
s_add_u32 s88, s88, s89
v_add_u32 {vRM}, s88, {t[0]}
s_lshl_b32 s88, {sG16}, 8
s_add_u32 s88, s88, {WS_FL}
v_lshl_add_u32 {vFLp}, {vL}, 2, s88
s_lshl_b32 s91, {sM16}, 2
s_add_u32 s91, s91, {sW}
s_lshl_b32 s91, s91, 2
s_add_u32 s88, s88, s91
v_mov_b32 {vFLo}, s88""")
        def srd(base, lo, size):
            p(f's_mov_b32 s{base}, s{lo}\ns_and_b32 s{base+1}, s{lo+1}, 0xffff\ns_mov_b32 s{base+2}, {size}\ns_mov_b32 s{base+3}, 0x20000')
        srd(4, 64, 2*MB); srd(8, 66, 512*3072); srd(12, 68, 512*1024)
        p(f's_bitcmp1_b32 {sW}, 0\ns_cselect_b32 s72, s74, s72\ns_cselect_b32 s73, s75, s73')
        srd(16, 72, 512*3584); srd(20, 76, 1792*1024); srd(24, 78, 2*MB); srd(28, 82, 256*MB); srd(32, 80, 256)
        c = 40
        p(f"""v_mov_b32 v{c}, -1
v_mov_b32 v{c+1}, -1
v_mov_b32 v{c+2}, -1
v_mov_b32 v{c+3}, -1
v_mov_b32 v{c+4}, 0
v_lshrrev_b32 v{c+5}, 3, {vL}
v_and_b32 v{c+6}, 7, {vL}
v_lshlrev_b32 v{c+6}, 4, v{c+6}
v_lshl_add_u32 v{c+5}, v{c+5}, 11, v{c+6}
s_lshl_b32 s88, {sG}, 14
s_add_u32 s88, s88, s89
s_add_u32 s88, s88, {sW4K}
s_add_u32 s88, s88, {WS_HB}
s_lshl_b32 s91, {sG}, 7
s_lshl_b32 s92, {sW}, 4
s_add_u32 s91, s91, s92
s_add_u32 s91, s91, {WS_HS}
s_cmp_eq_u32 {sCB}, 0
s_cselect_b32 s91, s91, 0x7ff00000
v_mov_b32 v{c+6}, s91
s_mov_b64 exec, 0xffff""")
        self.clr = [p(f'buffer_store_dwordx4 {vr(c,4)}, v{c+5}, {SWS}, s88 offen sc1')]
        p('s_mov_b64 exec, 1')
        self.clr.append(p(f'buffer_store_dwordx4 {vr(c,4)}, v{c+6}, {SWS}, 0 offen sc1'))
        self.clr.append(p(f'buffer_store_dword v{c+4}, {vFLo}, {SWS}, 0 offen sc1'))
        p('s_mov_b64 exec, -1')

    def publish_xcc(self):
        l = self.lab('px')
        self.p(Raw(f"""s_cmp_lg_u32 {sW}, 0
s_cbranch_scc1 {l}
s_lshl_b32 s88, {sG}, 3
s_add_u32 s88, s88, {sCB}
v_mov_b32 v124, {sXCC}
v_mov_b32 v125, s88
s_mov_b64 exec, 1
buffer_store_byte v124, v125, {SDBG}, 0 offen sc1
s_mov_b64 exec, -1
{l}:""", wr=['v124', 'v125', 's88'], states=2))
    def mode_issue(self, va, vd):
        p = self.p
        p(f"""s_lshl_b32 s88, {sG16}, 4
s_lshl_b32 s89, {sPG}, 3
s_sub_u32 s89, s89, 16
s_lshl_b32 s90, {sG}, 3
s_add_u32 s90, s90, {sCB}
v_add_u32 {va}, s88, {vL}
v_add_u32 {vd}, s89, {vL}
v_cmp_gt_u32 vcc, 16, {vL}
v_cndmask_b32 {va}, {vd}, {va}, vcc
v_mov_b32 {vd}, s90
v_cmp_gt_u32 vcc, 24, {vL}
v_cndmask_b32 {va}, {vd}, {va}, vcc""")
        p(f'buffer_load_ubyte {vd}, {va}, {SDBG}, 0 offen sc1')
    def mode_check(self, va, vd):
        p = self.p
        ls, lb = self.lab('ms'), self.lab('mb')
        p(f'v_cmp_eq_u32 vcc, 0, {vd}\ns_and_b64 vcc, vcc, exec\ns_cbranch_scc1 {ls}\n{lb}:')
        self.slow.append(f"""{ls}:
s_mov_b32 {sSPIN}, 0
{ls}_l:
buffer_load_ubyte {vd}, {va}, {SDBG}, 0 offen sc1
s_add_u32 {sSPIN}, {sSPIN}, 1
s_cmp_gt_u32 {sSPIN}, 30000
s_cbranch_scc1 {ls}_x
s_waitcnt vmcnt(0)
v_cmp_eq_u32 vcc, 0, {vd}
s_nop 0
s_and_b64 vcc, vcc, exec
s_cbranch_scc1 {ls}_l
{ls}_x:
s_waitcnt vmcnt(0)
s_branch {lb}""")
        p(f'v_cmp_ne_u32 vcc, {sXCC}, {vd}\ns_and_b32 {sMODE}, vcc_lo, 0xffff')
        if self.force_global: p(f's_mov_b32 {sMODE}, 1')

    def stats_final(self, S, Q, t):
        o = [f'v_mul_f32 {S}, {f2u(-1/512)}, {S}', f'v_mul_f32 {Q}, {f2u(1/512)}, {Q}', f'v_fma_f32 {Q}, -{S}, {S}, {Q}', f'v_max_f32 {Q}, 0, {Q}']
        rnd = lambda x: [f'v_cvt_pk_bf16_f32 {x}, {x}, {x}', f'v_and_b32 {x}, 0xffff0000, {x}']
        if self.mimic:
            o += rnd(S) + rnd(Q) + [f'v_add_f32 {Q}, {f2u(1e-5)}, {Q}'] + rnd(Q) + [f'v_sqrt_f32 {t}, {Q}'] + rnd(t) + [f'v_rcp_f32 {Q}, {t}']
        else:
            o += [f'v_add_f32 {Q}, {f2u(1e-5)}, {Q}', f'v_sqrt_f32 {t}, {Q}', f'v_rcp_f32 {Q}, {t}']
        return o
    def stats_partials_issue(self, base, sbase, r):
        o = [Ins(f's_add_u32 {sT}, {sbase}, {base}')]
        for i in range(4): o.append(Ins(f'buffer_load_dwordx4 {vr(r+4*i,4)}, {vL16}, {SWS}, {sT} offen offset:{1024*i} sc1'))
        return o
    def stats_partials_reduce(self, r):
        o = []
        for j in range(4): o.append(f'v_add_f32 v{r+j}, v{r+j}, v{r+4+j}')
        for j in range(4): o.append(f'v_add_f32 v{r+8+j}, v{r+8+j}, v{r+12+j}')
        for j in range(4): o.append(f'v_add_f32 v{r+j}, v{r+j}, v{r+8+j}')
        o += [f'v_permlane16_swap_b32 v{r}, v{r+2}', f'v_permlane16_swap_b32 v{r+1}, v{r+3}',
              f'v_add_f32 v{r}, v{r}, v{r+2}', f'v_add_f32 v{r+1}, v{r+1}, v{r+3}',
              f'v_permlane32_swap_b32 v{r}, v{r+1}', f'v_add_f32 v{r}, v{r}, v{r+1}', f'v_mov_b32 v{r+1}, v{r}',
              f'v_permlane32_swap_b32 v{r}, v{r+1}']
        return o

    def w1_stage(self, s):
        slot = L_R1 + (s % 7) * 12288
        return [self.dma(vW1d, SWQKV, None, part*1024 + s*32*3072, sW1K, slot + part*4096, (slot + part*4096, slot + part*4096 + 4096)) for part in range(3)]
    def w2_piece(self, i):
        return self.dma(vW2d, SWO, None, i*32768, sW1K, L_W2 + i*4096, (L_W2 + i*4096, L_W2 + i*4096 + 4096))
    W4SLOT = [8, 0, 1, 2, 3, 4, 5, 6, 7, 8, 0, 1, 2, 3]
    def w4_stage(self, s):
        c, j = divmod(s, 7)
        slot = self.W4SLOT[s] * 16384
        return [self.dma(vW4d, SWD, None, (128*j + 64*c + 8*i)*1024, sW4K, slot + i*1024, [(slot + q*4096 + i*1024, slot + q*4096 + i*1024 + 1024) for q in range(4)]) for i in range(4)]
    def w3_piece(self, c, ks, stg):
        return self.dma(vW3d, SW3, None, ks*16*3584 + c*128, sW1K, stg, (stg, stg + 4096))
    def w3_reads(self, c, ks, stg, vaddr, vbase):
        a = c*128 + ks*4
        return [Ins(f'ds_read_b64_tr_b16 {ar(a+2*rd,2)}, {vaddr} offset:{stg - vbase + rd*512}', lds=(stg, stg+4096)) for rd in range(2)]

    def p1(self, L, pre):
        p = self.p
        QA, KA, VA, AF, WQ, ONE, WK, WV = 40, 56, 76, 96, 112, 120, 128, 192
        srdA = SX if L == 0 else SWS
        abase = 0 if L == 0 else WS_X2
        wtok = dict(pre)
        if L == 1:
            self.poll(5, sMK1)
        self.ts(f'p1_go{L}')
        atok = []
        for kc in range(8):
            tk = []
            for o in range(2):
                d = self.dma(vA1o if o else vA1e, srdA, sA1, abase + o*16384 + kc*128, sW2K, kc*8192 + o*1024,
                             [(kc*8192 + q*2048 + o*1024, kc*8192 + q*2048 + o*1024 + 1024) for q in range(4)], sc1=(L == 1))
                p(d); tk.append(d[2])
            atok.append(tk)
        def halo_dma():
            out = []
            for u in range(2):
                out.append(self.dma(vA1o, srdA, 's93', u*128, sW2K, L_A1H + u*1024, [(L_A1H + q*2048 + u*1024, L_A1H + q*2048 + u*1024 + 1024) for q in range(4)], sc1=(L == 1)))
            return out
        p(f's_lshl_b32 s93, {sW}, 8')
        if L == 0:
            p(f's_add_u32 s93, s93, {sHALO}')
            hd = halo_dma(); p(hd); htok = [d[2] for d in hd]
            for i2 in range(2): p(f'buffer_load_dwordx4 {vr(RES+4*i2,4)}, {vRM}, {SX}, {sROW} offen offset:{32*i2}')
            for s in range(7):
                d = self.w1_stage(s); p(d); wtok[s] = [x[2] for x in d]
            if self.fine == 'p10':
                self.ts('issued'); p(WaitTok(self.clr)); self.ts('clr'); p(WaitTok(atok[0])); self.ts('a0')
            p(WaitTok(self.clr + atok[7] + htok)); p('s_barrier')
            self.publish_xcc()
            self.ts('a1_landed')
            t0, t1 = 'v124', 'v125'
            p(f'v_add_u32 {t0}, {sW2K}, {vA1r0}\nv_xor_b32 {t1}, 64, {t0}')
            for ks in range(16):
                p(f'ds_read_b128 {vr(128+4*ks,4)}, {t1 if ks & 1 else t0} offset:{(ks>>1)*8192}', lds=((ks>>1)*8192, (ks>>1)*8192+8192))
            p(f"""v_lshrrev_b32 v126, 5, {vL}
v_lshlrev_b32 v126, 7, v126
v_and_b32 v127, 7, {vL}
v_lshl_add_u32 v126, v127, 4, v126
v_bfe_u32 v127, {vL}, 3, 2
v_lshl_add_u32 v126, v127, 10, v126
s_lshl_b32 s88, {sW}, 8
s_add_u32 s88, s88, {L_A1H}
v_add_u32 v126, s88, v126""")
            for u in range(2): p(f'ds_read_b128 {vr(192+4*u,4)}, v126 offset:{u*4096}', lds=(L_A1H, L_A1H+8192))
            for i in range(4): p(f'v_mov_b32 v{ONE+i}, 0x3f803f80')
            for i in range(8): p(f'v_mov_b32 v{96+i}, 0')
            for i in range(64):
                p(f'v_dot2c_f32_bf16 v{96+(i&1)}, v{128+i}, v{ONE}\nv_dot2c_f32_bf16 v{98+(i&1)}, v{128+i}, v{128+i}')
            for i in range(8):
                p(f'v_dot2c_f32_bf16 v{100+(i&1)}, v{192+i}, v{ONE}\nv_dot2c_f32_bf16 v{102+(i&1)}, v{192+i}, v{192+i}')
            p("""v_add_f32 v96, v96, v97
v_add_f32 v98, v98, v99
v_add_f32 v100, v100, v101
v_add_f32 v102, v102, v103
v_permlane16_swap_b32 v96, v98
v_add_f32 v96, v96, v98
v_mov_b32 v98, v96
v_permlane32_swap_b32 v96, v98
v_add_f32 v96, v96, v98
v_mov_b32 v98, v96
v_permlane16_swap_b32 v96, v98""")
            for sh in (8, 4, 2, 1):
                p(f'v_add_f32_dpp v100, v100, v100 row_ror:{sh} row_mask:0xf bank_mask:0xf\nv_add_f32_dpp v102, v102, v102 row_ror:{sh} row_mask:0xf bank_mask:0xf')
            p("""v_permlane16_swap_b32 v100, v102
v_add_f32 v100, v100, v102
v_mov_b32 v102, v100
v_permlane16_swap_b32 v100, v102""")
            p(self.stats_final('v96', 'v98', 'v97')); p(self.stats_final('v100', 'v102', 'v101'))
            p(f"""v_and_b32 v124, 15, {vL}
s_lshl_b32 s88, {sW}, 6
s_add_u32 s88, s88, {L_NM + 64}
v_lshl_add_u32 v124, v124, 2, s88
v_lshrrev_b32 v125, 5, {vL}
s_lshl_b32 s88, {sW}, 3
s_add_u32 s88, s88, {L_NM}
v_lshl_add_u32 v125, v125, 2, s88""")
            tabw = [p('ds_write_b32 v124, v96', lds=(L_NM+64, L_NM+320)), p('ds_write_b32 v124, v98 offset:320', lds=(L_RS+64, L_RS+320))]
            for o in (0, 32):
                tabw.append(p(f'ds_write_b32 v125, v100 offset:{o}', lds=(L_NM, L_NM+64)))
                tabw.append(p(f'ds_write_b32 v125, v102 offset:{o+320}', lds=(L_RS, L_RS+64)))
            p(WaitTok(tabw))
        else:
            p(f's_lshl_b32 s88, {sPG}, 14\ns_add_u32 s93, s93, s88\ns_add_u32 s93, s93, {WS_HB}')
            p(f's_lshl_b32 s88, {sRB}, 12')
            p(self.stats_partials_issue(WS_ST2, 's88', 128))
            lh = self.lab('hs')
            p(Raw(f"""s_bitcmp1_b32 {sW}, 0
s_cbranch_scc0 {lh}
s_lshl_b32 s88, {sG}, 14
s_add_u32 s88, s88, {WS_HB - 56*2048}
s_mov_b32 exec_lo, 0xff000000
s_mov_b32 exec_hi, 0xff000000
buffer_store_dwordx4 {vr(RES,4)}, {vRM}, {SWS}, s88 offen sc1
buffer_store_dwordx4 {vr(RES+4,4)}, {vRM}, {SWS}, s88 offen offset:32 sc1
s_mov_b64 exec, -1
{lh}:""", rd=[vr(RES, 8)], wr=['s88'], states=2))
            p(self.stats_partials_reduce(128))
            p(self.stats_final('v128', 'v129', 'v130'))
            p(f"""v_and_b32 v124, 15, {vL}
v_lshlrev_b32 v124, 3, v124
v_bfe_u32 v125, {vL}, 4, 1
v_lshl_add_u32 v124, v125, 2, v124
s_and_b32 s88, {sW}, 1
s_lshl_b32 s88, s88, 7
s_add_u32 s88, s88, {L_NM + 64}
v_add_u32 v125, s88, v124""")
            tabw = [p('ds_write_b32 v125, v128', lds=(L_NM+64, L_NM+320)), p('ds_write_b32 v125, v129 offset:320', lds=(L_RS+64, L_RS+320))]
            lh = self.lab('ht')
            p(Raw(f"""s_lshl_b32 s88, {sCB}, 2
s_add_u32 s88, s88, {sW}
s_cmp_lg_u32 s88, 1
s_cbranch_scc1 {lh}
s_lshl_b32 s88, {sG}, 7
s_add_u32 s88, s88, {WS_HS - 96}
s_mov_b32 exec_lo, 0xf000f000
s_mov_b32 exec_hi, 0
buffer_store_dword v128, v124, {SWS}, s88 offen sc1
buffer_store_dword v129, v124, {SWS}, s88 offen offset:32 sc1
s_mov_b64 exec, -1
{lh}:""", rd=['v128', 'v129', 'v124'], wr=['s88'], states=2))
            p(WaitTok(tabw))
        self.ts(f'p1_stats{L}')
        def wreads(s):
            slot = s % 7
            va, off = (vW1r0, slot*12288) if slot < 4 else (vW1r1, slot*12288 - 49152)
            lo = L_R1 + slot*12288
            out = []
            for part, dst in ((0, WQ + 4*(s & 1)), (1, WK + 4*s), (2, WV + 4*s)):
                for rd in range(2):
                    out.append(Ins(f'ds_read_b64_tr_b16 {vr(dst+2*rd,2)}, {va} offset:{off + part*4096 + rd*512}', lds=(lo + part*4096, lo + part*4096 + 4096)))
            return out
        def aread(s, t):
            o = (s >> 1)*8192 + t*2048
            return Ins(f'ds_read_b128 {vr(AF+4*t,4)}, {vA1r1 if s & 1 else vA1r0} offset:{o}', lds=(o, o+2048))
        p(WaitTok(wtok[0] + atok[0])); p('s_barrier')
        wr = wreads(0); p(wr)
        for t in range(4): p(aread(0, t))
        w2tok = []
        w2order = list(range(1, 16)) + [0]
        mode_at = 9
        for s in range(16):
            spine = []; fill = {}
            z = (s == 0)
            wq, wk, wv = vr(WQ + 4*(s & 1), 4), vr(WK + 4*s, 4), vr(WV + 4*s, 4)
            for t in range(4):
                a = vr(AF + 4*t, 4)
                q, k, v = vr(QA + 4*t, 4), vr(KA + 4 + 4*t, 4), vr(VA + 4 + 4*t, 4)
                spine.append(f'v_mfma_f32_16x16x32_bf16 {q}, {wq}, {a}, {0 if z else q}')
                spine.append(f'v_mfma_f32_16x16x32_bf16 {k}, {wk}, {a}, {0 if z else k}')
                spine.append(f'v_mfma_f32_16x16x32_bf16 {v}, {a}, {wv}, {0 if z else v}')
            if L == 0:
                one = vr(ONE, 4)
                for dst, x, y in ((CSQ, wq, one), (CSK, wk, one), (CSV, one, wv)):
                    spine.append(f'v_mfma_f32_16x16x32_bf16 {vr(dst,4)}, {x}, {y}, {0 if z else vr(dst,4)}')
            pre_toks = list(wr)
            if s < 15:
                pre_toks += wtok[s+1] + atok[(s+1) >> 1]
            if s == 15: pre_toks += htok
            put(fill, 0, WaitTok(pre_toks), 's_barrier')
            if s < 15:
                wr = wreads(s+1)
                for i, x in enumerate(wr): put(fill, 1 + i, x)
                for t in range(4): put(fill, 3*t + 2, aread(s+1, t))
            dm = []
            if s + 7 < 16:
                dm = self.w1_stage(s+7); wtok[s+7] = [x[2] for x in dm]
            else:
                n0 = (s - 9) * 3
                idx = w2order[n0:n0+3] if s < 15 else []
                if s == 14: idx = []
                if s == 15: idx = [0]
                dm = [self.w2_piece(i) for i in idx]; w2tok += [x[2] for x in dm]
            for i, x in enumerate(dm): put(fill, 7 + 2*i if 7 + 2*i < len(spine) else len(spine) - 1, x)
            if L == 1 and s == 8:
                hd = halo_dma(); htok = [d[2] for d in hd]
                put(fill, 4, hd[0]); put(fill, 6, hd[1])
                put(fill, 6, f's_lshl_b32 s88, {sPG}, 7', f's_add_u32 s94, s88, {WS_HS}', f'v_and_b32 v124, 15, {vL}', 'v_lshlrev_b32 v124, 2, v124',
                    f'buffer_load_dword v125, v124, {SWS}, s94 offen sc1')
            if self.fine == f'p1{L}': self.ts(f'k{s}')
            weave(p, spine, fill)
            if L == 0 and s == mode_at: self.mode_issue('v126', 'v127')
        self.ts(f'p1_loop{L}')
        def halo_pass(pp, check):
            pp(f"""v_and_b32 v112, 1023, {vA1r0}
v_not_b32 v113, {vL}
v_and_b32 v113, 8, v113
v_lshlrev_b32 v113, 3, v113
v_xor_b32 v112, v112, v113
v_add_u32 v112, {L_A1H}, v112
v_xor_b32 v113, 64, v112""")
            if check: pp('v_mov_b32 v114, 0')
            rd = lambda s: Ins(f'ds_read_b128 {vr(AF+4*(s&3),4)}, {"v113" if s & 1 else "v112"} offset:{(s>>1)*1024}', lds=(L_A1H + (s>>1)*1024, L_A1H + (s>>1)*1024 + 1024))
            for s in range(4): pp(rd(s))
            for s in range(16):
                a = vr(AF + 4*(s & 3), 4); k, v = vr(KA, 4), vr(VA, 4)
                pp(f'v_mfma_f32_16x16x32_bf16 {k}, {vr(WK+4*s,4)}, {a}, {0 if s == 0 else k}')
                if check: pp(f'v_max_u32 v114, v114, v{AF+4*(s&3)}')
                pp(f'v_mfma_f32_16x16x32_bf16 {v}, {a}, {vr(WV+4*s,4)}, {0 if s == 0 else v}')
                if s + 4 < 16: pp(rd(s+4))
        halo_pass(p, L == 1)
        if L == 1:
            ls, lb = self.lab('hs'), self.lab('hb')
            p(f'v_cmp_eq_u32 vcc, -1, v114\ns_and_b64 vcc, vcc, exec\ns_cbranch_scc1 {ls}\n{lb}:')
            q = Prog(check_lds=False)
            q(f'{ls}:\ns_mov_b32 {sSPIN}, 0\n{ls}_l:\ns_waitcnt vmcnt(0) lgkmcnt(0)\ns_nop 15\ns_barrier')
            q(halo_dma())
            q('s_waitcnt vmcnt(0)\ns_barrier')
            halo_pass(q, True)
            q(f's_add_u32 {sSPIN}, {sSPIN}, 1\ns_cmp_gt_u32 {sSPIN}, 5000\ns_cbranch_scc1 {ls}_x')
            q(f'v_cmp_eq_u32 vcc, -1, v114\ns_and_b64 vcc, vcc, exec\ns_cbranch_scc1 {ls}_l\n{ls}_x:\ns_nop 15\ns_branch {lb}')
            self.slow.append(q.finalize())
            ls, lb = self.lab('ss'), self.lab('sb')
            p(f'v_cmp_eq_u32 vcc, -1, v125\ns_and_b64 vcc, vcc, exec\ns_cbranch_scc1 {ls}\n{lb}:')
            self.slow.append(f"""{ls}:
s_mov_b32 {sSPIN}, 0
{ls}_l:
buffer_load_dword v125, v124, {SWS}, s94 offen sc1
s_add_u32 {sSPIN}, {sSPIN}, 1
s_cmp_gt_u32 {sSPIN}, 30000
s_cbranch_scc1 {ls}_x
s_waitcnt vmcnt(0)
v_cmp_eq_u32 vcc, -1, v125
s_nop 0
s_and_b64 vcc, vcc, exec
s_cbranch_scc1 {ls}_l
{ls}_x:
s_waitcnt vmcnt(0)
s_branch {lb}""")
            p(f"""v_and_b32 v126, 7, {vL}
v_lshlrev_b32 v126, 2, v126
v_bfe_u32 v127, {vL}, 3, 1
v_mul_u32_u24 v127, 320, v127
v_add_u32 v126, v126, v127
v_bfe_u32 v127, {vL}, 4, 1
v_lshl_add_u32 v126, v127, 5, v126
v_add_u32 v126, {L_NM}, v126""")
            x = p('ds_write_b32 v126, v125', lds=[(L_NM, L_NM+64), (L_RS, L_RS+64)])
            p(WaitTok([x])); p('s_barrier')
        if L == 0: self.mode_check('v126', 'v127')
        self.ts(f'p1_halo{L}')
        NM, RS, CQ, VS, QB, KB, VB, CA, CB, CB0, MA, SB, PP, OA, T = 128, 133, 138, 144, 184, 192, 202, 212, 216, 220, 224, 96, 228, 56, 244
        p(f"""v_and_b32 v{T}, 15, {vL}
v_lshrrev_b32 v{T+1}, 4, {vL}
v_lshlrev_b32 v{T+2}, 2, v{T}
v_add_u32 v{T+2}, {L_NM}, v{T+2}
v_lshlrev_b32 v{T+3}, 4, v{T+1}
v_add_u32 v{T+3}, {L_NM}, v{T+3}""")
        tab = (L_NM, L_NM + 640)
        for u in range(5):
            p(f'ds_read_b32 v{NM+u}, v{T+2} offset:{64*u}', lds=tab); p(f'ds_read_b32 v{RS+u}, v{T+2} offset:{64*u+320}', lds=tab)
        for u in range(5):
            p(f'ds_read_b128 {vr(VS+8*u,4)}, v{T+3} offset:{64*u}', lds=tab); p(f'ds_read_b128 {vr(VS+8*u+4,4)}, v{T+3} offset:{64*u+320}', lds=tab)
        p(f'v_lshlrev_b32 v{T+1}, 2, v{T+1}\nv_sub_u32 v{T}, v{T}, v{T+1}\nv_mov_b32 v{T+4}, 0xff800000\nv_mov_b32 v{T+5}, 0xffff\nv_mov_b32 v{T+6}, 0xffff0000')
        p(f's_cmp_eq_u32 {sHASP}, 0\ns_cselect_b64 s[88:89], 0, -1')
        for j in range(4):
            p(f"""v_subrev_u32 v{T+1}, {j}, v{T}
v_add_u32 v{T+7}, 16, v{T+1}
v_cmp_gt_u32 vcc, 8, v{T+1}
v_cmp_gt_u32 s[90:91], 8, v{T+7}
v_cndmask_b32 v{CA+j}, v{T+4}, 0, vcc
v_cndmask_b32 v{T+8+j}, 0, v{T+5+(j&1)}, vcc
v_cndmask_b32 v{CB+j}, v{T+4}, 0, s[90:91]
v_cndmask_b32 v{CB0+j}, v{T+4}, v{CB+j}, s[88:89]""")
        p(f'v_or_b32 v{MA}, v{T+8}, v{T+9}\nv_or_b32 v{MA+1}, v{T+10}, v{T+11}')
        for u in range(5):
            for j in range(4): p(f'v_fmac_f32 v{KA+4*u+j}, v{NM+u}, v{CSK+j}')
            for j in range(4): p(f'v_mul_f32 v{KA+4*u+j}, v{RS+u}, v{KA+4*u+j}')
            for j in range(2): p(f'v_cvt_pk_bf16_f32 v{KB+2*u+j}, v{KA+4*u+2*j}, v{KA+4*u+2*j+1}')
            if u:
                t = u - 1
                for j in range(4): p(f'v_fmac_f32 v{QA+4*t+j}, v{NM+u}, v{CSQ+j}')
                for j in range(2): p(f'v_cvt_pk_bf16_f32 v{QB+2*t+j}, v{QA+4*t+2*j}, v{QA+4*t+2*j+1}')
                p(f'v_mul_f32 v{CQ+t}, {f2u(0.25*LOG2E)}, v{RS+u}')
        for t in range(4):
            p(f'v_mfma_f32_16x16x16_bf16 {vr(QA+4*t,4)}, {vr(KB+2*(t+1),2)}, {vr(QB+2*t,2)}, {vr(CA,4)}')
            p(f'v_mfma_f32_16x16x16_bf16 {vr(SB+4*t,4)}, {vr(KB+2*t,2)}, {vr(QB+2*t,2)}, {vr(CB0 if t == 0 else CB,4)}')
        for u in range(5):
            for j in range(4): p(f'v_fmac_f32 v{VA+4*u+j}, v{VS+8*u+j}, v{CSV}')
            for j in range(4): p(f'v_mul_f32 v{VA+4*u+j}, v{VS+8*u+4+j}, v{VA+4*u+j}')
            for j in range(2): p(f'v_cvt_pk_bf16_f32 v{VB+2*u+j}, v{VA+4*u+2*j}, v{VA+4*u+2*j+1}')
        for t in range(4):
            for j in range(4): p(f'v_max_f32 v{QA+4*t+j}, v{QA+4*t+j}, v{SB+4*t+j}')
        for t in range(4): p(f'v_max3_f32 v{T+t}, v{QA+4*t}, v{QA+4*t+1}, v{QA+4*t+2}')
        for t in range(4): p(f'v_max_f32 v{T+t}, v{T+t}, v{QA+4*t+3}')
        def reduce4(op, extra=None):
            p(f"""v_permlane16_swap_b32 v{T}, v{T+1}
v_permlane16_swap_b32 v{T+2}, v{T+3}
{op} v{T}, v{T}, v{T+1}
{op} v{T+2}, v{T+2}, v{T+3}
v_permlane32_swap_b32 v{T}, v{T+2}
{op} v{T}, v{T}, v{T+2}""")
            if extra: p(extra)
            p(f"""v_mov_b32 v{T+2}, v{T}
v_permlane32_swap_b32 v{T}, v{T+2}
v_mov_b32 v{T+1}, v{T}
v_mov_b32 v{T+3}, v{T+2}
v_permlane16_swap_b32 v{T}, v{T+1}
v_permlane16_swap_b32 v{T+2}, v{T+3}""")
        reduce4('v_max_f32')
        for t in range(4): p(f'v_mul_f32 v{T+t}, v{T+t}, v{CQ+t}')
        for t in range(4):
            for j in range(4): p(f'v_fma_f32 v{QA+4*t+j}, v{QA+4*t+j}, v{CQ+t}, -v{T+t}')
        for t in range(4):
            for j in range(4): p(f'v_exp_f32 v{QA+4*t+j}, v{QA+4*t+j}')
        for t in range(4):
            p(f"""v_cvt_pk_bf16_f32 v{PP+4*t}, v{QA+4*t}, v{QA+4*t+1}
v_cvt_pk_bf16_f32 v{PP+4*t+1}, v{QA+4*t+2}, v{QA+4*t+3}
v_and_b32 v{PP+4*t+2}, v{MA}, v{PP+4*t}
v_and_b32 v{PP+4*t+3}, v{MA+1}, v{PP+4*t+1}
v_xor_b32 v{PP+4*t}, v{PP+4*t}, v{PP+4*t+2}
v_xor_b32 v{PP+4*t+1}, v{PP+4*t+1}, v{PP+4*t+3}""")
            p(f'v_add_f32 v{T+t}, v{QA+4*t}, v{QA+4*t+1}\nv_add_f32 v{T+4}, v{QA+4*t+2}, v{QA+4*t+3}\nv_add_f32 v{T+t}, v{T+t}, v{T+4}')
            p(f'v_mfma_f32_16x16x32_bf16 {vr(OA+4*t,4)}, {vr(VB+2*t,4)}, {vr(PP+4*t,4)}, 0')
        reduce4('v_add_f32', f'v_rcp_f32 v{T}, v{T}')
        for t in range(4):
            for j in range(4): p(f'v_mul_f32 v{OA+4*t+j}, v{T+t}, v{OA+4*t+j}')
        for tp in range(2):
            b = PP + 4*tp
            for h in range(2):
                t = 2*tp + h
                for j in range(2): p(f'v_cvt_pk_bf16_f32 v{b+2*h+j}, v{OA+4*t+2*j}, v{OA+4*t+2*j+1}')
            p(f'v_permlane16_swap_b32 v{b}, v{b+2}\nv_permlane16_swap_b32 v{b+1}, v{b+3}')
        p(f"""s_lshl_b32 s88, {sG}, 16
s_lshl_b32 s89, {sCB}, 12
s_add_u32 s88, s88, s89
s_add_u32 s88, s88, {sW1K}
s_add_u32 s88, s88, {WS_O[L]}
s_add_u32 s89, s88, 32768""")
        alt, st = self.stores([f'buffer_store_dwordx4 {vr(PP,4)}, {vL16}, {SWS}, s88 offen', f'buffer_store_dwordx4 {vr(PP+4,4)}, {vL16}, {SWS}, s89 offen'])
        p(alt)
        self.ts(f'p1_attn{L}')
        self.post_flag(1 + 5*L, st)
        self.ts(f'p1_end{L}')
        return w2tok

    def tile_epilogue(self, kind, L):
        p = self.p
        OWN, OTH, X = 40, 56, 104
        p(f'v_add_u32 v120, {sW4K}, {vL16}\nv_xor_b32 v121, 8192, v120')
        ws = [p(f'ds_write_b128 v120, {vr(OTH+4*q,4)} offset:{L_XB + q*1024}', lds=[(L_XB + w*4096 + q*1024, L_XB + w*4096 + q*1024 + 1024) for w in range(4)]) for q in range(4)]
        for i in range(8):
            p(f'v_lshlrev_b32 v{72+2*i}, 16, v{RES+i}\nv_and_b32 v{73+2*i}, 0xffff0000, v{RES+i}')
        for i in range(16): p(f'v_add_f32 v{OWN+i}, v{OWN+i}, v{72+i}')
        p(WaitTok(ws)); p('s_barrier')
        for q in range(4):
            p(f'ds_read_b128 {vr(X+4*q,4)}, v121 offset:{L_XB + q*1024}', lds=[(L_XB + w*4096 + q*1024, L_XB + w*4096 + q*1024 + 1024) for w in range(4)])
        for i in range(16): p(f'v_add_f32 v{OWN+i}, v{OWN+i}, v{X+i}')
        for i in range(8): p(f'v_cvt_pk_bf16_f32 v{RES+i}, v{OWN+2*i}, v{OWN+2*i+1}')
        if kind == 'out':
            p(f'buffer_store_dwordx4 {vr(RES,4)}, {vRM}, {SOUT}, {sROW} offen')
            p(f'buffer_store_dwordx4 {vr(RES+4,4)}, {vRM}, {SOUT}, {sROW} offen offset:32')
            return None
        if kind == 'x1':
            p(f"""s_lshl_b32 s88, {sRB}, 15
s_lshl_b32 s89, {sCB}, 12
s_add_u32 s88, s88, s89
s_lshr_b32 s89, {sW}, 1
s_lshl_b32 s89, s89, 11
s_add_u32 s88, s88, s89
s_add_u32 s88, s88, {WS_X1[L]}""")
            alt, st = self.stores([f'buffer_store_dwordx4 {vr(RES,4)}, {vL16}, {SWS}, s88 offen', f'buffer_store_dwordx4 {vr(RES+4,4)}, {vL16}, {SWS}, s88 offen offset:1024'])
            stb = WS_ST1[L]
        else:
            p(f's_add_u32 s88, {sROW}, {WS_X2}')
            alt, st = self.stores([f'buffer_store_dwordx4 {vr(RES,4)}, {vRM}, {SWS}, s88 offen', f'buffer_store_dwordx4 {vr(RES+4,4)}, {vRM}, {SWS}, s88 offen offset:32'])
            stb = WS_ST2
        p(alt)
        for i in range(8):
            p(f'v_lshlrev_b32 v{72+2*i}, 16, v{RES+i}\nv_and_b32 v{73+2*i}, 0xffff0000, v{RES+i}')
        p('v_add_f32 v104, v72, v73\nv_mul_f32 v105, v72, v72\nv_add_f32 v106, v74, v75\nv_mul_f32 v107, v73, v73')
        for i in range(2, 16):
            if i >= 4: p(f'v_add_f32 v{104+2*(i&1)}, v{104+2*(i&1)}, v{72+i}')
            p(f'v_fmac_f32 v{105+2*(i&1)}, v{72+i}, v{72+i}')
        p(f"""v_add_f32 v104, v104, v106
v_add_f32 v105, v105, v107
v_permlane32_swap_b32 v104, v105
v_add_f32 v104, v104, v105
v_and_b32 v106, 31, {vL}
v_lshlrev_b32 v106, 3, v106
v_lshrrev_b32 v107, 5, {vL}
v_lshl_add_u32 v106, v107, 2, v106
s_lshl_b32 s88, {sRB}, 12
s_lshl_b32 s89, {sCB}, 9
s_add_u32 s88, s88, s89
s_lshr_b32 s89, {sW}, 1
s_lshl_b32 s89, s89, 8
s_add_u32 s88, s88, s89
s_add_u32 s88, s88, {stb}""")
        alt2, st2 = self.stores([f'buffer_store_dword v104, v106, {SWS}, s88 offen'])
        p(alt2)
        return st + st2

    def wfrag_reads(self, k, base, va, vb, lo):
        WR = 72
        r = WR + 8*(k % 4)
        out = []
        for h, ad in ((0, va), (1, vb)):
            for rd in range(2):
                out.append(Ins(f'ds_read_b64_tr_b16 {vr(r+4*h+2*rd,2)}, {ad} offset:{base + rd*512}', lds=lo))
        return out
    def tile_mfmas(self, k, z):
        r = 72 + 8*(k % 4); a = vr(128 + 4*(k % 16), 4)
        return [f'v_mfma_f32_32x32x16_bf16 {vr(56,16)}, {vr(r+4,4)}, {a}, {0 if z else vr(56,16)}',
                f'v_mfma_f32_32x32x16_bf16 {vr(40,16)}, {vr(r,4)}, {a}, {0 if z else vr(40,16)}']

    def w3_load_simple(self, c, stg, nslot):
        p = self.p
        l = self.lab('w3')
        p(f'v_add_u32 v122, {stg}, {vW3r}')
        for k0 in range(0, 32, nslot):
            ks = list(range(k0, min(32, k0 + nslot)))
            d = [self.w3_piece(c, k, stg + (k - k0)*4096) for k in ks]
            p('s_barrier')
            p(d); p(WaitTok([x[2] for x in d])); p('s_barrier')
            rs = []
            for k in ks:
                r = self.w3_reads(c, k, stg + (k - k0)*4096, 'v122', stg); p(r); rs += r
            p(WaitTok(rs))
    def colsum3(self, c):
        p = self.p
        p(f"""v_lshrrev_b32 v168, 2, {vL}
v_lshrrev_b32 v169, 4, {vL}
v_xor_b32 v168, v168, v169
v_and_b32 v168, 1, v168
v_cmp_eq_u32 vcc, 0, v168
v_mov_b32 v169, 0x3f803f80
v_cndmask_b32 v164, 0, v169, vcc
v_mov_b32 v165, v164
v_mov_b32 v166, v164
v_mov_b32 v167, v164""")
        for ks in range(32):
            p(f'v_mfma_f32_16x16x32_bf16 v[160:163], v[164:167], {ar(c*128+4*ks,4)}, {0 if ks == 0 else "v[160:163]"}')
        p(f"""v_and_b32 v168, 31, {vL}
s_lshl_b32 s88, {sW}, 8
s_add_u32 s88, s88, {L_CS3 + c*128}
v_lshl_add_u32 v168, v168, 2, s88""")
        x = p('ds_write_b32 v168, v160', lds=(L_CS3, L_CS3 + 1024), private=True)
        p(WaitTok([x]))

    def p2(self, L, w2tok):
        p = self.p
        p(f"""s_lshr_b32 s88, {sW}, 1
s_lshl_b32 s89, s88, 15
s_add_u32 s89, s89, {L_W2}
v_add_u32 v122, s89, {vWown}
v_add_u32 v123, s89, {vWoth}
s_lshl_b32 s88, s88, 14
s_lshl_b32 s92, {sRB}, 15
s_add_u32 s92, s92, s88
s_add_u32 s92, s92, {WS_O[L]}""")
        p(WaitTok(w2tok)); p('s_barrier')
        rd = lambda k: self.wfrag_reads(k, k*2048, 'v122', 'v123', [(L_W2 + h*32768 + k*2048, L_W2 + h*32768 + k*2048 + 2048) for h in range(2)])
        for k in range(3): p(rd(k))
        self.poll(1 + 5*L, sMK2)
        self.ts(f'p2_go{L}')
        for k in range(16):
            if k % 4 == 0: p(f's_add_u32 {sT}, s92, {k*1024}')
            p(f'buffer_load_dwordx4 {vr(128+4*k,4)}, {vL16}, {SWS}, {sT} offen offset:{(k%4)*1024} sc1')
        spine = []; fill = {}
        for k in range(16):
            spine += self.tile_mfmas(k, k == 0)
            if k + 3 < 16:
                r = rd(k+3)
                put(fill, 2*k, r[0], r[1]); put(fill, 2*k+1, r[2], r[3])
        weave(p, spine, fill)
        self.ts(f'p2_mm{L}')
        st = self.tile_epilogue('x1', L)
        self.ts(f'p2_epi{L}')
        self.post_flag(2 + 5*L, st)
        self.ts(f'p2_end{L}')

    def p3(self, L):
        p = self.p
        ACC, AF, CS, TK, T, HO = 40, 72, 96, 112, 144, 136
        lskip = self.lab('p3skip')
        w4 = {}
        p('s_barrier')
        d = self.w4_stage(0); p(d); w4[0] = [x[2] for x in d]
        p(WaitTok(w4[0]))
        p(f's_cmp_lg_u32 {sIDLE}, 0\ns_cbranch_scc1 {lskip}')
        self.poll(2 + 5*L, 'exec')
        self.ts(f'p3_go{L}')
        p(f"""s_lshl_b32 s92, {sG16}, 17
s_add_u32 s92, s92, {sW2K}
s_lshl_b32 s88, {sG16}, 2
s_add_u32 s88, s88, {sW}
s_lshl_b32 s88, s88, 12""")
        atok = {}
        def adma(rb, s):
            o = rb*32768 + s*8192
            d = self.dma(vL16, SWS, 's92', WS_X1[L] + o, sW2K, o, [(o + q*2048, o + q*2048 + 1024) for q in range(4)], sc1=True)
            d2 = Ins(f'buffer_load_dwordx4 {vL16}, {SWS}, {sT} offen offset:1024 sc1 lds', lds=[(o + q*2048 + 1024, o + q*2048 + 2048) for q in range(4)])
            atok[(rb, s)] = [d[2], d2]
            return d + [d2]
        p(adma(0, 0))
        p(self.stats_partials_issue(WS_ST1[L], 's88', 176))
        for s in range(1, 4): p(adma(0, s))
        for s in range(4): p(adma(1, s))
        if self.fine == 'p3' and L == 1: self.ts('issued')
        p(self.stats_partials_reduce(176))
        p(self.stats_final('v176', 'v177', 'v178'))
        p(f"""v_mul_f32 v179, {f2u(-LOG2E)}, v177
v_and_b32 v180, 15, {vL}
v_lshlrev_b32 v180, 5, v180
v_bfe_u32 v181, {vL}, 4, 1
v_lshl_add_u32 v180, v181, 4, v180
s_lshl_b32 s88, {sW}, 9
s_add_u32 s88, s88, {L_T3}
v_add_u32 v180, s88, v180""")
        tw = p('ds_write_b128 v180, v[176:179]', lds=(L_T3, L_T3 + 2048))
        p(f"""v_add_u32 v124, 65536, {vL16}
v_and_b32 v125, 31, {vL}
v_lshlrev_b32 v125, 4, v125
v_add_u32 v125, {L_T3}, v125
v_lshrrev_b32 v126, 5, {vL}
v_lshlrev_b32 v126, 4, v126
s_lshl_b32 s88, {sW}, 8
s_add_u32 s88, s88, {L_CS3}
v_add_u32 v126, s88, v126
s_lshl_b32 s93, {sG16}, 2
s_mul_i32 s93, s93, 114688
s_lshl_b32 s88, {sM16}, 13
s_add_u32 s93, s93, s88
s_add_u32 s93, s93, {sW1K}
s_add_u32 s93, s93, {WS_H[L]}""")
        tiles = [(c, rb) for c in range(2) for rb in range(4)]
        NR = 6
        def aread(n):
            ti, ks = divmod(n, 32); rb = tiles[ti][1]
            o = rb*32768 + ks*1024
            return Ins(f'ds_read_b128 {vr(AF+4*(n % NR),4)}, {"v124" if o >= 65536 else vL16} offset:{o % 65536}', lds=(o, o+1024))
        def epilogue(ti):
            c, rb = tiles[ti]
            A = ACC + 16*(ti & 1); tk = TK + 4*(ti & 1); ho = HO + 4*(ti & 1)
            o = []
            gi = lambda i: (i >> 2)*8 + (i & 3)
            for i in range(8): o.append(f'v_fmac_f32 v{A+gi(i)}, v{tk}, v{CS+gi(i)}')
            for i in range(8): o.append(f'v_mul_f32 v{A+gi(i)}, v{tk+3}, v{A+gi(i)}')
            for i in range(8):
                o.append(f'v_exp_f32 v{A+gi(i)}, v{A+gi(i)}'); o.append(f'v_fmac_f32 v{A+gi(i)+4}, v{tk}, v{CS+gi(i)+4}')
            for i in range(8): o.append(f'v_fma_f32 v{A+gi(i)}, v{A+gi(i)}, v{tk+2}, v{tk+2}')
            for i in range(8):
                o.append(f'v_rcp_f32 v{A+gi(i)}, v{A+gi(i)}')
                if i: o.append(f'v_mul_f32 v{A+gi(i-1)}, v{A+gi(i-1)}, v{A+gi(i-1)+4}')
            o.append(f's_add_u32 s94, s93, {rb*114688 + c*4096}')
            o.append(f'v_mul_f32 v{A+gi(7)}, v{A+gi(7)}, v{A+gi(7)+4}')
            for i in range(4): o.append(f'v_cvt_pk_bf16_f32 v{ho+i}, v{A+gi(2*i)}, v{A+gi(2*i+1)}')
            alt, st = self.stores([f'buffer_store_dwordx4 {vr(ho,4)}, {vL16}, {SWS}, s94 offen'])
            o.append(alt)
            return o, st
        def csreads(c):
            return [Ins(f'ds_read_b128 {vr(CS+4*i,4)}, v126 offset:{c*128 + i*32}', lds=(L_CS3, L_CS3+1024), private=True) for i in range(4)]
        if self.fine == 'p3' and L == 1: self.ts('stats')
        p(WaitTok(atok[(0, 0)] + [tw])); p('s_barrier')
        for n in range(NR - 1): p(aread(n))
        p(csreads(0))
        sts = []
        for ti, (c, rb) in enumerate(tiles):
            spine = []; fill = {}
            A = vr(ACC + 16*(ti & 1), 16)
            for ks in range(32):
                n = ti*32 + ks
                spine.append(f'v_mfma_f32_32x32x16_bf16 {A}, {ar(c*128+4*ks,4)}, {vr(AF+4*(n % NR),4)}, {0 if ks == 0 else A}')
                m = n + NR - 1
                if m < 256:
                    mt, mk = divmod(m, 32)
                    if mt < 4 and mk % 8 == 0 and (mt == 0 or mk == 0):
                        need = atok[(mt, mk // 8)] if mt == 0 else sum((atok[(mt, s)] for s in range(4)), [])
                        put(fill, ks, WaitTok(need), 's_barrier')
                    put(fill, ks, aread(m))
            put(fill, 20, Ins(f'ds_read_b128 {vr(TK+4*(ti&1),4)}, v125 offset:{rb*512}', lds=(L_T3, L_T3+2048)))
            if ti in (0, 1):
                for s in range(4): put(fill, 2 + 6*s, adma(ti + 2, s))
            if ti > 0:
                e, st = epilogue(ti - 1); sts.append(st)
                spread(fill, e, 3, 30)
            if ti == 4: put(fill, 31, csreads(1))
            if ti == 5:
                fl = Prog(); sv = self.p; self.p = fl
                self.post_flag(3 + 5*L, sum(sts[:4], [])); self.p = sv
                put(fill, 8, fl.items)
            if ti >= 5:
                put(fill, 1, 's_barrier')
                dm = self.w4_stage(2*(ti-5) + 1) + self.w4_stage(2*(ti-5) + 2)
                w4[2*(ti-5)+1] = [x[2] for x in dm[:4]]; w4[2*(ti-5)+2] = [x[2] for x in dm[4:]]
                spread(fill, dm, 4, 28)
            if L == 0 and ti == 4:
                self.ts('p3_w3b_0')
                self.w3_load_simple(1, 147456, 3); self.colsum3(1)
                self.ts('p3_w3b_1')
            if self.fine == 'p3' and L == 1: self.ts(f't{ti}')
            weave(p, spine, fill)
        self.ts(f'p3_mm{L}')
        e, st = epilogue(7); sts.append(st); p(e)
        self.ts(f'p3_epi{L}')
        self.post_flag(4 + 5*L, sum(sts[4:], []))
        lj = self.lab('p3join')
        p('s_waitcnt vmcnt(0)')
        p('s_barrier')
        p(f'{lj}:')
        q = Prog(check_lds=False)
        q(f'{lskip}:')
        for s in range(1, 7): q(self.w4_stage(s))
        q(f's_waitcnt vmcnt(0)\ns_barrier\ns_branch {lj}')
        self.slow.append(q.finalize())
        self.ts(f'p3_end{L}')
        return w4

    def p4(self, L, w4):
        p = self.p
        d = self.w4_stage(7) + self.w4_stage(8)
        w4[7] = [x[2] for x in d[:4]]; w4[8] = [x[2] for x in d[4:]]
        p(f"""s_lshr_b32 s88, {sW}, 1
s_lshl_b32 s89, s88, 13
v_add_u32 v122, s89, {vWown}
v_add_u32 v123, s89, {vWoth}
v_add_u32 v124, 65536, v122
v_add_u32 v125, 65536, v123
v_add_u32 v126, 131072, v122
v_add_u32 v127, 131072, v123
s_mul_i32 s88, s88, 57344
s_mul_i32 s92, {sRB}, 114688
s_add_u32 s92, s92, s88
s_add_u32 s92, s92, {WS_H[L]}""")
        self.poll(3 + 5*L, sMK4)
        self.ts(f'p4_go{L}')
        def aload(k):
            s, w = divmod(k, 4); c, j = divmod(s, 7)
            o = []
            if w == 0: o.append(Ins(f's_add_u32 s94, s92, {(8*j + 4*c)*1024}'))
            o.append(Ins(f'buffer_load_dwordx4 {vr(128+4*(k%16),4)}, {vL16}, {SWS}, s94 offen offset:{w*1024} sc1'))
            return o
        def rd(k):
            s, w = divmod(k, 4)
            b = self.W4SLOT[s]*16384 + w*2048
            va, vb = [('v122', 'v123'), ('v124', 'v125'), ('v126', 'v127')][b >> 16]
            return self.wfrag_reads(k, b & 65535, va, vb, [(b + h*8192, b + h*8192 + 2048) for h in range(2)])
        DA = 12
        for k in range(DA): p(aload(k))
        p(d)
        for k in range(3): p(rd(k))
        spine = []; fill = {}
        pre = {}
        allreads = {}
        for k in range(56):
            spine += self.tile_mfmas(k, k == 0)
            m = k + 3
            if m < 56:
                s, w = divmod(m, 4)
                if w == 0:
                    put(fill, 2*k, WaitTok(w4[s] + allreads.get(s-2, [])), 's_barrier')
                    ns = s + 7
                    if 9 <= ns < 14:
                        dm = self.w4_stage(ns); w4[ns] = [x[2] for x in dm]
                        for i, x in enumerate(dm): put(fill, 2*k + 1 + 2*i, x)
                    if L == 0 and s >= 9:
                        todo = {9: [0], 10: [1, 2], 11: [3, 6], 12: [4], 13: [5]}[s]
                        dm = []
                        for st_ in todo:
                            x = self.w1_stage(st_); pre[st_] = [y[2] for y in x]; dm += x
                        for i, x in enumerate(dm): put(fill, 2*k + 1 + i, x)
                r = rd(m); allreads.setdefault(s, []).extend(r)
                put(fill, 2*k, r[0], r[1]); put(fill, 2*k+1, r[2], r[3])
            m = k + DA
            if m == 28 - 4: put(fill, 2*k, self.poll_issue(vT0))
            if m == 28: put(fill, 2*k, self.poll_check(vT0, 4 + 5*L, sMK4))
            if m < 56: put(fill, 2*k + 1, aload(m))
            if self.fine == f'p4{L}' and k % 4 == 0:
                fl = Prog(); sv = self.p; self.p = fl; self.ts(f's{k//4}'); self.p = sv
                put(fill, 2*k, fl.items)
        weave(p, spine, fill)
        self.ts(f'p4_mm{L}')
        p('s_barrier')
        st = self.tile_epilogue('x2' if L == 0 else 'out', L)
        self.ts(f'p4_epi{L}')
        if L == 0:
            self.post_flag(5, st)
            p('s_barrier')
        self.ts(f'p4_end{L}')
        return pre

    def build(self):
        p = self.p
        self.prologue()
        pre = {}
        for L in range(2):
            w2 = self.p1(L, pre)
            if self.stop == f'p1_{L}': break
            if L == 0:
                l = self.lab('w3a')
                p('s_waitcnt vmcnt(0) lgkmcnt(0)')
                p(f's_cmp_lg_u32 {sIDLE}, 0\ns_cbranch_scc1 {l}')
                self.w3_load_simple(0, L_STG, 14); self.colsum3(0)
                p(f's_nop 7\n{l}:')
                self.ts('w3a')
            self.p2(L, w2)
            if self.stop == f'p2_{L}': break
            w4 = self.p3(L)
            if self.stop == f'p3_{L}': break
            pre = self.p4(L, w4)
            if self.stop == f'p4_{L}': break
        if not self.ts_on: self.ts('end')
        if self.amp:
            p('s_waitcnt vmcnt(0)')
            p(Raw(f"""s_memrealtime s[62:63]
s_sub_u32 s96, s98, s96
s_mul_i32 s96, s96, {self.amp[2]}
s_min_u32 s96, s96, 100000
s_waitcnt lgkmcnt(0)
Lamp:
s_memrealtime s[98:99]
s_waitcnt lgkmcnt(0)
s_sub_u32 s98, s98, s62
s_cmp_lt_u32 s98, s96
s_cbranch_scc1 Lamp"""))
        if self.ts_on:
            self.ts('end')
            p(f's_lshl_b32 s88, s2, 2\ns_add_u32 s88, s88, {sW}\ns_lshl_b32 s88, s88, 8\ns_add_u32 s88, s88, {WS_TS}\nv_lshlrev_b32 v40, 2, {vL}')
            p('s_memrealtime s[62:63]'); p(f'v_writelane_b32 {vTS}, s62, 62')
            p(f'buffer_store_dword {vTS}, v40, {SWS}, s88 offen')
            if self.dbgts:
                sel = [self.tsn.index(n) for n in self.dbgts] + [62, 63]
                l = self.lab('dbg')
                p(f's_lshl_b32 s88, s2, 2\ns_add_u32 s88, s88, {sW}\ns_cmp_lg_u32 s88, {self.dbgwg*4}\ns_cbranch_scc1 {l}')
                p(f'v_readlane_b32 s89, {vTS}, 0')
                for i, s in enumerate(sel):
                    p(f'v_readlane_b32 s88, {vTS}, {s}')
                    if s < 62: p('s_sub_u32 s88, s88, s89')
                    p(f'v_writelane_b32 v41, s88, {i}')
                p(f's_mov_b64 exec, 0xffff\nbuffer_store_dword v41, v40, {SDBG}, 0 offen sc1\ns_mov_b64 exec, -1\n{l}:')
        p('s_waitcnt vmcnt(0)')
        body = p.finalize()
        head = open('cdna_kernels/' + NAME + '.s.ref').read().split('; Override launch')[0]
        txt = head + '; @launch grid=(256,1,1) block=(256,1,1) lds=163840\n'
        txt += f'.amdgcn_target "amdgcn-amd-amdhsa--gfx950"\n.text\n.globl {NAME}_kernel\n.p2align 8\n.type {NAME}_kernel,@function\n{NAME}_kernel:\n'
        txt += body + 'L_end:\ns_endpgm\n' + '\n'.join(getattr(p, 'tail', [])) + '\n' + '\n'.join(self.slow) + '\n'
        txt += f""".section .rodata,"a"
.p2align 6
.amdhsa_kernel {NAME}_kernel
  .amdhsa_next_free_vgpr 512
  .amdhsa_next_free_sgpr 102
  .amdhsa_accum_offset 256
  .amdhsa_group_segment_fixed_size 0
  .amdhsa_kernarg_size 80
  .amdhsa_user_sgpr_count 2
  .amdhsa_user_sgpr_kernarg_segment_ptr 1
  .amdhsa_system_sgpr_workgroup_id_x 1
  .amdhsa_float_denorm_mode_32 3
.end_amdhsa_kernel
"""
        return txt

if __name__ == '__main__':
    import argparse
    ap = argparse.ArgumentParser()
    ap.add_argument('-o', default='k.s'); ap.add_argument('--ts', action='store_true'); ap.add_argument('--stop'); ap.add_argument('--nomimic', action='store_true'); ap.add_argument('--glob', action='store_true'); ap.add_argument('--fine'); ap.add_argument('--dbg'); ap.add_argument('--amp')
    a = ap.parse_args()
    g = Gen(ts=a.ts, stop=a.stop, mimic=not a.nomimic, force_global=a.glob, fine=a.fine)
    if a.amp: g.amp = a.amp.split(',')
    if a.dbg: g.dbgts = a.dbg.split(',')
    open(a.o, 'w').write(g.build())
    if a.ts: open(a.o + '.ts', 'w').write('\n'.join(g.tsn))
    print(g.p.stats)
```

```python
import sys
from asmlib import *

NAME = 'interleave_layers__sliding_local_dilated__glu_gated_glu__prompt'
MB = 1 << 20
WS_O = [0, 2*MB]; WS_X1 = [4*MB, 6*MB]; WS_X2 = 8*MB
WS_ST1 = [10*MB, 10*MB + (256 << 10)]; WS_ST2 = 10*MB + (512 << 10)
WS_HB = 11*MB; WS_HS = 12*MB; WS_FL = 13*MB; WS_TS = 14*MB
WS_H = [16*MB, 24*MB]

SX, SWQKV, SWO, SW3, SWD, SOUT, SWS, SDBG = 's[4:7]', 's[8:11]', 's[12:15]', 's[16:19]', 's[20:23]', 's[24:27]', 's[28:31]', 's[32:35]'
sW, sMODE, sT, sROW, sHALO, sG, sG16, sM16, sCB, sW1K, sW4K, sHASP, sPG = ['s%d' % i for i in range(36, 49)]
sIDLE = 's49'
sMK2, sMK4, sMK1 = 's[50:51]', 's[52:53]', 's[54:55]'
sA1, sRB, sSPIN, sT2 = 's56', 's57', 's58', 's59'
sXCC, sW2K = 's60', 's61'
vL, vL16, vA1e, vA1o, vW1d, vW1r0, vW1r1, vA1r0, vA1r1, vW2d, vW4d, vWown, vWoth, vRM, vFLp, vFLo = ['v%d' % i for i in range(16)]
RES = 16
CSQ, CSK, CSV = 24, 28, 32
vW3d, vW3r, vT0, vTS = 'v36', 'v37', 'v38', 'v39'
L_A1 = 0; L_A1H = 65536; L_R1 = 73728; L_TAB = 159744
L_W2 = L_TAB - 65536
L_XB = 0
L_STG = 16384
L_NM = L_TAB; L_RS = L_TAB + 320
L_T3 = L_TAB
L_CS3 = L_TAB + 2048
LOG2E = 1.4426950408889634
import struct
def f2u(x): return '0x%08x' % struct.unpack('<I', struct.pack('<f', x))[0]
def vr(a, n): return f'v[{a}:{a+n-1}]' if n > 1 else f'v{a}'
def ar(a, n): return f'a[{a}:{a+n-1}]'

class Gen:
    def __init__(self, ts=False, mimic=True, stop=None, force_global=False, fine=None):
        self.fine = fine; self.stfl = ''; self.outfl = ''; self.wb = False; self.amp = None; self.dbgts = None; self.dbgwg = 0
        self.p = Prog(); self.ts_on = ts; self.mimic = mimic; self.nts = 0; self.tsn = []
        self.slow = []; self.nlab = 0; self.stop = stop; self.force_global = force_global

    def lab(self, s):
        self.nlab += 1; return f'L{s}{self.nlab}'
    def ts(self, name):
        if self.amp and name == self.amp[0]: self.p('s_memrealtime s[96:97]\ns_waitcnt lgkmcnt(0)')
        if self.amp and name == self.amp[1]: self.p('s_memrealtime s[98:99]\ns_waitcnt lgkmcnt(0)')
        if not self.ts_on: return
        p = self.p
        p('s_memtime s[62:63]'); p(f'v_writelane_b32 {vTS}, s62, {self.nts}')
        self.tsn.append(name); self.nts += 1

    def dma(self, voff, srd, sbase, goff, lbase, loff, lds, sc1=False):
        a = Ins(f's_add_u32 m0, {lbase}, {loff}') if lbase else Ins(f's_mov_b32 m0, {loff}')
        b = Ins(f's_add_u32 {sT}, {sbase}, {goff}') if sbase else Ins(f's_mov_b32 {sT}, {goff}')
        c = Ins(f'buffer_load_dwordx4 {voff}, {srd}, {sT} offen{" sc1" if sc1 else ""} lds', lds=lds)
        return [a, b, c]
    def stores(self, texts):
        a = [Ins(t + (self.stfl if 'x4' in t else '')) for t in texts]; b = [Ins(t + ' sc1') for t in texts]
        return Alt(sMODE, a, b), a
    def post_flag(self, val, toks):
        p = self.p
        p(f'v_mov_b32 {vT0}, {val}')
        p(WaitTok(toks))
        p('s_mov_b64 exec, 1')
        alt, a = self.stores([f'buffer_store_dword {vT0}, {vFLo}, {SWS}, 0 offen'])
        p(alt)
        p('s_mov_b64 exec, -1')
    def poll_issue(self, vf):
        return Ins(f'buffer_load_dword {vf}, {vFLp}, {SWS}, 0 offen sc1')
    def poll_check(self, vf, val, mask):
        ls, lb = self.lab('ps'), self.lab('pb')
        items = [Ins(f'v_cmp_gt_u32 vcc, {val}, {vf}')]
        items.append(Ins(f's_and_b64 vcc, vcc, {mask}'))
        items.append(Ins(f's_cbranch_scc1 {ls}'))
        items.append(Ins(f'{lb}:'))
        self.slow.append(f"""{ls}:
s_mov_b32 {sSPIN}, 0
{ls}_l:
buffer_load_dword {vf}, {vFLp}, {SWS}, 0 offen sc1
s_add_u32 {sSPIN}, {sSPIN}, 1
s_cmp_gt_u32 {sSPIN}, 30000
s_cbranch_scc1 {ls}_x
s_waitcnt vmcnt(0)
v_cmp_gt_u32 vcc, {val}, {vf}
s_nop 0
s_and_b64 vcc, vcc, {mask}
s_cbranch_scc1 {ls}_l
{ls}_x:
s_waitcnt vmcnt(0)
s_branch {lb}""")
        return items
    def poll(self, val, mask):
        self.p(self.poll_issue(vT0)); self.p(self.poll_check(vT0, val, mask))

    def prologue(self):
        p = self.p
        if self.amp and self.amp[0] == 'entry': p('s_memrealtime s[96:97]')
        p('s_cmp_ge_u32 s2, 256'); p('s_cbranch_scc1 L_end')
        p('s_load_dwordx16 s[64:79], s[0:1], 0'); p('s_load_dwordx4 s[80:83], s[0:1], 64')
        p(f'v_lshrrev_b32 v1, 6, v0\nv_and_b32 {vL}, 63, v0\nv_readfirstlane_b32 {sW}, v1')
        if self.ts_on:
            p(f'v_mov_b32 {vTS}, 0'); p('s_memrealtime s[62:63]'); p(f'v_writelane_b32 {vTS}, s62, 63')
        self.ts('start')
        p(f"""s_getreg_b32 {sXCC}, hwreg(HW_REG_XCC_ID)
s_and_b32 {sXCC}, {sXCC}, 15
s_add_u32 {sXCC}, {sXCC}, 1
s_and_b32 s84, s2, 7
s_lshr_b32 s85, s2, 3
s_lshr_b32 s86, s85, 3
s_and_b32 {sCB}, s85, 7
s_and_b32 {sM16}, s85, 15
s_lshl_b32 {sG}, s84, 2
s_add_u32 {sG}, {sG}, s86
s_lshr_b32 {sG16}, {sG}, 1
s_lshr_b32 s87, s84, 1
s_lshl_b32 s87, s87, 2
s_add_u32 s87, s87, s86
s_lshl_b32 {sROW}, s87, 17
s_and_b32 s88, s84, 1
s_lshl_b32 s88, s88, 10
s_add_u32 {sROW}, {sROW}, s88
s_cmp_eq_u32 s86, 0
s_cselect_b32 s88, 5, 1
s_sub_u32 {sPG}, {sG}, s88
s_cmp_eq_u32 s87, 0
s_cselect_b32 {sPG}, {sG}, {sPG}
s_cselect_b32 {sHASP}, 0, 1
s_cselect_b32 s88, 0, 16384
s_sub_u32 {sHALO}, {sROW}, s88
s_lshl_b32 {sW1K}, {sW}, 10
s_lshl_b32 {sW2K}, {sW}, 11
s_lshl_b32 {sW4K}, {sW}, 12
s_cmp_ge_u32 {sM16}, 14
s_cselect_b32 {sIDLE}, 1, 0
s_and_b32 s88, {sW}, 1
s_lshl_b32 {sRB}, {sG}, 1
s_add_u32 {sRB}, {sRB}, s88
s_lshl_b32 {sA1}, {sW}, 15
s_add_u32 {sA1}, {sA1}, {sROW}""")
        p(f"""s_and_b32 s88, s86, 1
s_lshl_b32 s88, s88, 5
s_lshr_b32 s89, {sW}, 1
s_mov_b32 s90, -1
s_mov_b32 s91, 0
s_lshl_b64 {sMK1}, s[90:91], s88
s_lshl_b32 s92, s89, 4
s_add_u32 s92, s92, s88
s_mov_b32 s90, 0xffff
s_lshl_b64 {sMK2}, s[90:91], s92
s_mul_i32 s92, s89, 28
s_mov_b32 s90, 0xfffffff
s_lshl_b64 {sMK4}, s[90:91], s92""")
        t = [f'v{i}' for i in range(40, 56)]
        p(f"""v_lshlrev_b32 {vL16}, 4, {vL}
v_lshrrev_b32 {t[0]}, 3, {vL}
v_and_b32 {t[1]}, 7, {vL}
v_lshrrev_b32 {t[2]}, 1, {t[0]}
v_xor_b32 {t[3]}, {t[1]}, {t[2]}
v_lshlrev_b32 {t[3]}, 4, {t[3]}
v_lshl_add_u32 {vA1e}, {t[0]}, 11, {t[3]}
v_xor_b32 {vA1o}, 64, {vA1e}
v_and_b32 {t[4]}, 1, {t[2]}""")
        p(f"""s_and_b32 s88, {sW}, 1
s_lshl_b32 s88, s88, 2
v_lshl_add_u32 {t[5]}, {t[4]}, 1, s88
v_xor_b32 {t[5]}, {t[5]}, {t[1]}
v_lshlrev_b32 {t[5]}, 4, {t[5]}
s_mul_i32 s88, {sW}, 24576
s_lshl_b32 s89, {sCB}, 7
s_add_u32 s88, s88, s89
v_mul_u32_u24 {t[6]}, 3072, {t[0]}
v_add3_u32 {vW1d}, {t[5]}, {t[6]}, s88
s_lshr_b32 s90, {sW}, 1
s_mul_i32 s88, s90, 28672
s_lshl_b32 s91, {sM16}, 8
s_add_u32 s88, s88, s91
v_mul_u32_u24 {t[6]}, 3584, {t[0]}
v_add3_u32 {vW3d}, {t[5]}, {t[6]}, s88""")
        p(f"""v_lshlrev_b32 {t[5]}, 2, {t[4]}
v_xor_b32 {t[5]}, {t[5]}, {t[1]}
v_lshlrev_b32 {t[5]}, 4, {t[5]}
v_lshl_add_u32 {t[5]}, {t[0]}, 10, {t[5]}
s_lshl_b32 s88, {sW}, 13
s_add_u32 s88, s88, s89
v_add_u32 {vW2d}, s88, {t[5]}
s_mul_i32 s88, s90, {7*128*1024}
s_and_b32 s91, {sW}, 1
s_lshl_b32 s91, s91, 15
s_add_u32 s88, s88, s91
s_add_u32 s88, s88, s89
v_add_u32 {vW4d}, s88, {t[5]}""")
        p(f"""v_lshrrev_b32 {t[0]}, 4, {vL}
v_and_b32 {t[1]}, 15, {vL}
v_lshrrev_b32 {t[2]}, 2, {t[1]}
v_and_b32 {t[3]}, 3, {vL}
v_lshrrev_b32 {t[4]}, 1, {t[2]}
v_and_b32 {t[5]}, 1, {t[0]}
v_lshl_add_u32 {t[6]}, {t[5]}, 1, {t[4]}
v_xor_b32 {t[6]}, {sW}, {t[6]}
v_lshlrev_b32 {t[6]}, 5, {t[6]}
v_lshl_add_u32 {t[6]}, {t[3]}, 3, {t[6]}
v_lshl_add_u32 {t[6]}, {t[2]}, 7, {t[6]}
v_lshl_add_u32 {t[6]}, {t[0]}, 10, {t[6]}
v_add_u32 {vW1r0}, {L_R1}, {t[6]}
v_add_u32 {vW1r1}, {L_R1 + 49152}, {t[6]}
v_lshrrev_b32 {t[6]}, 1, {t[1]}
v_xor_b32 {t[6]}, {t[6]}, {t[0]}
v_lshlrev_b32 {t[6]}, 4, {t[6]}
v_lshl_add_u32 {vA1r0}, {t[1]}, 7, {t[6]}
v_xor_b32 {vA1r1}, 64, {vA1r0}""")
        p(f"""v_lshrrev_b32 {t[7]}, 1, {t[0]}
v_lshrrev_b32 {t[8]}, 1, {t[3]}
v_and_b32 {t[9]}, 1, {t[3]}
v_lshl_add_u32 {t[10]}, {t[9]}, 1, {t[8]}
v_lshl_add_u32 {t[10]}, {t[5]}, 2, {t[10]}
v_lshlrev_b32 {t[10]}, 3, {t[10]}
v_xor_b32 {t[11]}, s90, {t[4]}
v_lshl_add_u32 {t[10]}, {t[11]}, 6, {t[10]}
v_lshl_add_u32 {t[10]}, {t[2]}, 7, {t[10]}
v_lshl_add_u32 {vWown}, {t[7]}, 10, {t[10]}
v_xor_b32 {vWoth}, 64, {vWown}
v_lshl_add_u32 {t[10]}, {t[9]}, 1, {t[5]}
v_lshlrev_b32 {t[10]}, 3, {t[10]}
v_lshl_add_u32 {t[11]}, {t[8]}, 1, {t[4]}
v_xor_b32 {t[11]}, {sW}, {t[11]}
v_lshl_add_u32 {t[10]}, {t[11]}, 5, {t[10]}
v_lshl_add_u32 {t[10]}, {t[2]}, 7, {t[10]}
v_lshl_add_u32 {t[10]}, {t[8]}, 10, {t[10]}
v_lshl_add_u32 {vW3r}, {t[7]}, 11, {t[10]}""")
        p(f"""v_and_b32 {t[0]}, 31, {vL}
v_lshrrev_b32 {t[1]}, 5, {vL}
v_lshlrev_b32 {t[1]}, 4, {t[1]}
v_lshl_add_u32 {t[0]}, {t[0]}, 11, {t[1]}
s_and_b32 s88, {sW}, 1
s_lshl_b32 s88, s88, 16
s_lshl_b32 s91, s90, 6
s_add_u32 s88, s88, s91
s_add_u32 s88, s88, s89
v_add_u32 {vRM}, s88, {t[0]}
s_lshl_b32 s88, {sG16}, 8
s_add_u32 s88, s88, {WS_FL}
v_lshl_add_u32 {vFLp}, {vL}, 2, s88
s_lshl_b32 s91, {sM16}, 2
s_add_u32 s91, s91, {sW}
s_lshl_b32 s91, s91, 2
s_add_u32 s88, s88, s91
v_mov_b32 {vFLo}, s88""")
        def srd(base, lo, size):
            p(f's_mov_b32 s{base}, s{lo}\ns_and_b32 s{base+1}, s{lo+1}, 0xffff\ns_mov_b32 s{base+2}, {size}\ns_mov_b32 s{base+3}, 0x20000')
        srd(4, 64, 2*MB); srd(8, 66, 512*3072); srd(12, 68, 512*1024)
        p(f's_bitcmp1_b32 {sW}, 0\ns_cselect_b32 s72, s74, s72\ns_cselect_b32 s73, s75, s73')
        srd(16, 72, 512*3584); srd(20, 76, 1792*1024); srd(24, 78, 2*MB); srd(28, 82, 256*MB); srd(32, 80, 256)
        c = 40
        p(f"""v_mov_b32 v{c}, -1
v_mov_b32 v{c+1}, -1
v_mov_b32 v{c+2}, -1
v_mov_b32 v{c+3}, -1
v_mov_b32 v{c+4}, 0
v_lshrrev_b32 v{c+5}, 3, {vL}
v_and_b32 v{c+6}, 7, {vL}
v_lshlrev_b32 v{c+6}, 4, v{c+6}
v_lshl_add_u32 v{c+5}, v{c+5}, 11, v{c+6}
s_lshl_b32 s88, {sG}, 14
s_add_u32 s88, s88, s89
s_add_u32 s88, s88, {sW4K}
s_add_u32 s88, s88, {WS_HB}
s_lshl_b32 s91, {sG}, 7
s_lshl_b32 s92, {sW}, 4
s_add_u32 s91, s91, s92
s_add_u32 s91, s91, {WS_HS}
s_cmp_eq_u32 {sCB}, 0
s_cselect_b32 s91, s91, 0x7ff00000
v_mov_b32 v{c+6}, s91
s_mov_b64 exec, 0xffff""")
        self.clr = [p(f'buffer_store_dwordx4 {vr(c,4)}, v{c+5}, {SWS}, s88 offen sc1')]
        p('s_mov_b64 exec, 1')
        self.clr.append(p(f'buffer_store_dwordx4 {vr(c,4)}, v{c+6}, {SWS}, 0 offen sc1'))
        self.clr.append(p(f'buffer_store_dword v{c+4}, {vFLo}, {SWS}, 0 offen sc1'))
        p('s_mov_b64 exec, -1')

    def publish_xcc(self):
        l = self.lab('px')
        self.p(Raw(f"""s_cmp_lg_u32 {sW}, 0
s_cbranch_scc1 {l}
s_lshl_b32 s88, {sG}, 3
s_add_u32 s88, s88, {sCB}
v_mov_b32 v124, {sXCC}
v_mov_b32 v125, s88
s_mov_b64 exec, 1
buffer_store_byte v124, v125, {SDBG}, 0 offen sc1
s_mov_b64 exec, -1
{l}:""", wr=['v124', 'v125', 's88'], states=2))
    def mode_issue(self, va, vd):
        p = self.p
        p(f"""s_lshl_b32 s88, {sG16}, 4
s_lshl_b32 s89, {sPG}, 3
s_sub_u32 s89, s89, 16
s_lshl_b32 s90, {sG}, 3
s_add_u32 s90, s90, {sCB}
v_add_u32 {va}, s88, {vL}
v_add_u32 {vd}, s89, {vL}
v_cmp_gt_u32 vcc, 16, {vL}
v_cndmask_b32 {va}, {vd}, {va}, vcc
v_mov_b32 {vd}, s90
v_cmp_gt_u32 vcc, 24, {vL}
v_cndmask_b32 {va}, {vd}, {va}, vcc""")
        p(f'buffer_load_ubyte {vd}, {va}, {SDBG}, 0 offen sc1')
    def mode_check(self, va, vd):
        p = self.p
        ls, lb = self.lab('ms'), self.lab('mb')
        p(f'v_cmp_eq_u32 vcc, 0, {vd}\ns_and_b64 vcc, vcc, exec\ns_cbranch_scc1 {ls}\n{lb}:')
        self.slow.append(f"""{ls}:
s_mov_b32 {sSPIN}, 0
{ls}_l:
buffer_load_ubyte {vd}, {va}, {SDBG}, 0 offen sc1
s_add_u32 {sSPIN}, {sSPIN}, 1
s_cmp_gt_u32 {sSPIN}, 30000
s_cbranch_scc1 {ls}_x
s_waitcnt vmcnt(0)
v_cmp_eq_u32 vcc, 0, {vd}
s_nop 0
s_and_b64 vcc, vcc, exec
s_cbranch_scc1 {ls}_l
{ls}_x:
s_waitcnt vmcnt(0)
s_branch {lb}""")
        p(f'v_cmp_ne_u32 vcc, {sXCC}, {vd}\ns_and_b32 {sMODE}, vcc_lo, 0xffff')
        if self.force_global: p(f's_mov_b32 {sMODE}, 1')

    def stats_final(self, S, Q, t):
        o = [f'v_mul_f32 {S}, {f2u(-1/512)}, {S}', f'v_mul_f32 {Q}, {f2u(1/512)}, {Q}', f'v_fma_f32 {Q}, -{S}, {S}, {Q}', f'v_max_f32 {Q}, 0, {Q}']
        rnd = lambda x: [f'v_cvt_pk_bf16_f32 {x}, {x}, {x}', f'v_and_b32 {x}, 0xffff0000, {x}']
        if self.mimic:
            o += rnd(S) + rnd(Q) + [f'v_add_f32 {Q}, {f2u(1e-5)}, {Q}'] + rnd(Q) + [f'v_sqrt_f32 {t}, {Q}'] + rnd(t) + [f'v_rcp_f32 {Q}, {t}']
        else:
            o += [f'v_add_f32 {Q}, {f2u(1e-5)}, {Q}', f'v_sqrt_f32 {t}, {Q}', f'v_rcp_f32 {Q}, {t}']
        return o
    def stats_partials_issue(self, base, sbase, r):
        o = [Ins(f's_add_u32 {sT}, {sbase}, {base}')]
        for i in range(4): o.append(Ins(f'buffer_load_dwordx4 {vr(r+4*i,4)}, {vL16}, {SWS}, {sT} offen offset:{1024*i} sc1'))
        return o
    def stats_partials_reduce(self, r):
        o = []
        for j in range(4): o.append(f'v_add_f32 v{r+j}, v{r+j}, v{r+4+j}')
        for j in range(4): o.append(f'v_add_f32 v{r+8+j}, v{r+8+j}, v{r+12+j}')
        for j in range(4): o.append(f'v_add_f32 v{r+j}, v{r+j}, v{r+8+j}')
        o += [f'v_permlane16_swap_b32 v{r}, v{r+2}', f'v_permlane16_swap_b32 v{r+1}, v{r+3}',
              f'v_add_f32 v{r}, v{r}, v{r+2}', f'v_add_f32 v{r+1}, v{r+1}, v{r+3}',
              f'v_permlane32_swap_b32 v{r}, v{r+1}', f'v_add_f32 v{r}, v{r}, v{r+1}', f'v_mov_b32 v{r+1}, v{r}',
              f'v_permlane32_swap_b32 v{r}, v{r+1}']
        return o

    def w1_stage(self, s):
        slot = L_R1 + (s % 7) * 12288
        return [self.dma(vW1d, SWQKV, None, part*1024 + s*32*3072, sW1K, slot + part*4096, (slot + part*4096, slot + part*4096 + 4096)) for part in range(3)]
    def w2_piece(self, i):
        return self.dma(vW2d, SWO, None, i*32768, sW1K, L_W2 + i*4096, (L_W2 + i*4096, L_W2 + i*4096 + 4096))
    W4SLOT = [8, 0, 1, 2, 3, 4, 5, 6, 7, 8, 0, 1, 2, 3]
    def w4_stage(self, s):
        c, j = divmod(s, 7)
        slot = self.W4SLOT[s] * 16384
        return [self.dma(vW4d, SWD, None, (128*j + 64*c + 8*i)*1024, sW4K, slot + i*1024, [(slot + q*4096 + i*1024, slot + q*4096 + i*1024 + 1024) for q in range(4)]) for i in range(4)]
    def w3_piece(self, c, ks, stg):
        return self.dma(vW3d, SW3, None, ks*16*3584 + c*128, sW1K, stg, (stg, stg + 4096))
    def w3_reads(self, c, ks, stg, vaddr, vbase):
        a = c*128 + ks*4
        return [Ins(f'ds_read_b64_tr_b16 {ar(a+2*rd,2)}, {vaddr} offset:{stg - vbase + rd*512}', lds=(stg, stg+4096)) for rd in range(2)]

    def p1(self, L, pre):
        p = self.p
        QA, KA, VA, AF, WQ, ONE, WK, WV = 40, 56, 76, 96, 112, 120, 128, 192
        srdA = SX if L == 0 else SWS
        abase = 0 if L == 0 else WS_X2
        wtok = dict(pre)
        if L == 1:
            self.poll(5, sMK1)
        self.ts(f'p1_go{L}')
        atok = []
        for kc in range(8):
            tk = []
            for o in range(2):
                d = self.dma(vA1o if o else vA1e, srdA, sA1, abase + o*16384 + kc*128, sW2K, kc*8192 + o*1024,
                             [(kc*8192 + q*2048 + o*1024, kc*8192 + q*2048 + o*1024 + 1024) for q in range(4)], sc1=(L == 1))
                p(d); tk.append(d[2])
            atok.append(tk)
        def halo_dma():
            out = []
            for u in range(2):
                out.append(self.dma(vA1o, srdA, 's93', u*128, sW2K, L_A1H + u*1024, [(L_A1H + q*2048 + u*1024, L_A1H + q*2048 + u*1024 + 1024) for q in range(4)], sc1=(L == 1)))
            return out
        p(f's_lshl_b32 s93, {sW}, 8')
        if L == 0:
            p(f's_add_u32 s93, s93, {sHALO}')
            hd = halo_dma(); p(hd); htok = [d[2] for d in hd]
            for i2 in range(2): p(f'buffer_load_dwordx4 {vr(RES+4*i2,4)}, {vRM}, {SX}, {sROW} offen offset:{32*i2}')
            for s in range(7):
                d = self.w1_stage(s); p(d); wtok[s] = [x[2] for x in d]
            if self.fine == 'p10':
                self.ts('issued'); p(WaitTok(self.clr)); self.ts('clr'); p(WaitTok(atok[0])); self.ts('a0')
            p(WaitTok(self.clr + atok[7] + htok)); p('s_barrier')
            self.publish_xcc()
            self.ts('a1_landed')
            t0, t1 = 'v124', 'v125'
            p(f'v_add_u32 {t0}, {sW2K}, {vA1r0}\nv_xor_b32 {t1}, 64, {t0}')
            for ks in range(16):
                p(f'ds_read_b128 {vr(128+4*ks,4)}, {t1 if ks & 1 else t0} offset:{(ks>>1)*8192}', lds=((ks>>1)*8192, (ks>>1)*8192+8192))
            p(f"""v_lshrrev_b32 v126, 5, {vL}
v_lshlrev_b32 v126, 7, v126
v_and_b32 v127, 7, {vL}
v_lshl_add_u32 v126, v127, 4, v126
v_bfe_u32 v127, {vL}, 3, 2
v_lshl_add_u32 v126, v127, 10, v126
s_lshl_b32 s88, {sW}, 8
s_add_u32 s88, s88, {L_A1H}
v_add_u32 v126, s88, v126""")
            for u in range(2): p(f'ds_read_b128 {vr(192+4*u,4)}, v126 offset:{u*4096}', lds=(L_A1H, L_A1H+8192))
            for i in range(4): p(f'v_mov_b32 v{ONE+i}, 0x3f803f80')
            for i in range(8): p(f'v_mov_b32 v{96+i}, 0')
            for i in range(64):
                p(f'v_dot2c_f32_bf16 v{96+(i&1)}, v{128+i}, v{ONE}\nv_dot2c_f32_bf16 v{98+(i&1)}, v{128+i}, v{128+i}')
            for i in range(8):
                p(f'v_dot2c_f32_bf16 v{100+(i&1)}, v{192+i}, v{ONE}\nv_dot2c_f32_bf16 v{102+(i&1)}, v{192+i}, v{192+i}')
            p("""v_add_f32 v96, v96, v97
v_add_f32 v98, v98, v99
v_add_f32 v100, v100, v101
v_add_f32 v102, v102, v103
v_permlane16_swap_b32 v96, v98
v_add_f32 v96, v96, v98
v_mov_b32 v98, v96
v_permlane32_swap_b32 v96, v98
v_add_f32 v96, v96, v98
v_mov_b32 v98, v96
v_permlane16_swap_b32 v96, v98""")
            for sh in (8, 4, 2, 1):
                p(f'v_add_f32_dpp v100, v100, v100 row_ror:{sh} row_mask:0xf bank_mask:0xf\nv_add_f32_dpp v102, v102, v102 row_ror:{sh} row_mask:0xf bank_mask:0xf')
            p("""v_permlane16_swap_b32 v100, v102
v_add_f32 v100, v100, v102
v_mov_b32 v102, v100
v_permlane16_swap_b32 v100, v102""")
            p(self.stats_final('v96', 'v98', 'v97')); p(self.stats_final('v100', 'v102', 'v101'))
            p(f"""v_and_b32 v124, 15, {vL}
s_lshl_b32 s88, {sW}, 6
s_add_u32 s88, s88, {L_NM + 64}
v_lshl_add_u32 v124, v124, 2, s88
v_lshrrev_b32 v125, 5, {vL}
s_lshl_b32 s88, {sW}, 3
s_add_u32 s88, s88, {L_NM}
v_lshl_add_u32 v125, v125, 2, s88""")
            tabw = [p('ds_write_b32 v124, v96', lds=(L_NM+64, L_NM+320)), p('ds_write_b32 v124, v98 offset:320', lds=(L_RS+64, L_RS+320))]
            for o in (0, 32):
                tabw.append(p(f'ds_write_b32 v125, v100 offset:{o}', lds=(L_NM, L_NM+64)))
                tabw.append(p(f'ds_write_b32 v125, v102 offset:{o+320}', lds=(L_RS, L_RS+64)))
            p(WaitTok(tabw))
        else:
            p(f's_lshl_b32 s88, {sPG}, 14\ns_add_u32 s93, s93, s88\ns_add_u32 s93, s93, {WS_HB}')
            p(f's_lshl_b32 s88, {sRB}, 12')
            p(self.stats_partials_issue(WS_ST2, 's88', 128))
            lh = self.lab('hs')
            p(Raw(f"""s_bitcmp1_b32 {sW}, 0
s_cbranch_scc0 {lh}
s_lshl_b32 s88, {sG}, 14
s_add_u32 s88, s88, {WS_HB - 56*2048}
s_mov_b32 exec_lo, 0xff000000
s_mov_b32 exec_hi, 0xff000000
buffer_store_dwordx4 {vr(RES,4)}, {vRM}, {SWS}, s88 offen sc1
buffer_store_dwordx4 {vr(RES+4,4)}, {vRM}, {SWS}, s88 offen offset:32 sc1
s_mov_b64 exec, -1
{lh}:""", rd=[vr(RES, 8)], wr=['s88'], states=2))
            p(self.stats_partials_reduce(128))
            p(self.stats_final('v128', 'v129', 'v130'))
            p(f"""v_and_b32 v124, 15, {vL}
v_lshlrev_b32 v124, 3, v124
v_bfe_u32 v125, {vL}, 4, 1
v_lshl_add_u32 v124, v125, 2, v124
s_and_b32 s88, {sW}, 1
s_lshl_b32 s88, s88, 7
s_add_u32 s88, s88, {L_NM + 64}
v_add_u32 v125, s88, v124""")
            tabw = [p('ds_write_b32 v125, v128', lds=(L_NM+64, L_NM+320)), p('ds_write_b32 v125, v129 offset:320', lds=(L_RS+64, L_RS+320))]
            lh = self.lab('ht')
            p(Raw(f"""s_lshl_b32 s88, {sCB}, 2
s_add_u32 s88, s88, {sW}
s_cmp_lg_u32 s88, 1
s_cbranch_scc1 {lh}
s_lshl_b32 s88, {sG}, 7
s_add_u32 s88, s88, {WS_HS - 96}
s_mov_b32 exec_lo, 0xf000f000
s_mov_b32 exec_hi, 0
buffer_store_dword v128, v124, {SWS}, s88 offen sc1
buffer_store_dword v129, v124, {SWS}, s88 offen offset:32 sc1
s_mov_b64 exec, -1
{lh}:""", rd=['v128', 'v129', 'v124'], wr=['s88'], states=2))
            p(WaitTok(tabw))
        self.ts(f'p1_stats{L}')
        def wreads(s):
            slot = s % 7
            va, off = (vW1r0, slot*12288) if slot < 4 else (vW1r1, slot*12288 - 49152)
            lo = L_R1 + slot*12288
            out = []
            for part, dst in ((0, WQ + 4*(s & 1)), (1, WK + 4*s), (2, WV + 4*s)):
                for rd in range(2):
                    out.append(Ins(f'ds_read_b64_tr_b16 {vr(dst+2*rd,2)}, {va} offset:{off + part*4096 + rd*512}', lds=(lo + part*4096, lo + part*4096 + 4096)))
            return out
        def aread(s, t):
            o = (s >> 1)*8192 + t*2048
            return Ins(f'ds_read_b128 {vr(AF+4*t,4)}, {vA1r1 if s & 1 else vA1r0} offset:{o}', lds=(o, o+2048))
        p(WaitTok(wtok[0] + atok[0])); p('s_barrier')
        wr = wreads(0); p(wr)
        for t in range(4): p(aread(0, t))
        w2tok = []
        w2order = list(range(1, 16)) + [0]
        mode_at = 9
        for s in range(16):
            spine = []; fill = {}
            z = (s == 0)
            wq, wk, wv = vr(WQ + 4*(s & 1), 4), vr(WK + 4*s, 4), vr(WV + 4*s, 4)
            for t in range(4):
                a = vr(AF + 4*t, 4)
                q, k, v = vr(QA + 4*t, 4), vr(KA + 4 + 4*t, 4), vr(VA + 4 + 4*t, 4)
                spine.append(f'v_mfma_f32_16x16x32_bf16 {q}, {wq}, {a}, {0 if z else q}')
                spine.append(f'v_mfma_f32_16x16x32_bf16 {k}, {wk}, {a}, {0 if z else k}')
                spine.append(f'v_mfma_f32_16x16x32_bf16 {v}, {a}, {wv}, {0 if z else v}')
            if L == 0:
                one = vr(ONE, 4)
                for dst, x, y in ((CSQ, wq, one), (CSK, wk, one), (CSV, one, wv)):
                    spine.append(f'v_mfma_f32_16x16x32_bf16 {vr(dst,4)}, {x}, {y}, {0 if z else vr(dst,4)}')
            pre_toks = list(wr)
            if s < 15:
                pre_toks += wtok[s+1] + atok[(s+1) >> 1]
            if s == 15: pre_toks += htok
            put(fill, 0, WaitTok(pre_toks), 's_barrier')
            if s < 15:
                wr = wreads(s+1)
                for i, x in enumerate(wr): put(fill, 1 + i, x)
                for t in range(4): put(fill, 3*t + 2, aread(s+1, t))
            dm = []
            if s + 7 < 16:
                dm = self.w1_stage(s+7); wtok[s+7] = [x[2] for x in dm]
            else:
                n0 = (s - 9) * 3
                idx = w2order[n0:n0+3] if s < 15 else []
                if s == 14: idx = []
                if s == 15: idx = [0]
                dm = [self.w2_piece(i) for i in idx]; w2tok += [x[2] for x in dm]
            for i, x in enumerate(dm): put(fill, 7 + 2*i if 7 + 2*i < len(spine) else len(spine) - 1, x)
            if L == 1 and s == 8:
                hd = halo_dma(); htok = [d[2] for d in hd]
                put(fill, 4, hd[0]); put(fill, 6, hd[1])
                put(fill, 6, f's_lshl_b32 s88, {sPG}, 7', f's_add_u32 s94, s88, {WS_HS}', f'v_and_b32 v124, 15, {vL}', 'v_lshlrev_b32 v124, 2, v124',
                    f'buffer_load_dword v125, v124, {SWS}, s94 offen sc1')
            if self.fine == f'p1{L}': self.ts(f'k{s}')
            weave(p, spine, fill)
            if L == 0 and s == mode_at: self.mode_issue('v126', 'v127')
        self.ts(f'p1_loop{L}')
        def halo_pass(pp, check):
            pp(f"""v_and_b32 v112, 1023, {vA1r0}
v_not_b32 v113, {vL}
v_and_b32 v113, 8, v113
v_lshlrev_b32 v113, 3, v113
v_xor_b32 v112, v112, v113
v_add_u32 v112, {L_A1H}, v112
v_xor_b32 v113, 64, v112""")
            if check: pp('v_mov_b32 v114, 0')
            rd = lambda s: Ins(f'ds_read_b128 {vr(AF+4*(s&3),4)}, {"v113" if s & 1 else "v112"} offset:{(s>>1)*1024}', lds=(L_A1H + (s>>1)*1024, L_A1H + (s>>1)*1024 + 1024))
            for s in range(4): pp(rd(s))
            for s in range(16):
                a = vr(AF + 4*(s & 3), 4); k, v = vr(KA, 4), vr(VA, 4)
                pp(f'v_mfma_f32_16x16x32_bf16 {k}, {vr(WK+4*s,4)}, {a}, {0 if s == 0 else k}')
                if check: pp(f'v_max_u32 v114, v114, v{AF+4*(s&3)}')
                pp(f'v_mfma_f32_16x16x32_bf16 {v}, {a}, {vr(WV+4*s,4)}, {0 if s == 0 else v}')
                if s + 4 < 16: pp(rd(s+4))
        halo_pass(p, L == 1)
        if L == 1:
            ls, lb = self.lab('hs'), self.lab('hb')
            p(f'v_cmp_eq_u32 vcc, -1, v114\ns_and_b64 vcc, vcc, exec\ns_cbranch_scc1 {ls}\n{lb}:')
            q = Prog(check_lds=False)
            q(f'{ls}:\ns_mov_b32 {sSPIN}, 0\n{ls}_l:\ns_waitcnt vmcnt(0) lgkmcnt(0)\ns_nop 15\ns_barrier')
            q(halo_dma())
            q('s_waitcnt vmcnt(0)\ns_barrier')
            halo_pass(q, True)
            q(f's_add_u32 {sSPIN}, {sSPIN}, 1\ns_cmp_gt_u32 {sSPIN}, 5000\ns_cbranch_scc1 {ls}_x')
            q(f'v_cmp_eq_u32 vcc, -1, v114\ns_and_b64 vcc, vcc, exec\ns_cbranch_scc1 {ls}_l\n{ls}_x:\ns_nop 15\ns_branch {lb}')
            self.slow.append(q.finalize())
            ls, lb = self.lab('ss'), self.lab('sb')
            p(f'v_cmp_eq_u32 vcc, -1, v125\ns_and_b64 vcc, vcc, exec\ns_cbranch_scc1 {ls}\n{lb}:')
            self.slow.append(f"""{ls}:
s_mov_b32 {sSPIN}, 0
{ls}_l:
buffer_load_dword v125, v124, {SWS}, s94 offen sc1
s_add_u32 {sSPIN}, {sSPIN}, 1
s_cmp_gt_u32 {sSPIN}, 30000
s_cbranch_scc1 {ls}_x
s_waitcnt vmcnt(0)
v_cmp_eq_u32 vcc, -1, v125
s_nop 0
s_and_b64 vcc, vcc, exec
s_cbranch_scc1 {ls}_l
{ls}_x:
s_waitcnt vmcnt(0)
s_branch {lb}""")
            p(f"""v_and_b32 v126, 7, {vL}
v_lshlrev_b32 v126, 2, v126
v_bfe_u32 v127, {vL}, 3, 1
v_mul_u32_u24 v127, 320, v127
v_add_u32 v126, v126, v127
v_bfe_u32 v127, {vL}, 4, 1
v_lshl_add_u32 v126, v127, 5, v126
v_add_u32 v126, {L_NM}, v126""")
            x = p('ds_write_b32 v126, v125', lds=[(L_NM, L_NM+64), (L_RS, L_RS+64)])
            p(WaitTok([x])); p('s_barrier')
        if L == 0: self.mode_check('v126', 'v127')
        self.ts(f'p1_halo{L}')
        NM, RS, CQ, VS, QB, KB, VB, CA, CB, CB0, MA, SB, PP, OA, T = 128, 133, 138, 144, 184, 192, 202, 212, 216, 220, 224, 96, 228, 56, 244
        p(f"""v_and_b32 v{T}, 15, {vL}
v_lshrrev_b32 v{T+1}, 4, {vL}
v_lshlrev_b32 v{T+2}, 2, v{T}
v_add_u32 v{T+2}, {L_NM}, v{T+2}
v_lshlrev_b32 v{T+3}, 4, v{T+1}
v_add_u32 v{T+3}, {L_NM}, v{T+3}""")
        tab = (L_NM, L_NM + 640)
        for u in range(5):
            p(f'ds_read_b32 v{NM+u}, v{T+2} offset:{64*u}', lds=tab); p(f'ds_read_b32 v{RS+u}, v{T+2} offset:{64*u+320}', lds=tab)
        for u in range(5):
            p(f'ds_read_b128 {vr(VS+8*u,4)}, v{T+3} offset:{64*u}', lds=tab); p(f'ds_read_b128 {vr(VS+8*u+4,4)}, v{T+3} offset:{64*u+320}', lds=tab)
        p(f'v_lshlrev_b32 v{T+1}, 2, v{T+1}\nv_sub_u32 v{T}, v{T}, v{T+1}\nv_mov_b32 v{T+4}, 0xff800000\nv_mov_b32 v{T+5}, 0xffff\nv_mov_b32 v{T+6}, 0xffff0000')
        p(f's_cmp_eq_u32 {sHASP}, 0\ns_cselect_b64 s[88:89], 0, -1')
        for j in range(4):
            p(f"""v_subrev_u32 v{T+1}, {j}, v{T}
v_add_u32 v{T+7}, 16, v{T+1}
v_cmp_gt_u32 vcc, 8, v{T+1}
v_cmp_gt_u32 s[90:91], 8, v{T+7}
v_cndmask_b32 v{CA+j}, v{T+4}, 0, vcc
v_cndmask_b32 v{T+8+j}, 0, v{T+5+(j&1)}, vcc
v_cndmask_b32 v{CB+j}, v{T+4}, 0, s[90:91]
v_cndmask_b32 v{CB0+j}, v{T+4}, v{CB+j}, s[88:89]""")
        p(f'v_or_b32 v{MA}, v{T+8}, v{T+9}\nv_or_b32 v{MA+1}, v{T+10}, v{T+11}')
        for u in range(5):
            for j in range(4): p(f'v_fmac_f32 v{KA+4*u+j}, v{NM+u}, v{CSK+j}')
            for j in range(4): p(f'v_mul_f32 v{KA+4*u+j}, v{RS+u}, v{KA+4*u+j}')
            for j in range(2): p(f'v_cvt_pk_bf16_f32 v{KB+2*u+j}, v{KA+4*u+2*j}, v{KA+4*u+2*j+1}')
            if u:
                t = u - 1
                for j in range(4): p(f'v_fmac_f32 v{QA+4*t+j}, v{NM+u}, v{CSQ+j}')
                for j in range(2): p(f'v_cvt_pk_bf16_f32 v{QB+2*t+j}, v{QA+4*t+2*j}, v{QA+4*t+2*j+1}')
                p(f'v_mul_f32 v{CQ+t}, {f2u(0.25*LOG2E)}, v{RS+u}')
        for t in range(4):
            p(f'v_mfma_f32_16x16x16_bf16 {vr(QA+4*t,4)}, {vr(KB+2*(t+1),2)}, {vr(QB+2*t,2)}, {vr(CA,4)}')
            p(f'v_mfma_f32_16x16x16_bf16 {vr(SB+4*t,4)}, {vr(KB+2*t,2)}, {vr(QB+2*t,2)}, {vr(CB0 if t == 0 else CB,4)}')
        for u in range(5):
            for j in range(4): p(f'v_fmac_f32 v{VA+4*u+j}, v{VS+8*u+j}, v{CSV}')
            for j in range(4): p(f'v_mul_f32 v{VA+4*u+j}, v{VS+8*u+4+j}, v{VA+4*u+j}')
            for j in range(2): p(f'v_cvt_pk_bf16_f32 v{VB+2*u+j}, v{VA+4*u+2*j}, v{VA+4*u+2*j+1}')
        for t in range(4):
            for j in range(4): p(f'v_max_f32 v{QA+4*t+j}, v{QA+4*t+j}, v{SB+4*t+j}')
        for t in range(4): p(f'v_max3_f32 v{T+t}, v{QA+4*t}, v{QA+4*t+1}, v{QA+4*t+2}')
        for t in range(4): p(f'v_max_f32 v{T+t}, v{T+t}, v{QA+4*t+3}')
        def reduce4(op, extra=None):
            p(f"""v_permlane16_swap_b32 v{T}, v{T+1}
v_permlane16_swap_b32 v{T+2}, v{T+3}
{op} v{T}, v{T}, v{T+1}
{op} v{T+2}, v{T+2}, v{T+3}
v_permlane32_swap_b32 v{T}, v{T+2}
{op} v{T}, v{T}, v{T+2}""")
            if extra: p(extra)
            p(f"""v_mov_b32 v{T+2}, v{T}
v_permlane32_swap_b32 v{T}, v{T+2}
v_mov_b32 v{T+1}, v{T}
v_mov_b32 v{T+3}, v{T+2}
v_permlane16_swap_b32 v{T}, v{T+1}
v_permlane16_swap_b32 v{T+2}, v{T+3}""")
        reduce4('v_max_f32')
        for t in range(4): p(f'v_mul_f32 v{T+t}, v{T+t}, v{CQ+t}')
        for t in range(4):
            for j in range(4): p(f'v_fma_f32 v{QA+4*t+j}, v{QA+4*t+j}, v{CQ+t}, -v{T+t}')
        for t in range(4):
            for j in range(4): p(f'v_exp_f32 v{QA+4*t+j}, v{QA+4*t+j}')
        for t in range(4):
            p(f"""v_cvt_pk_bf16_f32 v{PP+4*t}, v{QA+4*t}, v{QA+4*t+1}
v_cvt_pk_bf16_f32 v{PP+4*t+1}, v{QA+4*t+2}, v{QA+4*t+3}
v_and_b32 v{PP+4*t+2}, v{MA}, v{PP+4*t}
v_and_b32 v{PP+4*t+3}, v{MA+1}, v{PP+4*t+1}
v_xor_b32 v{PP+4*t}, v{PP+4*t}, v{PP+4*t+2}
v_xor_b32 v{PP+4*t+1}, v{PP+4*t+1}, v{PP+4*t+3}""")
            p(f'v_add_f32 v{T+t}, v{QA+4*t}, v{QA+4*t+1}\nv_add_f32 v{T+4}, v{QA+4*t+2}, v{QA+4*t+3}\nv_add_f32 v{T+t}, v{T+t}, v{T+4}')
            p(f'v_mfma_f32_16x16x32_bf16 {vr(OA+4*t,4)}, {vr(VB+2*t,4)}, {vr(PP+4*t,4)}, 0')
        reduce4('v_add_f32', f'v_rcp_f32 v{T}, v{T}')
        for t in range(4):
            for j in range(4): p(f'v_mul_f32 v{OA+4*t+j}, v{T+t}, v{OA+4*t+j}')
        for tp in range(2):
            b = PP + 4*tp
            for h in range(2):
                t = 2*tp + h
                for j in range(2): p(f'v_cvt_pk_bf16_f32 v{b+2*h+j}, v{OA+4*t+2*j}, v{OA+4*t+2*j+1}')
            p(f'v_permlane16_swap_b32 v{b}, v{b+2}\nv_permlane16_swap_b32 v{b+1}, v{b+3}')
        p(f"""s_lshl_b32 s88, {sG}, 16
s_lshl_b32 s89, {sCB}, 12
s_add_u32 s88, s88, s89
s_add_u32 s88, s88, {sW1K}
s_add_u32 s88, s88, {WS_O[L]}
s_add_u32 s89, s88, 32768""")
        alt, st = self.stores([f'buffer_store_dwordx4 {vr(PP,4)}, {vL16}, {SWS}, s88 offen', f'buffer_store_dwordx4 {vr(PP+4,4)}, {vL16}, {SWS}, s89 offen'])
        p(alt)
        self.ts(f'p1_attn{L}')
        self.post_flag(1 + 5*L, st)
        self.ts(f'p1_end{L}')
        return w2tok

    def tile_epilogue(self, kind, L):
        p = self.p
        OWN, OTH, X = 40, 56, 104
        p(f'v_add_u32 v120, {sW4K}, {vL16}\nv_xor_b32 v121, 8192, v120')
        ws = [p(f'ds_write_b128 v120, {vr(OTH+4*q,4)} offset:{L_XB + q*1024}', lds=[(L_XB + w*4096 + q*1024, L_XB + w*4096 + q*1024 + 1024) for w in range(4)]) for q in range(4)]
        for i in range(8):
            p(f'v_lshlrev_b32 v{72+2*i}, 16, v{RES+i}\nv_and_b32 v{73+2*i}, 0xffff0000, v{RES+i}')
        for i in range(16): p(f'v_add_f32 v{OWN+i}, v{OWN+i}, v{72+i}')
        p(WaitTok(ws)); p('s_barrier')
        for q in range(4):
            p(f'ds_read_b128 {vr(X+4*q,4)}, v121 offset:{L_XB + q*1024}', lds=[(L_XB + w*4096 + q*1024, L_XB + w*4096 + q*1024 + 1024) for w in range(4)])
        for i in range(16): p(f'v_add_f32 v{OWN+i}, v{OWN+i}, v{X+i}')
        for i in range(8): p(f'v_cvt_pk_bf16_f32 v{RES+i}, v{OWN+2*i}, v{OWN+2*i+1}')
        if kind == 'out':
            p(f'buffer_store_dwordx4 {vr(RES,4)}, {vRM}, {SOUT}, {sROW} offen' + self.outfl)
            p(f'buffer_store_dwordx4 {vr(RES+4,4)}, {vRM}, {SOUT}, {sROW} offen offset:32' + self.outfl)
            return None
        if kind == 'x1':
            p(f"""s_lshl_b32 s88, {sRB}, 15
s_lshl_b32 s89, {sCB}, 12
s_add_u32 s88, s88, s89
s_lshr_b32 s89, {sW}, 1
s_lshl_b32 s89, s89, 11
s_add_u32 s88, s88, s89
s_add_u32 s88, s88, {WS_X1[L]}""")
            alt, st = self.stores([f'buffer_store_dwordx4 {vr(RES,4)}, {vL16}, {SWS}, s88 offen', f'buffer_store_dwordx4 {vr(RES+4,4)}, {vL16}, {SWS}, s88 offen offset:1024'])
            stb = WS_ST1[L]
        else:
            p(f's_add_u32 s88, {sROW}, {WS_X2}')
            alt, st = self.stores([f'buffer_store_dwordx4 {vr(RES,4)}, {vRM}, {SWS}, s88 offen', f'buffer_store_dwordx4 {vr(RES+4,4)}, {vRM}, {SWS}, s88 offen offset:32'])
            stb = WS_ST2
        p(alt)
        for i in range(8):
            p(f'v_lshlrev_b32 v{72+2*i}, 16, v{RES+i}\nv_and_b32 v{73+2*i}, 0xffff0000, v{RES+i}')
        p('v_add_f32 v104, v72, v73\nv_mul_f32 v105, v72, v72\nv_add_f32 v106, v74, v75\nv_mul_f32 v107, v73, v73')
        for i in range(2, 16):
            if i >= 4: p(f'v_add_f32 v{104+2*(i&1)}, v{104+2*(i&1)}, v{72+i}')
            p(f'v_fmac_f32 v{105+2*(i&1)}, v{72+i}, v{72+i}')
        p(f"""v_add_f32 v104, v104, v106
v_add_f32 v105, v105, v107
v_permlane32_swap_b32 v104, v105
v_add_f32 v104, v104, v105
v_and_b32 v106, 31, {vL}
v_lshlrev_b32 v106, 3, v106
v_lshrrev_b32 v107, 5, {vL}
v_lshl_add_u32 v106, v107, 2, v106
s_lshl_b32 s88, {sRB}, 12
s_lshl_b32 s89, {sCB}, 9
s_add_u32 s88, s88, s89
s_lshr_b32 s89, {sW}, 1
s_lshl_b32 s89, s89, 8
s_add_u32 s88, s88, s89
s_add_u32 s88, s88, {stb}""")
        alt2, st2 = self.stores([f'buffer_store_dword v104, v106, {SWS}, s88 offen'])
        p(alt2)
        return st + st2

    def wfrag_reads(self, k, base, va, vb, lo):
        WR = 72
        r = WR + 8*(k % 4)
        out = []
        for h, ad in ((0, va), (1, vb)):
            for rd in range(2):
                out.append(Ins(f'ds_read_b64_tr_b16 {vr(r+4*h+2*rd,2)}, {ad} offset:{base + rd*512}', lds=lo))
        return out
    def tile_mfmas(self, k, z):
        r = 72 + 8*(k % 4); a = vr(128 + 4*(k % 16), 4)
        return [f'v_mfma_f32_32x32x16_bf16 {vr(56,16)}, {vr(r+4,4)}, {a}, {0 if z else vr(56,16)}',
                f'v_mfma_f32_32x32x16_bf16 {vr(40,16)}, {vr(r,4)}, {a}, {0 if z else vr(40,16)}']

    def w3_load_simple(self, c, stg, nslot):
        p = self.p
        l = self.lab('w3')
        p(f'v_add_u32 v122, {stg}, {vW3r}')
        for k0 in range(0, 32, nslot):
            ks = list(range(k0, min(32, k0 + nslot)))
            d = [self.w3_piece(c, k, stg + (k - k0)*4096) for k in ks]
            p('s_barrier')
            p(d); p(WaitTok([x[2] for x in d])); p('s_barrier')
            rs = []
            for k in ks:
                r = self.w3_reads(c, k, stg + (k - k0)*4096, 'v122', stg); p(r); rs += r
            p(WaitTok(rs))
    def colsum3(self, c):
        p = self.p
        p(f"""v_lshrrev_b32 v168, 2, {vL}
v_lshrrev_b32 v169, 4, {vL}
v_xor_b32 v168, v168, v169
v_and_b32 v168, 1, v168
v_cmp_eq_u32 vcc, 0, v168
v_mov_b32 v169, 0x3f803f80
v_cndmask_b32 v164, 0, v169, vcc
v_mov_b32 v165, v164
v_mov_b32 v166, v164
v_mov_b32 v167, v164""")
        for ks in range(32):
            p(f'v_mfma_f32_16x16x32_bf16 v[160:163], v[164:167], {ar(c*128+4*ks,4)}, {0 if ks == 0 else "v[160:163]"}')
        p(f"""v_and_b32 v168, 31, {vL}
s_lshl_b32 s88, {sW}, 8
s_add_u32 s88, s88, {L_CS3 + c*128}
v_lshl_add_u32 v168, v168, 2, s88""")
        x = p('ds_write_b32 v168, v160', lds=(L_CS3, L_CS3 + 1024), private=True)
        p(WaitTok([x]))

    def p2(self, L, w2tok):
        p = self.p
        p(f"""s_lshr_b32 s88, {sW}, 1
s_lshl_b32 s89, s88, 15
s_add_u32 s89, s89, {L_W2}
v_add_u32 v122, s89, {vWown}
v_add_u32 v123, s89, {vWoth}
s_lshl_b32 s88, s88, 14
s_lshl_b32 s92, {sRB}, 15
s_add_u32 s92, s92, s88
s_add_u32 s92, s92, {WS_O[L]}""")
        p(WaitTok(w2tok)); p('s_barrier')
        rd = lambda k: self.wfrag_reads(k, k*2048, 'v122', 'v123', [(L_W2 + h*32768 + k*2048, L_W2 + h*32768 + k*2048 + 2048) for h in range(2)])
        for k in range(3): p(rd(k))
        self.poll(1 + 5*L, sMK2)
        self.ts(f'p2_go{L}')
        for k in range(16):
            if k % 4 == 0: p(f's_add_u32 {sT}, s92, {k*1024}')
            p(f'buffer_load_dwordx4 {vr(128+4*k,4)}, {vL16}, {SWS}, {sT} offen offset:{(k%4)*1024} sc1')
        spine = []; fill = {}
        for k in range(16):
            spine += self.tile_mfmas(k, k == 0)
            if k + 3 < 16:
                r = rd(k+3)
                put(fill, 2*k, r[0], r[1]); put(fill, 2*k+1, r[2], r[3])
        weave(p, spine, fill)
        self.ts(f'p2_mm{L}')
        st = self.tile_epilogue('x1', L)
        self.ts(f'p2_epi{L}')
        self.post_flag(2 + 5*L, st)
        self.ts(f'p2_end{L}')

    def p3(self, L):
        p = self.p
        ACC, AF, CS, TK, T, HO = 40, 72, 96, 112, 144, 136
        lskip = self.lab('p3skip')
        w4 = {}
        p('s_barrier')
        d = self.w4_stage(0); p(d); w4[0] = [x[2] for x in d]
        p(WaitTok(w4[0]))
        p(f's_cmp_lg_u32 {sIDLE}, 0\ns_cbranch_scc1 {lskip}')
        self.poll(2 + 5*L, 'exec')
        self.ts(f'p3_go{L}')
        p(f"""s_lshl_b32 s92, {sG16}, 17
s_add_u32 s92, s92, {sW2K}
s_lshl_b32 s88, {sG16}, 2
s_add_u32 s88, s88, {sW}
s_lshl_b32 s88, s88, 12""")
        atok = {}
        def adma(rb, s):
            o = rb*32768 + s*8192
            d = self.dma(vL16, SWS, 's92', WS_X1[L] + o, sW2K, o, [(o + q*2048, o + q*2048 + 1024) for q in range(4)], sc1=True)
            d2 = Ins(f'buffer_load_dwordx4 {vL16}, {SWS}, {sT} offen offset:1024 sc1 lds', lds=[(o + q*2048 + 1024, o + q*2048 + 2048) for q in range(4)])
            atok[(rb, s)] = [d[2], d2]
            return d + [d2]
        p(adma(0, 0))
        p(self.stats_partials_issue(WS_ST1[L], 's88', 176))
        for s in range(1, 4): p(adma(0, s))
        for s in range(4): p(adma(1, s))
        if self.fine == 'p3' and L == 1: self.ts('issued')
        p(self.stats_partials_reduce(176))
        p(self.stats_final('v176', 'v177', 'v178'))
        p(f"""v_mul_f32 v179, {f2u(-LOG2E)}, v177
v_and_b32 v180, 15, {vL}
v_lshlrev_b32 v180, 5, v180
v_bfe_u32 v181, {vL}, 4, 1
v_lshl_add_u32 v180, v181, 4, v180
s_lshl_b32 s88, {sW}, 9
s_add_u32 s88, s88, {L_T3}
v_add_u32 v180, s88, v180""")
        tw = p('ds_write_b128 v180, v[176:179]', lds=(L_T3, L_T3 + 2048))
        p(f"""v_add_u32 v124, 65536, {vL16}
v_and_b32 v125, 31, {vL}
v_lshlrev_b32 v125, 4, v125
v_add_u32 v125, {L_T3}, v125
v_lshrrev_b32 v126, 5, {vL}
v_lshlrev_b32 v126, 4, v126
s_lshl_b32 s88, {sW}, 8
s_add_u32 s88, s88, {L_CS3}
v_add_u32 v126, s88, v126
s_lshl_b32 s93, {sG16}, 2
s_mul_i32 s93, s93, 114688
s_lshl_b32 s88, {sM16}, 13
s_add_u32 s93, s93, s88
s_add_u32 s93, s93, {sW1K}
s_add_u32 s93, s93, {WS_H[L]}""")
        tiles = [(c, rb) for c in range(2) for rb in range(4)]
        NR = 6
        def aread(n):
            ti, ks = divmod(n, 32); rb = tiles[ti][1]
            o = rb*32768 + ks*1024
            return Ins(f'ds_read_b128 {vr(AF+4*(n % NR),4)}, {"v124" if o >= 65536 else vL16} offset:{o % 65536}', lds=(o, o+1024))
        def epilogue(ti):
            c, rb = tiles[ti]
            A = ACC + 16*(ti & 1); tk = TK + 4*(ti & 1); ho = HO + 4*(ti & 1)
            o = []
            gi = lambda i: (i >> 2)*8 + (i & 3)
            for i in range(8): o.append(f'v_fmac_f32 v{A+gi(i)}, v{tk}, v{CS+gi(i)}')
            for i in range(8): o.append(f'v_mul_f32 v{A+gi(i)}, v{tk+3}, v{A+gi(i)}')
            for i in range(8):
                o.append(f'v_exp_f32 v{A+gi(i)}, v{A+gi(i)}'); o.append(f'v_fmac_f32 v{A+gi(i)+4}, v{tk}, v{CS+gi(i)+4}')
            for i in range(8): o.append(f'v_fma_f32 v{A+gi(i)}, v{A+gi(i)}, v{tk+2}, v{tk+2}')
            for i in range(8):
                o.append(f'v_rcp_f32 v{A+gi(i)}, v{A+gi(i)}')
                if i: o.append(f'v_mul_f32 v{A+gi(i-1)}, v{A+gi(i-1)}, v{A+gi(i-1)+4}')
            o.append(f's_add_u32 s94, s93, {rb*114688 + c*4096}')
            o.append(f'v_mul_f32 v{A+gi(7)}, v{A+gi(7)}, v{A+gi(7)+4}')
            for i in range(4): o.append(f'v_cvt_pk_bf16_f32 v{ho+i}, v{A+gi(2*i)}, v{A+gi(2*i+1)}')
            alt, st = self.stores([f'buffer_store_dwordx4 {vr(ho,4)}, {vL16}, {SWS}, s94 offen'])
            o.append(alt)
            return o, st
        def csreads(c):
            return [Ins(f'ds_read_b128 {vr(CS+4*i,4)}, v126 offset:{c*128 + i*32}', lds=(L_CS3, L_CS3+1024), private=True) for i in range(4)]
        if self.fine == 'p3' and L == 1: self.ts('stats')
        p(WaitTok(atok[(0, 0)] + [tw])); p('s_barrier')
        for n in range(NR - 1): p(aread(n))
        p(csreads(0))
        sts = []
        for ti, (c, rb) in enumerate(tiles):
            spine = []; fill = {}
            A = vr(ACC + 16*(ti & 1), 16)
            for ks in range(32):
                n = ti*32 + ks
                spine.append(f'v_mfma_f32_32x32x16_bf16 {A}, {ar(c*128+4*ks,4)}, {vr(AF+4*(n % NR),4)}, {0 if ks == 0 else A}')
                m = n + NR - 1
                if m < 256:
                    mt, mk = divmod(m, 32)
                    if mt < 4 and mk % 8 == 0 and (mt == 0 or mk == 0):
                        need = atok[(mt, mk // 8)] if mt == 0 else sum((atok[(mt, s)] for s in range(4)), [])
                        put(fill, ks, WaitTok(need), 's_barrier')
                    put(fill, ks, aread(m))
            put(fill, 20, Ins(f'ds_read_b128 {vr(TK+4*(ti&1),4)}, v125 offset:{rb*512}', lds=(L_T3, L_T3+2048)))
            if ti in (0, 1):
                for s in range(4): put(fill, 2 + 6*s, adma(ti + 2, s))
            if ti > 0:
                e, st = epilogue(ti - 1); sts.append(st)
                spread(fill, e, 3, 30)
            if ti == 4: put(fill, 31, csreads(1))
            if ti == 5:
                fl = Prog(); sv = self.p; self.p = fl
                self.post_flag(3 + 5*L, sum(sts[:4], [])); self.p = sv
                put(fill, 8, fl.items)
            if ti >= 5:
                put(fill, 1, 's_barrier')
                dm = self.w4_stage(2*(ti-5) + 1) + self.w4_stage(2*(ti-5) + 2)
                w4[2*(ti-5)+1] = [x[2] for x in dm[:4]]; w4[2*(ti-5)+2] = [x[2] for x in dm[4:]]
                spread(fill, dm, 4, 28)
            if L == 0 and ti == 4:
                self.ts('p3_w3b_0')
                self.w3_load_simple(1, 147456, 3); self.colsum3(1)
                self.ts('p3_w3b_1')
            if self.fine == 'p3' and L == 1: self.ts(f't{ti}')
            weave(p, spine, fill)
        self.ts(f'p3_mm{L}')
        e, st = epilogue(7); sts.append(st); p(e)
        self.ts(f'p3_epi{L}')
        self.post_flag(4 + 5*L, sum(sts[4:], []))
        lj = self.lab('p3join')
        p('s_waitcnt vmcnt(0)')
        p('s_barrier')
        p(f'{lj}:')
        q = Prog(check_lds=False)
        q(f'{lskip}:')
        for s in range(1, 7): q(self.w4_stage(s))
        q(f's_waitcnt vmcnt(0)\ns_barrier\ns_branch {lj}')
        self.slow.append(q.finalize())
        self.ts(f'p3_end{L}')
        return w4

    def p4(self, L, w4):
        p = self.p
        d = self.w4_stage(7) + self.w4_stage(8)
        w4[7] = [x[2] for x in d[:4]]; w4[8] = [x[2] for x in d[4:]]
        p(f"""s_lshr_b32 s88, {sW}, 1
s_lshl_b32 s89, s88, 13
v_add_u32 v122, s89, {vWown}
v_add_u32 v123, s89, {vWoth}
v_add_u32 v124, 65536, v122
v_add_u32 v125, 65536, v123
v_add_u32 v126, 131072, v122
v_add_u32 v127, 131072, v123
s_mul_i32 s88, s88, 57344
s_mul_i32 s92, {sRB}, 114688
s_add_u32 s92, s92, s88
s_add_u32 s92, s92, {WS_H[L]}""")
        self.poll(3 + 5*L, sMK4)
        self.ts(f'p4_go{L}')
        def aload(k):
            s, w = divmod(k, 4); c, j = divmod(s, 7)
            o = []
            if w == 0: o.append(Ins(f's_add_u32 s94, s92, {(8*j + 4*c)*1024}'))
            o.append(Ins(f'buffer_load_dwordx4 {vr(128+4*(k%16),4)}, {vL16}, {SWS}, s94 offen offset:{w*1024} sc1'))
            return o
        def rd(k):
            s, w = divmod(k, 4)
            b = self.W4SLOT[s]*16384 + w*2048
            va, vb = [('v122', 'v123'), ('v124', 'v125'), ('v126', 'v127')][b >> 16]
            return self.wfrag_reads(k, b & 65535, va, vb, [(b + h*8192, b + h*8192 + 2048) for h in range(2)])
        DA = 12
        for k in range(DA): p(aload(k))
        p(d)
        for k in range(3): p(rd(k))
        spine = []; fill = {}
        pre = {}
        allreads = {}
        for k in range(56):
            spine += self.tile_mfmas(k, k == 0)
            m = k + 3
            if m < 56:
                s, w = divmod(m, 4)
                if w == 0:
                    put(fill, 2*k, WaitTok(w4[s] + allreads.get(s-2, [])), 's_barrier')
                    ns = s + 7
                    if 9 <= ns < 14:
                        dm = self.w4_stage(ns); w4[ns] = [x[2] for x in dm]
                        for i, x in enumerate(dm): put(fill, 2*k + 1 + 2*i, x)
                    if L == 0 and s >= 9:
                        todo = {9: [0], 10: [1, 2], 11: [3, 6], 12: [4], 13: [5]}[s]
                        dm = []
                        for st_ in todo:
                            x = self.w1_stage(st_); pre[st_] = [y[2] for y in x]; dm += x
                        for i, x in enumerate(dm): put(fill, 2*k + 1 + i, x)
                r = rd(m); allreads.setdefault(s, []).extend(r)
                put(fill, 2*k, r[0], r[1]); put(fill, 2*k+1, r[2], r[3])
            m = k + DA
            if m == 28 - 4: put(fill, 2*k, self.poll_issue(vT0))
            if m == 28: put(fill, 2*k, self.poll_check(vT0, 4 + 5*L, sMK4))
            if m < 56: put(fill, 2*k + 1, aload(m))
            if self.fine == f'p4{L}' and k % 4 == 0:
                fl = Prog(); sv = self.p; self.p = fl; self.ts(f's{k//4}'); self.p = sv
                put(fill, 2*k, fl.items)
        weave(p, spine, fill)
        self.ts(f'p4_mm{L}')
        p('s_barrier')
        st = self.tile_epilogue('x2' if L == 0 else 'out', L)
        self.ts(f'p4_epi{L}')
        if L == 0:
            self.post_flag(5, st)
            p('s_barrier')
        self.ts(f'p4_end{L}')
        return pre

    def build(self):
        p = self.p
        self.prologue()
        pre = {}
        for L in range(2):
            w2 = self.p1(L, pre)
            if self.stop == f'p1_{L}': break
            if L == 0:
                l = self.lab('w3a')
                p('s_waitcnt vmcnt(0) lgkmcnt(0)')
                p(f's_cmp_lg_u32 {sIDLE}, 0\ns_cbranch_scc1 {l}')
                self.w3_load_simple(0, L_STG, 14); self.colsum3(0)
                p(f's_nop 7\n{l}:')
                self.ts('w3a')
            self.p2(L, w2)
            if self.stop == f'p2_{L}': break
            w4 = self.p3(L)
            if self.stop == f'p3_{L}': break
            pre = self.p4(L, w4)
            if self.stop == f'p4_{L}': break
        if not self.ts_on: self.ts('end')
        if self.wb:
            p('s_waitcnt vmcnt(0)'); p('s_barrier')
            p(Raw(f's_cmp_lg_u32 {sW}, 0\ns_cbranch_scc1 Lnowb\nbuffer_wbl2 sc1\ns_waitcnt vmcnt(0)\nLnowb:'))
            self.ts('wb')
        if self.amp:
            p('s_waitcnt vmcnt(0)')
            p(Raw(f"""s_memrealtime s[62:63]
s_sub_u32 s96, s98, s96
s_mul_i32 s96, s96, {self.amp[2]}
s_min_u32 s96, s96, 100000
s_waitcnt lgkmcnt(0)
Lamp:
s_memrealtime s[98:99]
s_waitcnt lgkmcnt(0)
s_sub_u32 s98, s98, s62
s_cmp_lt_u32 s98, s96
s_cbranch_scc1 Lamp"""))
        if self.ts_on:
            self.ts('end')
            p(f's_lshl_b32 s88, s2, 2\ns_add_u32 s88, s88, {sW}\ns_lshl_b32 s88, s88, 8\ns_add_u32 s88, s88, {WS_TS}\nv_lshlrev_b32 v40, 2, {vL}')
            p('s_memrealtime s[62:63]'); p(f'v_writelane_b32 {vTS}, s62, 62')
            p(f'buffer_store_dword {vTS}, v40, {SWS}, s88 offen')
            if self.dbgts:
                sel = [self.tsn.index(n) for n in self.dbgts] + [62, 63]
                l = self.lab('dbg')
                p(f's_lshl_b32 s88, s2, 2\ns_add_u32 s88, s88, {sW}\ns_cmp_lg_u32 s88, {self.dbgwg*4}\ns_cbranch_scc1 {l}')
                p(f'v_readlane_b32 s89, {vTS}, 0')
                for i, s in enumerate(sel):
                    p(f'v_readlane_b32 s88, {vTS}, {s}')
                    if s < 62: p('s_sub_u32 s88, s88, s89')
                    p(f'v_writelane_b32 v41, s88, {i}')
                p(f's_mov_b64 exec, 0xffff\nbuffer_store_dword v41, v40, {SDBG}, 0 offen sc1\ns_mov_b64 exec, -1\n{l}:')
        p('s_waitcnt vmcnt(0)')
        body = p.finalize()
        head = open('cdna_kernels/' + NAME + '.s.ref').read().split('; Override launch')[0]
        txt = head + '; @launch grid=(256,1,1) block=(256,1,1) lds=163840\n'
        txt += f'.amdgcn_target "amdgcn-amd-amdhsa--gfx950"\n.text\n.globl {NAME}_kernel\n.p2align 8\n.type {NAME}_kernel,@function\n{NAME}_kernel:\n'
        txt += body + 'L_end:\ns_endpgm\n' + '\n'.join(getattr(p, 'tail', [])) + '\n' + '\n'.join(self.slow) + '\n'
        txt += f""".section .rodata,"a"
.p2align 6
.amdhsa_kernel {NAME}_kernel
  .amdhsa_next_free_vgpr 512
  .amdhsa_next_free_sgpr 102
  .amdhsa_accum_offset 256
  .amdhsa_group_segment_fixed_size 0
  .amdhsa_kernarg_size 80
  .amdhsa_user_sgpr_count 2
  .amdhsa_user_sgpr_kernarg_segment_ptr 1
  .amdhsa_system_sgpr_workgroup_id_x 1
  .amdhsa_float_denorm_mode_32 3
.end_amdhsa_kernel
"""
        return txt

if __name__ == '__main__':
    import argparse
    ap = argparse.ArgumentParser()
    ap.add_argument('-o', default='k.s'); ap.add_argument('--ts', action='store_true'); ap.add_argument('--stop'); ap.add_argument('--nomimic', action='store_true'); ap.add_argument('--glob', action='store_true'); ap.add_argument('--fine'); ap.add_argument('--dbg'); ap.add_argument('--stfl'); ap.add_argument('--outfl'); ap.add_argument('--reuse', action='store_true'); ap.add_argument('--wb', action='store_true'); ap.add_argument('--amp')
    a = ap.parse_args()
    g = Gen(ts=a.ts, stop=a.stop, mimic=not a.nomimic, force_global=a.glob, fine=a.fine)
    if a.amp: g.amp = a.amp.split(',')
    g.wb = a.wb
    if a.stfl: g.stfl = ' ' + a.stfl.replace('+', ' ')
    if a.outfl: g.outfl = ' ' + a.outfl.replace('+', ' ')
    if a.reuse:
        WS_O[1] = WS_O[0]; WS_X1[1] = WS_X1[0]; WS_ST1[1] = WS_ST1[0]; WS_H[1] = WS_H[0]
    if a.dbg: g.dbgts = a.dbg.split(',')
    open(a.o, 'w').write(g.build())
    if a.ts: open(a.o + '.ts', 'w').write('\n'.join(g.tsn))
    print(g.p.stats)
```

```python
import re

def regs(op):
    op = op.strip()
    if op.startswith('-'): op = op[1:]
    if op.startswith('abs(') and op.endswith(')'): op = op[4:-1]
    if op.startswith('|') and op.endswith('|'): op = op[1:-1]
    m = re.fullmatch(r'([vas])(\d+)', op)
    if m: return [(m.group(1), int(m.group(2)))]
    m = re.fullmatch(r'([vas])\[(\d+):(\d+)\]', op)
    if m: return [(m.group(1), i) for i in range(int(m.group(2)), int(m.group(3)) + 1)]
    if op in ('vcc', 'vcc_lo', 'vcc_hi'): return [('s', 'vcc')]
    if op in ('exec', 'exec_lo', 'exec_hi'): return [('s', 'exec')]
    if op == 'm0': return [('s', 'm0')]
    return []

TRANS = ('v_exp_f32', 'v_log_f32', 'v_rcp_f32', 'v_rsq_f32', 'v_sqrt_f32')

class Ins:
    def __init__(self, text, lds=None, private=False, note=None):
        self.text = text.strip()
        self.lds = lds
        self.private = private
        self.done = False
        t = self.text
        sp = t.split(None, 1)
        mn = sp[0]
        self.mn = mn
        rest = sp[1] if len(sp) > 1 else ''
        ops = []
        mods = ''
        pieces = [o.strip() for o in rest.split(',')] if rest else []
        for n, o in enumerate(pieces):
            parts = o.split(None, 1)
            ops.append(parts[0] if parts else '')
            if len(parts) > 1:
                mods = ','.join([parts[1]] + pieces[n+1:]); break
        self.ops = ops; self.mods = mods
        rd, wr = [], []
        R = lambda lst: [x for o in lst for x in regs(o)]
        self.passes = 0
        self.dpp = ('row_' in mods or 'quad_perm' in mods or 'wave_' in mods)
        if mn.startswith('v_mfma'):
            self.kind = 'mfma'
            wr = R(ops[:1]); rd = R(ops[1:])
            self.ab = R(ops[1:3]); self.c = R(ops[3:4])
            self.passes = 8 if '32x32' in mn else 4
        elif mn.startswith('ds_read'):
            self.kind = 'dsrd'; wr = R(ops[:1]); rd = R(ops[1:])
        elif mn.startswith('ds_write') or mn.startswith('ds_add'):
            self.kind = 'dswr'; rd = R(ops)
        elif mn.startswith('buffer_load') or mn.startswith('global_load'):
            if ' lds' in ' ' + mods or 'load_lds' in mn:
                self.kind = 'dma'; rd = R(ops) + [('s', 'm0')]
            else:
                self.kind = 'vmld'; wr = R(ops[:1]); rd = R(ops[1:])
        elif mn.startswith('buffer_store') or mn.startswith('global_store'):
            self.kind = 'vmst'; rd = R(ops)
            self.data = R(ops[:1]) if mn.startswith('buffer') else R(ops[1:2])
            self.wide = ('x4' in mn or 'x3' in mn)
        elif mn.startswith('s_load') or mn.startswith('s_mem'):
            self.kind = 'smem'; wr = R(ops[:1]); rd = R(ops[1:])
        elif mn == 's_barrier': self.kind = 'barrier'
        elif mn == 's_waitcnt': self.kind = 'wait'
        elif mn == 's_nop': self.kind = 'nop'
        elif mn.endswith(':'): self.kind = 'label'
        elif mn.startswith('s_cbranch') or mn == 's_branch' or mn == 's_endpgm' or mn.startswith('s_set') or mn == 's_sleep':
            self.kind = 'ctl'
            if 'vcc' in mn: rd = [('s', 'vcc')]
        elif mn.startswith('s_cmp') or mn.startswith('s_bitcmp'):
            self.kind = 'salu'; rd = R(ops)
        elif mn.startswith('s_'):
            self.kind = 'salu'; wr = R(ops[:1]); rd = R(ops[1:])
            if 'saveexec' in mn: wr += [('s', 'exec')]
        elif mn.startswith('v_'):
            self.kind = 'trans' if mn.split('_e')[0] in TRANS or mn in TRANS else 'valu'
            if 'permlane' in mn and 'swap' in mn:
                wr = R(ops); rd = R(ops)
            elif mn.startswith('v_fmac') or mn.startswith('v_dot2c') or mn.startswith('v_writelane') or self.dpp:
                wr = R(ops[:1]); rd = R(ops)
            elif mn.startswith('v_add_co') or mn.startswith('v_addc_co') or mn.startswith('v_sub_co'):
                wr = R(ops[:2]); rd = R(ops[2:])
            else:
                wr = R(ops[:1]); rd = R(ops[1:])
        elif mn.startswith('.') or mn.startswith(';'):
            self.kind = 'dir'
        else:
            raise ValueError('unknown instruction ' + t)
        self.rd = set(rd); self.wr = set(wr)

class WaitTok:
    kind = 'waittok'
    def __init__(self, toks): self.toks = list(toks)

class Drained:
    kind = 'drained'
    def __init__(self, vm=True, lgkm=False): self.vm = vm; self.lgkm = lgkm

class Raw:
    mn = 'raw'
    kind = 'raw'
    def __init__(self, text, rd=(), wr=(), drains_vm=False, drains_lgkm=False, states=1):
        self.text = text; self.rd = set(x for o in rd for x in regs(o)); self.wr = set(x for o in wr for x in regs(o))
        self.drains_vm = drains_vm; self.drains_lgkm = drains_lgkm; self.states = states

class Alt:
    kind = 'alt'
    n = 0
    def __init__(self, sreg, a, b):
        self.sreg = sreg; self.a = a; self.b = b
        Alt.n += 1; self.id = Alt.n

class Prog:
    def __init__(self, check_lds=True):
        self.items = []
        self.check_lds = check_lds
    def __call__(self, x, **kw):
        if isinstance(x, str):
            out = None
            for line in x.split('\n'):
                line = line.strip()
                if not line: continue
                out = Ins(line, **kw); self.items.append(out)
            return out
        if isinstance(x, (list, tuple)):
            for y in x: self(y)
            return None
        self.items.append(x); return x

    def finalize(self):
        out = []
        vmq = []
        lgq = []
        pos = 0
        lastw = {}
        lastc = {}
        stdata = {}
        bar = 0
        G = 64
        NG = 163840 // G
        lw = [[] for _ in range(NG)]
        lr = [[] for _ in range(NG)]
        stats = dict(nop=0, wait=0, n=0)
        def complete(i):
            if not i.done:
                i.done = True; i.donebar = bar
        def do_wait(vm=None, lg=None):
            nonlocal pos
            w = []
            if vm is not None and vm < len(vmq):
                assert vm <= 63
                w.append(f'vmcnt({vm})')
                while len(vmq) > vm: complete(vmq.pop(0))
            if lg is not None and lg < len(lgq):
                if any(i.kind == 'smem' for i in lgq): lg = 0
                lg = min(lg, 15)
                w.append(f'lgkmcnt({lg})')
                while len(lgq) > lg: complete(lgq.pop(0))
            if w:
                out.append('s_waitcnt ' + ' '.join(w)); pos += 1; stats['wait'] += 1
        def need(queue, pred):
            idx = -1
            for n, i in enumerate(queue):
                if pred(i): idx = n
            return None if idx < 0 else len(queue) - 1 - idx
        def ranges(i):
            if i.lds is None: return []
            return i.lds if isinstance(i.lds, list) else [i.lds]
        def ldscheck(i):
            if not self.check_lds: return
            assert i.lds is not None, 'LDS range missing: ' + i.text
            for lo, hi in ranges(i):
                assert 0 <= lo < hi <= 163840, (lo, hi, i.text)
                for g in range(lo // G, (hi + G - 1) // G):
                    if i.kind == 'dsrd':
                        for wq in lw[g]:
                            if wq.private and i.private:
                                ok = wq.done or wq.kind == 'dswr'
                            else:
                                ok = wq.done and wq.donebar < bar
                            assert ok, f'LDS RAW: {i.text} @{g*G} vs {wq.text}'
                        lr[g].append(i)
                    else:
                        if lr[g]:
                            for rq in lr[g]:
                                if rq.private and i.private:
                                    ok = rq.done or i.kind == 'dswr'
                                else:
                                    ok = rq.done and rq.donebar < bar
                                assert ok, f'LDS WAR: {i.text} @{g*G} vs {rq.text}'
                            lr[g] = []; lw[g] = []
                        lw[g].append(i)
        def hazard(i):
            need_n = 0
            def req(p, n):
                nonlocal need_n
                need_n = max(need_n, n - (pos - p - 1))
            k = i.kind
            isv = k in ('valu', 'trans')
            for r in i.rd | i.wr:
                lw_ = lastw.get(r)
                if lw_:
                    p, j = lw_
                    if j.kind == 'mfma':
                        big = j.passes == 8
                        if k == 'mfma':
                            if r in i.ab: req(p, 12 if big else 8)
                            elif r in i.c:
                                if not (set(i.c) == j.wr and i.passes == j.passes): req(p, 10 if big else 6)
                            else: req(p, 12 if big else 8)
                        else: req(p, 12 if big else 8)
                    elif j.kind == 'valu' and j.mn.startswith('v_dot') and not (i.mn == j.mn and r in i.wr):
                        req(p, 3)
                    elif j.kind in ('valu', 'trans', 'raw') and r in i.rd:
                        if r[0] in 'va':
                            if k == 'mfma': req(p, 2)
                            if isv and getattr(i, 'dpp', False): req(p, 2)
                            if isv and 'permlane' in i.mn: req(p, 2)
                            if isv and (i.mn.startswith('v_readfirstlane') or i.mn.startswith('v_readlane')): req(p, 1)
                            if j.kind == 'trans' and isv: req(p, 1)
                            if j.kind == 'trans' and k in ('dswr', 'vmst'): req(p, 1)
                        else:
                            if isv: req(p, 2)
                            if k in ('vmld', 'vmst', 'dma'): req(p, 5)
                            if k in ('salu', 'ctl', 'smem'): req(p, 1)
                    elif j.kind == 'salu' and r == ('s', 'm0') and k == 'dma': req(p, 1)
            if isv or k in ('dsrd', 'vmld'):
                for r in i.wr:
                    if r in lastc:
                        p, ps = lastc[r]; req(p, 7 if ps == 8 else 3)
                    if r in stdata: req(stdata[r], 2)
            return need_n
        def issue(i):
            nonlocal pos, bar
            touched = i.rd | i.wr
            vm = need(vmq, lambda j: j.kind == 'vmld' and (j.wr & touched))
            lg = need(lgq, lambda j: j.kind in ('dsrd', 'smem') and (j.wr & touched))
            do_wait(vm, lg)
            n = hazard(i)
            if n > 0:
                stats['nop'] += n
                while n > 0:
                    c = min(n, 16); out.append(f's_nop {c-1}'); pos += c; n -= c
            if i.kind in ('dsrd', 'dswr', 'dma'): ldscheck(i)
            out.append(i.text); stats['n'] += 1; i.issued = True
            if i.kind == 'dir' or i.kind == 'label': return
            for r in i.wr: lastw[r] = (pos, i)
            if i.kind == 'mfma':
                for r in i.c: lastc[r] = (pos, i.passes)
            if i.kind == 'vmst' and i.wide:
                for r in i.data: stdata[r] = pos
            if i.kind in ('vmld', 'vmst', 'dma'):
                vmq.append(i)
                if len(vmq) > 63: complete(vmq.pop(0))
            if i.kind in ('dsrd', 'dswr', 'smem'): lgq.append(i)
            if i.kind == 'barrier': bar += 1
            if i.kind == 'wait':
                m = re.search(r'vmcnt\((\d+)\)', i.text)
                if m:
                    while len(vmq) > int(m.group(1)): complete(vmq.pop(0))
                m = re.search(r'lgkmcnt\((\d+)\)', i.text)
                if m:
                    nn = int(m.group(1))
                    assert nn == 0 or not any(j.kind == 'smem' for j in lgq)
                    while len(lgq) > nn: complete(lgq.pop(0))
            if i.kind == 'nop': pos += int(i.ops[0])
            pos += 1
        for it in self.items:
            if it.kind == 'waittok':
                for t_ in it.toks: assert getattr(t_, 'issued', False), 'wait on an instruction not yet issued: ' + t_.text
                ids = set(id(t) for t in it.toks)
                do_wait(need(vmq, lambda j: id(j) in ids), need(lgq, lambda j: id(j) in ids))
            elif it.kind == 'drained':
                if it.vm:
                    while vmq: complete(vmq.pop(0))
                if it.lgkm:
                    while lgq: complete(lgq.pop(0))
            elif it.kind == 'raw':
                touched = it.rd | it.wr
                do_wait(need(vmq, lambda j: j.kind == 'vmld' and (j.wr & touched)), need(lgq, lambda j: j.kind in ('dsrd', 'smem') and (j.wr & touched)))
                n = 0
                for kind in ('valu', 'vmst'):
                    probe = Ins('v_mov_b32 v0, v0'); probe.kind = kind; probe.rd = it.rd; probe.wr = it.wr; probe.dpp = True; probe.mn = 'v_permlane'
                    n = max(n, hazard(probe))
                if n > 0: out.append(f's_nop {n-1}'); pos += n
                out.append(it.text)
                pos += it.states
                for r in it.wr: lastw[r] = (pos - 1, it)
                if it.drains_vm:
                    while vmq: complete(vmq.pop(0))
                if it.drains_lgkm:
                    while lgq: complete(lgq.pop(0))
            elif it.kind == 'alt':
                allr = set()
                for j in it.a + it.b: allr |= j.rd | j.wr
                do_wait(need(vmq, lambda j: j.kind == 'vmld' and (j.wr & allr)), need(lgq, lambda j: j.kind in ('dsrd', 'smem') and (j.wr & allr)))
                pos += 2
                n = max(hazard(j) for j in it.a + it.b)
                pos -= 2
                if n > 0: out.append(f's_nop {n-1}'); pos += n
                assert [j.kind for j in it.a] == [j.kind for j in it.b]
                out.append(f's_cmp_lg_u32 {it.sreg}, 0\ns_cbranch_scc1 Lalt{it.id}_b')
                pos += 2
                for j in it.a: issue(j)
                out.append(f'Lalt{it.id}_e:')
                self.tail = getattr(self, 'tail', [])
                self.tail.append(f'Lalt{it.id}_b:\n' + '\n'.join(j.text for j in it.b) + f'\ns_branch Lalt{it.id}_e')
            else:
                issue(it)
        self.stats = stats
        return '\n'.join(out) + '\n'

def weave(p, spine, fill):
    for x in fill.get(-1, []): p(x)
    for n, s in enumerate(spine):
        p(s)
        for x in fill.get(n, []): p(x)
    extra = sorted(k for k in fill if k >= len(spine))
    for k in extra:
        for x in fill[k]: p(x)

def put(fill, slot, *items):
    fill.setdefault(slot, []).extend(items)

def spread(fill, items, start, end):
    n = len(items)
    for i, it in enumerate(items):
        put(fill, start + (i * (end - start)) // max(n, 1), it)

def _flat(x):
    if isinstance(x, str):
        return [Ins(l) for l in x.split('\n') if l.strip()]
    if isinstance(x, (list, tuple)):
        return [z for y in x for z in _flat(y)]
    return [x]

def _cost(i, tacost):
    k = i.kind
    if k == 'dsrd':
        return (4, 16 if 'b128' in i.mn else 8, 0)
    if k == 'dswr':
        return (4, 52 if 'b128' in i.mn else 16, 0)
    if k in ('dma', 'vmld', 'vmst'):
        return (6, 0, tacost if 'x4' in i.mn else 24)
    if k == 'trans': return (8, 0, 0)
    if k == 'mfma': return (16 if i.passes == 4 else 32, 0, 0)
    if k == 'barrier': return (8, 0, 0)
    if k == 'waittok': return (4, 0, 0)
    if k == 'alt': return (8 + 6*len(i.a), 0, tacost*len(i.a))
    if k == 'raw': return (4*min(6, i.text.count('\n') + 1), 0, 0)
    if k in ('label', 'dir', 'drained'): return (0, 0, 0)
    return (4, 0, 0)

class Sched:
    def __init__(self, spine, b32=20, b16=8):
        self.spine = [_flat(s)[0] for s in spine]
        self.before = {}
        self.streams = {}
        self.order = []
        self.b32 = b32; self.b16 = b16
    def add(self, stream, items, e=0, d=None, ta=64, step=None, prio=1, slack=None, needs=None, split=False, early=None):
        if stream not in self.streams:
            self.streams[stream] = []; self.order.append(stream)
        groups = []
        for j, it in enumerate(items):
            g = _flat(it)
            if not g: continue
            parts = [[x] for x in g] if split else [g]
            for q in parts:
                mn = getattr(q[0], 'mn', '')
                if groups and (mn.startswith('s_cselect') or mn.startswith('s_cbranch') or mn.startswith('s_addc')): groups[-1][1].extend(q)
                else: groups.append((j, q))
        n = len(items)
        for j, g in groups:
            c = [_cost(i, ta) for i in g]
            if step is not None: tg = e + j*step
            elif d is not None and d > e: tg = e + (d - e)*(j + 0.3)/(n + 0.3)
            else: tg = e
            vm = any(x[2] for x in c)
            self.streams[stream].append(dict(ins=g, e=e, d=d, tg=tg, needs=list(needs or []), early=(not vm and step is None) if early is None else early,
                                             slack=3 if slack is None else slack, c=(sum(x[0] for x in c), sum(x[1] for x in c), sum(x[2] for x in c))))
    def at(self, slot, items, stream='fix'):
        self.add(stream + str(slot), [items], e=slot, d=slot)
        self.streams[stream + str(slot)][0]['tg'] = -1000
    def emit(self, p, verbose=None):
        N = len(self.spine)
        t = 0; lds_free = 0; ta_free = 0
        for s in self.streams.values():
            nd = None; nt = None
            for it in reversed(s):
                if it['d'] is None or (nd is not None and nd < it['d']): it['d'] = nd
                nd = it['d']
                if nt is not None and nt < it['tg']: it['tg'] = nt
                nt = it['tg']
        lost = 0
        done = set()
        self.load = []
        for slot in range(-1, N):
            used = 0
            if slot >= 0:
                m = self.spine[slot]
                for x in self.before.get(slot, []): p(x)
                p(m)
                dur = 32 if m.passes == 8 else 16
                budget = self.b32 if dur == 32 else self.b16
                if slot + 1 in self.before: budget -= 4
            else:
                dur = 0; budget = 0
            while True:
                best = None
                for name in self.order:
                    s = self.streams[name]
                    if not s or s[0]['e'] > slot: continue
                    it = s[0]
                    d = it['d'] if it['d'] is not None else N + 1000
                    forced = d <= slot or slot == N - 1
                    if any(id(x) not in done for x in it['needs']):
                        assert not forced, ('dependency not issued', name, slot, it['ins'][0].text)
                        continue
                    if not forced:
                        if slot < 0: continue
                        if not it['early'] and it['tg'] > slot + 0.5: continue
                        over = slot - it['tg'] > it['slack']
                        if used + it['c'][0] > budget + (4 if over else 0) and not (used == 0): continue
                        if it['c'][1] and lds_free > t + dur + (16 if over else 0): continue
                        if it['c'][2] and ta_free > t + dur + 32: continue
                    key = (0 if forced else 1, it['tg'])
                    if best is None or key < best[0]: best = (key, name, forced)
                if best is None: break
                it = self.streams[best[1]].pop(0)
                p(it['ins'])
                for x in it['ins']: done.add(id(x))
                used += it['c'][0]
                if it['c'][1]: lds_free = max(lds_free, t + used) + it['c'][1]
                if it['c'][2]: ta_free = max(ta_free, t + used) + it['c'][2]
            if slot + 1 in self.before: used += 4
            step = max(dur, used + (12 if dur == 32 else 8)) if slot >= 0 else used
            lost += step - dur
            t += step
            self.load.append(used)
        self.time = t; self.lost = lost
        if verbose: print(f'   sched {verbose}: slots {N} est time {t} lost {lost}')
```

```python
import sys, struct
from asmlib import *

NAME = 'interleave_layers__sliding_local_dilated__glu_gated_glu__prompt'
MB = 1 << 20
WS_O = [0, 2*MB]; WS_X1 = [4*MB, 6*MB]; WS_X2 = 8*MB
WS_ST1 = [10*MB, 10*MB + (256 << 10)]; WS_ST2 = 10*MB + (512 << 10)
WS_HB = 11*MB; WS_HS = 11*MB + (512 << 10); WS_FL = 11*MB + (768 << 10); WS_EP = WS_FL + 8192; WS_XC = WS_FL + 16384; WS_TS = 14*MB
WS_H = [16*MB, 24*MB]

SX, SWQKV, SWO, SW3, SWD, SOUT, SWS, SDBG = 's[4:7]', 's[8:11]', 's[12:15]', 's[16:19]', 's[20:23]', 's[24:27]', 's[28:31]', 's[32:35]'
sW, sMODE, sT, sROW, sHALO, sG, sG16, sM16, sCB, sW1K, sW4K, sHASP, sPG, sIDLE = ['s%d' % i for i in range(36, 50)]
sMK2, sMK4, sMK1 = 's[50:51]', 's[52:53]', 's[54:55]'
sA1, sRB, sSPIN, sV, sXCC, sW2K = 's56', 's57', 's58', 's59', 's60', 's61'
sW3K, sR8, sRG, sR3 = 's84', 's85', 's86', 's87'
sR8s, sU = 's3', 's95'
sCODE = 's[100:101]'
SW3F = SW3
sA2 = ['s40', 's59', 's78', 's77']
sWd4 = 's64'; sA3 = ['s65', 's66', 's67', 's68']; sJ = ['s%d' % i for i in range(69, 76)]
sH0, sH1, sHB, sX, sY, sE, sES, sSG = 's76', 's77', 's78', 's79', 's80', 's81', 's82', 's83'
vL, vL16, vA1e, vA1o, vW1d, vW1r0, vW1r1, vA1r0, vA1r1, vW2d, vCT, vWown, vWoth, vRM, vFLp, vFLo = ['v%d' % i for i in range(16)]
RES = 16
CSQ, CSK, CSV = 24, 28, 32
vW3d, vW3r, vT0, vTS = 'v36', 'v37', 'v38', 'v39'
vW4 = ['v208', 'v209', 'v210', 'v211']
vW3q = ['v36', 'v252', 'v253', 'v254']
L_A1H = 65536; L_R1 = 73728; L_TAB = 159744
L_W2 = L_TAB - 65536
L_XB = 0
L_NM = L_TAB; L_RS = L_TAB + 320
L_T3 = L_TAB
L_CS3 = L_TAB + 2048
LOG2E = 1.4426950408889634
def f2u(x): return '0x%08x' % struct.unpack('<I', struct.pack('<f', x))[0]
def vr(a, n): return f'v[{a}:{a+n-1}]' if n > 1 else f'v{a}'
def ar(a, n): return f'a[{a}:{a+n-1}]'
def lines(s): return [x.strip() for x in s.strip().split('\n') if x.strip()]
def last(x): return x[-1]

class Gen:
    def __init__(self, **kw):
        self.p = Prog(); self.nts = 0; self.tsn = []; self.slow = []; self.nlab = 0; self.w3tok = {}; self.w3stg = {}
        self.o = dict(ts=False, mimic=True, stop=None, glob=False, fine=None, amp=None, dbg=None, touch=True, rot=True, ctouch=True, wb=False)
        self.o.update(kw)
        for k, v in self.o.items(): setattr(self, 'o_' + k, v)

    def cap(self, fn):
        sv = self.p; self.p = Prog(); fn(); items = self.p.items; self.p = sv
        return items
    def lab(self, s):
        self.nlab += 1; return f'L{s}{self.nlab}'
    def ts(self, name):
        if self.o_amp and name == self.o_amp[0]: self.p('s_memrealtime s[96:97]\ns_waitcnt lgkmcnt(0)')
        if self.o_amp and name == self.o_amp[1]: self.p('s_memrealtime s[98:99]\ns_waitcnt lgkmcnt(0)')
        if not self.o_ts: return
        if self.o_fine and self.o_fine[0] == 'b' and name[0] == 'p' and name[:3] != 'p3_': return
        self.p('s_memtime s[62:63]'); self.p(f'v_writelane_b32 {vTS}, s62, {self.nts}')
        self.tsn.append(name); self.nts += 1
    def fts(self, key, name):
        return self.cap(lambda: self.ts(name)) if self.o_fine == key else []

    def stores(self, texts):
        a = [Ins(t) for t in texts]; b = [Ins(t + ' sc1') for t in texts]
        return Alt(sMODE, a, b), a
    def post_flag(self, val, toks):
        p = self.p
        p(f's_add_u32 s91, {sE}, {val}\nv_mov_b32 {vT0}, s91'); p(WaitTok(toks)); p('s_mov_b64 exec, 1')
        alt, a = self.stores([f'buffer_store_dword {vT0}, {vFLo}, {SWS}, 0 offen'])
        p(alt); p('s_mov_b64 exec, -1')
    def spin(self, load, cmp_, mask, pre=''):
        ls, lb = self.lab('s'), self.lab('b')
        items = [Ins(x) for x in lines(cmp_)] + [Ins(f's_and_b64 vcc, vcc, {mask}'), Ins(f's_cbranch_scc1 {ls}'), Ins(f'{lb}:')]
        self.slow.append(f"""{ls}:
s_mov_b32 {sSPIN}, 0
{ls}_l:
{load}
s_add_u32 {sSPIN}, {sSPIN}, 1
s_cmp_gt_u32 {sSPIN}, 30000
s_cbranch_scc1 {ls}_x
s_waitcnt vmcnt(0)
{pre}
{cmp_}
s_nop 0
s_and_b64 vcc, vcc, {mask}
s_cbranch_scc1 {ls}_l
{ls}_x:
s_waitcnt vmcnt(0) lgkmcnt(0)
s_branch {lb}""")
        return items
    def poll_issue(self, vf): return Ins(f'buffer_load_dword {vf}, {vFLp}, {SWS}, 0 offen sc1')
    def poll_check(self, vf, val, mask):
        return self.spin(f'buffer_load_dword {vf}, {vFLp}, {SWS}, 0 offen sc1', f's_add_u32 s91, {sE}, {val}\nv_subrev_u32 v33, s91, {vf}\nv_cmp_lt_u32 vcc, 7, v33', mask)
    def poll(self, val, mask):
        self.p(self.poll_issue(vT0)); self.p(self.poll_check(vT0, val, mask))
    def touch(self, voff, soff, mask=None):
        if not self.o_touch: return []
        i = Ins(f'buffer_load_dword v34, {voff}, {SWS}, {soff} offen sc1'); i.wr = set()
        return [f's_mov_b64 exec, {mask}', i, 's_mov_b64 exec, -1'] if mask else [i]
    def warm_touch(self, t):
        if not self.o.get('warm', True): return []
        o = lines(f"""s_lshl_b32 s88, s2, 1
s_lshr_b32 s89, {sW}, 1
s_add_u32 s88, s88, s89
s_mul_i32 s88, s88, {28*128}
s_lshl_b32 s89, s2, 2
s_add_u32 s89, s89, {sW}
s_mul_i32 s90, s89, {14*128}
s_lshl_b32 s89, s89, 9
v_lshlrev_b32 {t}, 7, {vL}""")
        for srd, so, m in ((SW3F, 's88', 0xfffffff), (SWD, 's90', 0x3fff), (SWO, 's89', 0xf)):
            i = Ins(f'buffer_load_dword v34, {t}, {srd}, {so} offen'); i.wr = set()
            o.append([f's_mov_b64 exec, {m}', i, 's_mov_b64 exec, -1'])
        return o
    def code_touch(self):
        if not self.o_ctouch: return []
        i = Ins(f'global_load_dword v35, {vCT}, {sCODE}'); i.wr = set()
        return [i]

    def prologue_a(self):
        p = self.p
        if self.o_amp and self.o_amp[0] == 'entry': p('s_memrealtime s[96:97]')
        p('s_cmp_ge_u32 s2, 256'); p('s_cbranch_scc1 L_end')
        p('s_load_dwordx16 s[64:79], s[0:1], 0'); p('s_load_dwordx4 s[80:83], s[0:1], 64')
        p(f"""s_getpc_b64 {sCODE}
Lpc:
v_lshrrev_b32 v1, 6, v0
v_and_b32 {vL}, 63, v0
s_lshr_b32 s89, s2, 3
v_readfirstlane_b32 {sW}, v1
s_lshl_b32 s90, s89, 11
v_and_b32 {vCT}, 3, {vL}
v_lshl_add_u32 {vCT}, v1, 2, {vCT}
v_lshl_add_u32 {vCT}, {vCT}, 7, s90
v_min_u32 {vCT}, L_last-Lpc-4, {vCT}""")
        p(self.code_touch())
        if self.o_ts:
            p(f'v_mov_b32 {vTS}, 0'); p('s_memrealtime s[62:63]'); p(f'v_writelane_b32 {vTS}, s62, 63')
        self.ts('start')
        t = [f'v{i}' for i in range(40, 56)]
        p(f"""s_and_b32 s88, s2, 7
s_lshr_b32 {sRG}, s89, 3
s_and_b32 {sCB}, s89, 7
s_lshr_b32 s90, s88, 1
s_lshl_b32 s90, s90, 2
s_add_u32 s90, s90, {sRG}
s_and_b32 s91, s88, 1
s_lshl_b32 {sR8}, {sRG}, 1
s_add_u32 {sR8}, {sR8}, s91""")
        if not self.o_rot: p(f's_mov_b32 {sR8}, 0')
        p(f"""s_lshl_b32 {sR8s}, {sR8}, 7
s_lshl_b32 {sROW}, s90, 17
s_lshl_b32 s91, s91, 10
s_add_u32 {sROW}, {sROW}, s91
s_cmp_eq_u32 s90, 0
s_cselect_b32 {sHASP}, 0, 1
s_cselect_b32 s91, 0, 16384
s_sub_u32 {sHALO}, {sROW}, s91
s_lshl_b32 {sA1}, {sW}, 15
s_add_u32 {sA1}, {sA1}, {sROW}
s_lshl_b32 {sW2K}, {sW}, 11
s_mul_i32 {sW3K}, {sW}, 3072
v_lshrrev_b32 {t[0]}, 3, {vL}
v_and_b32 {t[1]}, 7, {vL}
v_lshrrev_b32 {t[2]}, 1, {t[0]}
v_xor_b32 {t[3]}, {t[1]}, {t[2]}
v_lshlrev_b32 {t[3]}, 4, {t[3]}
v_lshl_add_u32 {vA1e}, {t[0]}, 11, {t[3]}
v_xor_b32 v124, 64, {vA1e}
v_add_u32 {vA1o}, {16384-1024}, v124
v_and_b32 {t[4]}, 1, {t[2]}
s_and_b32 s91, {sW}, 1
s_lshl_b32 s91, s91, 2
v_lshl_add_u32 {t[5]}, {t[4]}, 1, s91
v_xor_b32 {t[5]}, {t[5]}, {t[1]}
v_lshlrev_b32 {t[5]}, 4, {t[5]}
s_mul_i32 s91, {sW}, 24576
s_lshl_b32 s92, {sCB}, 7
s_add_u32 s91, s91, s92
v_mul_u32_u24 {t[6]}, 3072, {t[0]}
v_add3_u32 {vW1d}, {t[5]}, {t[6]}, s91""")
        self.srd(4, 64, 2*MB); self.srd(8, 66, 512*3072)
    def srd(self, base, lo, size):
        self.p(f's_mov_b32 s{base}, s{lo}\ns_and_b32 s{base+1}, s{lo+1}, 0xffff\ns_mov_b32 s{base+2}, {size}\ns_mov_b32 s{base+3}, 0x20000')
    def prologue_b(self):
        p = self.p
        t = [f'v{i}' for i in range(40, 56)]
        p(f"""s_getreg_b32 {sXCC}, hwreg(HW_REG_XCC_ID)
s_and_b32 {sXCC}, {sXCC}, 15
s_add_u32 {sXCC}, {sXCC}, 1
s_and_b32 {sM16}, s89, 15
s_lshl_b32 {sG}, s88, 2
s_add_u32 {sG}, {sG}, {sRG}
s_lshr_b32 {sG16}, {sG}, 1
s_cmp_eq_u32 {sRG}, 0
s_cselect_b32 s91, 5, 1
s_sub_u32 {sPG}, {sG}, s91
s_cmp_eq_u32 s90, 0
s_cselect_b32 {sPG}, {sG}, {sPG}
s_lshl_b32 {sW1K}, {sW}, 10
s_lshl_b32 {sW4K}, {sW}, 12
s_and_b32 s91, {sW}, 1
s_lshl_b32 {sRB}, {sG}, 1
s_add_u32 {sRB}, {sRB}, s91
s_and_b32 s91, {sG16}, 1
s_and_b32 {sR3}, s88, 3
s_lshl_b32 {sR3}, {sR3}, 1
s_add_u32 {sR3}, {sR3}, s91
v_lshlrev_b32 {vL16}, 4, {vL}""")
        self.srd(12, 68, 512*1024)
        p(f's_bitcmp1_b32 {sW}, 0\ns_cselect_b32 s72, s74, s72\ns_cselect_b32 s73, s75, s73')
        self.srd(16, 72, 512*3584); self.srd(20, 76, 1792*1024); self.srd(24, 78, 2*MB); self.srd(28, 82, 256*MB); self.srd(32, 80, 256)
        p(f"""s_cmp_ge_u32 {sM16}, 14
s_cselect_b32 {sIDLE}, 1, 0""")
        if not self.o_rot: p(f's_mov_b32 {sR3}, 0')
        p(f"""s_lshr_b32 s93, {sW}, 1
s_and_b32 s94, {sRG}, 1
s_lshl_b32 s94, s94, 5
s_mov_b32 s62, -1
s_mov_b32 s63, 0
s_lshl_b64 {sMK1}, s[62:63], s94
s_lshl_b32 s91, s93, 4
s_add_u32 s91, s91, s94
s_mov_b32 s62, 0xffff
s_lshl_b64 {sMK2}, s[62:63], s91
s_mul_i32 s91, s93, 28
s_mov_b32 s62, 0xfffffff
s_lshl_b64 {sMK4}, s[62:63], s91""")
        p(f"""s_mul_i32 s91, s93, 28672
s_lshl_b32 s94, {sM16}, 8
s_add_u32 s91, s91, s94
v_mul_u32_u24 {t[6]}, 3584, {t[0]}
v_add3_u32 {vW3d}, {t[5]}, {t[6]}, s91
v_lshlrev_b32 {t[5]}, 2, {t[4]}
v_xor_b32 {t[5]}, {t[5]}, {t[1]}
v_lshlrev_b32 {t[5]}, 4, {t[5]}
v_lshl_add_u32 {t[5]}, {t[0]}, 10, {t[5]}
s_lshl_b32 s91, {sW}, 13
s_add_u32 s94, s91, s92
v_add_u32 {vW2d}, s94, {t[5]}
s_mul_i32 {sWd4}, s93, {7*128*1024}
s_and_b32 s94, {sW}, 1
s_lshl_b32 s94, s94, 15
s_add_u32 {sWd4}, {sWd4}, s94
s_sub_u32 {sWd4}, {sWd4}, s91""")
        p(f"""v_lshrrev_b32 {t[0]}, 4, {vL}
v_and_b32 {t[1]}, 15, {vL}
v_lshrrev_b32 {t[2]}, 2, {t[1]}
v_and_b32 {t[3]}, 3, {vL}
v_lshrrev_b32 {t[4]}, 1, {t[2]}
v_and_b32 {t[5]}, 1, {t[0]}
v_lshl_add_u32 {t[6]}, {t[5]}, 1, {t[4]}
v_xor_b32 {t[6]}, {sW}, {t[6]}
v_lshlrev_b32 {t[6]}, 5, {t[6]}
v_lshl_add_u32 {t[6]}, {t[3]}, 3, {t[6]}
v_lshl_add_u32 {t[6]}, {t[2]}, 7, {t[6]}
v_mul_u32_u24 {t[7]}, 3072, {t[0]}
v_add_u32 {t[6]}, {t[6]}, {t[7]}
v_add_u32 {vW1r0}, {L_R1}, {t[6]}
v_add_u32 {vW1r1}, {L_R1 + 49152}, {t[6]}
v_lshrrev_b32 {t[6]}, 1, {t[1]}
v_xor_b32 {t[6]}, {t[6]}, {t[0]}
v_lshlrev_b32 {t[6]}, 4, {t[6]}
v_lshl_add_u32 {vA1r0}, {t[1]}, 7, {t[6]}
v_xor_b32 {vA1r1}, 64, {vA1r0}
v_lshrrev_b32 {t[7]}, 1, {t[0]}
v_lshrrev_b32 {t[8]}, 1, {t[3]}
v_and_b32 {t[9]}, 1, {t[3]}
v_lshl_add_u32 {t[10]}, {t[9]}, 1, {t[8]}
v_lshl_add_u32 {t[10]}, {t[5]}, 2, {t[10]}
v_lshlrev_b32 {t[10]}, 3, {t[10]}
v_xor_b32 {t[11]}, s93, {t[4]}
v_lshl_add_u32 {t[10]}, {t[11]}, 6, {t[10]}
v_lshl_add_u32 {t[10]}, {t[2]}, 7, {t[10]}
v_lshl_add_u32 {vWown}, {t[7]}, 10, {t[10]}
v_xor_b32 {vWoth}, 64, {vWown}
v_lshl_add_u32 {t[10]}, {t[9]}, 1, {t[5]}
v_lshlrev_b32 {t[10]}, 3, {t[10]}
v_lshl_add_u32 {t[11]}, {t[8]}, 1, {t[4]}
v_xor_b32 {t[11]}, {sW}, {t[11]}
v_lshl_add_u32 {t[10]}, {t[11]}, 5, {t[10]}
v_lshl_add_u32 {t[10]}, {t[2]}, 7, {t[10]}
v_lshl_add_u32 {t[10]}, {t[8]}, 12, {t[10]}
v_lshl_add_u32 {vW3r}, {t[7]}, 13, {t[10]}
v_and_b32 {t[0]}, 31, {vL}
v_lshrrev_b32 {t[1]}, 5, {vL}
v_lshlrev_b32 {t[1]}, 4, {t[1]}
v_lshl_add_u32 {t[0]}, {t[0]}, 11, {t[1]}
s_and_b32 s91, {sW}, 1
s_lshl_b32 s91, s91, 16
s_lshl_b32 s94, s93, 6
s_add_u32 s91, s91, s94
s_add_u32 s91, s91, s92
v_add_u32 {vRM}, s91, {t[0]}
s_lshl_b32 s91, {sG16}, 8
s_add_u32 s91, s91, {WS_FL}
v_lshl_add_u32 {vFLp}, {vL}, 2, s91
s_lshl_b32 s94, {sM16}, 2
s_add_u32 s94, s94, {sW}
s_lshl_b32 s94, s94, 2
s_add_u32 s91, s91, s94
v_mov_b32 {vFLo}, s91""")
        for s in range(2):
            p(f"""s_add_u32 s91, {sW}, {4*s}
s_xor_b32 s91, s91, {sR3}
s_lshl_b32 s91, s91, 12
s_lshl_b32 s94, {sG16}, 17
s_add_u32 {sA3[s]}, s91, s94""")
        p(f's_cmp_eq_u32 {sR8}, 7\ns_cselect_b32 s91, 3, {sR8}\ns_lshl_b32 {sJ[0]}, s91, 13')
        for j in range(1, 7):
            p(f's_add_u32 {sJ[j]}, {sJ[j-1]}, 8192\ns_cmp_eq_u32 {sJ[j]}, {7*8192}\ns_cselect_b32 {sJ[j]}, 0, {sJ[j]}')
        p(f"""s_cmp_eq_u32 {sRG}, 3
s_cselect_b32 s91, 5, 1
s_add_u32 {sSG}, {sG}, s91
s_cmp_eq_u32 s90, 15
s_cselect_b32 {sSG}, {sG}, {sSG}
s_lshr_b32 s91, {sSG}, 1
v_mov_b32 v252, {sG16}
v_mov_b32 v253, s91
v_cmp_eq_u32 vcc, 0, {vL}
v_cndmask_b32 v252, v253, v252, vcc
v_lshlrev_b32 v252, 7, v252
s_mov_b32 s91, {WS_EP}
buffer_load_dword v253, v252, {SWS}, s91 offen sc1""")
        c = 40
        p(f"""v_mov_b32 v{c}, -1
v_mov_b32 v{c+1}, -1
v_mov_b32 v{c+2}, -1
v_mov_b32 v{c+3}, -1
v_mov_b32 v{c+4}, 0
v_lshrrev_b32 v{c+5}, 3, {vL}
v_and_b32 v{c+6}, 7, {vL}
v_lshlrev_b32 v{c+6}, 4, v{c+6}
v_lshl_add_u32 v{c+5}, v{c+5}, 11, v{c+6}
s_lshl_b32 s88, {sG}, 14
s_add_u32 s88, s88, s92
s_add_u32 s88, s88, {sW4K}
s_add_u32 s88, s88, {WS_HB}
s_lshl_b32 s91, {sG}, 7
s_lshl_b32 s94, {sW}, 4
s_add_u32 s91, s91, s94
s_add_u32 s91, s91, {WS_HS}
s_cmp_eq_u32 {sCB}, 0
s_cselect_b32 s91, s91, 0x7ff00000
v_mov_b32 v{c+6}, s91
s_mov_b64 exec, 0xffff""")
        self.clr = [p(f'buffer_store_dwordx4 {vr(c,4)}, v{c+5}, {SWS}, s88 offen sc1')]
        p('s_mov_b64 exec, 1')
        self.clr.append(p(f'buffer_store_dwordx4 {vr(c,4)}, v{c+6}, {SWS}, 0 offen sc1'))
        p('s_mov_b64 exec, -1')
        if not self.o_rot: p(f's_mov_b32 {sRG}, 0')

    def publish_xcc(self):
        l = self.lab('px')
        return [f'v_readlane_b32 {sE}, v253, 0', f'v_readlane_b32 {sES}, v253, 1', Raw(f"""s_cmp_lg_u32 {sW}, 0
s_cbranch_scc1 {l}
s_lshl_b32 s88, {sG}, 3
s_add_u32 s88, s88, {sCB}
s_lshl_b32 s88, s88, 8
s_add_u32 s88, s88, {WS_XC}
v_sub_u32 v252, 15, {vL}
v_add_u32 v252, v252, v253
v_mov_b32 v253, {sXCC}
v_lshlrev_b32 v254, 7, {vL}
s_mov_b64 exec, 3
buffer_store_dwordx2 v[252:253], v254, {SWS}, s88 offen sc1
s_mov_b64 exec, -1
{l}:""", rd=['v253', sE, sES], wr=['v252', 'v253', 'v254', 's88'], states=2)]
    def mode_issue(self, va, vd):
        return lines(f"""s_lshl_b32 s88, {sG16}, 12
s_lshl_b32 s89, {sPG}, 11
s_sub_u32 s89, s89, {16*256 - 128}
v_lshlrev_b32 {va}, 8, {vL}
v_add_u32 v{vd}, s89, {va}
v_add_u32 {va}, s88, {va}
v_cmp_gt_u32 vcc, 16, {vL}
v_cndmask_b32 {va}, v{vd}, {va}, vcc
v_mov_b32 v{vd}, s88
v_cmp_gt_u32 vcc, 24, {vL}
v_cndmask_b32 {va}, v{vd}, {va}, vcc
v_add_u32 {va}, {WS_XC}, {va}
buffer_load_dwordx2 {vr(vd,2)}, {va}, {SWS}, 0 offen sc1""")
    def mode_check(self, va, vd):
        o = lines(f"""s_cmp_eq_u32 {sHASP}, 0
s_mov_b32 s92, 0xffffff
s_cselect_b32 s92, 0xffff, s92
s_mov_b32 s93, 0
v_lshrrev_b32 v33, 4, {vL}
v_sub_u32 v33, 15, v33
v_add_u32 v33, {sE}, v33""")
        o += self.spin(f'buffer_load_dwordx2 {vr(vd,2)}, {va}, {SWS}, 0 offen sc1', f'v_cmp_ne_u32 vcc, v33, v{vd}', 's[92:93]')
        o += lines(f'v_cmp_ne_u32 vcc, {sXCC}, v{vd+1}\ns_and_b32 {sMODE}, vcc_lo, 0xffff')
        if self.o_glob: o.append(f's_mov_b32 {sMODE}, 1')
        return o
    def bump_epoch(self):
        l = self.lab('ep')
        return Raw(f"""s_add_u32 s88, {sM16}, {sW}
s_cmp_lg_u32 s88, 0
s_cbranch_scc1 {l}
s_lshl_b32 s88, {sG16}, 7
s_add_u32 s88, s88, {WS_EP}
s_add_u32 s89, {sE}, 16
v_mov_b32 v33, s89
v_mov_b32 v34, 0
s_mov_b64 exec, 1
buffer_store_dword v33, v34, {SWS}, s88 offen
s_mov_b64 exec, -1
{l}:""", wr=['v33', 'v34', 's88', 's89'], states=2)

    def stats_final(self, S, Q, t):
        o = [f'v_mul_f32 {S}, {f2u(-1/512)}, {S}', f'v_mul_f32 {Q}, {f2u(1/512)}, {Q}', f'v_fma_f32 {Q}, -{S}, {S}, {Q}', f'v_max_f32 {Q}, 0, {Q}']
        rnd = lambda x: [f'v_cvt_pk_bf16_f32 {x}, {x}, {x}', f'v_and_b32 {x}, 0xffff0000, {x}']
        if self.o_mimic:
            o += rnd(Q) + [f'v_add_f32 {Q}, {f2u(1e-5)}, {Q}'] + rnd(Q) + [f'v_sqrt_f32 {t}, {Q}'] + rnd(S) + rnd(t) + [f'v_rcp_f32 {Q}, {t}']
        else:
            o += [f'v_add_f32 {Q}, {f2u(1e-5)}, {Q}', f'v_sqrt_f32 {t}, {Q}', f'v_rcp_f32 {Q}, {t}']
        return o
    def stats_issue(self, base, sbase, r):
        o = [Ins(f's_add_u32 {sT}, {sbase}, {base}')]
        for i in range(4): o.append(Ins(f'buffer_load_dwordx4 {vr(r+4*i,4)}, {vL16}, {SWS}, {sT} offen offset:{1024*i} sc1'))
        return o
    def stats_reduce(self, r):
        o = []
        for j in range(4): o.append(f'v_add_f32 v{r+j}, v{r+j}, v{r+4+j}')
        for j in range(4): o.append(f'v_add_f32 v{r+8+j}, v{r+8+j}, v{r+12+j}')
        for j in range(4): o.append(f'v_add_f32 v{r+j}, v{r+j}, v{r+8+j}')
        o += [f'v_permlane16_swap_b32 v{r}, v{r+2}', f'v_permlane16_swap_b32 v{r+1}, v{r+3}',
              f'v_add_f32 v{r}, v{r}, v{r+2}', f'v_add_f32 v{r+1}, v{r+1}, v{r+3}',
              f'v_permlane32_swap_b32 v{r}, v{r+1}', f'v_add_f32 v{r}, v{r}, v{r+1}', f'v_mov_b32 v{r+1}, v{r}',
              f'v_permlane32_swap_b32 v{r}, v{r+1}']
        return o

    def w1_stage(self, s, seq=False):
        slot = L_R1 + (s % 7) * 12288
        pre = []
        if not (seq and s & 1):
            pre += [Ins(f's_xor_b32 {sV}, {sR8}, {s >> 1}'), Ins(f's_mul_i32 {sV}, {sV}, 196608')]
        if s & 1: pre.append(Ins(f's_add_u32 {sV}, {sV}, 98304'))
        out = []
        for part in range(3):
            g = ([Ins(f's_add_u32 m0, {sW3K}, {slot}')] + pre) if part == 0 else []
            g.append(Ins(f'buffer_load_dwordx4 {vW1d}, {SWQKV}, {sV} offen offset:{part*1024} lds', lds=[(slot + q*3072 + part*1024, slot + q*3072 + part*1024 + 1024) for q in range(4)]))
            out.append(g)
        return [sum(out, [])], [last(g) for g in out]
    def a1_chunk(self, L, kc):
        srd = SX if L == 0 else SWS; fl = ' sc1' if L else ''
        rng = lambda o: [(kc*8192 + q*2048 + o*1024, kc*8192 + q*2048 + o*1024 + 1024) for q in range(4)]
        a = Ins(f'buffer_load_dwordx4 {vA1e}, {srd}, {sT} offen{fl} lds', lds=rng(0))
        b = Ins(f'buffer_load_dwordx4 {vA1o}, {srd}, {sT} offen offset:1024{fl} lds', lds=rng(1))
        return [Ins(f's_add_u32 m0, {sW2K}, {kc*8192}'), Ins(f's_xor_b32 {sT}, {sR8s}, {kc*128}'), Ins(f's_add_u32 {sT}, {sT}, {sA1}'), a, b], [a, b]
    def halo_dma(self, L, va, sT=sT):
        srd = SX if L == 0 else SWS; fl = ' sc1' if L else ''
        o = []; tk = []
        for u in range(2):
            d = Ins(f'buffer_load_dwordx4 {va}, {srd}, {sT} offen{fl} lds', lds=[(L_A1H + q*2048 + u*1024, L_A1H + q*2048 + u*1024 + 1024) for q in range(4)])
            o += [Ins(f's_add_u32 m0, {sW2K}, {L_A1H + u*1024}'), Ins(f's_lshl_b32 {sT}, {sW}, 8'), Ins(f's_add_u32 {sT}, {sT}, {u*128}'),
                  Ins(f's_xor_b32 {sT}, {sT}, {sR8s}'), Ins(f's_add_u32 {sT}, {sT}, {sHB if L else sHALO}'), d]
            tk.append(d)
        return o, tk
    def w2_piece(self, i):
        q = (i >> 1) & 3; c = (i & 1)*32768 + (i >> 3)*262144
        o = [Ins(f's_add_u32 m0, {sW1K}, {L_W2 + i*4096}'), Ins(f's_xor_b32 {sT}, {sRG}, {q}'), Ins(f's_lshl_b32 {sT}, {sT}, 16')]
        if c: o.append(Ins(f's_add_u32 {sT}, {sT}, {c}'))
        o.append(Ins(f'buffer_load_dwordx4 {vW2d}, {SWO}, {sT} offen lds', lds=(L_W2 + i*4096, L_W2 + i*4096 + 4096)))
        return o
    W4SLOTS = [[8, 2, 3, 4, 5, 0, 1, 6, 7, 2, 3, 0, 1, 2], [8, 0, 1, 2, 3, 4, 5, 6, 7, 8, 0, 1, 2, 3]]
    @property
    def W4SLOT(self): return self.W4SLOTS[self.layer]
    def w4_setup(self):
        return [f'v_add_u32 {vW4[0]}, {sWd4}, {vW2d}'] + [f'v_add_u32 {vW4[i]}, {7168*i}, {vW4[0]}' for i in range(1, 4)]
    def w4_stage(self, s):
        c, j = divmod(s, 7)
        slot = self.W4SLOT[s] * 16384
        out = []; tk = []
        for h in range(2):
            g = [Ins(f's_add_u32 m0, {sW4K}, {slot}'), Ins(f's_lshl4_add_u32 {sT}, {sJ[j]}, {c*65536}')]
            for i in (2*h, 2*h+1):
                d = Ins(f'buffer_load_dwordx4 {vW4[i]}, {SWD}, {sT} offen offset:{i*1024} lds', lds=[(slot + q*4096 + i*1024, slot + q*4096 + i*1024 + 1024) for q in range(4)])
                g.append(d); tk.append(d)
            out.append(g)
        return out, tk
    def w3_quad(self, q, stg):
        c, kq = divmod(q, 8)
        o = [Ins(f's_add_u32 m0, {sW4K}, {stg}'), Ins(f's_xor_b32 {sU}, {sR3}, {kq}'), Ins(f's_mul_i32 {sU}, {sU}, {4*57344}')]
        if c: o.append(Ins(f's_add_u32 {sU}, {sU}, 128'))
        tk = [Ins(f'buffer_load_dwordx4 {vW3q[i]}, {SW3}, {sU} offen offset:{i*1024} lds', lds=[(stg + w*4096 + i*1024, stg + w*4096 + i*1024 + 1024) for w in range(4)]) for i in range(4)]
        self.w3tok[q] = tk; self.w3stg[q] = stg
        return self.split_dma(o + tk)
    def w3_reads(self, n):
        stg = self.w3stg[n >> 2]; i = n & 3
        va, off = [(vW3r, 0), ('v212', 49152), ('v213', 98304)][min(2, stg // 49152)]
        return [Ins(f'ds_read_b64_tr_b16 {ar(4*n+2*r,2)}, {va} offset:{stg - off + i*1024 + r*512}', lds=[(stg + w*4096 + i*1024, stg + w*4096 + i*1024 + 1024) for w in range(4)]) for r in range(2)]
    def w3_cs(self, n):
        return f'v_mfma_f32_16x16x32_bf16 v[216:219], v[220:223], {ar(4*n,4)}, {0 if n % 32 == 0 else "v[216:219]"}'
    def w3_setup(self):
        return [f'v_add_u32 v212, 49152, {vW3r}', f'v_add_u32 v213, 98304, {vW3r}']
    def w3_take(self, ns):
        p = self.p
        rs = [self.w3_reads(n) for n in ns]
        for i, n in enumerate(ns):
            p(rs[i])
            if i >= 3: p(self.w3_cs(ns[i-3]))
        for n in ns[-3:]: p(self.w3_cs(n))
        return sum(rs, [])
    def w3_sel(self):
        return lines(f"""v_lshrrev_b32 v220, 2, {vL}
v_lshrrev_b32 v221, 4, {vL}
v_xor_b32 v220, v220, v221
v_and_b32 v220, 1, v220
v_cmp_eq_u32 vcc, 0, v220
v_mov_b32 v221, 0x3f803f80
v_cndmask_b32 v220, 0, v221, vcc
v_mov_b32 v221, v220
v_mov_b32 v222, v220
v_mov_b32 v223, v220""")
    def w3_cs_store(self, c):
        o = lines(f"""v_and_b32 v214, 31, {vL}
s_lshl_b32 s90, {sW}, 8
s_add_u32 s90, s90, {L_CS3 + c*128}
v_lshl_add_u32 v214, v214, 2, s90""")
        o.append(Ins('ds_write_b32 v214, v216', lds=(L_CS3, L_CS3 + 1024), private=True))
        return o

    ATT = dict(ST=144, VS=154, CQ=194, QB=202, KB=210, VB=220, CA=128, CB=132, CB0=136, MA=140, SB=96, PP=230, OA=56, T=246)
    def att_masks(self, T):
        A = self.ATT; CA, CB, CB0, MA = A['CA'], A['CB'], A['CB0'], A['MA']
        o = lines(f"""v_and_b32 v{T}, 15, {vL}
v_lshrrev_b32 v{T+1}, 4, {vL}
v_lshlrev_b32 v142, 2, v{T}
v_add_u32 v142, {L_NM}, v142
v_lshlrev_b32 v143, 4, v{T+1}
v_add_u32 v143, {L_NM}, v143
v_lshlrev_b32 v{T+1}, 2, v{T+1}
v_sub_u32 v{T}, v{T}, v{T+1}
v_mov_b32 v{T+4}, 0xff800000
v_mov_b32 v{T+5}, 0xffff
v_mov_b32 v{T+6}, 0xffff0000
s_cmp_eq_u32 {sHASP}, 0
s_cselect_b64 s[88:89], 0, -1""")
        for j in range(4):
            o += lines(f"""v_subrev_u32 v{T+1}, {j}, v{T}
v_add_u32 v{T+7}, 16, v{T+1}
v_cmp_gt_u32 vcc, 8, v{T+1}
v_cmp_gt_u32 s[90:91], 8, v{T+7}
v_cndmask_b32 v{CA+j}, v{T+4}, 0, vcc
v_cndmask_b32 v{T+8+j}, 0, v{T+5+(j&1)}, vcc
v_cndmask_b32 v{CB+j}, v{T+4}, 0, s[90:91]
v_cndmask_b32 v{CB0+j}, v{T+4}, v{CB+j}, s[88:89]""")
        o += [f'v_or_b32 v{MA}, v{T+8}, v{T+9}', f'v_or_b32 v{MA+1}, v{T+10}, v{T+11}']
        return o
    def att_tabreads(self):
        A = self.ATT; tab = (L_NM, L_NM + 640)
        o = [Ins(f'ds_read2_b32 {vr(A["ST"]+2*u,2)}, v142 offset0:{16*u} offset1:{80+16*u}', lds=tab) for u in range(5)]
        for u in range(5):
            o.append(Ins(f'ds_read_b128 {vr(A["VS"]+8*u,4)}, v143 offset:{64*u}', lds=tab))
            o.append(Ins(f'ds_read_b128 {vr(A["VS"]+8*u+4,4)}, v143 offset:{64*u+320}', lds=tab))
        return o
    def attention(self, L, extra):
        p = self.p
        QA, KA, VA = 40, 56, 76
        A = self.ATT
        ST, VS, CQ, QB, KB, VB, CA, CB, CB0, MA, SB, PP, OA, T = [A[k] for k in 'ST VS CQ QB KB VB CA CB CB0 MA SB PP OA T'.split()]
        lo, hi = 'op_sel_hi:[1,0,1]', 'op_sel:[0,1] op_sel_hi:[1,1]'
        for u in range(5):
            st = vr(ST + 2*u, 2)
            for j in (0, 2): p(f'v_pk_fma_f32 {vr(KA+4*u+j,2)}, {vr(CSK+j,2)}, {st}, {vr(KA+4*u+j,2)} {lo}')
            if u:
                for j in (0, 2): p(f'v_pk_fma_f32 {vr(QA+4*u-4+j,2)}, {vr(CSQ+j,2)}, {st}, {vr(QA+4*u-4+j,2)} {lo}')
            for j in (0, 2): p(f'v_pk_mul_f32 {vr(KA+4*u+j,2)}, {vr(KA+4*u+j,2)}, {st} {hi}')
            if u:
                for j in range(2): p(f'v_cvt_pk_bf16_f32 v{QB+2*u-2+j}, v{QA+4*u-4+2*j}, v{QA+4*u-4+2*j+1}')
            for j in range(2): p(f'v_cvt_pk_bf16_f32 v{KB+2*u+j}, v{KA+4*u+2*j}, v{KA+4*u+2*j+1}')
        p(extra.get('a', []))
        for t in range(4):
            p(f'v_mfma_f32_16x16x16_bf16 {vr(QA+4*t,4)}, {vr(KB+2*(t+1),2)}, {vr(QB+2*t,2)}, {vr(CA,4)}')
            p(f'v_mul_f32 v{CQ+2*t}, {f2u(0.25*LOG2E)}, v{ST+2*t+3}')
            p(f'v_mfma_f32_16x16x16_bf16 {vr(SB+4*t,4)}, {vr(KB+2*t,2)}, {vr(QB+2*t,2)}, {vr(CB0 if t == 0 else CB,4)}')
        p(extra.get('b', []))
        for u in range(5):
            for j in (0, 2): p(f'v_pk_fma_f32 {vr(VA+4*u+j,2)}, {vr(VS+8*u+j,2)}, {vr(CSV,2)}, {vr(VA+4*u+j,2)} {lo}')
            for j in (0, 2): p(f'v_pk_mul_f32 {vr(VA+4*u+j,2)}, {vr(VA+4*u+j,2)}, {vr(VS+8*u+4+j,2)}')
            for j in range(2): p(f'v_cvt_pk_bf16_f32 v{VB+2*u+j}, v{VA+4*u+2*j}, v{VA+4*u+2*j+1}')
        for t in range(4):
            for j in range(4): p(f'v_max_f32 v{QA+4*t+j}, v{QA+4*t+j}, v{SB+4*t+j}')
        for t in range(4): p(f'v_max3_f32 v{T+t}, v{QA+4*t}, v{QA+4*t+1}, v{QA+4*t+2}')
        for t in range(4): p(f'v_max_f32 v{T+t}, v{T+t}, v{QA+4*t+3}')
        def reduce4(op, ex=None):
            p(f"""v_permlane16_swap_b32 v{T}, v{T+1}
v_permlane16_swap_b32 v{T+2}, v{T+3}
{op} v{T}, v{T}, v{T+1}
{op} v{T+2}, v{T+2}, v{T+3}
v_permlane32_swap_b32 v{T}, v{T+2}
{op} v{T}, v{T}, v{T+2}""")
            if ex: p(ex)
            p(f"""v_mov_b32 v{T+2}, v{T}
v_permlane32_swap_b32 v{T}, v{T+2}
v_mov_b32 v{T+1}, v{T}
v_mov_b32 v{T+3}, v{T+2}
v_permlane16_swap_b32 v{T}, v{T+1}
v_permlane16_swap_b32 v{T+2}, v{T+3}""")
        reduce4('v_max_f32')
        for t in range(4): p(f'v_mul_f32 v{CQ+2*t+1}, v{T+t}, v{CQ+2*t}')
        for t in range(4):
            for j in (0, 2): p(f'v_pk_fma_f32 {vr(QA+4*t+j,2)}, {vr(QA+4*t+j,2)}, {vr(CQ+2*t,2)}, {vr(CQ+2*t,2)} op_sel:[0,0,1] op_sel_hi:[1,0,1] neg_lo:[0,0,1] neg_hi:[0,0,1]')
        for t in range(4):
            for j in range(4): p(f'v_exp_f32 v{QA+4*t+j}, v{QA+4*t+j}')
        for t in range(4):
            p(f"""v_cvt_pk_bf16_f32 v{PP+4*t}, v{QA+4*t}, v{QA+4*t+1}
v_cvt_pk_bf16_f32 v{PP+4*t+1}, v{QA+4*t+2}, v{QA+4*t+3}
v_and_b32 v{PP+4*t+2}, v{MA}, v{PP+4*t}
v_and_b32 v{PP+4*t+3}, v{MA+1}, v{PP+4*t+1}
v_xor_b32 v{PP+4*t}, v{PP+4*t}, v{PP+4*t+2}
v_xor_b32 v{PP+4*t+1}, v{PP+4*t+1}, v{PP+4*t+3}
v_add_f32 v{T+t}, v{QA+4*t}, v{QA+4*t+1}
v_add_f32 v{T+4}, v{QA+4*t+2}, v{QA+4*t+3}""")
            p(f'v_mfma_f32_16x16x32_bf16 {vr(OA+4*t,4)}, {vr(VB+2*t,4)}, {vr(PP+4*t,4)}, 0')
            p(f'v_add_f32 v{T+t}, v{T+t}, v{T+4}')
        reduce4('v_add_f32', f'v_rcp_f32 v{T}, v{T}')
        for t in range(4):
            sel = 'op_sel_hi:[1,0]' if t % 2 == 0 else 'op_sel:[0,1] op_sel_hi:[1,1]'
            for j in (0, 2): p(f'v_pk_mul_f32 {vr(OA+4*t+j,2)}, {vr(OA+4*t+j,2)}, {vr(T+(t&2),2)} {sel}')
        for tp in range(2):
            b = PP + 4*tp
            for h in range(2):
                t = 2*tp + h
                for j in range(2): p(f'v_cvt_pk_bf16_f32 v{b+2*h+j}, v{OA+4*t+2*j}, v{OA+4*t+2*j+1}')
        for tp in range(2):
            b = PP + 4*tp
            p(f'v_permlane16_swap_b32 v{b}, v{b+2}\nv_permlane16_swap_b32 v{b+1}, v{b+3}')
        alt, st = self.stores([f'buffer_store_dwordx4 {vr(PP,4)}, {vL16}, {SWS}, {sX} offen', f'buffer_store_dwordx4 {vr(PP+4,4)}, {vL16}, {SWS}, {sY} offen'])
        p(alt)
        return st
    def o_addr(self, L):
        return lines(f"""s_lshl_b32 {sX}, {sG}, 16
s_lshl_b32 {sY}, {sCB}, 12
s_add_u32 {sX}, {sX}, {sY}
s_add_u32 {sX}, {sX}, {sW1K}
s_add_u32 {sX}, {sX}, {WS_O[L]}
s_add_u32 {sY}, {sX}, 32768""")
    def x1_addr(self, L, d):
        return lines(f"""s_lshl_b32 {d}, {sRB}, 15
s_lshl_b32 s89, {sCB}, 12
s_add_u32 {d}, {d}, s89
s_and_b32 s89, {sW1K}, 2048
s_add_u32 {d}, {d}, s89
s_add_u32 {d}, {d}, {WS_X1[L]}""")
    def st_addr(self, base, d):
        return lines(f"""s_lshl_b32 {d}, {sRB}, 12
s_lshl_b32 s89, {sCB}, 9
s_add_u32 {d}, {d}, s89
s_lshr_b32 s89, {sW}, 1
s_lshl_b32 s89, s89, 8
s_add_u32 {d}, {d}, s89
s_add_u32 {d}, {d}, {base}""")
    def h_addr(self, L):
        return lines(f"""s_mul_i32 {sH0}, {sG16}, {4*114688}
s_lshl_b32 s88, {sM16}, 13
s_add_u32 {sH0}, {sH0}, s88
s_add_u32 {sH0}, {sH0}, {sW1K}
s_add_u32 {sH0}, {sH0}, {WS_H[L]}""")
    def touches_p1(self, L, t):
        if not self.o_touch: return self.o_addr(L)
        o = self.o_addr(L) + [f'v_and_b32 {t}, 7, {vL}', f'v_lshlrev_b32 {t}, 7, {t}', f'v_bfe_u32 v34, {vL}, 3, 1', f'v_lshl_add_u32 {t}, v34, 15, {t}']
        o.append(self.touch(t, sX, 0xffff))
        o += self.x1_addr(L, 's88') + [f'v_lshlrev_b32 {t}, 7, {vL}']
        o.append(self.touch(t, 's88', 0xffff))
        o += self.st_addr(WS_ST1[L], 's88')
        o.append(self.touch(t, 's88', 3))
        if L == 0: o.append(self.touch(vFLp, 0))
        return o
    def touches_h(self, L, t):
        if not self.o_touch: return []
        o = self.h_addr(L) + lines(f"""v_and_b32 {t}, 7, {vL}
v_lshlrev_b32 {t}, 7, {t}
v_bfe_u32 v34, {vL}, 3, 1
v_lshl_add_u32 {t}, v34, 12, {t}
v_lshrrev_b32 v34, 4, {vL}
v_mul_u32_u24 v34, 114688, v34
v_add_u32 {t}, {t}, v34
s_cmp_lg_u32 {sIDLE}, 0
s_cselect_b32 s88, 0x7ff00000, {sH0}""")
        o.append(self.touch(t, 's88'))
        return o
    def touches_x2(self, t):
        if not self.o_touch: return []
        o = [f's_add_u32 s88, {sROW}, {WS_X2}', self.touch(vRM, 's88', 0xffffffff)]
        o += self.st_addr(WS_ST2, 's88') + [f'v_lshlrev_b32 {t}, 7, {vL}', self.touch(t, 's88', 3)]
        return o

    def p1_wreads(self, s, dq, dk, dv):
        slot = s % 7
        va, off = (vW1r0, slot*12288) if slot < 4 else (vW1r1, slot*12288 - 49152)
        lo = L_R1 + slot*12288
        return [Ins(f'ds_read_b64_tr_b16 {vr(dst+2*rd,2)}, {va} offset:{off + part*1024 + rd*512}', lds=[(lo + q*3072 + part*1024, lo + q*3072 + part*1024 + 1024) for q in range(4)])
                for part, dst in ((0, dq), (1, dk), (2, dv)) for rd in range(2)]
    def p1_aread(self, s, t, dst):
        o = (s >> 1)*8192 + t*2048
        return Ins(f'ds_read_b128 {vr(dst,4)}, {vA1r1 if s & 1 else vA1r0} offset:{o}', lds=(o, o+2048))
    def halo_addr(self, a, b):
        return lines(f"""v_and_b32 {a}, 1023, {vA1r0}
v_not_b32 {b}, {vL}
v_and_b32 {b}, 8, {b}
v_lshlrev_b32 {b}, 3, {b}
v_xor_b32 {a}, {a}, {b}
v_add_u32 {a}, {L_A1H}, {a}
v_xor_b32 {b}, 64, {a}""")
    def halo_read(self, s, dst, a, b):
        o = (s >> 1)*1024
        return Ins(f'ds_read_b128 {vr(dst,4)}, {b if s & 1 else a} offset:{o}', lds=(L_A1H + o, L_A1H + o + 1024))
    W2AT = {9: [1, 2, 3], 10: [4, 5, 6], 11: [7, 8, 9], 12: [10, 11, 12], 13: [13, 14, 15], 15: [0]}

    def split_dma(self, g):
        out = []; cur = []
        for i in g:
            cur.append(i)
            if i.kind in ('dma', 'vmld'): out.append(cur); cur = []
        assert not cur
        return out

    def p1_first(self):
        p = self.p
        QA, KA, VA, AF, ONE, WB, SA = 40, 56, 76, 96, 120, 224, 152
        wtok = {}; atok = {}
        def A(kc):
            o, tk = self.a1_chunk(0, kc); atok[kc] = tk; return self.split_dma(o)
        def W(s):
            o, tk = self.w1_stage(s, seq=True); wtok[s] = tk; return self.split_dma(o[0])
        p(A(0))
        hd, htok = self.halo_dma(0, 'v124'); p(hd)
        p(W(0)); p(W(1)); p(A(1))
        self.prologue_b()
        for i2 in range(2): p(f'buffer_load_dwordx4 {vr(RES+4*i2,4)}, {vRM}, {SX}, {sROW} offen offset:{32*i2}')
        p(self.halo_addr('v124', 'v125'))
        p(f'v_add_u32 v126, {sW2K}, {vA1r0}\nv_xor_b32 v127, 64, v126')
        for i in range(4): p(f'v_mov_b32 v{ONE+i}, 0x3f803f80')
        p(W(2)); p(W(3))
        self.ts('p1_go0')
        plan = {0: ['A2', 'W4'], 1: ['A3', 'W5'], 2: ['A4', 'W6'], 3: ['A5', 'W7'], 4: ['A6', 'W8'], 5: ['A7', 'W9'], 6: ['W10', 'W11'], 7: ['W12', 'W13'], 8: ['W14', 'W15']}
        wb = lambda s: WB + 12*(s & 1)
        one = vr(ONE, 4)
        p(WaitTok(wtok[0] + atok[0] + htok)); p('s_barrier')
        self.ts('a1_landed')
        wr = self.p1_wreads(0, wb(0), wb(0)+4, wb(0)+8); p(wr)
        p(self.halo_read(0, AF+16, 'v124', 'v125'))
        for t in range(4): p(self.p1_aread(0, t, AF + 4*t))
        spine = []; base = []
        for s in range(16):
            base.append(len(spine))
            z = (s == 0)
            wq, wk, wv = vr(wb(s), 4), vr(wb(s)+4, 4), vr(wb(s)+8, 4)
            mm = lambda d, x, y, zz=z: f'v_mfma_f32_16x16x32_bf16 {vr(d,4)}, {x}, {y}, {0 if zz else vr(d,4)}'
            h = vr(AF + 16, 4)
            spine += [mm(CSQ, wq, one), mm(CSK, wk, one), mm(248, one, wv), mm(KA, wk, h), mm(VA, h, wv)]
            for t in range(4):
                a = vr(AF + 4*t, 4)
                spine += [mm(QA + 4*t, wq, a), mm(KA + 4 + 4*t, wk, a), mm(VA + 4 + 4*t, a, wv)]
            kc = s - 2
            if 0 <= kc < 8:
                for hh in range(2):
                    fa, fh = vr(168 + 8*hh, 4), vr(172 + 8*hh, 4); zz = (kc == 0 and hh == 0)
                    spine += [mm(SA, one, fa, zz), mm(SA+4, fa, fa, zz), mm(SA+8, one, fh, zz), mm(SA+12, fh, fh, zz)]
        base.append(len(spine))
        S = Sched(spine)
        w2tok = []; nraw = 0
        for s in range(16):
            b, nb = base[s], base[s+1]
            for it in plan.get(s, []): S.add('dma', A(int(it[1:])) if it[0] == 'A' else W(int(it[1:])), e=b+1, d=nb+6, split=True)
            for i in self.W2AT.get(s, []):
                x = self.w2_piece(i); S.add('dma', [x], e=b+1, d=nb+6, split=True); w2tok.append(last(x))
            if s in (12, 14): S.add('dma', self.w3_quad(nraw, 16384 + 16384*nraw), e=b+1, d=base[s+2]-1, split=True); nraw += 1
        tabw = [Ins(f'ds_write2_b32 v169, v{SA}, v{SA+4} offset0:16 offset1:96', lds=(L_NM, L_NM+640)), Ins(f'ds_write2_b32 v168, v{SA+8}, v{SA+12} offset0:0 offset1:80', lds=(L_NM, L_NM+640))]
        for s in range(16):
            b, nb = base[s], base[s+1]
            toks = list(wr)
            if s < 15: toks += wtok[s+1] + atok[(s+1) >> 1]
            kc = s - 2
            if 0 <= kc < 8: toks += atok[kc]
            if s == 3: toks += self.clr
            if s == 15: toks += tabw
            S.before[b] = self.fts('p10', f'k{s}')
            S.at(b, [WaitTok(toks), 's_barrier'])
            if 0 <= kc < 8:
                x = []
                for hh in range(2):
                    x.append(Ins(f'ds_read_b128 {vr(168+8*hh,4)}, {"v127" if hh else "v126"} offset:{kc*8192}', lds=(kc*8192, kc*8192 + 8192)))
                    x.append(self.halo_read(2*kc + hh, 172 + 8*hh, 'v124', 'v125'))
                S.add('sr', x, e=b+1, d=b+13)
            if s < 15:
                wr = self.p1_wreads(s+1, wb(s+1), wb(s+1)+4, wb(s+1)+8)
                S.add('wr', wr, e=b+1, d=nb-5)
                S.add('ar', [self.halo_read(s+1, AF+16, 'v124', 'v125')], e=b+5, d=nb-3)
                for t in range(4): S.add('ar', [self.p1_aread(s+1, t, AF + 4*t)], e=b+8+3*t, d=nb+3*t)
        x = lines(f"""v_and_b32 v168, 3, {vL}
v_cmp_eq_u32 vcc, 1, v168
v_cmp_eq_u32 s[88:89], 2, v168
v_cmp_eq_u32 s[90:91], 3, v168""")
        for bb in (SA+4, SA+12):
            x += [f'v_cndmask_b32 v{bb}, v{bb}, v{bb+1}, vcc', f'v_cndmask_b32 v{bb}, v{bb}, v{bb+2}, s[88:89]', f'v_cndmask_b32 v{bb}, v{bb}, v{bb+3}, s[90:91]']
        x += self.stats_final(f'v{SA}', f'v{SA+4}', f'v{SA+1}') + self.stats_final(f'v{SA+8}', f'v{SA+12}', f'v{SA+9}')
        x += lines(f"""v_and_b32 v168, 15, {vL}
v_lshlrev_b32 v168, 2, v168
v_add_u32 v168, {L_NM}, v168
s_lshl_b32 s88, {sW}, 6
v_add_u32 v169, s88, v168""")
        x.append(['s_mov_b32 exec_lo, 0x00f0000f', 's_mov_b32 exec_hi, 0xf0000f00'] + tabw + ['s_mov_b64 exec, -1'])
        wt = self.o.get('wat', 0)
        S.add('misc', self.warm_touch('v196') + [[f's_cmp_lg_u32 {sIDLE}, 0', 's_cselect_b32 s18, 0, s18']], e=base[wt]+1, d=base[wt+1]-1)
        S.add('misc', self.att_masks(184), e=base[1]+1, d=base[3]-1)
        S.add('misc', self.publish_xcc(), e=base[3]+1, d=base[4])
        S.add('misc', self.touches_p1(0, 'v196'), e=base[6], d=base[9])
        S.add('misc', self.mode_issue('v197', 198), e=base[9], d=base[10]+1)
        S.add('misc', [f'v_add_u32 {vW3q[i]}, {i*(57344-1024)}, {vW3d}' for i in range(1, 4)], e=base[10], d=base[11])
        S.add('misc', x, e=base[10]+2, d=base[14])
        S.add('misc', [self.mode_check('v197', 198)], e=base[14], d=base[15]-1)
        S.add('misc', self.att_tabreads(), e=base[15]+1, d=base[16]-2)
        S.emit(p, 'p1 L0')
        self.ts('p1_loop0')
        p(f'v_mov_b32 v{CSV}, v248')
        p('s_waitcnt lgkmcnt(0)'); p('s_barrier')
        p(self.w3_quad(2, 49152)); p(self.touches_h(0, 'v124'))
        st = self.attention(0, {'a': self.w3_quad(3, 65536)})
        self.ts('p1_attn0')
        self.post_flag(1, st)
        self.ts('p1_end0')
        return w2tok

    def p1_second(self, pre):
        p = self.p
        QA, KA, VA, AF, WQ, WK, WV = 40, 56, 76, 96, 112, 128, 192
        wtok = dict(pre); atok = {}
        def A(kc):
            o, tk = self.a1_chunk(1, kc); atok[kc] = tk; return self.split_dma(o)
        p(f"""s_add_u32 {sA1}, {sA1}, {WS_X2}
s_lshl_b32 {sHB}, {sPG}, 14
s_add_u32 {sHB}, {sHB}, {WS_HB}
s_add_u32 s88, {sROW}, {WS_X2}
s_cmp_eq_u32 {sHASP}, 0
s_cselect_b32 {sHB}, s88, {sHB}
s_lshl_b32 s92, {sRB}, 12
v_xor_b32 v120, 64, {vA1e}""")
        dst = lambda s: (WQ + 4*(s & 1), WK + 4*s, WV + 4*s)
        p(WaitTok(wtok[0])); p('s_barrier')
        wr = self.p1_wreads(0, *dst(0)); p(wr)
        self.poll(5, sMK1)
        self.ts('p1_go1')
        p(A(0)); p(A(1))
        p(self.stats_issue(WS_ST2, 's92', 240))
        p(A(2))
        p(WaitTok(atok[0])); p('s_barrier')
        for t in range(4): p(self.p1_aread(0, t, AF + 4*t))
        self.ts('p1_stats1')
        spine = []
        for s in range(16):
            z = (s == 0)
            dq, dk, dv = dst(s)
            mm = lambda d, x, y: f'v_mfma_f32_16x16x32_bf16 {vr(d,4)}, {x}, {y}, {0 if z else vr(d,4)}'
            for t in range(4):
                a = vr(AF + 4*t, 4)
                spine += [mm(QA + 4*t, vr(dq,4), a), mm(KA + 4 + 4*t, vr(dk,4), a), mm(VA + 4 + 4*t, a, vr(dv,4))]
        hb = len(spine)
        for s in range(16):
            a = vr(AF + 4*(s & 3), 4); k, v = vr(KA, 4), vr(VA, 4)
            spine.append(f'v_mfma_f32_16x16x32_bf16 {k}, {vr(WK+4*s,4)}, {a}, {0 if s == 0 else k}')
            spine.append(f'v_mfma_f32_16x16x32_bf16 {v}, {a}, {vr(WV+4*s,4)}, {0 if s == 0 else v}')
        S = Sched(spine)
        w2tok = []
        hd, htok = self.halo_dma(1, 'v120')
        for s in range(16):
            b = 12*s
            if s == 0:
                for st_ in range(7):
                    if st_ not in wtok:
                        o, tk = self.w1_stage(st_); wtok[st_] = tk; S.add('dma', self.split_dma(o[0]), e=0, d=12*(st_-1) - 14, step=3, split=True)
            if s < 5: S.add('dma', A(s+3), e=b+1, d=min(b+30, 12*(2*s+5) - 14), split=True)
            if s + 7 < 16:
                o, tk = self.w1_stage(s+7, seq=(s > 0)); wtok[s+7] = tk; S.add('dma', self.split_dma(o[0]), e=b+1, d=b+36, split=True)
            if s == 8: S.add('dma', self.split_dma(hd), e=b+1, d=b+36, split=True)
            for i in self.W2AT.get(s, []):
                x = self.w2_piece(i); S.add('dma', [x], e=b+1, d=b+40, split=True); w2tok.append(last(x))
        tabw = [Ins('ds_write2_b32 v125, v240, v241 offset0:16 offset1:96', lds=(L_NM, L_NM+640)), Ins('ds_write_b32 v126, v125', lds=[(L_NM, L_NM+64), (L_RS, L_RS+64)])]
        for s in range(16):
            b = 12*s
            toks = list(wr)
            if s < 15: toks += wtok[s+1] + atok[(s+1) >> 1]
            if s == 15: toks += tabw + htok
            S.before[b] = self.fts('p11', f'k{s}')
            S.at(b, [WaitTok(toks), 's_barrier'])
            if s < 15:
                wr = self.p1_wreads(s+1, *dst(s+1))
                S.add('wr', wr, e=b+1, d=b+9)
                for t in range(4): S.add('ar', [self.p1_aread(s+1, t, AF + 4*t)], e=b+3+3*t, d=b+8+3*t)
        S.before[hb] = self.cap(lambda: self.ts('p1_loop1'))
        for s in range(16):
            e = 12*15 + 3 + 3*s if s < 4 else hb + 2*(s-4) + 2
            S.add('ar', [self.halo_read(s, AF + 4*(s & 3), 'v122', 'v123')], e=e, d=max(e, hb + 2*s - 4))
        lh = self.lab('hs')
        S.add('misc', [Raw(f"""s_bitcmp1_b32 {sW}, 0
s_cbranch_scc0 {lh}
s_lshl_b32 s88, {sG}, 14
s_add_u32 s88, s88, {WS_HB - 56*2048}
s_mov_b32 exec_lo, 0xff000000
s_mov_b32 exec_hi, 0xff000000
buffer_store_dwordx4 {vr(RES,4)}, {vRM}, {SWS}, s88 offen sc1
buffer_store_dwordx4 {vr(RES+4,4)}, {vRM}, {SWS}, s88 offen offset:32 sc1
s_mov_b64 exec, -1
{lh}:""", rd=[vr(RES, 8)], wr=['s88'], states=2)], e=10, d=11)
        x = self.stats_reduce(240) + self.stats_final('v240', 'v241', 'v242') + lines(f"""v_and_b32 v124, 15, {vL}
v_lshlrev_b32 v124, 3, v124
v_bfe_u32 v125, {vL}, 4, 1
v_lshl_add_u32 v124, v125, 2, v124
s_and_b32 s88, {sW}, 1
s_lshl_b32 s88, s88, 7
s_add_u32 s88, s88, {L_NM}
v_add_u32 v125, s88, v124""")
        x.append(tabw[0])
        lh = self.lab('ht')
        x.append(Raw(f"""s_lshl_b32 s88, {sCB}, 2
s_add_u32 s88, s88, {sW}
s_cmp_lg_u32 s88, 1
s_cbranch_scc1 {lh}
s_lshl_b32 s88, {sG}, 7
s_add_u32 s88, s88, {WS_HS - 96}
s_mov_b32 exec_lo, 0xf000f000
s_mov_b32 exec_hi, 0
buffer_store_dword v240, v124, {SWS}, s88 offen sc1
buffer_store_dword v241, v124, {SWS}, s88 offen offset:32 sc1
s_mov_b64 exec, -1
{lh}:""", rd=['v240', 'v241', 'v124'], wr=['s88'], states=2))
        S.add('misc', x, e=12, d=12*5, step=0.8)
        S.add('misc', self.touches_p1(1, 'v121'), e=12*5, d=12*9, step=1)
        S.add('misc', [f's_lshl_b32 s88, {sPG}, 7', f's_add_u32 s94, s88, {WS_HS}', [f's_cmp_eq_u32 {sHASP}, 0', 's_cselect_b32 s94, 0x7ff00000, s94'], f'v_and_b32 v124, 15, {vL}', 'v_lshlrev_b32 v124, 2, v124',
                       f'buffer_load_dword v125, v124, {SWS}, s94 offen sc1', f's_add_u32 s88, {sW2K}, {L_A1H}', f'v_add_u32 v121, s88, {vL16}'], e=12*10, d=12*12, step=1)
        S.add('misc', lines(f"""v_and_b32 v126, 7, {vL}
v_lshlrev_b32 v126, 2, v126
v_bfe_u32 v127, {vL}, 3, 1
v_mul_u32_u24 v127, 320, v127
v_add_u32 v126, v126, v127
v_bfe_u32 v127, {vL}, 4, 1
v_lshl_add_u32 v126, v127, 5, v126
v_add_u32 v126, {L_NM}, v126"""), e=12*11, d=12*14, step=1)
        r = [Ins(f'ds_read_b32 v{122+u}, v121 offset:{u*1024}', lds=(L_A1H, L_A1H + 8192), private=True) for u in range(2)]
        for d in htok: d.private = True
        hd2, _ = self.halo_dma(1, 'v120', 's90')
        S.add('misc', [[WaitTok(htok)] + r], e=12*14, d=12*14+1)
        S.add('misc', [self.spin('s_mov_b32 s93, m0\n' + '\n'.join(i.text for i in hd2) + '\ns_mov_b32 m0, s93', 'v_max_u32 v122, v122, v123\nv_cmp_eq_u32 vcc, -1, v122', 'exec',
                                 pre='ds_read_b32 v122, v121\nds_read_b32 v123, v121 offset:1024\ns_waitcnt lgkmcnt(0)')], e=12*14+5, d=12*14+5)
        S.add('misc', [self.spin(f'buffer_load_dword v125, v124, {SWS}, s94 offen sc1', 'v_cmp_eq_u32 vcc, -1, v125', 'exec'), tabw[1]], e=12*14+7, d=12*14+10)
        S.add('misc', self.halo_addr('v122', 'v123'), e=12*14+8, d=12*15+1)
        S.add('misc', self.touches_h(1, 'v121'), e=12*15+2, d=hb+7)
        S.add('misc', self.att_masks(192), e=hb+8, d=hb+29)
        tr = self.att_tabreads()
        S.add('tab', tr[:5], e=hb+20, d=hb+30); S.add('tab', tr[5:], e=hb+31)
        S.emit(p, 'p1 L1')
        self.ts('p1_halo1')
        st = self.attention(1, {})
        self.ts('p1_attn1')
        self.post_flag(6, st)
        self.ts('p1_end1')
        return w2tok

    def epi_pre(self):
        o = [f'v_add_u32 v120, {sW4K}, {vL16}', 'v_xor_b32 v121, 8192, v120']
        for i in range(8): o += [f'v_lshlrev_b32 v{224+2*i}, 16, v{RES+i}', f'v_and_b32 v{225+2*i}, 0xffff0000, v{RES+i}']
        o += lines(f"""v_and_b32 v240, 31, {vL}
v_lshlrev_b32 v240, 3, v240
v_lshrrev_b32 v241, 5, {vL}
v_lshl_add_u32 v240, v241, 2, v240""")
        return o
    def tile_epilogue(self, kind, L, after=None):
        p = self.p
        OWN, OTH, X = 40, 56, 104
        rng = lambda q: [(L_XB + w*4096 + q*1024, L_XB + w*4096 + q*1024 + 1024) for w in range(4)]
        ws = [p(f'ds_write_b128 v120, {vr(OTH+4*q,4)} offset:{L_XB + q*1024}', lds=rng(q)) for q in range(4)]
        for i in range(0, 16, 2): p(f'v_pk_add_f32 {vr(OWN+i,2)}, {vr(OWN+i,2)}, {vr(224+i,2)}')
        p(WaitTok(ws)); p('s_barrier')
        for q in range(4): p(f'ds_read_b128 {vr(X+4*q,4)}, v121 offset:{L_XB + q*1024}', lds=rng(q))
        for q in range(4):
            for i in (4*q, 4*q+2): p(f'v_pk_add_f32 {vr(OWN+i,2)}, {vr(OWN+i,2)}, {vr(X+i,2)}')
            for i in (2*q, 2*q+1): p(f'v_cvt_pk_bf16_f32 v{RES+i}, v{OWN+2*i}, v{OWN+2*i+1}')
        if kind == 'out':
            p(f'buffer_store_dwordx4 {vr(RES,4)}, {vRM}, {SOUT}, {sROW} offen')
            p(f'buffer_store_dwordx4 {vr(RES+4,4)}, {vRM}, {SOUT}, {sROW} offen offset:32')
            return None
        if kind == 'x1': alt, st = self.stores([f'buffer_store_dwordx4 {vr(RES,4)}, {vL16}, {SWS}, {sX} offen', f'buffer_store_dwordx4 {vr(RES+4,4)}, {vL16}, {SWS}, {sX} offen offset:1024'])
        else: alt, st = self.stores([f'buffer_store_dwordx4 {vr(RES,4)}, {vRM}, {SWS}, {sX} offen', f'buffer_store_dwordx4 {vr(RES+4,4)}, {vRM}, {SWS}, {sX} offen offset:32'])
        p(alt)
        p(f'v_pk_add_f32 v[104:105], {vr(OWN,2)}, {vr(OWN+2,2)}\nv_pk_mul_f32 v[106:107], {vr(OWN,2)}, {vr(OWN,2)}\nv_pk_fma_f32 v[106:107], {vr(OWN+2,2)}, {vr(OWN+2,2)}, v[106:107]')
        for i in range(4, 16, 2):
            p(f'v_pk_add_f32 v[104:105], v[104:105], {vr(OWN+i,2)}\nv_pk_fma_f32 v[106:107], {vr(OWN+i,2)}, {vr(OWN+i,2)}, v[106:107]')
        p("""v_add_f32 v104, v104, v105
v_add_f32 v106, v106, v107
v_permlane32_swap_b32 v104, v106
v_add_f32 v104, v104, v106""")
        alt2, st2 = self.stores([f'buffer_store_dword v104, v240, {SWS}, {sY} offen'])
        p(alt2)
        return st + st2
    def wfrag_reads(self, k, base, va, vb, lo):
        r = 72 + 8*(k % 4)
        return [Ins(f'ds_read_b64_tr_b16 {vr(r+4*h+2*rd,2)}, {ad} offset:{base + rd*512}', lds=lo) for h, ad in ((1, vb), (0, va)) for rd in range(2)]
    ARING = [128 + 4*i for i in range(16)] + [224, 228, 232, 236, 248, 252]
    def tile_mfmas(self, k, z):
        r = 72 + 8*(k % 4); a = vr(self.ARING[k % 22], 4)
        return [f'v_mfma_f32_32x32x16_bf16 {vr(56,16)}, {vr(r+4,4)}, {a}, {0 if z else vr(56,16)}',
                f'v_mfma_f32_32x32x16_bf16 {vr(40,16)}, {vr(r,4)}, {a}, {0 if z else vr(40,16)}']

    def p2(self, L, w2tok):
        p = self.p
        p(f"""s_lshr_b32 s88, {sW}, 1
s_lshl_b32 s89, s88, 15
s_add_u32 s89, s89, {L_W2}
v_add_u32 v122, s89, {vWown}
v_add_u32 v123, s89, {vWoth}
s_lshl_b32 s88, s88, 14
s_lshl_b32 s92, {sRB}, 15
s_add_u32 s92, s92, s88
s_add_u32 s92, s92, {WS_O[L]}""")
        for q in range(4): p(f's_xor_b32 {sA2[q]}, {sRG}, {q}\ns_lshl_b32 {sA2[q]}, {sA2[q]}, 12\ns_add_u32 {sA2[q]}, {sA2[q]}, s92')
        p(WaitTok(w2tok + sum(self.w3tok.values(), []))); p('s_barrier')
        rd = lambda k: self.wfrag_reads(k, k*2048, 'v122', 'v123', [(L_W2 + h*32768 + k*2048, L_W2 + h*32768 + k*2048 + 2048) for h in range(2)])
        for k in range(3): p(rd(k))
        if L == 0:
            p(self.w3_setup()); p(self.w3_sel())
            rs = self.w3_take(list(range(16)))
            p(WaitTok(rs)); p('s_barrier')
        self.poll(1 + 5*L, sMK2)
        self.ts(f'p2_go{L}')
        al = [f'buffer_load_dwordx4 {vr(128+4*k,4)}, {vL16}, {SWS}, {sA2[k >> 2]} offen offset:{(k%4)*1024} sc1' for k in range(16)]
        NP = 10
        p(al[:NP])
        S = Sched(sum((self.tile_mfmas(k, k == 0) for k in range(16)), []))
        S.add('a', al[NP:], e=0, d=12, step=1, split=True)
        for k in range(13): S.add('wr', rd(k+3), e=2*k, d=2*k+2)
        if L == 0: S.add('dma', sum((self.w3_quad(q, 16384*(q - 3)) for q in range(4, 7)), []), e=8, d=31, step=1.9, split=True)
        S.add('misc', self.x1_addr(L, sX) + self.st_addr(WS_ST1[L], sY) + self.epi_pre(), e=8, d=30)
        S.emit(p, f'p2 L{L}')
        self.ts(f'p2_mm{L}')
        st = self.tile_epilogue('x1', L)
        self.ts(f'p2_epi{L}')
        if L == 0:
            p(self.w3_quad(7, 98304))
        self.post_flag(2 + 5*L, st)
        self.ts(f'p2_end{L}')

    def p3(self, L):
        p = self.p
        ACC, AF, CS, TK, HO, SR = 40, 72, 104, 240, 192, 224
        lskip = self.lab('p3skip')
        w4 = {}
        self.layer = L
        p(self.w4_setup())
        p(f"""v_add_u32 v124, 65536, {vL16}
v_and_b32 v125, 31, {vL}
v_lshlrev_b32 v125, 4, v125
v_add_u32 v125, {L_T3}, v125
v_lshrrev_b32 v126, 5, {vL}
v_lshlrev_b32 v126, 4, v126
s_lshl_b32 s88, {sW}, 8
s_add_u32 s88, s88, {L_CS3}
v_add_u32 v126, s88, v126
s_lshl_b32 s92, {sG16}, 2
s_add_u32 s92, s92, {sW}
s_lshl_b32 s92, s92, 12""")
        p(self.h_addr(L))
        if L == 0:
            p(WaitTok(sum((self.w3tok[q] for q in range(4, 7)), []))); p('s_barrier')
            self.w3_take(list(range(16, 28)))
        p('s_waitcnt lgkmcnt(0)'); p('s_barrier')
        p(f's_cmp_lg_u32 {sIDLE}, 0\ns_cbranch_scc1 {lskip}')
        self.poll(2 + 5*L, 'exec')
        self.ts(f'p3_go{L}')
        atok = {}
        def adma(rb, s, area=None):
            o = (rb if area is None else area)*32768 + s*16384
            d = [Ins(f'buffer_load_dwordx4 {vL16}, {SWS}, {sT} offen offset:{u*1024} sc1 lds', lds=[(o + q*4096 + u*1024, o + q*4096 + u*1024 + 1024) for q in range(4)]) for u in range(4)]
            atok[(rb, s, area)] = d
            return self.split_dma([Ins(f's_add_u32 m0, {sW4K}, {o}'), Ins(f's_add_u32 {sT}, {sA3[s]}, {WS_X1[L] + rb*32768}')] + d)
        for s in range(2): p(adma(0, s))
        if L == 0:
            tiles = [(0, 0), (0, 1), (0, 2), (0, 3), (1, 1), (1, 2), (1, 3), (1, 0)]; area = [0, 1, 2, 0, 1, 2, 0, 3]
        else:
            tiles = [(c, rb) for c in range(2) for rb in range(4)]; area = [0, 1, 2, 3, 0, 1, 2, 3]
        NR = 8
        def aread(n):
            ti, ks = divmod(n, 32)
            o = area[ti]*32768 + ks*1024
            return Ins(f'ds_read_b128 {vr(AF+4*(n % NR),4)}, {"v124" if o >= 65536 else vL16} offset:{o % 65536}', lds=(o, o+1024))
        def epilogue(ti):
            c, rb = tiles[ti]
            A = ACC + 16*(ti & 1); tk = TK + 4*(ti & 1); ho = HO + 4*(ti & 1)
            o = []
            gi = lambda i: (i >> 2)*8 + (i & 3)
            for i in range(8): o.append(f'v_fmac_f32 v{A+gi(i)}, v{tk}, v{CS+gi(i)}')
            for i in range(8): o.append(f'v_mul_f32 v{A+gi(i)}, v{tk+3}, v{A+gi(i)}')
            for i in range(8):
                o.append(f'v_exp_f32 v{A+gi(i)}, v{A+gi(i)}'); o.append(f'v_fmac_f32 v{A+gi(i)+4}, v{tk}, v{CS+gi(i)+4}')
            for i in range(8): o.append(f'v_fma_f32 v{A+gi(i)}, v{A+gi(i)}, v{tk+2}, v{tk+2}')
            for i in range(8):
                o.append(f'v_rcp_f32 v{A+gi(i)}, v{A+gi(i)}')
                if i: o.append(f'v_mul_f32 v{A+gi(i-1)}, v{A+gi(i-1)}, v{A+gi(i-1)+4}')
            o.append(f's_add_u32 s94, {sH0}, {rb*114688 + c*4096}')
            o.append(f'v_mul_f32 v{A+gi(7)}, v{A+gi(7)}, v{A+gi(7)+4}')
            for i in range(4): o.append(f'v_cvt_pk_bf16_f32 v{ho+i}, v{A+gi(2*i)}, v{A+gi(2*i+1)}')
            alt, st = self.stores([f'buffer_store_dwordx4 {vr(ho,4)}, {vL16}, {SWS}, s94 offen'])
            o.append(alt)
            return o, st
        def csreads(c):
            return [Ins(f'ds_read_b128 {vr(CS+4*i,4)}, v126 offset:{c*128 + i*32}', lds=(L_CS3, L_CS3+1024), private=True) for i in range(4)]
        p(self.fts(f'p3{L}', 'issued'))
        p(WaitTok(atok[(0, 0, None)])); p('s_barrier')
        rds = [aread(n) for n in range(256)]
        for n in range(6): p(rds[n])
        CS0, CS1 = 20, self.o.get('cs1', 148)
        spine = []; slot = []
        for n in range(256):
            if L == 0 and n == CS0: spine += [self.w3_cs(x) for x in range(28, 32)]
            if L == 0 and n == CS1: spine += [self.w3_cs(x) for x in range(32, 64)]
            ti, ks = divmod(n, 32); c, rb = tiles[ti]
            A = vr(ACC + 16*(ti & 1), 16)
            slot.append(len(spine))
            spine.append(f'v_mfma_f32_32x32x16_bf16 {A}, {ar(c*128+4*ks,4)}, {vr(AF+4*(n % NR),4)}, {0 if ks == 0 else A}')
        sl = lambda n: slot[max(0, min(int(n), 255))]
        S = Sched(spine)
        for n in range(0, 256, 2): S.before[sl(n)] = [WaitTok(rds[n:n+2])]
        for ti in range(8): S.before[sl(32*ti)] = self.fts(f'p3{L}', f't{ti}') + S.before[sl(32*ti)]
        bars = {}
        def bar(n, toks): bars.setdefault(n, []).extend(toks)
        gate = {}
        def publish(first, toks): bar(first - 7, toks); gate[first] = first - 7
        st_issue = self.stats_issue(WS_ST1[L], 's92', SR)
        S.add('dma', [st_issue[:2]] + st_issue[2:], e=0, d=8, step=1.5, split=True)
        publish(16, atok[(0, 1, None)])
        def astream(rb, ar_, e, first, step=2):
            for s in range(2):
                S.add('dma', adma(rb, s, ar_), e=sl(e + 4*step*s), d=sl(first + 16*s - 12), step=step, split=True)
            publish(first, atok[(rb, 0, ar_)]); publish(first + 16, atok[(rb, 1, ar_)])
        if L == 1:
            astream(1, None, 6, 32); astream(2, None, 24, 64); astream(3, None, 44, 96)
        else:
            SLOT = [98304, 114688, 131072]
            lag = self.o.get('lag', 26)
            rd_at = {7: 9}; iss = {8: 22, 9: 30}
            for q in range(8, 16):
                if q >= 10: iss[q] = rd_at[q-2] + 1
                rd_at[q] = max(min(iss[q] + lag, 128 + 4*(q - 8) - 6, CS1 - 8), iss[q] + 12, rd_at[q-1] + 6)
            assert rd_at[15] + 6 <= CS1
            def wq(q):
                S.add('dma', self.w3_quad(q, SLOT[(q - 7) % 3]), e=sl(iss[q]), d=sl(iss[q] + 10), step=2, split=True, ta=72)
            ev = [(6, lambda: astream(1, None, 6, 32)), (40, lambda: astream(2, None, 40, 64, 1.5)), (70, lambda: astream(3, 0, 70, 96, 1.5))] + [(iss[q], (lambda q=q: wq(q))) for q in range(8, 16)]
            for _, f in sorted(ev, key=lambda t: t[0]): f()
            bar(41, rds[24:32])
            prevr = []
            for q in range(7, 16):
                at = rd_at[q]
                r = sum((self.w3_reads(n) for n in range(4*q, 4*q + 4)), [])
                bar(at, self.w3tok[q] + prevr); prevr = r
                S.add('w3r', r, e=sl(at), d=sl(at + 5))
            self.w3_last = prevr
            S.add('w3c', self.w3_cs_store(0) + csreads(0), e=sl(CS0) + 3, d=sl(33))
            cs1 = csreads(1)
            S.add('w3c', self.w3_cs_store(1), e=sl(CS1) + 3)
            S.add('w3c', cs1, e=sl(159), d=sl(161))
        for m in range(6, 256):
            if L == 0 and m == 224: publish_late = True
            e = max(m - NR + 1, max([v for k_, v in gate.items() if k_ <= m], default=-1))
            if L == 0 and m >= 224: e = max(e, 217 if m < 240 else 233)
            S.add('ar', [rds[m]], e=sl(e), d=sl(max(e, (m & ~1) - 4)))
        x = self.stats_reduce(SR) + self.stats_final(f'v{SR}', f'v{SR+1}', f'v{SR+2}') + lines(f"""v_mul_f32 v{SR+3}, {f2u(-LOG2E)}, v{SR+1}
v_and_b32 v{SR+4}, 15, {vL}
v_lshlrev_b32 v{SR+4}, 5, v{SR+4}
v_bfe_u32 v{SR+5}, {vL}, 4, 1
v_lshl_add_u32 v{SR+4}, v{SR+5}, 4, v{SR+4}
s_lshl_b32 s88, {sW}, 9
s_add_u32 s88, s88, {L_T3}
v_add_u32 v{SR+4}, s88, v{SR+4}""")
        tw = Ins(f'ds_write_b128 v{SR+4}, {vr(SR,4)}', lds=(L_T3, L_T3 + 2048))
        S.add('epi', x + [tw], e=sl(11), d=sl(23))
        bar(25, [tw])
        if L == 1: S.add('epi', csreads(0), e=25, d=33)
        sts = []
        for ti in range(8):
            c, rb = tiles[ti]
            S.add('epi', [Ins(f'ds_read_b128 {vr(TK+4*(ti&1),4)}, v125 offset:{rb*512}', lds=(L_T3, L_T3+2048))], e=sl(32*ti + 26), d=sl(32*ti + 32))
            if ti == 4 and L == 1: S.add('epi', csreads(1), e=159, d=161)
            if ti < 7:
                e, st = epilogue(ti); sts.append(st)
                S.add('epi', e, e=sl(32*ti + 35), d=sl(32*ti + 62), needs=(cs1 if L == 0 and ti == 4 else None), early=False)
            if ti >= 5:
                bar(32*ti + 1, rds[32*ti-8:32*ti] + (self.w3_last if L == 0 else []))
                todo = [2*(ti-5) + 1, 2*(ti-5) + 2]
                if ti == 5 and L == 0: todo = [0] + todo
                gq = []
                for s in todo:
                    x_, tk = self.w4_stage(s); w4[s] = tk; gq += sum((self.split_dma(y) for y in x_), [])
                S.add('dma', gq, e=sl(32*ti + 1), d=sl(32*ti + 31), ta=72, split=True)
                if ti == 5 and L == 0:
                    for s in range(2): S.add('dma', adma(0, s, 3), e=sl(193), d=sl(205 + 8*s), step=1.5, split=True)
                    bar(217, atok[(0, 0, 3)]); bar(233, atok[(0, 1, 3)])
            if ti == 3 and L == 1:
                x_, tk = self.w4_stage(0); w4[0] = tk; S.add('dma', sum((self.split_dma(y) for y in x_), []), e=100, d=127, ta=72, split=True)
        if L == 0:
            S.add('misc', self.touches_x2('v215') + [self.code_touch()], e=sl(CS1) - 28, d=sl(CS1) - 2)
        S.add('misc', [self.cap(lambda: self.post_flag(3 + 5*L, sum(sts[:4], [])))], e=sl(172), d=sl(174))
        NPRE = self.o.get('npre', 22)
        S.add('misc', self.p4_setup(L) + [self.poll_issue(vT0)], e=sl(176), d=sl(190))
        S.add('misc', [self.poll_check(vT0, 3 + 5*L, sMK4)], e=sl(204), d=sl(206))
        S.add('misc', [self.p4_aload(k) for k in range(NPRE)], e=sl(208), d=sl(254), step=46/NPRE, split=True)
        for n, toks in sorted(bars.items()):
            lo_, hi_ = self.o.get('blo', 0), self.o.get('bhi', 70)
            f = (lambda nm: self.fts(f'b3{L}', nm)) if lo_ <= n < hi_ else (lambda nm: [])
            S.at(sl(n), f(f'x{n}') + [WaitTok(toks)] + f(f'w{n}') + ['s_barrier'] + f(f'b{n}'), 'bar')
        S.emit(p, f'p3 L{L}')
        self.ts(f'p3_mm{L}')
        e, st = epilogue(7); sts.append(st); p(e)
        self.ts(f'p3_epi{L}')
        self.post_flag(4 + 5*L, sum(sts[4:], []))
        lj = self.lab('p3join')
        p('s_waitcnt lgkmcnt(0)'); p('s_barrier')
        p(f'{lj}:')
        sv = self.p; q = self.p = Prog(check_lds=False)
        q(f'{lskip}:')
        if L == 0: q(self.touches_x2('v215'))
        q(self.p4_setup(L))
        late = (L == 0 and self.o.get('pflate', True))
        if not late:
            for s in range(0, 7): q(self.w4_stage(s)[0])
            self.idle_prefetch(L)
        self.poll(3 + 5*L, sMK4)
        if late:
            for s in range(0, 7): q(self.w4_stage(s)[0])
        if self.o_wb and L == 1: q(Raw(f's_add_u32 s88, {sW}, {sM16}\ns_and_b32 s89, {sG16}, 1\ns_add_u32 s88, s88, s89\ns_cmp_lg_u32 s88, 14\ns_cbranch_scc1 Lnowb\nbuffer_wbl2 sc1\nLnowb:'))
        for k in range(NPRE): q(self.p4_aload(k))
        q(f's_waitcnt vmcnt(0)\ns_barrier\ns_branch {lj}')
        self.p = sv
        self.slow.append(q.finalize())
        self.ts(f'p3_end{L}')
        return w4

    def idle_prefetch(self, L):
        if not self.o.get('pf', True): return
        q = self.p
        q(f"""s_and_b32 s88, {sG16}, 1
s_lshl_b32 s88, s88, 1
s_add_u32 s88, s88, {sM16}
s_sub_u32 s88, s88, 14
s_lshl_b32 s88, s88, 2
s_add_u32 s88, s88, {sW}
v_lshlrev_b32 v40, 7, {vL}""")
        jobs = [(SWD, 7, 'down')] + ([(SWQKV, self.o.get('pfq', 0), 'qkv')] if L == 0 else [])
        for srd, n, kind in jobs:
            for i in range(n):
                if kind == 'down':
                    q(f's_mul_i32 s89, s88, 7\ns_add_u32 s89, s89, {i}\ns_lshr_b32 s90, s89, 3\ns_lshl_b32 s90, s90, 17\ns_and_b32 s89, s89, 7\ns_lshl_b32 s89, s89, 13\ns_add_u32 s89, s89, s90\ns_add_u32 s89, s89, 65536')
                else:
                    q(f's_lshl_b32 s89, s88, 13\ns_add_u32 s89, s89, {i*131072}')
                x = Ins(f'buffer_load_dword v41, v40, {srd}, s89 offen'); x.wr = set(); q(x)
                q('s_waitcnt vmcnt(1)')

    def p4_setup(self, L):
        return lines(f"""s_lshr_b32 s88, {sW}, 1
s_lshl_b32 s89, s88, 13
v_add_u32 v200, s89, {vWown}
v_add_u32 v201, s89, {vWoth}
v_add_u32 v202, 65536, v200
v_add_u32 v203, 65536, v201
v_add_u32 v204, 131072, v200
v_add_u32 v205, 131072, v201
s_mul_i32 s88, s88, 57344
s_mul_i32 {sX}, {sRB}, 114688
s_add_u32 {sX}, {sX}, s88
s_add_u32 {sX}, {sX}, {WS_H[L]}
s_add_u32 {sY}, {sX}, 4096""")
    def p4_aload(self, k):
        s, w = divmod(k, 4); c, j = divmod(s, 7)
        o = []
        if w == 0: o.append(Ins(f's_add_u32 {sH1}, {sY if c else sX}, {sJ[j]}'))
        o.append(Ins(f'buffer_load_dwordx4 {vr(self.ARING[k % 22],4)}, {vL16}, {SWS}, {sH1} offen offset:{w*1024} sc1'))
        return o
    def p4(self, L, w4):
        p = self.p
        def rd(k):
            s, w = divmod(k, 4)
            b = self.W4SLOT[s]*16384 + w*2048
            va, vb = [('v200', 'v201'), ('v202', 'v203'), ('v204', 'v205')][b >> 16]
            return self.wfrag_reads(k, b & 65535, va, vb, [(b + h*8192, b + h*8192 + 2048) for h in range(2)])
        NPRE = self.o.get('npre', 22); dac = self.o.get('dac', 9)
        self.ts(f'p4_go{L}')
        for k in range(3): p(rd(k))
        S = Sched(sum((self.tile_mfmas(k, k == 0) for k in range(56)), []))
        pre = {}; allreads = {}
        ev = []
        for m in range(NPRE, 56):
            e = max(0, 2*(m - 22) + 2)
            if m >= 28: e = max(e, 2*(28 - dac) + 1 + 1.6*(m - 28))
            ev.append((e, 2*m - 10, [self.p4_aload(m)], True))
        ev.append((2*(28 - dac) - 8, 2*(28 - dac) - 6, [self.poll_issue(vT0)], True))
        ev.append((2*(28 - dac), 2*(28 - dac) + 1, [self.poll_check(vT0, 4 + 5*L, sMK4)], False))
        stage_at = {7: 0, 8: 7}
        for ns in range(9, 14):
            prev = max(x for x in range(ns) if self.W4SLOT[x] == self.W4SLOT[ns])
            stage_at[ns] = max(2*(4*(prev + 2) - 3) + 1, stage_at[ns-1] + 7)
        for ns, e in stage_at.items():
            gq, tk = self.w4_stage(ns); w4[ns] = tk
            for i, y in enumerate(sum((self.split_dma(y) for y in gq), [])): ev.append((e + 1.7*i, 2*(4*ns - 3) - 8, [y], True))
        if L == 0:
            e0 = max(x[0] for x in ev) + 1
            for i, st_ in enumerate(range(self.o.get('nw1', 4))):
                gq, tk = self.w1_stage(st_, seq=(i > 0)); pre[st_] = tk
                for j, y in enumerate(self.split_dma(gq[0])): ev.append((e0 + 1.3*(3*i + j), 111, [y], True))
        for e, d, gq, sp in sorted(ev, key=lambda t: t[0]): S.add('vm', gq, e=int(e), d=max(int(e), d), step=0, split=sp)
        for k in range(56):
            m = k + 3
            if k % 4 == 0: S.before[2*k] = self.fts(f'p4{L}', f's{k//4}')
            if m < 56:
                s, w = divmod(m, 4)
                if w == 0: S.at(2*k, [WaitTok(w4[s] + allreads.get(s-2, [])), 's_barrier'], 'bar')
                r = rd(m); allreads.setdefault(s, []).extend(r)
                S.add('wr', r, e=2*k, d=2*k+3)
        x = self.epi_pre()
        if L == 0: x += [f's_add_u32 {sX}, {sROW}, {WS_X2}'] + self.st_addr(WS_ST2, sY)
        S.add('misc', x, e=92, d=110)
        S.emit(p, f'p4 L{L}')
        self.ts(f'p4_mm{L}')
        st = self.tile_epilogue('x2' if L == 0 else 'out', L)
        self.ts(f'p4_epi{L}')
        if L == 0: self.post_flag(5, st)
        self.ts(f'p4_end{L}')
        return pre

    def build(self):
        p = self.p
        self.prologue_a()
        pre = {}
        for L in range(2):
            w2 = self.p1_first() if L == 0 else self.p1_second(pre)
            if self.o_stop == f'p1_{L}': break
            self.p2(L, w2)
            if self.o_stop == f'p2_{L}': break
            w4 = self.p3(L)
            if self.o_stop == f'p3_{L}': break
            pre = self.p4(L, w4)
            if self.o_stop == f'p4_{L}': break
        p(self.bump_epoch())
        self.ts('end')
        if self.o_amp:
            p('s_waitcnt vmcnt(0)')
            p(Raw(f"""s_memrealtime s[62:63]
s_sub_u32 s96, s98, s96
s_mul_i32 s96, s96, {self.o_amp[2]}
s_min_u32 s96, s96, 100000
s_waitcnt lgkmcnt(0)
Lamp:
s_memrealtime s[98:99]
s_waitcnt lgkmcnt(0)
s_sub_u32 s98, s98, s62
s_cmp_lt_u32 s98, s96
s_cbranch_scc1 Lamp"""))
        if self.o_ts:
            p(f's_lshl_b32 s88, s2, 2\ns_add_u32 s88, s88, {sW}\ns_lshl_b32 s88, s88, 8\ns_add_u32 s88, s88, {WS_TS}\nv_lshlrev_b32 v40, 2, {vL}')
            p('s_memrealtime s[62:63]'); p(f'v_writelane_b32 {vTS}, s62, 62')
            p(f'buffer_store_dword {vTS}, v40, {SWS}, s88 offen')
            if self.o_dbg:
                sel = [self.tsn.index(n) for n in self.o_dbg] + [62, 63]
                l = self.lab('dbg')
                p(f's_lshl_b32 s88, s2, 2\ns_add_u32 s88, s88, {sW}\ns_cmp_lg_u32 s88, 0\ns_cbranch_scc1 {l}')
                p(f'v_readlane_b32 s89, {vTS}, 0')
                for i, s in enumerate(sel):
                    p(f'v_readlane_b32 s88, {vTS}, {s}')
                    if s < 62: p('s_sub_u32 s88, s88, s89')
                    p(f'v_writelane_b32 v41, s88, {i}')
                p(f's_mov_b64 exec, 0xffff\nbuffer_store_dword v41, v40, {SDBG}, 0 offen sc1\ns_mov_b64 exec, -1\n{l}:')
        body = p.finalize()
        head = open('cdna_kernels/' + NAME + '.s.ref').read().split('; Override launch')[0]
        txt = head + '; @launch grid=(256,1,1) block=(256,1,1) lds=163840\n'
        txt += f'.amdgcn_target "amdgcn-amd-amdhsa--gfx950"\n.text\n.globl {NAME}_kernel\n.p2align 8\n.type {NAME}_kernel,@function\n{NAME}_kernel:\n'
        txt += body + 'L_end:\ns_endpgm\n' + '\n'.join(getattr(p, 'tail', [])) + '\n' + '\n'.join(self.slow) + '\nL_last:\ns_endpgm\n'
        txt += f""".section .rodata,"a"
.p2align 6
.amdhsa_kernel {NAME}_kernel
  .amdhsa_next_free_vgpr 512
  .amdhsa_next_free_sgpr 102
  .amdhsa_accum_offset 256
  .amdhsa_group_segment_fixed_size 0
  .amdhsa_kernarg_size 80
  .amdhsa_user_sgpr_count 2
  .amdhsa_user_sgpr_kernarg_segment_ptr 1
  .amdhsa_system_sgpr_workgroup_id_x 1
  .amdhsa_float_denorm_mode_32 3
.end_amdhsa_kernel
"""
        return txt

if __name__ == '__main__':
    out = sys.argv[1]
    kw = {}
    for a in sys.argv[2:]:
        k, _, v = a.partition('=')
        if k in ('amp', 'dbg'): kw[k] = v.split(',')
        elif v in ('0', '1', ''): kw[k] = (v != '0')
        elif v.replace('.', '').isdigit(): kw[k] = float(v) if '.' in v else int(v)
        else: kw[k] = v
    if kw.pop('reuse', False):
        WS_O[1] = WS_O[0]; WS_X1[1] = WS_X1[0]; WS_ST1[1] = WS_ST1[0]; WS_H[1] = WS_H[0]
    g = Gen(**kw)
    open(out, 'w').write(g.build())
    if g.o_ts: open(out + '.ts', 'w').write('\n'.join(g.tsn))
    print(out, g.p.stats)
```

```python
import sys, struct
from asmlib import *

NAME = 'interleave_layers__sliding_local_dilated__glu_gated_glu__prompt'
MB = 1 << 20
WS_O = [0, 2*MB]; WS_X1 = [4*MB, 6*MB]; WS_X2 = 8*MB
WS_ST1 = [10*MB, 10*MB + (256 << 10)]; WS_ST2 = 10*MB + (512 << 10)
WS_HB = 11*MB; WS_HS = 11*MB + (512 << 10); WS_FL = 11*MB + (768 << 10); WS_EP = WS_FL + 8192; WS_XC = WS_FL + 16384; WS_TS = 14*MB
WS_H = [16*MB, 24*MB]

SX, SWQKV, SWO, SW3, SWD, SOUT, SWS, SDBG = 's[4:7]', 's[8:11]', 's[12:15]', 's[16:19]', 's[20:23]', 's[24:27]', 's[28:31]', 's[32:35]'
sW, sMODE, sT, sROW, sHALO, sG, sG16, sM16, sCB, sW1K, sW4K, sHASP, sPG, sIDLE = ['s%d' % i for i in range(36, 50)]
sMK2, sMK4, sMK1 = 's[50:51]', 's[52:53]', 's[54:55]'
sA1, sRB, sSPIN, sV, sXCC, sW2K = 's56', 's57', 's58', 's59', 's60', 's61'
sW3K, sR8, sRG, sR3 = 's84', 's85', 's86', 's87'
sR8s, sU = 's3', 's95'
sCODE = 's[100:101]'
SW3F = SW3
sA2 = ['s40', 's59', 's78', 's77']
sWd4 = 's64'; sA3 = ['s65', 's66', 's67', 's68']; sJ = ['s%d' % i for i in range(69, 76)]
sH0, sH1, sHB, sX, sY, sE, sES, sSG = 's76', 's77', 's78', 's79', 's80', 's81', 's82', 's83'
vL, vL16, vA1e, vA1o, vW1d, vW1r0, vW1r1, vA1r0, vA1r1, vW2d, vCT, vWown, vWoth, vRM, vFLp, vFLo = ['v%d' % i for i in range(16)]
RES = 16
CSQ, CSK, CSV = 24, 28, 32
vW3d, vW3r, vT0, vTS = 'v36', 'v37', 'v38', 'v39'
vW4 = ['v208', 'v209', 'v210', 'v211']
vW3q = ['v36', 'v252', 'v253', 'v254']
L_A1H = 65536; L_R1 = 73728; L_TAB = 159744
L_W2 = L_TAB - 65536
L_XB = 0
L_NM = L_TAB; L_RS = L_TAB + 320
L_T3 = L_TAB
L_CS3 = L_TAB + 2048
LOG2E = 1.4426950408889634
def f2u(x): return '0x%08x' % struct.unpack('<I', struct.pack('<f', x))[0]
def vr(a, n): return f'v[{a}:{a+n-1}]' if n > 1 else f'v{a}'
def ar(a, n): return f'a[{a}:{a+n-1}]'
def lines(s): return [x.strip() for x in s.strip().split('\n') if x.strip()]
def last(x): return x[-1]

class Gen:
    def __init__(self, **kw):
        self.p = Prog(); self.nts = 0; self.tsn = []; self.slow = []; self.nlab = 0; self.w3tok = {}; self.w3stg = {}
        self.o = dict(ts=False, mimic=True, stop=None, glob=False, fine=None, amp=None, dbg=None, touch=True, rot=True, ctouch=True, wb=False)
        self.o.update(kw)
        for k, v in self.o.items(): setattr(self, 'o_' + k, v)

    def cap(self, fn):
        sv = self.p; self.p = Prog(); fn(); items = self.p.items; self.p = sv
        return items
    def lab(self, s):
        self.nlab += 1; return f'L{s}{self.nlab}'
    def ts(self, name):
        if self.o_amp and name == self.o_amp[0]: self.p('s_memrealtime s[96:97]\ns_waitcnt lgkmcnt(0)')
        if self.o_amp and name == self.o_amp[1]: self.p('s_memrealtime s[98:99]\ns_waitcnt lgkmcnt(0)')
        if not self.o_ts: return
        if self.o_fine and self.o_fine[0] == 'b' and name[0] == 'p' and name[:3] != 'p3_': return
        self.p('s_memtime s[62:63]'); self.p(f'v_writelane_b32 {vTS}, s62, {self.nts}')
        self.tsn.append(name); self.nts += 1
    def fts(self, key, name):
        return self.cap(lambda: self.ts(name)) if self.o_fine == key else []

    def stores(self, texts):
        a = [Ins(t) for t in texts]; b = [Ins(t + ' sc1') for t in texts]
        return Alt(sMODE, a, b), a
    def post_flag(self, val, toks):
        p = self.p
        p(f's_add_u32 s91, {sE}, {val}\nv_mov_b32 {vT0}, s91'); p(WaitTok(toks)); p('s_mov_b64 exec, 1')
        alt, a = self.stores([f'buffer_store_dword {vT0}, {vFLo}, {SWS}, 0 offen'])
        p(alt); p('s_mov_b64 exec, -1')
    def spin(self, load, cmp_, mask, pre=''):
        ls, lb = self.lab('s'), self.lab('b')
        items = [Ins(x) for x in lines(cmp_)] + [Ins(f's_and_b64 vcc, vcc, {mask}'), Ins(f's_cbranch_scc1 {ls}'), Ins(f'{lb}:')]
        self.slow.append(f"""{ls}:
s_mov_b32 {sSPIN}, 0
{ls}_l:
{load}
s_add_u32 {sSPIN}, {sSPIN}, 1
s_cmp_gt_u32 {sSPIN}, 30000
s_cbranch_scc1 {ls}_x
s_waitcnt vmcnt(0)
{pre}
{cmp_}
s_nop 0
s_and_b64 vcc, vcc, {mask}
s_cbranch_scc1 {ls}_l
{ls}_x:
s_waitcnt vmcnt(0) lgkmcnt(0)
s_branch {lb}""")
        return items
    def poll_issue(self, vf): return Ins(f'buffer_load_dword {vf}, {vFLp}, {SWS}, 0 offen sc1')
    def poll_check(self, vf, val, mask):
        return self.spin(f'buffer_load_dword {vf}, {vFLp}, {SWS}, 0 offen sc1', f's_add_u32 s91, {sE}, {val}\nv_subrev_u32 v33, s91, {vf}\nv_cmp_lt_u32 vcc, 7, v33', mask)
    def poll(self, val, mask):
        self.p(self.poll_issue(vT0)); self.p(self.poll_check(vT0, val, mask))
    def touch(self, voff, soff, mask=None):
        if not self.o_touch: return []
        i = Ins(f'buffer_load_dword v34, {voff}, {SWS}, {soff} offen sc1'); i.wr = set()
        return [f's_mov_b64 exec, {mask}', i, 's_mov_b64 exec, -1'] if mask else [i]
    def warm_touch(self, t):
        if not self.o.get('warm', False): return []
        o = lines(f"""s_lshl_b32 s88, s2, 1
s_lshr_b32 s89, {sW}, 1
s_add_u32 s88, s88, s89
s_mul_i32 s88, s88, {28*128}
s_lshl_b32 s89, s2, 2
s_add_u32 s89, s89, {sW}
s_mul_i32 s90, s89, {14*128}
s_lshl_b32 s89, s89, 9
v_lshlrev_b32 {t}, 7, {vL}""")
        for srd, so, m in ((SW3F, 's88', 0xfffffff), (SWD, 's90', 0x3fff), (SWO, 's89', 0xf)):
            i = Ins(f'buffer_load_dword v34, {t}, {srd}, {so} offen'); i.wr = set()
            o.append([f's_mov_b64 exec, {m}', i, 's_mov_b64 exec, -1'])
        return o
    def pf_touch(self, srd, per, idx, t, lanes=16, base=0, half=False):
        o = [f's_mul_i32 s90, {idx}, {per*128}']
        if half: o += ['s_lshr_b32 s89, s90, 16', 's_lshl_b32 s89, s89, 16', 's_add_u32 s90, s90, s89', 's_add_u32 s90, s90, 65536']
        o += [f'v_lshlrev_b32 {t}, 7, {vL}']
        pre = o; o = []
        for i in range(per // lanes):
            x = Ins(f'buffer_load_dword v34, {t}, {srd}, s90 offen offset:{(i*lanes*128) % 4096}'); x.wr = set()
            gq = [f's_mov_b64 exec, {hex((1 << lanes) - 1)}', x, 's_mov_b64 exec, -1']
            if i and (i*lanes*128) % 4096 == 0: gq = ['s_add_u32 s90, s90, 4096'] + gq
            o.append(gq)
        return pre, o
    def code_touch(self):
        if not self.o_ctouch: return []
        i = Ins(f'global_load_dword v35, {vCT}, {sCODE}'); i.wr = set()
        return [i]

    def prologue_a(self):
        p = self.p
        if self.o_amp and self.o_amp[0] == 'entry': p('s_memrealtime s[96:97]')
        p('s_cmp_ge_u32 s2, 256'); p('s_cbranch_scc1 L_end')
        p('s_load_dwordx16 s[64:79], s[0:1], 0'); p('s_load_dwordx4 s[80:83], s[0:1], 64')
        p(f"""s_getpc_b64 {sCODE}
Lpc:
v_lshrrev_b32 v1, 6, v0
v_and_b32 {vL}, 63, v0
s_lshr_b32 s89, s2, 3
v_readfirstlane_b32 {sW}, v1
s_lshl_b32 s90, s89, 11
v_and_b32 {vCT}, 3, {vL}
v_lshl_add_u32 {vCT}, v1, 2, {vCT}
v_lshl_add_u32 {vCT}, {vCT}, 7, s90
v_min_u32 {vCT}, L_last-Lpc-4, {vCT}""")
        p(self.code_touch())
        if self.o_ts:
            p(f'v_mov_b32 {vTS}, 0'); p('s_memrealtime s[62:63]'); p(f'v_writelane_b32 {vTS}, s62, 63')
        self.ts('start')
        t = [f'v{i}' for i in range(40, 56)]
        p(f"""s_and_b32 s88, s2, 7
s_lshr_b32 {sRG}, s89, 3
s_and_b32 {sCB}, s89, 7
s_lshr_b32 s90, s88, 1
s_lshl_b32 s90, s90, 2
s_add_u32 s90, s90, {sRG}
s_and_b32 s91, s88, 1
s_lshl_b32 {sR8}, {sRG}, 1
s_add_u32 {sR8}, {sR8}, s91""")
        if not self.o_rot: p(f's_mov_b32 {sR8}, 0')
        if self.o.get('rotx', 7) & 1: p(f's_mov_b32 {sR8}, s88')
        p(f"""s_lshl_b32 {sR8s}, {sR8}, 7
s_lshl_b32 {sROW}, s90, 17
s_lshl_b32 s91, s91, 10
s_add_u32 {sROW}, {sROW}, s91
s_cmp_eq_u32 s90, 0
s_cselect_b32 {sHASP}, 0, 1
s_cselect_b32 s91, 0, 16384
s_sub_u32 {sHALO}, {sROW}, s91
s_lshl_b32 {sA1}, {sW}, 15
s_add_u32 {sA1}, {sA1}, {sROW}
s_lshl_b32 {sW2K}, {sW}, 11
s_mul_i32 {sW3K}, {sW}, 3072
v_lshrrev_b32 {t[0]}, 3, {vL}
v_and_b32 {t[1]}, 7, {vL}
v_lshrrev_b32 {t[2]}, 1, {t[0]}
v_xor_b32 {t[3]}, {t[1]}, {t[2]}
v_lshlrev_b32 {t[3]}, 4, {t[3]}
v_lshl_add_u32 {vA1e}, {t[0]}, 11, {t[3]}
v_xor_b32 v124, 64, {vA1e}
v_add_u32 {vA1o}, {16384-1024}, v124
v_and_b32 {t[4]}, 1, {t[2]}
s_and_b32 s91, {sW}, 1
s_lshl_b32 s91, s91, 2
v_lshl_add_u32 {t[5]}, {t[4]}, 1, s91
v_xor_b32 {t[5]}, {t[5]}, {t[1]}
v_lshlrev_b32 {t[5]}, 4, {t[5]}
s_mul_i32 s91, {sW}, 24576
s_lshl_b32 s92, {sCB}, 7
s_add_u32 s91, s91, s92
v_mul_u32_u24 {t[6]}, 3072, {t[0]}
v_add3_u32 {vW1d}, {t[5]}, {t[6]}, s91""")
        self.srd(4, 64, 2*MB); self.srd(8, 66, 512*3072)
    def srd(self, base, lo, size):
        self.p(f's_mov_b32 s{base}, s{lo}\ns_and_b32 s{base+1}, s{lo+1}, 0xffff\ns_mov_b32 s{base+2}, {size}\ns_mov_b32 s{base+3}, 0x20000')
    def prologue_b(self):
        p = self.p
        t = [f'v{i}' for i in range(40, 56)]
        p(f"""s_getreg_b32 {sXCC}, hwreg(HW_REG_XCC_ID)
s_and_b32 {sXCC}, {sXCC}, 15
s_add_u32 {sXCC}, {sXCC}, 1
s_and_b32 {sM16}, s89, 15
s_lshl_b32 {sG}, s88, 2
s_add_u32 {sG}, {sG}, {sRG}
s_lshr_b32 {sG16}, {sG}, 1
s_cmp_eq_u32 {sRG}, 0
s_cselect_b32 s91, 5, 1
s_sub_u32 {sPG}, {sG}, s91
s_cmp_eq_u32 s90, 0
s_cselect_b32 {sPG}, {sG}, {sPG}
s_lshl_b32 {sW1K}, {sW}, 10
s_lshl_b32 {sW4K}, {sW}, 12
s_and_b32 s91, {sW}, 1
s_lshl_b32 {sRB}, {sG}, 1
s_add_u32 {sRB}, {sRB}, s91
s_and_b32 s91, {sG16}, 1
s_and_b32 {sR3}, s88, 3
s_lshl_b32 {sR3}, {sR3}, 1
s_add_u32 {sR3}, {sR3}, s91
v_lshlrev_b32 {vL16}, 4, {vL}""")
        self.srd(12, 68, 512*1024)
        p(f's_bitcmp1_b32 {sW}, 0\ns_cselect_b32 s72, s74, s72\ns_cselect_b32 s73, s75, s73')
        self.srd(16, 72, 512*3584); self.srd(20, 76, 1792*1024); self.srd(24, 78, 2*MB); self.srd(28, 82, 256*MB); self.srd(32, 80, 256)
        p(f"""s_cmp_ge_u32 {sM16}, 14
s_cselect_b32 {sIDLE}, 1, 0""")
        if not self.o_rot: p(f's_mov_b32 {sR3}, 0')
        if self.o.get('rotx', 7) & 2: p(f's_mov_b32 {sR3}, s88')
        p(f"""s_lshr_b32 s93, {sW}, 1
s_and_b32 s94, {sRG}, 1
s_lshl_b32 s94, s94, 5
s_mov_b32 s62, -1
s_mov_b32 s63, 0
s_lshl_b64 {sMK1}, s[62:63], s94
s_lshl_b32 s91, s93, 4
s_add_u32 s91, s91, s94
s_mov_b32 s62, 0xffff
s_lshl_b64 {sMK2}, s[62:63], s91
s_mul_i32 s91, s93, 28
s_mov_b32 s62, 0xfffffff
s_lshl_b64 {sMK4}, s[62:63], s91""")
        p(f"""s_mul_i32 s91, s93, 28672
s_lshl_b32 s94, {sM16}, 8
s_add_u32 s91, s91, s94
v_mul_u32_u24 {t[6]}, 3584, {t[0]}
v_add3_u32 {vW3d}, {t[5]}, {t[6]}, s91
v_lshlrev_b32 {t[5]}, 2, {t[4]}
v_xor_b32 {t[5]}, {t[5]}, {t[1]}
v_lshlrev_b32 {t[5]}, 4, {t[5]}
v_lshl_add_u32 {t[5]}, {t[0]}, 10, {t[5]}
s_lshl_b32 s91, {sW}, 13
s_add_u32 s94, s91, s92
v_add_u32 {vW2d}, s94, {t[5]}
s_mul_i32 {sWd4}, s93, {7*128*1024}
s_and_b32 s94, {sW}, 1
s_lshl_b32 s94, s94, 15
s_add_u32 {sWd4}, {sWd4}, s94
s_sub_u32 {sWd4}, {sWd4}, s91""")
        p(f"""v_lshrrev_b32 {t[0]}, 4, {vL}
v_and_b32 {t[1]}, 15, {vL}
v_lshrrev_b32 {t[2]}, 2, {t[1]}
v_and_b32 {t[3]}, 3, {vL}
v_lshrrev_b32 {t[4]}, 1, {t[2]}
v_and_b32 {t[5]}, 1, {t[0]}
v_lshl_add_u32 {t[6]}, {t[5]}, 1, {t[4]}
v_xor_b32 {t[6]}, {sW}, {t[6]}
v_lshlrev_b32 {t[6]}, 5, {t[6]}
v_lshl_add_u32 {t[6]}, {t[3]}, 3, {t[6]}
v_lshl_add_u32 {t[6]}, {t[2]}, 7, {t[6]}
v_mul_u32_u24 {t[7]}, 3072, {t[0]}
v_add_u32 {t[6]}, {t[6]}, {t[7]}
v_add_u32 {vW1r0}, {L_R1}, {t[6]}
v_add_u32 {vW1r1}, {L_R1 + 49152}, {t[6]}
v_lshrrev_b32 {t[6]}, 1, {t[1]}
v_xor_b32 {t[6]}, {t[6]}, {t[0]}
v_lshlrev_b32 {t[6]}, 4, {t[6]}
v_lshl_add_u32 {vA1r0}, {t[1]}, 7, {t[6]}
v_xor_b32 {vA1r1}, 64, {vA1r0}
v_lshrrev_b32 {t[7]}, 1, {t[0]}
v_lshrrev_b32 {t[8]}, 1, {t[3]}
v_and_b32 {t[9]}, 1, {t[3]}
v_lshl_add_u32 {t[10]}, {t[9]}, 1, {t[8]}
v_lshl_add_u32 {t[10]}, {t[5]}, 2, {t[10]}
v_lshlrev_b32 {t[10]}, 3, {t[10]}
v_xor_b32 {t[11]}, s93, {t[4]}
v_lshl_add_u32 {t[10]}, {t[11]}, 6, {t[10]}
v_lshl_add_u32 {t[10]}, {t[2]}, 7, {t[10]}
v_lshl_add_u32 {vWown}, {t[7]}, 10, {t[10]}
v_xor_b32 {vWoth}, 64, {vWown}
v_lshl_add_u32 {t[10]}, {t[9]}, 1, {t[5]}
v_lshlrev_b32 {t[10]}, 3, {t[10]}
v_lshl_add_u32 {t[11]}, {t[8]}, 1, {t[4]}
v_xor_b32 {t[11]}, {sW}, {t[11]}
v_lshl_add_u32 {t[10]}, {t[11]}, 5, {t[10]}
v_lshl_add_u32 {t[10]}, {t[2]}, 7, {t[10]}
v_lshl_add_u32 {t[10]}, {t[8]}, 12, {t[10]}
v_lshl_add_u32 {vW3r}, {t[7]}, 13, {t[10]}
v_and_b32 {t[0]}, 31, {vL}
v_lshrrev_b32 {t[1]}, 5, {vL}
v_lshlrev_b32 {t[1]}, 4, {t[1]}
v_lshl_add_u32 {t[0]}, {t[0]}, 11, {t[1]}
s_and_b32 s91, {sW}, 1
s_lshl_b32 s91, s91, 16
s_lshl_b32 s94, s93, 6
s_add_u32 s91, s91, s94
s_add_u32 s91, s91, s92
v_add_u32 {vRM}, s91, {t[0]}
s_lshl_b32 s91, {sG16}, 8
s_add_u32 s91, s91, {WS_FL}
v_lshl_add_u32 {vFLp}, {vL}, 2, s91
s_lshl_b32 s94, {sM16}, 2
s_add_u32 s94, s94, {sW}
s_lshl_b32 s94, s94, 2
s_add_u32 s91, s91, s94
v_mov_b32 {vFLo}, s91""")
        for s in range(2):
            p(f"""s_add_u32 s91, {sW}, {4*s}
s_xor_b32 s91, s91, {sR3}
s_lshl_b32 s91, s91, 12
s_lshl_b32 s94, {sG16}, 17
s_add_u32 {sA3[s]}, s91, s94""")
        p(f's_cmp_eq_u32 {sR8}, 7\ns_cselect_b32 s91, 3, {sR8}\ns_lshl_b32 {sJ[0]}, s91, 13')
        for j in range(1, 7):
            p(f's_add_u32 {sJ[j]}, {sJ[j-1]}, 8192\ns_cmp_eq_u32 {sJ[j]}, {7*8192}\ns_cselect_b32 {sJ[j]}, 0, {sJ[j]}')
        p(f"""s_cmp_eq_u32 {sRG}, 3
s_cselect_b32 s91, 5, 1
s_add_u32 {sSG}, {sG}, s91
s_cmp_eq_u32 s90, 15
s_cselect_b32 {sSG}, {sG}, {sSG}
s_lshr_b32 s91, {sSG}, 1
v_mov_b32 v252, {sG16}
v_mov_b32 v253, s91
v_cmp_eq_u32 vcc, 0, {vL}
v_cndmask_b32 v252, v253, v252, vcc
v_lshlrev_b32 v252, 7, v252
s_mov_b32 s91, {WS_EP}
buffer_load_dword v253, v252, {SWS}, s91 offen sc1""")
        c = 40
        p(f"""v_mov_b32 v{c}, -1
v_mov_b32 v{c+1}, -1
v_mov_b32 v{c+2}, -1
v_mov_b32 v{c+3}, -1
v_mov_b32 v{c+4}, 0
v_lshrrev_b32 v{c+5}, 3, {vL}
v_and_b32 v{c+6}, 7, {vL}
v_lshlrev_b32 v{c+6}, 4, v{c+6}
v_lshl_add_u32 v{c+5}, v{c+5}, 11, v{c+6}
s_lshl_b32 s88, {sG}, 14
s_add_u32 s88, s88, s92
s_add_u32 s88, s88, {sW4K}
s_add_u32 s88, s88, {WS_HB}
s_lshl_b32 s91, {sG}, 7
s_lshl_b32 s94, {sW}, 4
s_add_u32 s91, s91, s94
s_add_u32 s91, s91, {WS_HS}
s_cmp_eq_u32 {sCB}, 0
s_cselect_b32 s91, s91, 0x7ff00000
v_mov_b32 v{c+6}, s91
s_mov_b64 exec, 0xffff""")
        self.clr = [p(f'buffer_store_dwordx4 {vr(c,4)}, v{c+5}, {SWS}, s88 offen sc1')]
        p('s_mov_b64 exec, 1')
        self.clr.append(p(f'buffer_store_dwordx4 {vr(c,4)}, v{c+6}, {SWS}, 0 offen sc1'))
        p('s_mov_b64 exec, -1')
        if not self.o_rot: p(f's_mov_b32 {sRG}, 0')
        if self.o.get('rotx', 7) & 4: p(f's_and_b32 {sRG}, s2, 3')

    def publish_xcc(self):
        l = self.lab('px')
        return [f'v_readlane_b32 {sE}, v253, 0', f'v_readlane_b32 {sES}, v253, 1', Raw(f"""s_cmp_lg_u32 {sW}, 0
s_cbranch_scc1 {l}
s_lshl_b32 s88, {sG}, 3
s_add_u32 s88, s88, {sCB}
s_lshl_b32 s88, s88, 8
s_add_u32 s88, s88, {WS_XC}
v_sub_u32 v252, 15, {vL}
v_add_u32 v252, v252, v253
v_mov_b32 v253, {sXCC}
v_lshlrev_b32 v254, 7, {vL}
s_mov_b64 exec, 3
buffer_store_dwordx2 v[252:253], v254, {SWS}, s88 offen sc1
s_mov_b64 exec, -1
{l}:""", rd=['v253', sE, sES], wr=['v252', 'v253', 'v254', 's88'], states=2)]
    def mode_issue(self, va, vd):
        return lines(f"""s_lshl_b32 s88, {sG16}, 12
s_lshl_b32 s89, {sPG}, 11
s_sub_u32 s89, s89, {16*256 - 128}
v_lshlrev_b32 {va}, 8, {vL}
v_add_u32 v{vd}, s89, {va}
v_add_u32 {va}, s88, {va}
v_cmp_gt_u32 vcc, 16, {vL}
v_cndmask_b32 {va}, v{vd}, {va}, vcc
v_mov_b32 v{vd}, s88
v_cmp_gt_u32 vcc, 24, {vL}
v_cndmask_b32 {va}, v{vd}, {va}, vcc
v_add_u32 {va}, {WS_XC}, {va}
buffer_load_dwordx2 {vr(vd,2)}, {va}, {SWS}, 0 offen sc1""")
    def mode_check(self, va, vd):
        o = lines(f"""s_cmp_eq_u32 {sHASP}, 0
s_mov_b32 s92, 0xffffff
s_cselect_b32 s92, 0xffff, s92
s_mov_b32 s93, 0
v_lshrrev_b32 v33, 4, {vL}
v_sub_u32 v33, 15, v33
v_add_u32 v33, {sE}, v33""")
        o += self.spin(f'buffer_load_dwordx2 {vr(vd,2)}, {va}, {SWS}, 0 offen sc1', f'v_cmp_ne_u32 vcc, v33, v{vd}', 's[92:93]')
        o += lines(f'v_cmp_ne_u32 vcc, {sXCC}, v{vd+1}\ns_and_b32 {sMODE}, vcc_lo, 0xffff')
        if self.o_glob: o.append(f's_mov_b32 {sMODE}, 1')
        return o
    def bump_epoch(self):
        l = self.lab('ep')
        return Raw(f"""s_add_u32 s88, {sM16}, {sW}
s_cmp_lg_u32 s88, 0
s_cbranch_scc1 {l}
s_lshl_b32 s88, {sG16}, 7
s_add_u32 s88, s88, {WS_EP}
s_add_u32 s89, {sE}, 16
v_mov_b32 v33, s89
v_mov_b32 v34, 0
s_mov_b64 exec, 1
buffer_store_dword v33, v34, {SWS}, s88 offen
s_mov_b64 exec, -1
{l}:""", wr=['v33', 'v34', 's88', 's89'], states=2)

    def stats_final(self, S, Q, t):
        o = [f'v_mul_f32 {S}, {f2u(-1/512)}, {S}', f'v_mul_f32 {Q}, {f2u(1/512)}, {Q}', f'v_fma_f32 {Q}, -{S}, {S}, {Q}', f'v_max_f32 {Q}, 0, {Q}']
        rnd = lambda x: [f'v_cvt_pk_bf16_f32 {x}, {x}, {x}', f'v_and_b32 {x}, 0xffff0000, {x}']
        if self.o_mimic:
            o += rnd(Q) + [f'v_add_f32 {Q}, {f2u(1e-5)}, {Q}'] + rnd(Q) + [f'v_sqrt_f32 {t}, {Q}'] + rnd(S) + rnd(t) + [f'v_rcp_f32 {Q}, {t}']
        else:
            o += [f'v_add_f32 {Q}, {f2u(1e-5)}, {Q}', f'v_sqrt_f32 {t}, {Q}', f'v_rcp_f32 {Q}, {t}']
        return o
    def stats_issue(self, base, sbase, r):
        o = [Ins(f's_add_u32 {sT}, {sbase}, {base}')]
        for i in range(4): o.append(Ins(f'buffer_load_dwordx4 {vr(r+4*i,4)}, {vL16}, {SWS}, {sT} offen offset:{1024*i} sc1'))
        return o
    def stats_reduce(self, r):
        o = []
        for j in range(4): o.append(f'v_add_f32 v{r+j}, v{r+j}, v{r+4+j}')
        for j in range(4): o.append(f'v_add_f32 v{r+8+j}, v{r+8+j}, v{r+12+j}')
        for j in range(4): o.append(f'v_add_f32 v{r+j}, v{r+j}, v{r+8+j}')
        o += [f'v_permlane16_swap_b32 v{r}, v{r+2}', f'v_permlane16_swap_b32 v{r+1}, v{r+3}',
              f'v_add_f32 v{r}, v{r}, v{r+2}', f'v_add_f32 v{r+1}, v{r+1}, v{r+3}',
              f'v_permlane32_swap_b32 v{r}, v{r+1}', f'v_add_f32 v{r}, v{r}, v{r+1}', f'v_mov_b32 v{r+1}, v{r}',
              f'v_permlane32_swap_b32 v{r}, v{r+1}']
        return o

    def w1_stage(self, s, seq=False):
        slot = L_R1 + (s % 7) * 12288
        pre = []
        if not (seq and s & 1):
            pre += [Ins(f's_xor_b32 {sV}, {sR8}, {s >> 1}'), Ins(f's_mul_i32 {sV}, {sV}, 196608')]
        if s & 1: pre.append(Ins(f's_add_u32 {sV}, {sV}, 98304'))
        out = []
        for part in range(3):
            g = ([Ins(f's_add_u32 m0, {sW3K}, {slot}')] + pre) if part == 0 else []
            g.append(Ins(f'buffer_load_dwordx4 {vW1d}, {SWQKV}, {sV} offen offset:{part*1024} lds', lds=[(slot + q*3072 + part*1024, slot + q*3072 + part*1024 + 1024) for q in range(4)]))
            out.append(g)
        return [sum(out, [])], [last(g) for g in out]
    def a1_chunk(self, L, kc):
        srd = SX if L == 0 else SWS; fl = ' sc1' if L else ''
        rng = lambda o: [(kc*8192 + q*2048 + o*1024, kc*8192 + q*2048 + o*1024 + 1024) for q in range(4)]
        a = Ins(f'buffer_load_dwordx4 {vA1e}, {srd}, {sT} offen{fl} lds', lds=rng(0))
        b = Ins(f'buffer_load_dwordx4 {vA1o}, {srd}, {sT} offen offset:1024{fl} lds', lds=rng(1))
        return [Ins(f's_add_u32 m0, {sW2K}, {kc*8192}'), Ins(f's_xor_b32 {sT}, {sR8s}, {kc*128}'), Ins(f's_add_u32 {sT}, {sT}, {sA1}'), a, b], [a, b]
    def halo_dma(self, L, va, sT=sT):
        srd = SX if L == 0 else SWS; fl = ' sc1' if L else ''
        o = []; tk = []
        for u in range(2):
            d = Ins(f'buffer_load_dwordx4 {va}, {srd}, {sT} offen{fl} lds', lds=[(L_A1H + q*2048 + u*1024, L_A1H + q*2048 + u*1024 + 1024) for q in range(4)])
            o += [Ins(f's_add_u32 m0, {sW2K}, {L_A1H + u*1024}'), Ins(f's_lshl_b32 {sT}, {sW}, 8'), Ins(f's_add_u32 {sT}, {sT}, {u*128}'),
                  Ins(f's_xor_b32 {sT}, {sT}, {sR8s}'), Ins(f's_add_u32 {sT}, {sT}, {sHB if L else sHALO}'), d]
            tk.append(d)
        return o, tk
    def w2_piece(self, i):
        q = (i >> 1) & 3; c = (i & 1)*32768 + (i >> 3)*262144
        o = [Ins(f's_add_u32 m0, {sW1K}, {L_W2 + i*4096}'), Ins(f's_xor_b32 {sT}, {sRG}, {q}'), Ins(f's_lshl_b32 {sT}, {sT}, 16')]
        if c: o.append(Ins(f's_add_u32 {sT}, {sT}, {c}'))
        o.append(Ins(f'buffer_load_dwordx4 {vW2d}, {SWO}, {sT} offen lds', lds=(L_W2 + i*4096, L_W2 + i*4096 + 4096)))
        return o
    W4SLOTS = [[8, 2, 3, 4, 5, 0, 1, 6, 7, 2, 3, 0, 1, 2], [8, 0, 1, 2, 3, 4, 5, 6, 7, 8, 0, 1, 2, 3]]
    @property
    def W4SLOT(self): return self.W4SLOTS[self.layer]
    def w4_setup(self):
        return [f'v_add_u32 {vW4[0]}, {sWd4}, {vW2d}'] + [f'v_add_u32 {vW4[i]}, {7168*i}, {vW4[0]}' for i in range(1, 4)]
    def w4_stage(self, s):
        c, j = divmod(s, 7)
        slot = self.W4SLOT[s] * 16384
        out = []; tk = []
        for h in range(2):
            g = [Ins(f's_add_u32 m0, {sW4K}, {slot}'), Ins(f's_lshl4_add_u32 {sT}, {sJ[j]}, {c*65536}')]
            for i in (2*h, 2*h+1):
                d = Ins(f'buffer_load_dwordx4 {vW4[i]}, {SWD}, {sT} offen offset:{i*1024} lds', lds=[(slot + q*4096 + i*1024, slot + q*4096 + i*1024 + 1024) for q in range(4)])
                g.append(d); tk.append(d)
            out.append(g)
        return out, tk
    def w3_quad(self, q, stg):
        c, kq = divmod(q, 8)
        o = [Ins(f's_add_u32 m0, {sW4K}, {stg}'), Ins(f's_xor_b32 {sU}, {sR3}, {kq}'), Ins(f's_mul_i32 {sU}, {sU}, {4*57344}')]
        if c: o.append(Ins(f's_add_u32 {sU}, {sU}, 128'))
        tk = [Ins(f'buffer_load_dwordx4 {vW3q[i]}, {SW3}, {sU} offen offset:{i*1024} lds', lds=[(stg + w*4096 + i*1024, stg + w*4096 + i*1024 + 1024) for w in range(4)]) for i in range(4)]
        self.w3tok[q] = tk; self.w3stg[q] = stg
        return self.split_dma(o + tk)
    def w3_reads(self, n):
        stg = self.w3stg[n >> 2]; i = n & 3
        va, off = [(vW3r, 0), ('v212', 49152), ('v213', 98304)][min(2, stg // 49152)]
        return [Ins(f'ds_read_b64_tr_b16 {ar(4*n+2*r,2)}, {va} offset:{stg - off + i*1024 + r*512}', lds=[(stg + w*4096 + i*1024, stg + w*4096 + i*1024 + 1024) for w in range(4)]) for r in range(2)]
    def w3_cs(self, n):
        return f'v_mfma_f32_16x16x32_bf16 v[216:219], v[220:223], {ar(4*n,4)}, {0 if n % 32 == 0 else "v[216:219]"}'
    def w3_setup(self):
        return [f'v_add_u32 v212, 49152, {vW3r}', f'v_add_u32 v213, 98304, {vW3r}']
    def w3_take(self, ns):
        p = self.p
        rs = [self.w3_reads(n) for n in ns]
        for i, n in enumerate(ns):
            p(rs[i])
            if i >= 3: p(self.w3_cs(ns[i-3]))
        for n in ns[-3:]: p(self.w3_cs(n))
        return sum(rs, [])
    def w3_sel(self):
        return lines(f"""v_lshrrev_b32 v220, 2, {vL}
v_lshrrev_b32 v221, 4, {vL}
v_xor_b32 v220, v220, v221
v_and_b32 v220, 1, v220
v_cmp_eq_u32 vcc, 0, v220
v_mov_b32 v221, 0x3f803f80
v_cndmask_b32 v220, 0, v221, vcc
v_mov_b32 v221, v220
v_mov_b32 v222, v220
v_mov_b32 v223, v220""")
    CSW = [34, 34]
    def w3_cs_store(self, c):
        o = lines(f"""v_cvt_pk_bf16_f32 v217, v216, v216
v_and_b32 v218, 0xffff0000, v217
v_sub_f32 v216, v216, v218
v_cvt_pk_bf16_f32 v218, v216, v216
v_and_b32 v219, 0xffff0000, v218
v_sub_f32 v216, v216, v219
v_and_b32 v217, 0xffff, v217
v_or_b32 v218, v219, v217
v_cvt_pk_bf16_f32 v219, v216, 0
v_lshlrev_b32 v217, 3, {vL}
s_lshl_b32 s90, {sW}, 9
s_add_u32 s90, s90, {L_CS3 + c*256}
v_add_u32 v217, s90, v217""")
        o.append(['s_mov_b64 exec, 0xffffffff', Ins('ds_write_b64 v217, v[218:219]', lds=(L_CS3, L_CS3 + 2048), private=True), 's_mov_b64 exec, -1'])
        return o

    ATT = dict(ST=144, VS=154, CQ=194, QB=202, KB=210, VB=220, CA=128, CB=132, CB0=136, MA=140, SB=96, PP=230, OA=56, T=246)
    def att_masks(self, T):
        A = self.ATT; CA, CB, CB0, MA = A['CA'], A['CB'], A['CB0'], A['MA']
        o = lines(f"""v_and_b32 v{T}, 15, {vL}
v_lshrrev_b32 v{T+1}, 4, {vL}
v_lshlrev_b32 v142, 2, v{T}
v_add_u32 v142, {L_NM}, v142
v_lshlrev_b32 v143, 4, v{T+1}
v_add_u32 v143, {L_NM}, v143
v_lshlrev_b32 v{T+1}, 2, v{T+1}
v_sub_u32 v{T}, v{T}, v{T+1}
v_mov_b32 v{T+4}, 0xff800000
v_mov_b32 v{T+5}, 0xffff
v_mov_b32 v{T+6}, 0xffff0000
s_cmp_eq_u32 {sHASP}, 0
s_cselect_b64 s[88:89], 0, -1""")
        for j in range(4):
            o += lines(f"""v_subrev_u32 v{T+1}, {j}, v{T}
v_add_u32 v{T+7}, 16, v{T+1}
v_cmp_gt_u32 vcc, 8, v{T+1}
v_cmp_gt_u32 s[90:91], 8, v{T+7}
v_cndmask_b32 v{CA+j}, v{T+4}, 0, vcc
v_cndmask_b32 v{T+8+j}, 0, v{T+5+(j&1)}, vcc
v_cndmask_b32 v{CB+j}, v{T+4}, 0, s[90:91]
v_cndmask_b32 v{CB0+j}, v{T+4}, v{CB+j}, s[88:89]""")
        o += [f'v_or_b32 v{MA}, v{T+8}, v{T+9}', f'v_or_b32 v{MA+1}, v{T+10}, v{T+11}']
        return o
    def att_tabreads(self):
        A = self.ATT; tab = (L_NM, L_NM + 640)
        o = [Ins(f'ds_read2_b32 {vr(A["ST"]+2*u,2)}, v142 offset0:{16*u} offset1:{80+16*u}', lds=tab) for u in range(5)]
        for u in range(5):
            o.append(Ins(f'ds_read_b128 {vr(A["VS"]+8*u,4)}, v143 offset:{64*u}', lds=tab))
            o.append(Ins(f'ds_read_b128 {vr(A["VS"]+8*u+4,4)}, v143 offset:{64*u+320}', lds=tab))
        return o
    def attention(self, L, extra):
        p = self.p
        QA, KA, VA = 40, 56, 76
        A = self.ATT
        ST, VS, CQ, QB, KB, VB, CA, CB, CB0, MA, SB, PP, OA, T = [A[k] for k in 'ST VS CQ QB KB VB CA CB CB0 MA SB PP OA T'.split()]
        lo, hi = 'op_sel_hi:[1,0,1]', 'op_sel:[0,1] op_sel_hi:[1,1]'
        for u in range(5):
            st = vr(ST + 2*u, 2)
            for j in (0, 2): p(f'v_pk_fma_f32 {vr(KA+4*u+j,2)}, {vr(CSK+j,2)}, {st}, {vr(KA+4*u+j,2)} {lo}')
            if u:
                for j in (0, 2): p(f'v_pk_fma_f32 {vr(QA+4*u-4+j,2)}, {vr(CSQ+j,2)}, {st}, {vr(QA+4*u-4+j,2)} {lo}')
            for j in (0, 2): p(f'v_pk_mul_f32 {vr(KA+4*u+j,2)}, {vr(KA+4*u+j,2)}, {st} {hi}')
            if u:
                for j in range(2): p(f'v_cvt_pk_bf16_f32 v{QB+2*u-2+j}, v{QA+4*u-4+2*j}, v{QA+4*u-4+2*j+1}')
            for j in range(2): p(f'v_cvt_pk_bf16_f32 v{KB+2*u+j}, v{KA+4*u+2*j}, v{KA+4*u+2*j+1}')
        p(extra.get('a', []))
        for t in range(4):
            p(f'v_mfma_f32_16x16x16_bf16 {vr(QA+4*t,4)}, {vr(KB+2*(t+1),2)}, {vr(QB+2*t,2)}, {vr(CA,4)}')
            p(f'v_mul_f32 v{CQ+2*t}, {f2u(0.25*LOG2E)}, v{ST+2*t+3}')
            p(f'v_mfma_f32_16x16x16_bf16 {vr(SB+4*t,4)}, {vr(KB+2*t,2)}, {vr(QB+2*t,2)}, {vr(CB0 if t == 0 else CB,4)}')
        p(extra.get('b', []))
        for u in range(5):
            for j in (0, 2): p(f'v_pk_fma_f32 {vr(VA+4*u+j,2)}, {vr(VS+8*u+j,2)}, {vr(CSV,2)}, {vr(VA+4*u+j,2)} {lo}')
            for j in (0, 2): p(f'v_pk_mul_f32 {vr(VA+4*u+j,2)}, {vr(VA+4*u+j,2)}, {vr(VS+8*u+4+j,2)}')
            for j in range(2): p(f'v_cvt_pk_bf16_f32 v{VB+2*u+j}, v{VA+4*u+2*j}, v{VA+4*u+2*j+1}')
        for t in range(4):
            for j in range(4): p(f'v_max_f32 v{QA+4*t+j}, v{QA+4*t+j}, v{SB+4*t+j}')
        for t in range(4): p(f'v_max3_f32 v{T+t}, v{QA+4*t}, v{QA+4*t+1}, v{QA+4*t+2}')
        for t in range(4): p(f'v_max_f32 v{T+t}, v{T+t}, v{QA+4*t+3}')
        def reduce4(op, ex=None):
            p(f"""v_permlane16_swap_b32 v{T}, v{T+1}
v_permlane16_swap_b32 v{T+2}, v{T+3}
{op} v{T}, v{T}, v{T+1}
{op} v{T+2}, v{T+2}, v{T+3}
v_permlane32_swap_b32 v{T}, v{T+2}
{op} v{T}, v{T}, v{T+2}""")
            if ex: p(ex)
            p(f"""v_mov_b32 v{T+2}, v{T}
v_permlane32_swap_b32 v{T}, v{T+2}
v_mov_b32 v{T+1}, v{T}
v_mov_b32 v{T+3}, v{T+2}
v_permlane16_swap_b32 v{T}, v{T+1}
v_permlane16_swap_b32 v{T+2}, v{T+3}""")
        reduce4('v_max_f32')
        for t in range(4): p(f'v_mul_f32 v{CQ+2*t+1}, v{T+t}, v{CQ+2*t}')
        for t in range(4):
            for j in (0, 2): p(f'v_pk_fma_f32 {vr(QA+4*t+j,2)}, {vr(QA+4*t+j,2)}, {vr(CQ+2*t,2)}, {vr(CQ+2*t,2)} op_sel:[0,0,1] op_sel_hi:[1,0,1] neg_lo:[0,0,1] neg_hi:[0,0,1]')
        for t in range(4):
            for j in range(4): p(f'v_exp_f32 v{QA+4*t+j}, v{QA+4*t+j}')
        for t in range(4):
            p(f"""v_cvt_pk_bf16_f32 v{PP+4*t}, v{QA+4*t}, v{QA+4*t+1}
v_cvt_pk_bf16_f32 v{PP+4*t+1}, v{QA+4*t+2}, v{QA+4*t+3}
v_and_b32 v{PP+4*t+2}, v{MA}, v{PP+4*t}
v_and_b32 v{PP+4*t+3}, v{MA+1}, v{PP+4*t+1}
v_xor_b32 v{PP+4*t}, v{PP+4*t}, v{PP+4*t+2}
v_xor_b32 v{PP+4*t+1}, v{PP+4*t+1}, v{PP+4*t+3}
v_add_f32 v{T+t}, v{QA+4*t}, v{QA+4*t+1}
v_add_f32 v{T+4}, v{QA+4*t+2}, v{QA+4*t+3}""")
            p(f'v_mfma_f32_16x16x32_bf16 {vr(OA+4*t,4)}, {vr(VB+2*t,4)}, {vr(PP+4*t,4)}, 0')
            p(f'v_add_f32 v{T+t}, v{T+t}, v{T+4}')
        reduce4('v_add_f32', f'v_rcp_f32 v{T}, v{T}')
        for t in range(4):
            sel = 'op_sel_hi:[1,0]' if t % 2 == 0 else 'op_sel:[0,1] op_sel_hi:[1,1]'
            for j in (0, 2): p(f'v_pk_mul_f32 {vr(OA+4*t+j,2)}, {vr(OA+4*t+j,2)}, {vr(T+(t&2),2)} {sel}')
        for tp in range(2):
            b = PP + 4*tp
            for h in range(2):
                t = 2*tp + h
                for j in range(2): p(f'v_cvt_pk_bf16_f32 v{b+2*h+j}, v{OA+4*t+2*j}, v{OA+4*t+2*j+1}')
        for tp in range(2):
            b = PP + 4*tp
            p(f'v_permlane16_swap_b32 v{b}, v{b+2}\nv_permlane16_swap_b32 v{b+1}, v{b+3}')
        alt, st = self.stores([f'buffer_store_dwordx4 {vr(PP,4)}, {vL16}, {SWS}, {sX} offen', f'buffer_store_dwordx4 {vr(PP+4,4)}, {vL16}, {SWS}, {sY} offen'])
        p(alt)
        return st
    def o_addr(self, L):
        return lines(f"""s_lshl_b32 {sX}, {sG}, 16
s_lshl_b32 {sY}, {sCB}, 12
s_add_u32 {sX}, {sX}, {sY}
s_add_u32 {sX}, {sX}, {sW1K}
s_add_u32 {sX}, {sX}, {WS_O[L]}
s_add_u32 {sY}, {sX}, 32768""")
    def x1_addr(self, L, d):
        return lines(f"""s_lshl_b32 {d}, {sRB}, 15
s_lshl_b32 s89, {sCB}, 12
s_add_u32 {d}, {d}, s89
s_and_b32 s89, {sW1K}, 2048
s_add_u32 {d}, {d}, s89
s_add_u32 {d}, {d}, {WS_X1[L]}""")
    def st_addr(self, base, d):
        return lines(f"""s_lshl_b32 {d}, {sRB}, 12
s_lshl_b32 s89, {sCB}, 9
s_add_u32 {d}, {d}, s89
s_lshr_b32 s89, {sW}, 1
s_lshl_b32 s89, s89, 8
s_add_u32 {d}, {d}, s89
s_add_u32 {d}, {d}, {base}""")
    def h_addr(self, L):
        return lines(f"""s_mul_i32 {sH0}, {sG16}, {4*114688}
s_lshl_b32 s88, {sM16}, 13
s_add_u32 {sH0}, {sH0}, s88
s_add_u32 {sH0}, {sH0}, {sW1K}
s_add_u32 {sH0}, {sH0}, {WS_H[L]}""")
    def touches_p1(self, L, t):
        if not self.o_touch: return self.o_addr(L)
        o = self.o_addr(L) + [f'v_and_b32 {t}, 7, {vL}', f'v_lshlrev_b32 {t}, 7, {t}', f'v_bfe_u32 v34, {vL}, 3, 1', f'v_lshl_add_u32 {t}, v34, 15, {t}']
        o.append(self.touch(t, sX, 0xffff))
        o += self.x1_addr(L, 's88') + [f'v_lshlrev_b32 {t}, 7, {vL}']
        o.append(self.touch(t, 's88', 0xffff))
        o += self.st_addr(WS_ST1[L], 's88')
        o.append(self.touch(t, 's88', 3))
        if L == 0: o.append(self.touch(vFLp, 0))
        return o
    def touches_h(self, L, t):
        if not self.o_touch: return []
        o = self.h_addr(L) + lines(f"""v_and_b32 {t}, 7, {vL}
v_lshlrev_b32 {t}, 7, {t}
v_bfe_u32 v34, {vL}, 3, 1
v_lshl_add_u32 {t}, v34, 12, {t}
v_lshrrev_b32 v34, 4, {vL}
v_mul_u32_u24 v34, 114688, v34
v_add_u32 {t}, {t}, v34
s_cmp_lg_u32 {sIDLE}, 0
s_cselect_b32 s88, 0x7ff00000, {sH0}""")
        o.append(self.touch(t, 's88'))
        return o
    def touches_x2(self, t):
        if not self.o_touch: return []
        o = [f's_add_u32 s88, {sROW}, {WS_X2}', self.touch(vRM, 's88', 0xffffffff)]
        o += self.st_addr(WS_ST2, 's88') + [f'v_lshlrev_b32 {t}, 7, {vL}', self.touch(t, 's88', 3)]
        return o

    def p1_wreads(self, s, dq, dk, dv):
        slot = s % 7
        va, off = (vW1r0, slot*12288) if slot < 4 else (vW1r1, slot*12288 - 49152)
        lo = L_R1 + slot*12288
        return [Ins(f'ds_read_b64_tr_b16 {vr(dst+2*rd,2)}, {va} offset:{off + part*1024 + rd*512}', lds=[(lo + q*3072 + part*1024, lo + q*3072 + part*1024 + 1024) for q in range(4)])
                for part, dst in ((0, dq), (1, dk), (2, dv)) for rd in range(2)]
    def p1_aread(self, s, t, dst):
        o = (s >> 1)*8192 + t*2048
        return Ins(f'ds_read_b128 {vr(dst,4)}, {vA1r1 if s & 1 else vA1r0} offset:{o}', lds=(o, o+2048))
    def halo_addr(self, a, b):
        return lines(f"""v_and_b32 {a}, 1023, {vA1r0}
v_not_b32 {b}, {vL}
v_and_b32 {b}, 8, {b}
v_lshlrev_b32 {b}, 3, {b}
v_xor_b32 {a}, {a}, {b}
v_add_u32 {a}, {L_A1H}, {a}
v_xor_b32 {b}, 64, {a}""")
    def halo_read(self, s, dst, a, b):
        o = (s >> 1)*1024
        return Ins(f'ds_read_b128 {vr(dst,4)}, {b if s & 1 else a} offset:{o}', lds=(L_A1H + o, L_A1H + o + 1024))
    W2AT = {9: [1, 2, 3], 10: [4, 5, 6], 11: [7, 8, 9], 12: [10, 11, 12], 13: [13, 14, 15], 15: [0]}

    def split_dma(self, g):
        out = []; cur = []
        for i in g:
            cur.append(i)
            if i.kind in ('dma', 'vmld'): out.append(cur); cur = []
        assert not cur
        return out

    def p1_first(self):
        p = self.p
        QA, KA, VA, AF, ONE, WB, SA = 40, 56, 76, 96, 120, 224, 152
        wtok = {}; atok = {}
        def A(kc):
            o, tk = self.a1_chunk(0, kc); atok[kc] = tk; return self.split_dma(o)
        def W(s):
            o, tk = self.w1_stage(s, seq=True); wtok[s] = tk; return self.split_dma(o[0])
        p(A(0))
        hd, htok = self.halo_dma(0, 'v124'); p(hd)
        p(W(0)); p(W(1)); p(A(1))
        self.prologue_b()
        for i2 in range(2): p(f'buffer_load_dwordx4 {vr(RES+4*i2,4)}, {vRM}, {SX}, {sROW} offen offset:{32*i2}')
        p(self.halo_addr('v124', 'v125'))
        p(f'v_add_u32 v126, {sW2K}, {vA1r0}\nv_xor_b32 v127, 64, v126')
        for i in range(4): p(f'v_mov_b32 v{ONE+i}, 0x3f803f80')
        p(W(2)); p(W(3))
        self.ts('p1_go0')
        plan = {0: ['A2', 'W4'], 1: ['A3', 'W5'], 2: ['A4', 'W6'], 3: ['A5', 'W7'], 4: ['A6', 'W8'], 5: ['A7', 'W9'], 6: ['W10', 'W11'], 7: ['W12', 'W13'], 8: ['W14', 'W15']}
        wb = lambda s: WB + 12*(s & 1)
        one = vr(ONE, 4)
        p(WaitTok(wtok[0] + atok[0] + htok)); p('s_barrier')
        self.ts('a1_landed')
        wr = self.p1_wreads(0, wb(0), wb(0)+4, wb(0)+8); p(wr)
        p(self.halo_read(0, AF+16, 'v124', 'v125'))
        for t in range(4): p(self.p1_aread(0, t, AF + 4*t))
        spine = []; base = []
        for s in range(16):
            base.append(len(spine))
            z = (s == 0)
            wq, wk, wv = vr(wb(s), 4), vr(wb(s)+4, 4), vr(wb(s)+8, 4)
            mm = lambda d, x, y, zz=z: f'v_mfma_f32_16x16x32_bf16 {vr(d,4)}, {x}, {y}, {0 if zz else vr(d,4)}'
            h = vr(AF + 16, 4)
            spine += [mm(CSQ, wq, one), mm(CSK, wk, one), mm(248, one, wv), mm(KA, wk, h), mm(VA, h, wv)]
            for t in range(4):
                a = vr(AF + 4*t, 4)
                spine += [mm(QA + 4*t, wq, a), mm(KA + 4 + 4*t, wk, a), mm(VA + 4 + 4*t, a, wv)]
            kc = s - 2
            if 0 <= kc < 8:
                for hh in range(2):
                    fa, fh = vr(168 + 8*hh, 4), vr(172 + 8*hh, 4); zz = (kc == 0 and hh == 0)
                    spine += [mm(SA, one, fa, zz), mm(SA+4, fa, fa, zz), mm(SA+8, one, fh, zz), mm(SA+12, fh, fh, zz)]
        base.append(len(spine))
        S = Sched(spine)
        w2tok = []; nraw = 0
        for s in range(16):
            b, nb = base[s], base[s+1]
            for it in plan.get(s, []): S.add('dma', A(int(it[1:])) if it[0] == 'A' else W(int(it[1:])), e=b+1, d=nb+6, split=True)
            for i in self.W2AT.get(s, []):
                x = self.w2_piece(i); S.add('dma', [x], e=b+1, d=nb+6, split=True); w2tok.append(last(x))
            if s in (12, 14): S.add('dma', self.w3_quad(nraw, 16384 + 16384*nraw), e=b+1, d=base[s+2]-1, split=True); nraw += 1
        tabw = [Ins(f'ds_write2_b32 v169, v{SA}, v{SA+4} offset0:16 offset1:96', lds=(L_NM, L_NM+640)), Ins(f'ds_write2_b32 v168, v{SA+8}, v{SA+12} offset0:0 offset1:80', lds=(L_NM, L_NM+640))]
        for s in range(16):
            b, nb = base[s], base[s+1]
            toks = list(wr)
            if s < 15: toks += wtok[s+1] + atok[(s+1) >> 1]
            kc = s - 2
            if 0 <= kc < 8: toks += atok[kc]
            if s == 3: toks += self.clr
            if s == 15: toks += tabw
            S.before[b] = self.fts('p10', f'k{s}')
            S.at(b, [WaitTok(toks), 's_barrier'])
            if 0 <= kc < 8:
                x = []
                for hh in range(2):
                    x.append(Ins(f'ds_read_b128 {vr(168+8*hh,4)}, {"v127" if hh else "v126"} offset:{kc*8192}', lds=(kc*8192, kc*8192 + 8192)))
                    x.append(self.halo_read(2*kc + hh, 172 + 8*hh, 'v124', 'v125'))
                S.add('sr', x, e=b+1, d=b+13)
            if s < 15:
                wr = self.p1_wreads(s+1, wb(s+1), wb(s+1)+4, wb(s+1)+8)
                S.add('wr', wr, e=b+1, d=nb-5, step=1)
                S.add('ar', [self.halo_read(s+1, AF+16, 'v124', 'v125')], e=b+5, d=nb-3)
                for t in range(4): S.add('ar', [self.p1_aread(s+1, t, AF + 4*t)], e=b+8+3*t, d=nb+3*t, step=0)
        x = lines(f"""v_and_b32 v168, 3, {vL}
v_cmp_eq_u32 vcc, 1, v168
v_cmp_eq_u32 s[88:89], 2, v168
v_cmp_eq_u32 s[90:91], 3, v168""")
        for bb in (SA+4, SA+12):
            x += [f'v_cndmask_b32 v{bb}, v{bb}, v{bb+1}, vcc', f'v_cndmask_b32 v{bb}, v{bb}, v{bb+2}, s[88:89]', f'v_cndmask_b32 v{bb}, v{bb}, v{bb+3}, s[90:91]']
        x += self.stats_final(f'v{SA}', f'v{SA+4}', f'v{SA+1}') + self.stats_final(f'v{SA+8}', f'v{SA+12}', f'v{SA+9}')
        x += lines(f"""v_and_b32 v168, 15, {vL}
v_lshlrev_b32 v168, 2, v168
v_add_u32 v168, {L_NM}, v168
s_lshl_b32 s88, {sW}, 6
v_add_u32 v169, s88, v168""")
        x.append(['s_mov_b32 exec_lo, 0x00f0000f', 's_mov_b32 exec_hi, 0xf0000f00'] + tabw + ['s_mov_b64 exec, -1'])
        wt = self.o.get('wat', 0)
        S.add('misc', self.warm_touch('v196') + [[f's_cmp_lg_u32 {sIDLE}, 0', 's_cselect_b32 s18, 0, s18']], e=base[wt]+1, d=base[wt+1]-1)
        S.add('misc', self.att_masks(184), e=base[1]+1, d=base[3]-1)
        S.add('misc', self.publish_xcc(), e=base[3]+1, d=base[4])
        S.add('misc', self.touches_p1(0, 'v196'), e=base[6], d=base[9])
        S.add('misc', self.mode_issue('v197', 198), e=base[9], d=base[10]+1)
        S.add('misc', [f'v_add_u32 {vW3q[i]}, {i*(57344-1024)}, {vW3d}' for i in range(1, 4)], e=base[10], d=base[11])
        if self.o.get('ct2', False): S.add('misc', [self.code_touch()], e=base[10], d=base[11])
        S.add('misc', x, e=base[10]+2, d=base[14])
        S.add('misc', [self.mode_check('v197', 198)], e=base[14], d=base[15]-1)
        S.add('misc', self.att_tabreads(), e=base[15]+1, d=base[16]-2)
        S.emit(p, 'p1 L0')
        self.ts('p1_loop0')
        p(f'v_mov_b32 v{CSV}, v248')
        p('s_waitcnt lgkmcnt(0)'); p('s_barrier')
        p(self.w3_quad(2, 49152)); p(self.touches_h(0, 'v124'))
        st = self.attention(0, {'a': self.w3_quad(3, 65536)})
        self.ts('p1_attn0')
        self.post_flag(1, st)
        self.ts('p1_end0')
        return w2tok

    def p1_second(self, pre):
        p = self.p
        QA, KA, VA, AF, WQ, WK, WV = 40, 56, 76, 96, 112, 128, 192
        wtok = dict(pre); atok = {}
        def A(kc):
            o, tk = self.a1_chunk(1, kc); atok[kc] = tk; return self.split_dma(o)
        p(f"""s_add_u32 {sA1}, {sA1}, {WS_X2}
s_lshl_b32 {sHB}, {sPG}, 14
s_add_u32 {sHB}, {sHB}, {WS_HB}
s_add_u32 s88, {sROW}, {WS_X2}
s_cmp_eq_u32 {sHASP}, 0
s_cselect_b32 {sHB}, s88, {sHB}
s_lshl_b32 s92, {sRB}, 12
v_xor_b32 v120, 64, {vA1e}""")
        dst = lambda s: (WQ + 4*(s & 1), WK + 4*s, WV + 4*s)
        p(WaitTok(wtok[0])); p('s_barrier')
        wr = self.p1_wreads(0, *dst(0)); p(wr)
        self.poll(5, sMK1)
        self.ts('p1_go1')
        p(A(0)); p(A(1))
        p(self.stats_issue(WS_ST2, 's92', 240))
        p(A(2))
        p(WaitTok(atok[0])); p('s_barrier')
        for t in range(4): p(self.p1_aread(0, t, AF + 4*t))
        self.ts('p1_stats1')
        spine = []
        for s in range(16):
            z = (s == 0)
            dq, dk, dv = dst(s)
            mm = lambda d, x, y: f'v_mfma_f32_16x16x32_bf16 {vr(d,4)}, {x}, {y}, {0 if z else vr(d,4)}'
            for t in range(4):
                a = vr(AF + 4*t, 4)
                spine += [mm(QA + 4*t, vr(dq,4), a), mm(KA + 4 + 4*t, vr(dk,4), a), mm(VA + 4 + 4*t, a, vr(dv,4))]
        hb = len(spine)
        for s in range(16):
            a = vr(AF + 4*(s & 3), 4); k, v = vr(KA, 4), vr(VA, 4)
            spine.append(f'v_mfma_f32_16x16x32_bf16 {k}, {vr(WK+4*s,4)}, {a}, {0 if s == 0 else k}')
            spine.append(f'v_mfma_f32_16x16x32_bf16 {v}, {a}, {vr(WV+4*s,4)}, {0 if s == 0 else v}')
        S = Sched(spine)
        w2tok = []
        hd, htok = self.halo_dma(1, 'v120')
        for s in range(16):
            b = 12*s
            if s == 0:
                for st_ in range(7):
                    if st_ not in wtok:
                        o, tk = self.w1_stage(st_); wtok[st_] = tk; S.add('dma', self.split_dma(o[0]), e=0, d=12*(st_-1) - 14, step=3, split=True)
            if s < 5: S.add('dma', A(s+3), e=b+1, d=min(b+30, 12*(2*s+5) - 14), split=True)
            if s + 7 < 16:
                o, tk = self.w1_stage(s+7, seq=(s > 0)); wtok[s+7] = tk; S.add('dma', self.split_dma(o[0]), e=b+1, d=b+36, split=True)
            if s == 8: S.add('dma', self.split_dma(hd), e=b+1, d=b+36, split=True)
        w2 = [self.w2_piece(i) for i in list(range(1, 16)) + [0]]; w2tok = [last(x) for x in w2]
        NW2 = 9
        S.add('dma', w2[:NW2], e=12*14+1, d=hb+30, split=True)
        tabw = [Ins('ds_write2_b32 v125, v240, v241 offset0:16 offset1:96', lds=(L_NM, L_NM+640)), Ins('ds_write_b32 v126, v125', lds=[(L_NM, L_NM+64), (L_RS, L_RS+64)])]
        for s in range(16):
            b = 12*s
            toks = list(wr)
            if s < 15: toks += wtok[s+1] + atok[(s+1) >> 1]
            if s == 15: toks += tabw + htok
            S.before[b] = self.fts('p11', f'k{s}')
            S.at(b, [WaitTok(toks), 's_barrier'])
            if s < 15:
                wr = self.p1_wreads(s+1, *dst(s+1))
                S.add('wr', wr, e=b+1, d=b+9, step=1)
                for t in range(4): S.add('ar', [self.p1_aread(s+1, t, AF + 4*t)], e=b+3+3*t, d=b+8+3*t, step=0)
        S.before[hb] = self.cap(lambda: self.ts('p1_loop1'))
        for s in range(16):
            e = 12*15 + 3 + 3*s if s < 4 else hb + 2*(s-4) + 2
            S.add('ar', [self.halo_read(s, AF + 4*(s & 3), 'v122', 'v123')], e=e, d=max(e, hb + 2*s - 4))
        lh = self.lab('hs')
        S.add('misc', [Raw(f"""s_bitcmp1_b32 {sW}, 0
s_cbranch_scc0 {lh}
s_lshl_b32 s88, {sG}, 14
s_add_u32 s88, s88, {WS_HB - 56*2048}
s_mov_b32 exec_lo, 0xff000000
s_mov_b32 exec_hi, 0xff000000
buffer_store_dwordx4 {vr(RES,4)}, {vRM}, {SWS}, s88 offen sc1
buffer_store_dwordx4 {vr(RES+4,4)}, {vRM}, {SWS}, s88 offen offset:32 sc1
s_mov_b64 exec, -1
{lh}:""", rd=[vr(RES, 8)], wr=['s88'], states=2)], e=10, d=11)
        x = self.stats_reduce(240) + self.stats_final('v240', 'v241', 'v242') + lines(f"""v_and_b32 v124, 15, {vL}
v_lshlrev_b32 v124, 3, v124
v_bfe_u32 v125, {vL}, 4, 1
v_lshl_add_u32 v124, v125, 2, v124
s_and_b32 s88, {sW}, 1
s_lshl_b32 s88, s88, 7
s_add_u32 s88, s88, {L_NM}
v_add_u32 v125, s88, v124""")
        x.append(tabw[0])
        lh = self.lab('ht')
        x.append(Raw(f"""s_lshl_b32 s88, {sCB}, 2
s_add_u32 s88, s88, {sW}
s_cmp_lg_u32 s88, 1
s_cbranch_scc1 {lh}
s_lshl_b32 s88, {sG}, 7
s_add_u32 s88, s88, {WS_HS - 96}
s_mov_b32 exec_lo, 0xf000f000
s_mov_b32 exec_hi, 0
buffer_store_dword v240, v124, {SWS}, s88 offen sc1
buffer_store_dword v241, v124, {SWS}, s88 offen offset:32 sc1
s_mov_b64 exec, -1
{lh}:""", rd=['v240', 'v241', 'v124'], wr=['s88'], states=2))
        S.add('misc', x, e=12, d=12*5, step=0.8)
        S.add('misc', self.touches_p1(1, 'v121') + ([self.code_touch()] if self.o.get('ct2', False) else []), e=12*9, d=12*10 - 1)
        S.add('misc', [f's_lshl_b32 s88, {sPG}, 7', f's_add_u32 s94, s88, {WS_HS}', [f's_cmp_eq_u32 {sHASP}, 0', 's_cselect_b32 s94, 0x7ff00000, s94'], f'v_and_b32 v124, 15, {vL}', 'v_lshlrev_b32 v124, 2, v124',
                       f'buffer_load_dword v125, v124, {SWS}, s94 offen sc1', f's_add_u32 s88, {sW2K}, {L_A1H}', f'v_add_u32 v121, s88, {vL16}'], e=12*10, d=12*12, step=1)
        S.add('misc', lines(f"""v_and_b32 v126, 7, {vL}
v_lshlrev_b32 v126, 2, v126
v_bfe_u32 v127, {vL}, 3, 1
v_mul_u32_u24 v127, 320, v127
v_add_u32 v126, v126, v127
v_bfe_u32 v127, {vL}, 4, 1
v_lshl_add_u32 v126, v127, 5, v126
v_add_u32 v126, {L_NM}, v126"""), e=12*11, d=12*14, step=1)
        r = [Ins(f'ds_read_b32 v{122+u}, v121 offset:{u*1024}', lds=(L_A1H, L_A1H + 8192), private=True) for u in range(2)]
        for d in htok: d.private = True
        hd2, _ = self.halo_dma(1, 'v120', 's90')
        S.add('misc', [[WaitTok(htok)] + r], e=12*14, d=12*14+1)
        S.add('misc', [self.spin('s_mov_b32 s93, m0\n' + '\n'.join(i.text for i in hd2) + '\ns_mov_b32 m0, s93', 'v_max_u32 v122, v122, v123\nv_cmp_eq_u32 vcc, -1, v122', 'exec',
                                 pre='ds_read_b32 v122, v121\nds_read_b32 v123, v121 offset:1024\ns_waitcnt lgkmcnt(0)')], e=12*14+5, d=12*14+5)
        S.add('misc', [self.spin(f'buffer_load_dword v125, v124, {SWS}, s94 offen sc1', 'v_cmp_eq_u32 vcc, -1, v125', 'exec'), tabw[1]], e=12*14+7, d=12*14+10)
        S.add('misc', self.halo_addr('v122', 'v123'), e=12*14+8, d=12*15+1)
        S.add('misc', self.att_masks(192), e=hb+8, d=hb+29)
        tr = self.att_tabreads()
        S.add('tab', tr[:5], e=hb+20, d=hb+30); S.add('tab', tr[5:], e=hb+31)
        S.emit(p, 'p1 L1')
        self.ts('p1_halo1')
        st = self.attention(1, {'a': w2[NW2:NW2+4], 'b': w2[NW2+4:] + self.touches_h(1, 'v121')})
        self.ts('p1_attn1')
        self.post_flag(6, st)
        self.ts('p1_end1')
        return w2tok

    def epi_pre(self):
        o = [f'v_add_u32 v120, {sW4K}, {vL16}', 'v_xor_b32 v121, 8192, v120']
        for i in range(8): o += [f'v_lshlrev_b32 v{224+2*i}, 16, v{RES+i}', f'v_and_b32 v{225+2*i}, 0xffff0000, v{RES+i}']
        o += lines(f"""v_and_b32 v240, 31, {vL}
v_lshlrev_b32 v240, 3, v240
v_lshrrev_b32 v241, 5, {vL}
v_lshl_add_u32 v240, v241, 2, v240""")
        return o
    def tile_epilogue(self, kind, L, after=None):
        p = self.p
        OWN, OTH, X = 40, 56, 104
        rng = lambda q: [(L_XB + w*4096 + q*1024, L_XB + w*4096 + q*1024 + 1024) for w in range(4)]
        ws = [p(f'ds_write_b128 v120, {vr(OTH+4*q,4)} offset:{L_XB + q*1024}', lds=rng(q)) for q in range(4)]
        for i in range(0, 16, 2): p(f'v_pk_add_f32 {vr(OWN+i,2)}, {vr(OWN+i,2)}, {vr(224+i,2)}')
        p(WaitTok(ws)); p('s_barrier')
        for q in range(4): p(f'ds_read_b128 {vr(X+4*q,4)}, v121 offset:{L_XB + q*1024}', lds=rng(q))
        for q in range(4):
            for i in (4*q, 4*q+2): p(f'v_pk_add_f32 {vr(OWN+i,2)}, {vr(OWN+i,2)}, {vr(X+i,2)}')
            for i in (2*q, 2*q+1): p(f'v_cvt_pk_bf16_f32 v{RES+i}, v{OWN+2*i}, v{OWN+2*i+1}')
        if kind == 'out':
            p(f'buffer_store_dwordx4 {vr(RES,4)}, {vRM}, {SOUT}, {sROW} offen')
            p(f'buffer_store_dwordx4 {vr(RES+4,4)}, {vRM}, {SOUT}, {sROW} offen offset:32')
            return None
        if kind == 'x1': alt, st = self.stores([f'buffer_store_dwordx4 {vr(RES,4)}, {vL16}, {SWS}, {sX} offen', f'buffer_store_dwordx4 {vr(RES+4,4)}, {vL16}, {SWS}, {sX} offen offset:1024'])
        else: alt, st = self.stores([f'buffer_store_dwordx4 {vr(RES,4)}, {vRM}, {SWS}, {sX} offen', f'buffer_store_dwordx4 {vr(RES+4,4)}, {vRM}, {SWS}, {sX} offen offset:32'])
        p(alt)
        p(f'v_pk_add_f32 v[104:105], {vr(OWN,2)}, {vr(OWN+2,2)}\nv_pk_mul_f32 v[106:107], {vr(OWN,2)}, {vr(OWN,2)}\nv_pk_fma_f32 v[106:107], {vr(OWN+2,2)}, {vr(OWN+2,2)}, v[106:107]')
        for i in range(4, 16, 2):
            p(f'v_pk_add_f32 v[104:105], v[104:105], {vr(OWN+i,2)}\nv_pk_fma_f32 v[106:107], {vr(OWN+i,2)}, {vr(OWN+i,2)}, v[106:107]')
        p("""v_add_f32 v104, v104, v105
v_add_f32 v106, v106, v107
v_permlane32_swap_b32 v104, v106
v_add_f32 v104, v104, v106""")
        alt2, st2 = self.stores([f'buffer_store_dword v104, v240, {SWS}, {sY} offen'])
        p(alt2)
        return st + st2
    def wfrag_reads(self, k, base, va, vb, lo):
        r = 72 + 8*(k % 4)
        return [Ins(f'ds_read_b64_tr_b16 {vr(r+4*h+2*rd,2)}, {ad} offset:{base + rd*512}', lds=lo) for h, ad in ((1, vb), (0, va)) for rd in range(2)]
    ARING = [128 + 4*i for i in range(16)] + [224, 228, 232, 236, 248, 252]
    def tile_mfmas(self, k, z):
        r = 72 + 8*(k % 4); a = vr(self.ARING[k % 22], 4)
        return [f'v_mfma_f32_32x32x16_bf16 {vr(56,16)}, {vr(r+4,4)}, {a}, {0 if z else vr(56,16)}',
                f'v_mfma_f32_32x32x16_bf16 {vr(40,16)}, {vr(r,4)}, {a}, {0 if z else vr(40,16)}']

    def p2(self, L, w2tok):
        p = self.p
        p(f"""s_lshr_b32 s88, {sW}, 1
s_lshl_b32 s89, s88, 15
s_add_u32 s89, s89, {L_W2}
v_add_u32 v122, s89, {vWown}
v_add_u32 v123, s89, {vWoth}
s_lshl_b32 s88, s88, 14
s_lshl_b32 s92, {sRB}, 15
s_add_u32 s92, s92, s88
s_add_u32 s92, s92, {WS_O[L]}""")
        for q in range(4): p(f's_xor_b32 {sA2[q]}, {sRG}, {q}\ns_lshl_b32 {sA2[q]}, {sA2[q]}, 12\ns_add_u32 {sA2[q]}, {sA2[q]}, s92')
        p(WaitTok(w2tok + sum(self.w3tok.values(), []))); p('s_barrier')
        rd = lambda k: self.wfrag_reads(k, k*2048, 'v122', 'v123', [(L_W2 + h*32768 + k*2048, L_W2 + h*32768 + k*2048 + 2048) for h in range(2)])
        for k in range(3): p(rd(k))
        if L == 0:
            p(self.w3_setup()); p(self.w3_sel())
            rs = self.w3_take(list(range(16)))
            p(WaitTok(rs)); p('s_barrier')
        self.poll(1 + 5*L, sMK2)
        self.ts(f'p2_go{L}')
        al = [f'buffer_load_dwordx4 {vr(128+4*k,4)}, {vL16}, {SWS}, {sA2[k >> 2]} offen offset:{(k%4)*1024} sc1' for k in range(16)]
        NP = 10
        p(al[:NP])
        S = Sched(sum((self.tile_mfmas(k, k == 0) for k in range(16)), []))
        S.add('a', al[NP:], e=0, d=12, step=1, split=True)
        for k in range(13): S.add('wr', rd(k+3), e=2*k, d=2*k+2, step=0.5)
        if L == 0: S.add('dma', sum((self.w3_quad(q, 16384*(q - 3)) for q in range(4, 7)), []), e=8, d=31, step=1.9, split=True)
        S.add('misc', self.x1_addr(L, sX) + self.st_addr(WS_ST1[L], sY) + self.epi_pre(), e=8, d=30)
        S.emit(p, f'p2 L{L}')
        self.ts(f'p2_mm{L}')
        st = self.tile_epilogue('x1', L)
        self.ts(f'p2_epi{L}')
        if L == 0:
            p(self.w3_quad(7, 98304))
        self.post_flag(2 + 5*L, st)
        self.ts(f'p2_end{L}')

    def p3(self, L):
        p = self.p
        ACC, AF, CS, TK, HO, SR = 40, 72, 120, 240, 192, 224
        lskip = self.lab('p3skip')
        w4 = {}
        self.layer = L
        p(self.w4_setup())
        p(f"""v_add_u32 v124, 65536, {vL16}
v_and_b32 v125, 31, {vL}
v_lshlrev_b32 v125, 4, v125
v_add_u32 v125, {L_T3}, v125
v_lshlrev_b32 v126, 3, {vL}
s_lshl_b32 s88, {sW}, 9
s_add_u32 s88, s88, {L_CS3}
v_add_u32 v126, s88, v126
s_lshl_b32 s92, {sG16}, 2
s_add_u32 s92, s92, {sW}
s_lshl_b32 s92, s92, 12""")
        p(self.h_addr(L))
        if L == 0:
            p(WaitTok(sum((self.w3tok[q] for q in range(4, 7)), []))); p('s_barrier')
            self.w3_take(list(range(16, 28)))
        p('s_waitcnt lgkmcnt(0)'); p('s_barrier')
        p(f's_cmp_lg_u32 {sIDLE}, 0\ns_cbranch_scc1 {lskip}')
        self.poll(2 + 5*L, 'exec')
        self.ts(f'p3_go{L}')
        atok = {}
        def adma(rb, s, area=None):
            o = (rb if area is None else area)*32768 + s*16384
            d = [Ins(f'buffer_load_dwordx4 {vL16}, {SWS}, {sT} offen offset:{u*1024} sc1 lds', lds=[(o + q*4096 + u*1024, o + q*4096 + u*1024 + 1024) for q in range(4)]) for u in range(4)]
            atok[(rb, s, area)] = d
            return self.split_dma([Ins(f's_add_u32 m0, {sW4K}, {o}'), Ins(f's_add_u32 {sT}, {sA3[s]}, {WS_X1[L] + rb*32768}')] + d)
        for s in range(2): p(adma(0, s))
        if L == 0:
            tiles = [(0, 0), (0, 1), (0, 2), (0, 3), (1, 1), (1, 2), (1, 3), (1, 0)]; area = [0, 1, 2, 0, 1, 2, 0, 3]
        else:
            tiles = [(c, rb) for c in range(2) for rb in range(4)]; area = [0, 1, 2, 3, 0, 1, 2, 3]
        NR = 12
        def aread(n):
            ti, ks = divmod(n, 32)
            o = area[ti]*32768 + ks*1024
            return Ins(f'ds_read_b128 {vr(AF+4*(n % NR),4)}, {"v124" if o >= 65536 else vL16} offset:{o % 65536}', lds=(o, o+1024))
        def epilogue(ti):
            c, rb = tiles[ti]
            A = ACC + 16*(ti & 1); tk = TK + 4*(ti & 1); ho = HO + 4*(ti & 1)
            o = []
            gi = lambda i: (i >> 2)*8 + (i & 3)
            for i in range(9):
                if i < 8: o.append(f'v_mul_f32 v{A+gi(i)}, v{tk+3}, v{A+gi(i)}')
                if i: o.append(f'v_exp_f32 v{A+gi(i-1)}, v{A+gi(i-1)}')
            for i in range(8): o.append(f'v_fma_f32 v{A+gi(i)}, v{A+gi(i)}, v{tk+2}, v{tk+2}')
            for i in range(8):
                o.append(f'v_rcp_f32 v{A+gi(i)}, v{A+gi(i)}')
                if i: o.append(f'v_mul_f32 v{A+gi(i-1)}, v{A+gi(i-1)}, v{A+gi(i-1)+4}')
            o.append(f's_add_u32 s94, {sH0}, {rb*114688 + c*4096}')
            o.append(f'v_mul_f32 v{A+gi(7)}, v{A+gi(7)}, v{A+gi(7)+4}')
            for i in range(4): o.append(f'v_cvt_pk_bf16_f32 v{ho+i}, v{A+gi(2*i)}, v{A+gi(2*i+1)}')
            alt, st = self.stores([f'buffer_store_dwordx4 {vr(ho,4)}, {vL16}, {SWS}, s94 offen'])
            o.append(alt)
            return o, st
        def csreads(c):
            r = Ins(f'ds_read_b64 {vr(CS+2*c,2)}, v126 offset:{c*256}', lds=(L_CS3, L_CS3+2048), private=True)
            return [[f'v_mov_b32 v{CS+2*c}, 0', f'v_mov_b32 v{CS+2*c+1}, 0', 's_mov_b64 exec, 0xffffffff', r, 's_mov_b64 exec, -1']], r
        p(self.fts(f'p3{L}', 'issued'))
        p(WaitTok(atok[(0, 0, None)])); p('s_barrier')
        rds = [aread(n) for n in range(256)]
        for n in range(8): p(rds[n])
        CS0, CS1 = 20, self.o.get('cs1', 148)
        spine = []; slot = []
        for n in range(256):
            if L == 0 and n == CS0: spine += [self.w3_cs(x) for x in range(28, 32)]
            if L == 0 and n == CS1: spine += [self.w3_cs(x) for x in range(32, 64)]
            ti, ks = divmod(n, 32); c, rb = tiles[ti]
            A = vr(ACC + 16*(ti & 1), 16)
            slot.append(len(spine))
            spine.append(f'v_mfma_f32_32x32x16_bf16 {A}, {ar(c*128+4*ks,4)}, {vr(AF+4*(n % NR),4)}, {0 if ks == 0 else A}')
            if ks == 31: spine.append(f'v_mfma_f32_32x32x8_bf16 {A}, {vr(CS+2*c,2)}, {vr(TK+4*(ti&1),2)}, {A}')
        sl = lambda n: slot[max(0, min(int(n), 255))]
        S = Sched(spine)
        for n in range(0, 256, 4): S.before[sl(n)] = [WaitTok(rds[n:n+4])]
        for ti in range(8): S.before[sl(32*ti)] = self.fts(f'p3{L}', f't{ti}') + S.before[sl(32*ti)]
        bars = {}
        def bar(n, toks): bars.setdefault(n, []).extend(toks)
        gate = {}
        def publish(first, toks): bar(first - 9, toks); gate[first] = first - 9
        st_issue = self.stats_issue(WS_ST1[L], 's92', SR)
        S.add('dma', [st_issue[:2]] + st_issue[2:], e=0, d=8, step=1.5, split=True)
        publish(16, atok[(0, 1, None)])
        def astream(rb, ar_, e, first, step=2):
            for s in range(2):
                S.add('dma', adma(rb, s, ar_), e=sl(e + 4*step*s), d=sl(first + 16*s - 14), step=step, split=True)
            publish(first, atok[(rb, 0, ar_)]); publish(first + 16, atok[(rb, 1, ar_)])
        if L == 1:
            astream(1, None, 6, 32); astream(2, None, 24, 64); astream(3, None, 44, 96)
        else:
            SLOT = [98304, 114688, 131072]
            lag = self.o.get('lag', 26)
            rd_at = {7: 7}; iss = {8: self.o.get('i8', 20), 9: self.o.get('i9', 38)}
            for q in range(8, 16):
                if q >= 10: iss[q] = rd_at[q-2] + 1
                rd_at[q] = max(min(iss[q] + lag, 128 + 4*(q - 8) - 6, CS1 - 8), iss[q] + 12, rd_at[q-1] + 6)
            assert rd_at[15] + 6 <= CS1
            def wq(q):
                S.add('dma', self.w3_quad(q, SLOT[(q - 7) % 3]), e=sl(iss[q]), d=sl(iss[q] + 10), step=2, split=True, ta=72)
            ev = [(6, lambda: astream(1, None, 6, 32)), (self.o.get('a2', 21), lambda: astream(2, None, self.o.get('a2', 21), 64, 2)), (self.o.get('a3', 62), lambda: astream(3, 0, self.o.get('a3', 62), 96, 2))] + [(iss[q], (lambda q=q: wq(q))) for q in range(8, 16)]
            for _, f in sorted(ev, key=lambda t: t[0]): f()
            bar(39, rds[20:32])
            prevr = []
            for q in range(7, 16):
                at = rd_at[q]
                r = sum((self.w3_reads(n) for n in range(4*q, 4*q + 4)), [])
                bar(at, self.w3tok[q] + prevr); prevr = r
                S.add('w3r', r, e=sl(at), d=sl(at + 5))
            self.w3_last = prevr
            S.add('w3c', self.w3_cs_store(0) + csreads(0)[0], e=sl(CS0) + 3, d=sl(29))
            S.add('w3c', self.w3_cs_store(1) + csreads(1)[0], e=sl(CS1) + 3, d=sl(157))
        for m in range(8, 256):
            e = max(m - NR + 1, max([v for k_, v in gate.items() if k_ <= m], default=-1))
            S.add('ar', [rds[m]], e=sl(e), d=sl(max(e, (m & ~3) - 3)), step=0)
        x = self.stats_reduce(SR) + self.stats_final(f'v{SR}', f'v{SR+1}', f'v{SR+2}') + lines(f"""v_mul_f32 v{SR+3}, {f2u(-LOG2E)}, v{SR+1}
v_cvt_pk_bf16_f32 v{SR}, v{SR}, v{SR}
v_mov_b32 v{SR+1}, v{SR}
v_and_b32 v{SR+4}, 15, {vL}
v_lshlrev_b32 v{SR+4}, 5, v{SR+4}
v_bfe_u32 v{SR+5}, {vL}, 4, 1
v_lshl_add_u32 v{SR+4}, v{SR+5}, 4, v{SR+4}
s_lshl_b32 s88, {sW}, 9
s_add_u32 s88, s88, {L_T3}
v_add_u32 v{SR+4}, s88, v{SR+4}""")
        tw = Ins(f'ds_write_b128 v{SR+4}, {vr(SR,4)}', lds=(L_T3, L_T3 + 2048))
        S.add('epi', x + [tw], e=sl(10), d=sl(21))
        bar(23, [tw])
        if L == 1: S.add('w3c', csreads(0)[0] + csreads(1)[0], e=2, d=20)
        sts = []
        for ti in range(8):
            c, rb = tiles[ti]
            S.add('epi', [Ins(f'ds_read_b128 {vr(TK+4*(ti&1),4)}, v125 offset:{rb*512}', lds=(L_T3, L_T3+2048))], e=sl(32*ti + 25), d=sl(32*ti + 28))
            if ti < 7:
                e, st = epilogue(ti); sts.append(st)
                S.add('epi', e, e=sl(32*ti + 35), d=sl(32*ti + 56), early=False)
            if ti >= 5:
                bar(32*ti + 1, rds[32*ti-12:32*ti] + (self.w3_last if L == 0 else []))
                todo = [2*(ti-5) + 1, 2*(ti-5) + 2]
                gq = []
                for s in todo:
                    x_, tk = self.w4_stage(s); w4[s] = tk; gq += sum((self.split_dma(y) for y in x_), [])
                S.add('dma', gq, e=sl(32*ti + 1), d=sl(32*ti + 31), ta=72, split=True)
            if ti == 4 and L == 0:
                fr = rd_at[15] + 7
                bar(fr, self.w3_last)
                x_, tk = self.w4_stage(0); w4[0] = tk
                S.add('dma', sum((self.split_dma(y) for y in x_), []) + adma(0, 0, 3) + adma(0, 1, 3), e=sl(fr), d=sl(160), split=True)
                bar(193, atok[(0, 0, 3)] + atok[(0, 1, 3)])
            if ti == 3 and L == 1:
                x_, tk = self.w4_stage(0); w4[0] = tk; S.add('dma', sum((self.split_dma(y) for y in x_), []), e=100, d=127, ta=72, split=True)
        if self.o.get('ct2', False): S.add('misc', [self.code_touch()], e=sl(30), d=sl(40))
        widx = lines(f"""s_and_b32 s89, {sG16}, 1
s_mul_i32 s89, s89, 14
s_add_u32 s89, s89, {sM16}
s_lshl_b32 s89, s89, 2
s_add_u32 s93, s89, {sW}""")
        if self.o.get('pf4', False):
            if L == 1:
                pre_, tt = self.pf_touch(SWD, 128, 's93', 'v127')
                S.add('misc', widx + pre_, e=sl(50), d=sl(60)); S.add('misc', tt, e=sl(62), d=sl(160), step=12)
        if L == 0:
            S.add('misc', self.touches_x2('v127') + [self.code_touch()], e=sl(CS1) - 28, d=sl(CS1) - 2)
        S.add('misc', [self.cap(lambda: self.post_flag(3 + 5*L, sum(sts[:4], [])))], e=sl(163), d=sl(164))
        NPRE = self.o.get('npre', 22)
        pc = self.o.get('pc', 200)
        S.add('misc', self.p4_setup(L), e=sl(166), d=sl(178))
        S.add('misc', [self.poll_issue(vT0)], e=sl(pc - 14), d=sl(pc - 12))
        S.add('misc', [self.poll_check(vT0, 3 + 5*L, sMK4)], e=sl(pc), d=sl(pc + 1))
        S.add('a', [self.p4_aload(k) for k in range(NPRE)], e=sl(pc + 2), d=sl(255), step=(253 - pc)/NPRE, split=True)
        if L == 0 and self.o.get('pf40', False):
            pre_, tt = self.pf_touch(SWD, 64, 's93', 'v127', half=True)
            S.add('misc', widx + pre_, e=sl(192), d=sl(200)); S.add('misc', tt, e=sl(202), d=sl(250), step=12)
        for n, toks in sorted(bars.items()):
            lo_, hi_ = self.o.get('blo', 0), self.o.get('bhi', 70)
            f = (lambda nm: self.fts(f'b3{L}', nm)) if lo_ <= n < hi_ else (lambda nm: [])
            S.at(sl(n), f(f'x{n}') + [WaitTok(toks)] + f(f'w{n}') + ['s_barrier'] + f(f'b{n}'), 'bar')
        S.emit(p, f'p3 L{L}')
        self.ts(f'p3_mm{L}')
        e, st = epilogue(7); sts.append(st); p(e)
        self.ts(f'p3_epi{L}')
        self.post_flag(4 + 5*L, sum(sts[4:], []))
        lj = self.lab('p3join')
        p('s_waitcnt lgkmcnt(0)'); p('s_barrier')
        p(f'{lj}:')
        sv = self.p; q = self.p = Prog(check_lds=False)
        q(f'{lskip}:')
        if L == 0: q(self.touches_x2('v127'))
        q(self.p4_setup(L))
        for s in range(0, 7): q(self.w4_stage(s)[0])
        if L == 1: self.idle_prefetch(L)
        self.poll(3 + 5*L, sMK4)
        if L == 0: self.idle_prefetch(L)
        if self.o_wb and L == 1: q(Raw(f's_add_u32 s88, {sW}, {sM16}\ns_and_b32 s89, {sG16}, 1\ns_add_u32 s88, s88, s89\ns_cmp_lg_u32 s88, 14\ns_cbranch_scc1 Lnowb\nbuffer_wbl2 sc1\nLnowb:'))
        for k in range(NPRE): q(self.p4_aload(k))
        q(f's_waitcnt vmcnt(0)\ns_barrier\ns_branch {lj}')
        self.p = sv
        self.slow.append(q.finalize())
        self.ts(f'p3_end{L}')
        return w4

    def idle_prefetch(self, L):
        if not self.o.get('pf', True): return
        q = self.p
        q(f"""s_and_b32 s88, {sG16}, 1
s_lshl_b32 s88, s88, 1
s_add_u32 s88, s88, {sM16}
s_sub_u32 s88, s88, 14
s_lshl_b32 s88, s88, 2
s_add_u32 s88, s88, {sW}
v_lshlrev_b32 v40, 7, {vL}""")
        jobs = [(SWD, 7 if L else self.o.get('pfd', 4), 'down')] + ([(SWQKV, self.o.get('pfq', 0), 'qkv')] if L == 0 else [])
        for srd, n, kind in jobs:
            for i in range(n):
                if kind == 'down':
                    q(f's_mul_i32 s89, s88, 7\ns_add_u32 s89, s89, {i}\ns_lshr_b32 s90, s89, 3\ns_lshl_b32 s90, s90, 17\ns_and_b32 s89, s89, 7\ns_lshl_b32 s89, s89, 13\ns_add_u32 s89, s89, s90\ns_add_u32 s89, s89, 65536')
                else:
                    q(f's_lshl_b32 s89, s88, 13\ns_add_u32 s89, s89, {i*131072}')
                x = Ins(f'buffer_load_dword v41, v40, {srd}, s89 offen'); x.wr = set(); q(x)
                q('s_waitcnt vmcnt(1)')

    def p4_setup(self, L):
        return lines(f"""s_lshr_b32 s88, {sW}, 1
s_lshl_b32 s89, s88, 13
v_add_u32 v200, s89, {vWown}
v_add_u32 v201, s89, {vWoth}
v_add_u32 v202, 65536, v200
v_add_u32 v203, 65536, v201
v_add_u32 v204, 131072, v200
v_add_u32 v205, 131072, v201
s_mul_i32 s88, s88, 57344
s_mul_i32 {sX}, {sRB}, 114688
s_add_u32 {sX}, {sX}, s88
s_add_u32 {sX}, {sX}, {WS_H[L]}
s_add_u32 {sY}, {sX}, 4096""")
    def p4_aload(self, k):
        s, w = divmod(k, 4); c, j = divmod(s, 7)
        o = []
        if w == 0: o.append(Ins(f's_add_u32 {sH1}, {sY if c else sX}, {sJ[j]}'))
        o.append(Ins(f'buffer_load_dwordx4 {vr(self.ARING[k % 22],4)}, {vL16}, {SWS}, {sH1} offen offset:{w*1024} sc1'))
        return o
    def p4(self, L, w4):
        p = self.p
        def rd(k):
            s, w = divmod(k, 4)
            b = self.W4SLOT[s]*16384 + w*2048
            va, vb = [('v200', 'v201'), ('v202', 'v203'), ('v204', 'v205')][b >> 16]
            return self.wfrag_reads(k, b & 65535, va, vb, [(b + h*8192, b + h*8192 + 2048) for h in range(2)])
        NPRE = self.o.get('npre', 22); dac = self.o.get('dac', 9)
        self.ts(f'p4_go{L}')
        for k in range(3): p(rd(k))
        S = Sched(sum((self.tile_mfmas(k, k == 0) for k in range(56)), []))
        pre = {}; allreads = {}
        ev = []
        for m in range(NPRE, 56):
            e = max(0, 2*(m - 22) + 2)
            if m >= 28: e = max(e, 2*(28 - dac) + 1 + 1.6*(m - 28))
            ev.append((e, 2*m - 10, [self.p4_aload(m)], True))
        ev.append((2*(28 - dac) - 8, 2*(28 - dac) - 6, [self.poll_issue(vT0)], True))
        ev.append((2*(28 - dac), 2*(28 - dac) + 1, [self.poll_check(vT0, 4 + 5*L, sMK4)], False))
        stage_at = {7: 0, 8: 7}
        for ns in range(9, 14):
            prev = max(x for x in range(ns) if self.W4SLOT[x] == self.W4SLOT[ns])
            stage_at[ns] = max(2*(4*(prev + 2) - 3) + 1, stage_at[ns-1] + 7)
        for ns, e in stage_at.items():
            gq, tk = self.w4_stage(ns); w4[ns] = tk
            for i, y in enumerate(sum((self.split_dma(y) for y in gq), [])): ev.append((e + 1.7*i, 2*(4*ns - 3) - 8, [y], True))
        if L == 0:
            e0 = max(x[0] for x in ev) + 1
            for i, st_ in enumerate(range(self.o.get('nw1', 4))):
                gq, tk = self.w1_stage(st_, seq=(i > 0)); pre[st_] = tk
                for j, y in enumerate(self.split_dma(gq[0])): ev.append((e0 + 1.3*(3*i + j), 111, [y], True))
        for e, d, gq, sp in sorted(ev, key=lambda t: t[0]): S.add('vm', gq, e=int(e), d=max(int(e), d), step=0, split=sp)
        for k in range(56):
            m = k + 3
            if k % 4 == 0: S.before[2*k] = self.fts(f'p4{L}', f's{k//4}')
            if m < 56:
                s, w = divmod(m, 4)
                if w == 0: S.at(2*k, [WaitTok(w4[s] + allreads.get(s-2, [])), 's_barrier'], 'bar')
                r = rd(m); allreads.setdefault(s, []).extend(r)
                S.add('wr', r, e=2*k, d=2*k+3, step=0.5)
        x = self.epi_pre()
        if L == 0: x += [f's_add_u32 {sX}, {sROW}, {WS_X2}'] + self.st_addr(WS_ST2, sY)
        S.add('misc', x, e=92, d=110)
        S.emit(p, f'p4 L{L}')
        self.ts(f'p4_mm{L}')
        st = self.tile_epilogue('x2' if L == 0 else 'out', L)
        self.ts(f'p4_epi{L}')
        if L == 0:
            self.post_flag(5, st)
            for st_ in range(len(pre), self.o.get('nw2', 6)):
                gq, tk = self.w1_stage(st_, seq=True); pre[st_] = tk; p(gq)
        self.ts(f'p4_end{L}')
        return pre

    def build(self):
        p = self.p
        self.prologue_a()
        pre = {}
        for L in range(2):
            p(f'; PH 1{L}')
            w2 = self.p1_first() if L == 0 else self.p1_second(pre)
            if self.o_stop == f'p1_{L}': break
            p(f'; PH 2{L}')
            self.p2(L, w2)
            if self.o_stop == f'p2_{L}': break
            p(f'; PH 3{L}')
            w4 = self.p3(L)
            if self.o_stop == f'p3_{L}': break
            p(f'; PH 4{L}')
            pre = self.p4(L, w4)
            if self.o_stop == f'p4_{L}': break
        p(self.bump_epoch())
        self.ts('end')
        if self.o_amp:
            p('s_waitcnt vmcnt(0)')
            p(Raw(f"""s_memrealtime s[62:63]
s_sub_u32 s96, s98, s96
s_mul_i32 s96, s96, {self.o_amp[2]}
s_min_u32 s96, s96, 100000
s_waitcnt lgkmcnt(0)
Lamp:
s_memrealtime s[98:99]
s_waitcnt lgkmcnt(0)
s_sub_u32 s98, s98, s62
s_cmp_lt_u32 s98, s96
s_cbranch_scc1 Lamp"""))
        if self.o_ts:
            p(f's_lshl_b32 s88, s2, 2\ns_add_u32 s88, s88, {sW}\ns_lshl_b32 s88, s88, 8\ns_add_u32 s88, s88, {WS_TS}\nv_lshlrev_b32 v40, 2, {vL}')
            p('s_memrealtime s[62:63]'); p(f'v_writelane_b32 {vTS}, s62, 62')
            p(f'buffer_store_dword {vTS}, v40, {SWS}, s88 offen')
            if self.o_dbg:
                sel = [self.tsn.index(n) for n in self.o_dbg] + [62, 63]
                l = self.lab('dbg')
                p(f's_lshl_b32 s88, s2, 2\ns_add_u32 s88, s88, {sW}\ns_cmp_lg_u32 s88, 0\ns_cbranch_scc1 {l}')
                p(f'v_readlane_b32 s89, {vTS}, 0')
                for i, s in enumerate(sel):
                    p(f'v_readlane_b32 s88, {vTS}, {s}')
                    if s < 62: p('s_sub_u32 s88, s88, s89')
                    p(f'v_writelane_b32 v41, s88, {i}')
                p(f's_mov_b64 exec, 0xffff\nbuffer_store_dword v41, v40, {SDBG}, 0 offen sc1\ns_mov_b64 exec, -1\n{l}:')
        kill = str(self.o.get('kill', '')).split('+')
        if kill != ['']:
            p.check_lds = False
            import re as _re
            inp3 = None
            for it in p.items:
                t = getattr(it, 'text', '')
                if t.startswith('; PH'): inp3 = t[5:]
                lst = [it] if it.kind != 'alt' else it.a
                for x in lst:
                    t = getattr(x, 'text', '')
                    tag = None
                    if x.kind == 'dma' and SW3 in t: tag = 'w3'
                    elif x.kind == 'dma' and SWD in t: tag = 'w4'
                    elif x.kind == 'dma' and SWQKV in t: tag = 'w1'
                    elif x.kind == 'dma' and SWO in t: tag = 'w2'
                    elif x.kind == 'dma': tag = 'adma'
                    elif x.kind == 'vmld' and 'x4' in t and SWS in t: tag = 'ald'
                    elif x.kind == 'vmld' and 'v34' in t: tag = 'touch'
                    elif x.kind == 'vmst' and 'x4' in t: tag = 'st'
                    if tag and f'{inp3}{tag}' in kill:
                        x.text = 's_nop 0'; x.kind = 'nop'; x.ops = ['0']; x.rd = set(); x.wr = set(); x.lds = None
                        if it.kind == 'alt':
                            for y in it.b: y.kind = 'nop'
        body = p.finalize()
        head = open('cdna_kernels/' + NAME + '.s.ref').read().split('; Override launch')[0]
        txt = head + '; @launch grid=(256,1,1) block=(256,1,1) lds=163840\n'
        txt += f'.amdgcn_target "amdgcn-amd-amdhsa--gfx950"\n.text\n.globl {NAME}_kernel\n.p2align 8\n.type {NAME}_kernel,@function\n{NAME}_kernel:\n'
        txt += body + 'L_end:\ns_endpgm\n' + '\n'.join(getattr(p, 'tail', [])) + '\n' + '\n'.join(self.slow) + '\nL_last:\ns_endpgm\n'
        txt += f""".section .rodata,"a"
.p2align 6
.amdhsa_kernel {NAME}_kernel
  .amdhsa_next_free_vgpr 512
  .amdhsa_next_free_sgpr 102
  .amdhsa_accum_offset 256
  .amdhsa_group_segment_fixed_size 0
  .amdhsa_kernarg_size 80
  .amdhsa_user_sgpr_count 2
  .amdhsa_user_sgpr_kernarg_segment_ptr 1
  .amdhsa_system_sgpr_workgroup_id_x 1
  .amdhsa_float_denorm_mode_32 3
.end_amdhsa_kernel
"""
        return txt

if __name__ == '__main__':
    out = sys.argv[1]
    kw = {}
    for a in sys.argv[2:]:
        k, _, v = a.partition('=')
        if k in ('amp', 'dbg'): kw[k] = v.split(',')
        elif v in ('0', '1', ''): kw[k] = (v != '0')
        elif v.replace('.', '').isdigit(): kw[k] = float(v) if '.' in v else int(v)
        else: kw[k] = v
    if kw.pop('reuse', False):
        WS_O[1] = WS_O[0]; WS_X1[1] = WS_X1[0]; WS_ST1[1] = WS_ST1[0]; WS_H[1] = WS_H[0]
    g = Gen(**kw)
    open(out, 'w').write(g.build())
    if g.o_ts: open(out + '.ts', 'w').write('\n'.join(g.tsn))
    print(out, g.p.stats)
```

```python
import re

def regs(op):
    op = op.strip()
    if op.startswith('-'): op = op[1:]
    if op.startswith('abs(') and op.endswith(')'): op = op[4:-1]
    if op.startswith('|') and op.endswith('|'): op = op[1:-1]
    m = re.fullmatch(r'([vas])(\d+)', op)
    if m: return [(m.group(1), int(m.group(2)))]
    m = re.fullmatch(r'([vas])\[(\d+):(\d+)\]', op)
    if m: return [(m.group(1), i) for i in range(int(m.group(2)), int(m.group(3)) + 1)]
    if op in ('vcc', 'vcc_lo', 'vcc_hi'): return [('s', 'vcc')]
    if op in ('exec', 'exec_lo', 'exec_hi'): return [('s', 'exec')]
    if op == 'm0': return [('s', 'm0')]
    return []

TRANS = ('v_exp_f32', 'v_log_f32', 'v_rcp_f32', 'v_rsq_f32', 'v_sqrt_f32')

class Ins:
    def __init__(self, text, lds=None, private=False, note=None):
        self.text = text.strip()
        self.lds = lds
        self.private = private
        self.done = False
        t = self.text
        sp = t.split(None, 1)
        mn = sp[0]
        self.mn = mn
        rest = sp[1] if len(sp) > 1 else ''
        ops = []
        mods = ''
        pieces = [o.strip() for o in rest.split(',')] if rest else []
        for n, o in enumerate(pieces):
            parts = o.split(None, 1)
            ops.append(parts[0] if parts else '')
            if len(parts) > 1:
                mods = ','.join([parts[1]] + pieces[n+1:]); break
        self.ops = ops; self.mods = mods
        rd, wr = [], []
        R = lambda lst: [x for o in lst for x in regs(o)]
        self.passes = 0
        self.dpp = ('row_' in mods or 'quad_perm' in mods or 'wave_' in mods)
        if mn.startswith('v_mfma'):
            self.kind = 'mfma'
            wr = R(ops[:1]); rd = R(ops[1:])
            self.ab = R(ops[1:3]); self.c = R(ops[3:4])
            self.passes = 8 if '32x32' in mn else 4
        elif mn.startswith('ds_read'):
            self.kind = 'dsrd'; wr = R(ops[:1]); rd = R(ops[1:])
        elif mn.startswith('ds_write') or mn.startswith('ds_add'):
            self.kind = 'dswr'; rd = R(ops)
        elif mn.startswith('buffer_load') or mn.startswith('global_load'):
            if ' lds' in ' ' + mods or 'load_lds' in mn:
                self.kind = 'dma'; rd = R(ops) + [('s', 'm0')]
            else:
                self.kind = 'vmld'; wr = R(ops[:1]); rd = R(ops[1:])
        elif mn.startswith('buffer_store') or mn.startswith('global_store'):
            self.kind = 'vmst'; rd = R(ops)
            self.data = R(ops[:1]) if mn.startswith('buffer') else R(ops[1:2])
            self.wide = ('x4' in mn or 'x3' in mn)
        elif mn.startswith('s_load') or mn.startswith('s_mem'):
            self.kind = 'smem'; wr = R(ops[:1]); rd = R(ops[1:])
        elif mn == 's_barrier': self.kind = 'barrier'
        elif mn == 's_waitcnt': self.kind = 'wait'
        elif mn == 's_nop': self.kind = 'nop'
        elif mn.endswith(':'): self.kind = 'label'
        elif mn.startswith('s_cbranch') or mn == 's_branch' or mn == 's_endpgm' or mn.startswith('s_set') or mn == 's_sleep':
            self.kind = 'ctl'
            if 'vcc' in mn: rd = [('s', 'vcc')]
        elif mn.startswith('s_cmp') or mn.startswith('s_bitcmp'):
            self.kind = 'salu'; rd = R(ops)
        elif mn.startswith('s_'):
            self.kind = 'salu'; wr = R(ops[:1]); rd = R(ops[1:])
            if 'saveexec' in mn: wr += [('s', 'exec')]
        elif mn.startswith('v_'):
            self.kind = 'trans' if mn.split('_e')[0] in TRANS or mn in TRANS else 'valu'
            if 'permlane' in mn and 'swap' in mn:
                wr = R(ops); rd = R(ops)
            elif mn.startswith('v_fmac') or mn.startswith('v_dot2c') or mn.startswith('v_writelane') or self.dpp:
                wr = R(ops[:1]); rd = R(ops)
            elif mn.startswith('v_add_co') or mn.startswith('v_addc_co') or mn.startswith('v_sub_co'):
                wr = R(ops[:2]); rd = R(ops[2:])
            else:
                wr = R(ops[:1]); rd = R(ops[1:])
        elif mn.startswith('.') or mn.startswith(';'):
            self.kind = 'dir'
        else:
            raise ValueError('unknown instruction ' + t)
        self.rd = set(rd); self.wr = set(wr)

class WaitTok:
    kind = 'waittok'
    def __init__(self, toks): self.toks = list(toks)

class Drained:
    kind = 'drained'
    def __init__(self, vm=True, lgkm=False): self.vm = vm; self.lgkm = lgkm

class Raw:
    mn = 'raw'
    kind = 'raw'
    def __init__(self, text, rd=(), wr=(), drains_vm=False, drains_lgkm=False, states=1):
        self.text = text; self.rd = set(x for o in rd for x in regs(o)); self.wr = set(x for o in wr for x in regs(o))
        self.drains_vm = drains_vm; self.drains_lgkm = drains_lgkm; self.states = states

class Alt:
    kind = 'alt'
    n = 0
    def __init__(self, sreg, a, b):
        self.sreg = sreg; self.a = a; self.b = b
        Alt.n += 1; self.id = Alt.n

class Prog:
    def __init__(self, check_lds=True):
        self.items = []
        self.check_lds = check_lds
    def __call__(self, x, **kw):
        if isinstance(x, str):
            out = None
            for line in x.split('\n'):
                line = line.strip()
                if not line: continue
                out = Ins(line, **kw); self.items.append(out)
            return out
        if isinstance(x, (list, tuple)):
            for y in x: self(y)
            return None
        self.items.append(x); return x

    def finalize(self):
        out = []
        vmq = []
        lgq = []
        pos = 0
        lastw = {}
        lastc = {}
        stdata = {}
        bar = 0
        G = 64
        NG = 163840 // G
        lw = [[] for _ in range(NG)]
        lr = [[] for _ in range(NG)]
        stats = dict(nop=0, wait=0, n=0)
        def complete(i):
            if not i.done:
                i.done = True; i.donebar = bar
        def do_wait(vm=None, lg=None):
            nonlocal pos
            w = []
            if vm is not None and vm < len(vmq):
                assert vm <= 63
                w.append(f'vmcnt({vm})')
                while len(vmq) > vm: complete(vmq.pop(0))
            if lg is not None and lg < len(lgq):
                if any(i.kind == 'smem' for i in lgq): lg = 0
                lg = min(lg, 15)
                w.append(f'lgkmcnt({lg})')
                while len(lgq) > lg: complete(lgq.pop(0))
            if w:
                out.append('s_waitcnt ' + ' '.join(w)); pos += 1; stats['wait'] += 1
        def need(queue, pred):
            idx = -1
            for n, i in enumerate(queue):
                if pred(i): idx = n
            return None if idx < 0 else len(queue) - 1 - idx
        def ranges(i):
            if i.lds is None: return []
            return i.lds if isinstance(i.lds, list) else [i.lds]
        def ldscheck(i):
            if not self.check_lds: return
            assert i.lds is not None, 'LDS range missing: ' + i.text
            for lo, hi in ranges(i):
                assert 0 <= lo < hi <= 163840, (lo, hi, i.text)
                for g in range(lo // G, (hi + G - 1) // G):
                    if i.kind == 'dsrd':
                        for wq in lw[g]:
                            if wq.private and i.private:
                                ok = wq.done or wq.kind == 'dswr'
                            else:
                                ok = wq.done and wq.donebar < bar
                            assert ok, f'LDS RAW: {i.text} @{g*G} vs {wq.text}'
                        lr[g].append(i)
                    else:
                        if lr[g]:
                            for rq in lr[g]:
                                if rq.private and i.private:
                                    ok = rq.done or i.kind == 'dswr'
                                else:
                                    ok = rq.done and rq.donebar < bar
                                assert ok, f'LDS WAR: {i.text} @{g*G} vs {rq.text}'
                            lr[g] = []; lw[g] = []
                        lw[g].append(i)
        def hazard(i):
            need_n = 0
            def req(p, n):
                nonlocal need_n
                need_n = max(need_n, n - (pos - p - 1))
            k = i.kind
            isv = k in ('valu', 'trans')
            for r in i.rd | i.wr:
                lw_ = lastw.get(r)
                if lw_:
                    p, j = lw_
                    if j.kind == 'mfma':
                        big = j.passes == 8
                        if k == 'mfma':
                            if r in i.ab: req(p, 12 if big else 8)
                            elif r in i.c:
                                if not (set(i.c) == j.wr and i.passes == j.passes): req(p, 10 if big else 6)
                            else: req(p, 12 if big else 8)
                        else: req(p, 12 if big else 8)
                    elif j.kind == 'valu' and j.mn.startswith('v_dot') and not (i.mn == j.mn and r in i.wr):
                        req(p, 3)
                    elif j.kind in ('valu', 'trans', 'raw') and r in i.rd:
                        if r[0] in 'va':
                            if k == 'mfma': req(p, 2)
                            if isv and getattr(i, 'dpp', False): req(p, 2)
                            if isv and 'permlane' in i.mn: req(p, 2)
                            if isv and (i.mn.startswith('v_readfirstlane') or i.mn.startswith('v_readlane')): req(p, 1)
                            if j.kind == 'trans' and isv: req(p, 1)
                            if j.kind == 'trans' and k in ('dswr', 'vmst'): req(p, 1)
                        else:
                            if isv: req(p, 2)
                            if k in ('vmld', 'vmst', 'dma'): req(p, 5)
                            if k in ('salu', 'ctl', 'smem'): req(p, 1)
                    elif j.kind == 'salu' and r == ('s', 'm0') and k == 'dma': req(p, 1)
            if isv or k in ('dsrd', 'vmld'):
                for r in i.wr:
                    if r in lastc:
                        p, ps = lastc[r]; req(p, 7 if ps == 8 else 3)
                    if r in stdata: req(stdata[r], 2)
            return need_n
        def issue(i):
            nonlocal pos, bar
            touched = i.rd | i.wr
            vm = need(vmq, lambda j: j.kind == 'vmld' and (j.wr & touched))
            lg = need(lgq, lambda j: j.kind in ('dsrd', 'smem') and (j.wr & touched))
            do_wait(vm, lg)
            n = hazard(i)
            if n > 0:
                stats['nop'] += n
                while n > 0:
                    c = min(n, 16); out.append(f's_nop {c-1}'); pos += c; n -= c
            if i.kind in ('dsrd', 'dswr', 'dma'): ldscheck(i)
            out.append(i.text); stats['n'] += 1; i.issued = True
            if i.kind == 'dir' or i.kind == 'label': return
            for r in i.wr: lastw[r] = (pos, i)
            if i.kind == 'mfma':
                for r in i.c: lastc[r] = (pos, i.passes)
            if i.kind == 'vmst' and i.wide:
                for r in i.data: stdata[r] = pos
            if i.kind in ('vmld', 'vmst', 'dma'):
                vmq.append(i)
                if len(vmq) > 63: complete(vmq.pop(0))
            if i.kind in ('dsrd', 'dswr', 'smem'): lgq.append(i)
            if i.kind == 'barrier': bar += 1
            if i.kind == 'wait':
                m = re.search(r'vmcnt\((\d+)\)', i.text)
                if m:
                    while len(vmq) > int(m.group(1)): complete(vmq.pop(0))
                m = re.search(r'lgkmcnt\((\d+)\)', i.text)
                if m:
                    nn = int(m.group(1))
                    assert nn == 0 or not any(j.kind == 'smem' for j in lgq)
                    while len(lgq) > nn: complete(lgq.pop(0))
            if i.kind == 'nop': pos += int(i.ops[0])
            pos += 1
        for it in self.items:
            if it.kind == 'waittok':
                for t_ in it.toks: assert getattr(t_, 'issued', False), 'wait on an instruction not yet issued: ' + t_.text
                ids = set(id(t) for t in it.toks)
                do_wait(need(vmq, lambda j: id(j) in ids), need(lgq, lambda j: id(j) in ids))
            elif it.kind == 'drained':
                if it.vm:
                    while vmq: complete(vmq.pop(0))
                if it.lgkm:
                    while lgq: complete(lgq.pop(0))
            elif it.kind == 'raw':
                touched = it.rd | it.wr
                do_wait(need(vmq, lambda j: j.kind == 'vmld' and (j.wr & touched)), need(lgq, lambda j: j.kind in ('dsrd', 'smem') and (j.wr & touched)))
                n = 0
                for kind in ('valu', 'vmst'):
                    probe = Ins('v_mov_b32 v0, v0'); probe.kind = kind; probe.rd = it.rd; probe.wr = it.wr; probe.dpp = True; probe.mn = 'v_permlane'
                    n = max(n, hazard(probe))
                if n > 0: out.append(f's_nop {n-1}'); pos += n
                out.append(it.text)
                pos += it.states
                for r in it.wr: lastw[r] = (pos - 1, it)
                if it.drains_vm:
                    while vmq: complete(vmq.pop(0))
                if it.drains_lgkm:
                    while lgq: complete(lgq.pop(0))
            elif it.kind == 'alt':
                allr = set()
                for j in it.a + it.b: allr |= j.rd | j.wr
                do_wait(need(vmq, lambda j: j.kind == 'vmld' and (j.wr & allr)), need(lgq, lambda j: j.kind in ('dsrd', 'smem') and (j.wr & allr)))
                pos += 2
                n = max(hazard(j) for j in it.a + it.b)
                pos -= 2
                if n > 0: out.append(f's_nop {n-1}'); pos += n
                assert [j.kind for j in it.a] == [j.kind for j in it.b]
                out.append(f's_cmp_lg_u32 {it.sreg}, 0\ns_cbranch_scc1 Lalt{it.id}_b')
                pos += 2
                for j in it.a: issue(j)
                out.append(f'Lalt{it.id}_e:')
                self.tail = getattr(self, 'tail', [])
                self.tail.append(f'Lalt{it.id}_b:\n' + '\n'.join(j.text for j in it.b) + f'\ns_branch Lalt{it.id}_e')
            else:
                issue(it)
        self.stats = stats
        return '\n'.join(out) + '\n'

def weave(p, spine, fill):
    for x in fill.get(-1, []): p(x)
    for n, s in enumerate(spine):
        p(s)
        for x in fill.get(n, []): p(x)
    extra = sorted(k for k in fill if k >= len(spine))
    for k in extra:
        for x in fill[k]: p(x)

def put(fill, slot, *items):
    fill.setdefault(slot, []).extend(items)

def spread(fill, items, start, end):
    n = len(items)
    for i, it in enumerate(items):
        put(fill, start + (i * (end - start)) // max(n, 1), it)

def _flat(x):
    if isinstance(x, str):
        return [Ins(l) for l in x.split('\n') if l.strip()]
    if isinstance(x, (list, tuple)):
        return [z for y in x for z in _flat(y)]
    return [x]

def _cost(i, tacost):
    k = i.kind
    if k == 'dsrd':
        return (4, 16 if 'b128' in i.mn else 8, 0)
    if k == 'dswr':
        return (4, 52 if 'b128' in i.mn else 16, 0)
    if k in ('dma', 'vmld', 'vmst'):
        return (6, 0, tacost if 'x4' in i.mn else 24)
    if k == 'trans': return (8, 0, 0)
    if k == 'mfma': return (16 if i.passes == 4 else 32, 0, 0)
    if k == 'barrier': return (8, 0, 0)
    if k == 'waittok': return (4, 0, 0)
    if k == 'alt': return (8 + 6*len(i.a), 0, tacost*len(i.a))
    if k == 'raw': return (4*min(6, i.text.count('\n') + 1), 0, 0)
    if k in ('label', 'dir', 'drained'): return (0, 0, 0)
    return (4, 0, 0)

class Sched:
    def __init__(self, spine, b32=20, b16=8):
        self.spine = [_flat(s)[0] for s in spine]
        self.before = {}
        self.streams = {}
        self.order = []
        self.b32 = b32; self.b16 = b16
    def add(self, stream, items, e=0, d=None, ta=64, step=None, prio=1, slack=None, needs=None, split=False, early=None):
        if stream not in self.streams:
            self.streams[stream] = []; self.order.append(stream)
        groups = []
        for j, it in enumerate(items):
            g = _flat(it)
            if not g: continue
            parts = [[x] for x in g] if split else [g]
            for q in parts:
                mn = getattr(q[0], 'mn', '')
                if groups and (mn.startswith('s_cselect') or mn.startswith('s_cbranch') or mn.startswith('s_addc')): groups[-1][1].extend(q)
                else: groups.append((j, q))
        n = len(items)
        for j, g in groups:
            c = [_cost(i, ta) for i in g]
            if step is not None: tg = e + j*step
            elif d is not None and d > e: tg = e + (d - e)*(j + 0.3)/(n + 0.3)
            else: tg = e
            vm = any(x[2] for x in c)
            self.streams[stream].append(dict(ins=g, e=e, d=d, tg=tg, needs=list(needs or []), early=(not vm and step is None) if early is None else early,
                                             slack=3 if slack is None else slack, c=(sum(x[0] for x in c), sum(x[1] for x in c), sum(x[2] for x in c))))
    def at(self, slot, items, stream='fix'):
        self.add(stream + str(slot), [items], e=slot, d=slot)
        self.streams[stream + str(slot)][0]['tg'] = -1000
    def emit(self, p, verbose=None):
        N = len(self.spine)
        t = 0; lds_free = 0; ta_free = 0
        for s in self.streams.values():
            nd = None; nt = None
            for it in reversed(s):
                if it['d'] is None or (nd is not None and nd < it['d']): it['d'] = nd
                nd = it['d']
                if nt is not None and nt < it['tg']: it['tg'] = nt
                nt = it['tg']
        lost = 0
        done = set()
        self.load = []
        for slot in range(-1, N):
            used = 0
            if slot >= 0:
                m = self.spine[slot]
                for x in self.before.get(slot, []): p(x)
                p(m)
                dur = 32 if m.passes == 8 else 16
                budget = self.b32 if dur == 32 else self.b16
                if slot + 1 in self.before: budget -= 4
            else:
                dur = 0; budget = 0
            while True:
                best = None
                for name in self.order:
                    s = self.streams[name]
                    if not s or s[0]['e'] > slot: continue
                    it = s[0]
                    d = it['d'] if it['d'] is not None else N + 1000
                    forced = d <= slot or slot == N - 1
                    if any(id(x) not in done for x in it['needs']):
                        assert not forced, ('dependency not issued', name, slot, it['ins'][0].text)
                        continue
                    if not forced:
                        if slot < 0: continue
                        if not it['early'] and it['tg'] > slot + 0.5: continue
                        over = slot - it['tg'] > it['slack']
                        if used + it['c'][0] > budget + (4 if over else 0) and not (used == 0): continue
                        if it['c'][1] and lds_free > t + dur + (16 if over else 0): continue
                        if it['c'][2] and ta_free > t + dur + 32: continue
                    key = (0 if forced else 1, it['tg'])
                    if best is None or key < best[0]: best = (key, name, forced)
                if best is None: break
                it = self.streams[best[1]].pop(0)
                p(it['ins'])
                for x in it['ins']:
                    done.add(id(x))
                    if x.kind == 'alt':
                        for y in x.a: done.add(id(y))
                used += it['c'][0]
                if it['c'][1]: lds_free = max(lds_free, t + used) + it['c'][1]
                if it['c'][2]: ta_free = max(ta_free, t + used) + it['c'][2]
            if slot + 1 in self.before: used += 4
            step = max(dur, used + (12 if dur == 32 else 8)) if slot >= 0 else used
            lost += step - dur
            t += step
            self.load.append(used)
        self.time = t; self.lost = lost
        if verbose: print(f'   sched {verbose}: slots {N} est time {t} lost {lost}')
```

```python
import sys, struct
from asmlib import *

NAME = 'interleave_layers__sliding_local_dilated__glu_gated_glu__prompt'
MB = 1 << 20
WS_O = [0, 2*MB]; WS_X1 = [4*MB, 6*MB]; WS_X2 = 8*MB
WS_ST1 = [10*MB, 10*MB + (256 << 10)]; WS_ST2 = 10*MB + (512 << 10)
WS_HB = 11*MB; WS_HS = 11*MB + (512 << 10); WS_FL = 11*MB + (768 << 10); WS_EP = WS_FL + 8192; WS_XC = WS_FL + 16384; WS_TS = 14*MB
WS_H = [16*MB, 24*MB]

SX, SWQKV, SWO, SW3, SWD, SOUT, SWS, SDBG = 's[4:7]', 's[8:11]', 's[12:15]', 's[16:19]', 's[20:23]', 's[24:27]', 's[28:31]', 's[32:35]'
sW, sMODE, sT, sROW, sHALO, sG, sG16, sM16, sCB, sW1K, sW4K, sHASP, sPG, sIDLE = ['s%d' % i for i in range(36, 50)]
sMK2, sMK4, sMK1 = 's[50:51]', 's[52:53]', 's[54:55]'
sA1, sRB, sSPIN, sV, sXCC, sW2K = 's56', 's57', 's58', 's59', 's60', 's61'
sW3K, sR8, sRG, sR3 = 's84', 's85', 's86', 's87'
sR8s, sU = 's3', 's95'
sCODE = 's[100:101]'
SW3F = SW3
sA2 = ['s40', 's67', 's68', 's77']
sWd4 = 's64'; sA3 = ['s65', 's66', 's67', 's68']; sJ = ['s%d' % i for i in range(69, 76)]
sH0, sH1, sHB, sX, sY, sE, sES, sSG = 's76', 's77', 's78', 's79', 's80', 's81', 's82', 's83'
vL, vL16, vA1e, vA1o, vW1d, vW1r0, vW1r1, vA1r0, vA1r1, vW2d, vCT, vWown, vWoth, vRM, vFLp, vFLo = ['v%d' % i for i in range(16)]
RES = 16
CSQ, CSK, CSV = 24, 28, 32
vW3d, vW3r, vT0, vTS = 'v36', 'v37', 'v38', 'v39'
vW4 = ['v208', 'v209', 'v210', 'v211']
vW3q = ['v36', 'v252', 'v253', 'v254']
L_A1H = 65536; L_R1 = 73728; L_TAB = 159744
L_W2 = L_TAB - 65536
L_XB = 0
L_NM = L_TAB; L_RS = L_TAB + 320
L_T3 = L_TAB
L_CS3 = L_TAB + 2048
LOG2E = 1.4426950408889634
def f2u(x): return '0x%08x' % struct.unpack('<I', struct.pack('<f', x))[0]
def vr(a, n): return f'v[{a}:{a+n-1}]' if n > 1 else f'v{a}'
def ar(a, n): return f'a[{a}:{a+n-1}]'
def lines(s): return [x.strip() for x in s.strip().split('\n') if x.strip()]
def last(x): return x[-1]

class Gen:
    def __init__(self, **kw):
        self.p = Prog(); self.nts = 0; self.tsn = []; self.slow = []; self.nlab = 0; self.w3tok = {}; self.w3stg = {}
        self.o = dict(ts=False, mimic=True, stop=None, glob=False, fine=None, amp=None, dbg=None, touch=True, rot=True, ctouch=True, wb=False)
        self.o.update(kw)
        self.alias = self.o.get('alias', True)
        if self.alias:
            global WS_ST2
            WS_X1[1] = WS_X1[0]; WS_ST1[1] = WS_ST1[0]; WS_H[1] = WS_H[0]; WS_ST2 = WS_ST1[0]
        for k, v in self.o.items(): setattr(self, 'o_' + k, v)

    def cap(self, fn):
        sv = self.p; self.p = Prog(); fn(); items = self.p.items; self.p = sv
        return items
    def lab(self, s):
        self.nlab += 1; return f'L{s}{self.nlab}'
    def ts(self, name):
        if self.o_amp and name == self.o_amp[0]: self.p('s_memrealtime s[96:97]\ns_waitcnt lgkmcnt(0)')
        if self.o_amp and name == self.o_amp[1]: self.p('s_memrealtime s[98:99]\ns_waitcnt lgkmcnt(0)')
        if not self.o_ts: return
        if self.o_fine and self.o_fine[0] == 'b' and name[0] == 'p' and name[:3] != 'p3_': return
        if self.o.get('win') and name[0] != 'n' and name not in ('start', 'end'): return
        if self.o.get('rt'):
            if name not in ('start', 'a1_landed', 'p1_loop0', 'p1_end0', 'p2_end0', 'p3_go0', 'p3_end0', 'p4_mm0', 'p1_stats1', 'p1_halo1', 'p1_end1', 'p3_go1', 'p3_end1', 'p4_mm1', 'end'): return
            self.p('s_memrealtime s[62:63]'); self.p(f'v_writelane_b32 {vTS}, s62, {self.nts + 31}')
        self.p('s_memtime s[62:63]'); self.p(f'v_writelane_b32 {vTS}, s62, {self.nts}')
        self.tsn.append(name); self.nts += 1
    def win(self, S, key):
        w = self.o.get('win')
        if not w or w[0] != key: return
        for n in range(int(w[1]), int(w[2]), int(w[3])):
            S.before[n] = self.cap(lambda: self.ts(f'n{n}')) + S.before.get(n, [])
    def fts(self, key, name):
        return self.cap(lambda: self.ts(name)) if self.o_fine == key else []

    def stores(self, texts):
        a = [Ins(t) for t in texts]; b = [Ins(t + ' sc1') for t in texts]
        return Alt(sMODE, a, b), a
    def post_flag(self, val, toks):
        p = self.p
        p(f's_add_u32 s91, {sE}, {val}\nv_mov_b32 {vT0}, s91'); p(WaitTok(toks))
        alt, a = self.stores([f'buffer_store_dword {vT0}, {vFLo}, {SWS}, 0 offen'])
        p(alt)
    def spin(self, load, cmp_, mask, pre=''):
        ls, lb = self.lab('s'), self.lab('b')
        items = [Ins(x) for x in lines(cmp_)] + [Ins(f's_and_b64 vcc, vcc, {mask}'), Ins(f's_cbranch_scc1 {ls}'), Ins(f'{lb}:')]
        self.slow.append(f"""{ls}:
s_mov_b32 {sSPIN}, 0
{ls}_l:
{load}
s_add_u32 {sSPIN}, {sSPIN}, 1
s_cmp_gt_u32 {sSPIN}, 30000
s_cbranch_scc1 {ls}_x
s_waitcnt vmcnt(0)
{pre}
{cmp_}
s_nop 0
s_and_b64 vcc, vcc, {mask}
s_cbranch_scc1 {ls}_l
{ls}_x:
s_waitcnt vmcnt(0) lgkmcnt(0)
s_branch {lb}""")
        return items
    def poll_issue(self, vf): return Ins(f'buffer_load_dword {vf}, {vFLp}, {SWS}, 0 offen sc1')
    def poll_check(self, vf, val, mask):
        return self.spin(f'buffer_load_dword {vf}, {vFLp}, {SWS}, 0 offen sc1', f's_add_u32 s91, {sE}, {val}\nv_subrev_u32 v33, s91, {vf}\nv_cmp_lt_u32 vcc, 7, v33', mask)
    def poll(self, val, mask):
        l = self.lab('pl')
        self.p(Raw(f"""s_add_u32 s91, {sE}, {val}
s_mov_b32 {sSPIN}, 30000
{l}:
buffer_load_dword {vT0}, {vFLp}, {SWS}, 0 offen sc1
s_sub_u32 {sSPIN}, {sSPIN}, 1
s_cmp_eq_u32 {sSPIN}, 0
s_cselect_b64 s[88:89], 0, {mask}
s_waitcnt vmcnt(0)
v_subrev_u32 v33, s91, {vT0}
v_cmp_lt_u32 vcc, 7, v33
s_nop 0
s_and_b64 vcc, vcc, s[88:89]
s_cbranch_scc1 {l}""", rd=[vT0], wr=[vT0, 'v33', 's88', 's89', 's91', 'vcc'], drains_vm=True, states=6))
    def touch(self, voff, soff, mask=None):
        if not self.o_touch: return []
        i = Ins(f'buffer_load_dword v34, {voff}, {SWS}, {soff} offen sc1'); i.wr = set()
        return [f's_mov_b64 exec, {mask}', i, 's_mov_b64 exec, -1'] if mask else [i]
    def warm_touch(self, t):
        if not self.o.get('warm', False): return []
        o = lines(f"""s_lshl_b32 s88, s2, 1
s_lshr_b32 s89, {sW}, 1
s_add_u32 s88, s88, s89
s_mul_i32 s88, s88, {28*128}
s_lshl_b32 s89, s2, 2
s_add_u32 s89, s89, {sW}
s_mul_i32 s90, s89, {14*128}
s_lshl_b32 s89, s89, 9
v_lshlrev_b32 {t}, 7, {vL}""")
        for srd, so, m in ((SW3F, 's88', 0xfffffff), (SWD, 's90', 0x3fff), (SWO, 's89', 0xf)):
            i = Ins(f'buffer_load_dword v34, {t}, {srd}, {so} offen'); i.wr = set()
            o.append([f's_mov_b64 exec, {m}', i, 's_mov_b64 exec, -1'])
        return o
    def pf_touch(self, srd, per, idx, t, lanes=16, base=0, half=False):
        o = [f's_mul_i32 s90, {idx}, {per*128}']
        if half: o += ['s_lshr_b32 s89, s90, 16', 's_lshl_b32 s89, s89, 16', 's_add_u32 s90, s90, s89', 's_add_u32 s90, s90, 65536']
        o += [f'v_lshlrev_b32 {t}, 7, {vL}']
        pre = o; o = []
        for i in range(per // lanes):
            x = Ins(f'buffer_load_dword v34, {t}, {srd}, s90 offen offset:{(i*lanes*128) % 4096}'); x.wr = set()
            gq = [f's_mov_b64 exec, {hex((1 << lanes) - 1)}', x, 's_mov_b64 exec, -1']
            if i and (i*lanes*128) % 4096 == 0: gq = ['s_add_u32 s90, s90, 4096'] + gq
            o.append(gq)
        return pre, o
    def code_touch(self):
        if not self.o_ctouch: return []
        i = Ins(f'global_load_dword v35, {vCT}, {sCODE}'); i.wr = set()
        return [i]

    def prologue_a(self):
        p = self.p
        if self.o_amp and self.o_amp[0] == 'entry': p('s_memrealtime s[96:97]')
        p('s_cmp_ge_u32 s2, 256'); p('s_cbranch_scc1 L_end')
        p('s_load_dwordx16 s[64:79], s[0:1], 0'); p('s_load_dwordx4 s[80:83], s[0:1], 64')
        p(f"""s_getpc_b64 {sCODE}
Lpc:
v_lshrrev_b32 v1, 6, v0
v_and_b32 {vL}, 63, v0
s_lshr_b32 s89, s2, 3
s_xor_b32 s89, s89, {int(self.o.get('idxx', 0))}
v_readfirstlane_b32 {sW}, v1
s_lshl_b32 s90, s89, 11
v_and_b32 {vCT}, 3, {vL}
v_lshl_add_u32 {vCT}, v1, 2, {vCT}
v_lshl_add_u32 {vCT}, {vCT}, 7, s90
v_min_u32 {vCT}, L_last-Lpc-4, {vCT}""")
        p(self.code_touch())
        if self.o_ts:
            p(f'v_mov_b32 {vTS}, 0'); p('s_memrealtime s[62:63]'); p(f'v_writelane_b32 {vTS}, s62, 63')
        self.ts('start')
        t = [f'v{i}' for i in range(40, 56)]
        p(f"""s_and_b32 s88, s2, 7
s_lshr_b32 {sRG}, s89, 3
s_and_b32 {sCB}, s89, 7
s_lshr_b32 s90, s88, 1
s_lshl_b32 s90, s90, 2
s_add_u32 s90, s90, {sRG}
s_and_b32 s91, s88, 1
s_lshl_b32 {sR8}, {sRG}, 1
s_add_u32 {sR8}, {sR8}, s91""")
        if not self.o_rot: p(f's_mov_b32 {sR8}, 0')
        if self.o.get('rotx', 1) & 1:
            p(f's_lshl_b32 {sR8}, {sRG}, 1\ns_cmp_eq_u32 {sCB}, {int(self.o.get("slowcb", 3))}\ns_cselect_b32 {sR8}, {sR8}, 0\ns_xor_b32 {sR8}, {sR8}, s88')
        p(f"""s_lshl_b32 {sR8s}, {sR8}, 7
s_lshl_b32 {sROW}, s90, 17
s_lshl_b32 s91, s91, 10
s_add_u32 {sROW}, {sROW}, s91
s_cmp_eq_u32 s90, 0
s_cselect_b32 {sHASP}, 0, 1
s_cselect_b32 s91, 0, 16384
s_sub_u32 {sHALO}, {sROW}, s91
s_lshl_b32 {sA1}, {sW}, 15
s_add_u32 {sA1}, {sA1}, {sROW}
s_lshl_b32 {sW2K}, {sW}, 11
s_mul_i32 {sW3K}, {sW}, 3072
v_lshrrev_b32 {t[0]}, 3, {vL}
v_and_b32 {t[1]}, 7, {vL}
v_lshrrev_b32 {t[2]}, 1, {t[0]}
v_xor_b32 {t[3]}, {t[1]}, {t[2]}
v_lshlrev_b32 {t[3]}, 4, {t[3]}
v_lshl_add_u32 {vA1e}, {t[0]}, 11, {t[3]}
v_xor_b32 v124, 64, {vA1e}
v_add_u32 {vA1o}, {16384-1024}, v124
v_and_b32 {t[4]}, 1, {t[2]}
s_and_b32 s91, {sW}, 1
s_lshl_b32 s91, s91, 2
v_lshl_add_u32 {t[5]}, {t[4]}, 1, s91
v_xor_b32 {t[5]}, {t[5]}, {t[1]}
v_lshlrev_b32 {t[5]}, 4, {t[5]}
s_mul_i32 s91, {sW}, 24576
s_lshl_b32 s92, {sCB}, 7
s_add_u32 s91, s91, s92
v_mul_u32_u24 {t[6]}, 3072, {t[0]}
v_add3_u32 {vW1d}, {t[5]}, {t[6]}, s91""")
        self.srd(4, 64, 2*MB); self.srd(8, 66, 512*3072)
    def srd(self, base, lo, size):
        self.p(f's_mov_b32 s{base}, s{lo}\ns_and_b32 s{base+1}, s{lo+1}, 0xffff\ns_mov_b32 s{base+2}, {size}\ns_mov_b32 s{base+3}, 0x20000')
    def prologue_b(self):
        p = self.p
        t = [f'v{i}' for i in range(40, 56)]
        p(f"""s_getreg_b32 {sXCC}, hwreg(HW_REG_XCC_ID)
s_and_b32 {sXCC}, {sXCC}, 15
s_add_u32 {sXCC}, {sXCC}, 1
s_and_b32 {sM16}, s89, 15
s_lshl_b32 {sG}, s88, 2
s_add_u32 {sG}, {sG}, {sRG}
s_lshr_b32 {sG16}, {sG}, 1
s_cmp_eq_u32 {sRG}, 0
s_cselect_b32 s91, 5, 1
s_sub_u32 {sPG}, {sG}, s91
s_cmp_eq_u32 s90, 0
s_cselect_b32 {sPG}, {sG}, {sPG}
s_lshl_b32 {sW1K}, {sW}, 10
s_lshl_b32 {sW4K}, {sW}, 12
s_and_b32 s91, {sW}, 1
s_lshl_b32 {sRB}, {sG}, 1
s_add_u32 {sRB}, {sRB}, s91
s_and_b32 s91, {sG16}, 1
s_and_b32 {sR3}, s88, 3
s_lshl_b32 {sR3}, {sR3}, 1
s_add_u32 {sR3}, {sR3}, s91
v_lshlrev_b32 {vL16}, 4, {vL}""")
        self.srd(12, 68, 512*1024)
        p(f's_bitcmp1_b32 {sW}, 0\ns_cselect_b32 s72, s74, s72\ns_cselect_b32 s73, s75, s73')
        self.srd(16, 72, 512*3584); self.srd(20, 76, 1792*1024); self.srd(24, 78, 2*MB); self.srd(28, 82, 256*MB); self.srd(32, 80, 256)
        p(f"""s_cmp_ge_u32 {sM16}, 14
s_cselect_b32 {sIDLE}, 1, 0""")
        if not self.o_rot: p(f's_mov_b32 {sR3}, 0')
        if self.o.get('rotx', 1) & 2: p(f's_mov_b32 {sR3}, s88')
        p(f"""s_lshr_b32 s93, {sW}, 1
s_and_b32 s94, {sRG}, 1
s_lshl_b32 s94, s94, 5
s_mov_b32 s62, -1
s_mov_b32 s63, 0
s_lshl_b64 {sMK1}, s[62:63], s94
s_lshl_b32 s91, s93, 4
s_add_u32 s91, s91, s94
s_mov_b32 s62, 0xffff
s_lshl_b64 {sMK2}, s[62:63], s91
s_mul_i32 s91, s93, 28
s_mov_b32 s62, 0xfffffff
s_lshl_b64 {sMK4}, s[62:63], s91""")
        p(f"""s_mul_i32 s91, s93, 28672
s_lshl_b32 s94, {sM16}, 8
s_add_u32 s91, s91, s94
v_mul_u32_u24 {t[6]}, 3584, {t[0]}
v_add3_u32 {vW3d}, {t[5]}, {t[6]}, s91
v_lshlrev_b32 {t[5]}, 2, {t[4]}
v_xor_b32 {t[5]}, {t[5]}, {t[1]}
v_lshlrev_b32 {t[5]}, 4, {t[5]}
v_lshl_add_u32 {t[5]}, {t[0]}, 10, {t[5]}
s_lshl_b32 s91, {sW}, 13
s_add_u32 s94, s91, s92
v_add_u32 {vW2d}, s94, {t[5]}
s_mul_i32 {sWd4}, s93, {7*128*1024}
s_and_b32 s94, {sW}, 1
s_lshl_b32 s94, s94, 15
s_add_u32 {sWd4}, {sWd4}, s94
s_sub_u32 {sWd4}, {sWd4}, s91""")
        p(f"""v_lshrrev_b32 {t[0]}, 4, {vL}
v_and_b32 {t[1]}, 15, {vL}
v_lshrrev_b32 {t[2]}, 2, {t[1]}
v_and_b32 {t[3]}, 3, {vL}
v_lshrrev_b32 {t[4]}, 1, {t[2]}
v_and_b32 {t[5]}, 1, {t[0]}
v_lshl_add_u32 {t[6]}, {t[5]}, 1, {t[4]}
v_xor_b32 {t[6]}, {sW}, {t[6]}
v_lshlrev_b32 {t[6]}, 5, {t[6]}
v_lshl_add_u32 {t[6]}, {t[3]}, 3, {t[6]}
v_lshl_add_u32 {t[6]}, {t[2]}, 7, {t[6]}
v_mul_u32_u24 {t[7]}, 3072, {t[0]}
v_add_u32 {t[6]}, {t[6]}, {t[7]}
v_add_u32 {vW1r0}, {L_R1}, {t[6]}
v_add_u32 {vW1r1}, {L_R1 + 49152}, {t[6]}
v_lshrrev_b32 {t[6]}, 1, {t[1]}
v_xor_b32 {t[6]}, {t[6]}, {t[0]}
v_lshlrev_b32 {t[6]}, 4, {t[6]}
v_lshl_add_u32 {vA1r0}, {t[1]}, 7, {t[6]}
v_xor_b32 {vA1r1}, 64, {vA1r0}
v_lshrrev_b32 {t[7]}, 1, {t[0]}
v_lshrrev_b32 {t[8]}, 1, {t[3]}
v_and_b32 {t[9]}, 1, {t[3]}
v_lshl_add_u32 {t[10]}, {t[9]}, 1, {t[8]}
v_lshl_add_u32 {t[10]}, {t[5]}, 2, {t[10]}
v_lshlrev_b32 {t[10]}, 3, {t[10]}
v_xor_b32 {t[11]}, s93, {t[4]}
v_lshl_add_u32 {t[10]}, {t[11]}, 6, {t[10]}
v_lshl_add_u32 {t[10]}, {t[2]}, 7, {t[10]}
v_lshl_add_u32 {vWown}, {t[7]}, 10, {t[10]}
v_xor_b32 {vWoth}, 64, {vWown}
v_lshl_add_u32 {t[10]}, {t[9]}, 1, {t[5]}
v_lshlrev_b32 {t[10]}, 3, {t[10]}
v_lshl_add_u32 {t[11]}, {t[8]}, 1, {t[4]}
v_xor_b32 {t[11]}, {sW}, {t[11]}
v_lshl_add_u32 {t[10]}, {t[11]}, 5, {t[10]}
v_lshl_add_u32 {t[10]}, {t[2]}, 7, {t[10]}
v_lshl_add_u32 {t[10]}, {t[8]}, 12, {t[10]}
v_lshl_add_u32 {vW3r}, {t[7]}, 13, {t[10]}
v_and_b32 {t[0]}, 31, {vL}
v_lshrrev_b32 {t[1]}, 5, {vL}
v_lshlrev_b32 {t[1]}, 4, {t[1]}
v_lshl_add_u32 {t[0]}, {t[0]}, 11, {t[1]}
s_and_b32 s91, {sW}, 1
s_lshl_b32 s91, s91, 16
s_lshl_b32 s94, s93, 6
s_add_u32 s91, s91, s94
s_add_u32 s91, s91, s92
v_add_u32 {vRM}, s91, {t[0]}
s_lshl_b32 s91, {sG16}, 8
s_add_u32 s91, s91, {WS_FL}
v_lshl_add_u32 {vFLp}, {vL}, 2, s91
s_lshl_b32 s94, {sM16}, 2
s_add_u32 s94, s94, {sW}
s_lshl_b32 s94, s94, 2
s_add_u32 s91, s91, s94
v_mov_b32 {vFLo}, s91
v_mov_b32 {t[0]}, 0x7ff00000
v_cmp_eq_u32 vcc, 0, {vL}
v_cndmask_b32 {vFLo}, {t[0]}, {vFLo}, vcc""")
        for s in range(2):
            p(f"""s_add_u32 s91, {sW}, {4*s}
s_xor_b32 s91, s91, {sR3}
s_lshl_b32 s91, s91, 12
s_lshl_b32 s94, {sG16}, 17
s_add_u32 {sA3[s]}, s91, s94""")
        p(f's_cmp_eq_u32 {sR8}, 7\ns_cselect_b32 s91, 3, {sR8}\ns_lshl_b32 {sJ[0]}, s91, 13')
        for j in range(1, 7):
            p(f's_add_u32 {sJ[j]}, {sJ[j-1]}, 8192\ns_cmp_eq_u32 {sJ[j]}, {7*8192}\ns_cselect_b32 {sJ[j]}, 0, {sJ[j]}')
        p(f"""s_cmp_eq_u32 {sRG}, 3
s_cselect_b32 s91, 5, 1
s_add_u32 {sSG}, {sG}, s91
s_cmp_eq_u32 s90, 15
s_cselect_b32 {sSG}, {sG}, {sSG}
s_lshr_b32 s91, {sSG}, 1
v_mov_b32 v252, {sG16}
v_mov_b32 v253, s91
v_cmp_eq_u32 vcc, 0, {vL}
v_cndmask_b32 v252, v253, v252, vcc
v_lshlrev_b32 v252, 7, v252
s_mov_b32 s91, {WS_EP}
buffer_load_dword v253, v252, {SWS}, s91 offen sc1""")
        c = 40
        p(f"""v_mov_b32 v{c}, -1
v_mov_b32 v{c+1}, -1
v_mov_b32 v{c+2}, -1
v_mov_b32 v{c+3}, -1
v_mov_b32 v{c+4}, 0
v_lshrrev_b32 v{c+5}, 3, {vL}
v_and_b32 v{c+6}, 7, {vL}
v_lshlrev_b32 v{c+6}, 4, v{c+6}
v_lshl_add_u32 v{c+5}, v{c+5}, 11, v{c+6}
s_lshl_b32 s88, {sG}, 14
s_add_u32 s88, s88, s92
s_add_u32 s88, s88, {sW4K}
s_add_u32 s88, s88, {WS_HB}
s_lshl_b32 s91, {sG}, 7
s_lshl_b32 s94, {sW}, 4
s_add_u32 s91, s91, s94
s_add_u32 s91, s91, {WS_HS}
s_cmp_eq_u32 {sCB}, 0
s_cselect_b32 s91, s91, 0x7ff00000
v_mov_b32 v{c+6}, s91
s_mov_b64 exec, 0xffff""")
        self.clr = [p(f'buffer_store_dwordx4 {vr(c,4)}, v{c+5}, {SWS}, s88 offen sc1')]
        p('s_mov_b64 exec, 1')
        self.clr.append(p(f'buffer_store_dwordx4 {vr(c,4)}, v{c+6}, {SWS}, 0 offen sc1'))
        p('s_mov_b64 exec, -1')
        if not self.o_rot: p(f's_mov_b32 {sRG}, 0')
        if self.o.get('rotx', 1) & 4: p(f's_and_b32 {sRG}, s2, 3')

    def publish_xcc(self):
        l = self.lab('px')
        return [f'v_readlane_b32 {sE}, v253, 0', f'v_readlane_b32 {sES}, v253, 1', Raw(f"""s_cmp_lg_u32 {sW}, 0
s_cbranch_scc1 {l}
s_lshl_b32 s88, {sG}, 3
s_add_u32 s88, s88, {sCB}
s_lshl_b32 s88, s88, 8
s_add_u32 s88, s88, {WS_XC}
v_sub_u32 v252, 15, {vL}
v_add_u32 v252, v252, v253
v_mov_b32 v253, {sXCC}
v_lshlrev_b32 v254, 7, {vL}
s_mov_b64 exec, 3
buffer_store_dwordx2 v[252:253], v254, {SWS}, s88 offen sc1
s_mov_b64 exec, -1
{l}:""", rd=['v253', sE, sES], wr=['v252', 'v253', 'v254', 's88'], states=2)]
    def mode_issue(self, va, vd):
        return lines(f"""s_lshl_b32 s88, {sG16}, 12
s_lshl_b32 s89, {sPG}, 11
s_sub_u32 s89, s89, {16*256 - 128}
v_lshlrev_b32 {va}, 8, {vL}
v_add_u32 v{vd}, s89, {va}
v_add_u32 {va}, s88, {va}
v_cmp_gt_u32 vcc, 16, {vL}
v_cndmask_b32 {va}, v{vd}, {va}, vcc
v_mov_b32 v{vd}, s88
v_cmp_gt_u32 vcc, 24, {vL}
v_cndmask_b32 {va}, v{vd}, {va}, vcc
v_add_u32 {va}, {WS_XC}, {va}
buffer_load_dwordx2 {vr(vd,2)}, {va}, {SWS}, 0 offen sc1""")
    def mode_check(self, va, vd):
        o = lines(f"""s_cmp_eq_u32 {sHASP}, 0
s_mov_b32 s92, 0xffffff
s_cselect_b32 s92, 0xffff, s92
s_mov_b32 s93, 0
v_lshrrev_b32 v33, 4, {vL}
v_sub_u32 v33, 15, v33
v_add_u32 v33, {sE}, v33""")
        o += self.spin(f'buffer_load_dwordx2 {vr(vd,2)}, {va}, {SWS}, 0 offen sc1', f'v_cmp_ne_u32 vcc, v33, v{vd}', 's[92:93]')
        o += lines(f'v_cmp_ne_u32 vcc, {sXCC}, v{vd+1}\ns_and_b32 {sMODE}, vcc_lo, 0xffff')
        if self.o_glob: o.append(f's_mov_b32 {sMODE}, 1')
        return o
    def bump_epoch(self):
        l = self.lab('ep')
        return Raw(f"""s_add_u32 s88, {sM16}, {sW}
s_cmp_lg_u32 s88, 0
s_cbranch_scc1 {l}
s_lshl_b32 s88, {sG16}, 7
s_add_u32 s88, s88, {WS_EP}
s_add_u32 s89, {sE}, 16
v_mov_b32 v33, s89
v_mov_b32 v34, 0
s_mov_b64 exec, 1
buffer_store_dword v33, v34, {SWS}, s88 offen
s_mov_b64 exec, -1
{l}:""", wr=['v33', 'v34', 's88', 's89'], states=2)

    def stats_final(self, S, Q, t):
        o = [f'v_mul_f32 {S}, {f2u(-1/512)}, {S}', f'v_mul_f32 {Q}, {f2u(1/512)}, {Q}', f'v_fma_f32 {Q}, -{S}, {S}, {Q}', f'v_max_f32 {Q}, 0, {Q}']
        rnd = lambda x: [f'v_cvt_pk_bf16_f32 {x}, {x}, {x}', f'v_and_b32 {x}, 0xffff0000, {x}']
        if self.o_mimic:
            o += rnd(Q) + [f'v_add_f32 {Q}, {f2u(1e-5)}, {Q}'] + rnd(Q) + [f'v_sqrt_f32 {t}, {Q}'] + rnd(S) + rnd(t) + [f'v_rcp_f32 {Q}, {t}']
        else:
            o += [f'v_add_f32 {Q}, {f2u(1e-5)}, {Q}', f'v_sqrt_f32 {t}, {Q}', f'v_rcp_f32 {Q}, {t}']
        return o
    def stats_issue(self, base, sbase, r):
        o = [Ins(f's_add_u32 {sT}, {sbase}, {base}')]
        for i in range(4): o.append(Ins(f'buffer_load_dwordx4 {vr(r+4*i,4)}, {vL16}, {SWS}, {sT} offen offset:{1024*i} sc1'))
        return o
    def stats_reduce(self, r):
        o = []
        for j in range(4): o.append(f'v_add_f32 v{r+j}, v{r+j}, v{r+4+j}')
        for j in range(4): o.append(f'v_add_f32 v{r+8+j}, v{r+8+j}, v{r+12+j}')
        for j in range(4): o.append(f'v_add_f32 v{r+j}, v{r+j}, v{r+8+j}')
        o += [f'v_permlane16_swap_b32 v{r}, v{r+2}', f'v_permlane16_swap_b32 v{r+1}, v{r+3}',
              f'v_add_f32 v{r}, v{r}, v{r+2}', f'v_add_f32 v{r+1}, v{r+1}, v{r+3}',
              f'v_permlane32_swap_b32 v{r}, v{r+1}', f'v_add_f32 v{r}, v{r}, v{r+1}', f'v_mov_b32 v{r+1}, v{r}',
              f'v_permlane32_swap_b32 v{r}, v{r+1}']
        return o

    def w1_stage(self, s, seq=False):
        slot = L_R1 + (s % 7) * 12288
        pre = []
        if not (seq and s & 1):
            pre += [Ins(f's_xor_b32 {sV}, {sR8}, {s >> 1}'), Ins(f's_mul_i32 {sV}, {sV}, 196608')]
        if s & 1: pre.append(Ins(f's_add_u32 {sV}, {sV}, 98304'))
        out = []
        for part in range(3):
            g = ([Ins(f's_add_u32 m0, {sW3K}, {slot}')] + pre) if part == 0 else []
            g.append(Ins(f'buffer_load_dwordx4 {vW1d}, {SWQKV}, {sV} offen offset:{part*1024} lds', lds=[(slot + q*3072 + part*1024, slot + q*3072 + part*1024 + 1024) for q in range(4)]))
            out.append(g)
        return [sum(out, [])], [last(g) for g in out]
    def a1_chunk(self, L, kc):
        srd = SX if L == 0 else SWS; fl = ' sc1' if L else ''
        rng = lambda o: [(kc*8192 + q*2048 + o*1024, kc*8192 + q*2048 + o*1024 + 1024) for q in range(4)]
        a = Ins(f'buffer_load_dwordx4 {vA1e}, {srd}, {sT} offen{fl} lds', lds=rng(0))
        b = Ins(f'buffer_load_dwordx4 {vA1o}, {srd}, {sT} offen offset:1024{fl} lds', lds=rng(1))
        return [Ins(f's_add_u32 m0, {sW2K}, {kc*8192}'), Ins(f's_xor_b32 {sT}, {sR8s}, {kc*128}'), Ins(f's_add_u32 {sT}, {sT}, {sA1}'), a, b], [a, b]
    def halo_dma(self, L, va, sT=sT):
        srd = SX if L == 0 else SWS; fl = ' sc1' if L else ''
        o = []; tk = []
        for u in range(2):
            d = Ins(f'buffer_load_dwordx4 {va}, {srd}, {sT} offen{fl} lds', lds=[(L_A1H + q*2048 + u*1024, L_A1H + q*2048 + u*1024 + 1024) for q in range(4)])
            o += [Ins(f's_add_u32 m0, {sW2K}, {L_A1H + u*1024}'), Ins(f's_lshl_b32 {sT}, {sW}, 8'), Ins(f's_add_u32 {sT}, {sT}, {u*128}'),
                  Ins(f's_xor_b32 {sT}, {sT}, {sR8s}'), Ins(f's_add_u32 {sT}, {sT}, {sHB if L else sHALO}'), d]
            tk.append(d)
        return o, tk
    def w2_piece(self, i):
        q = (i >> 1) & 3; c = (i & 1)*32768 + (i >> 3)*262144
        o = [Ins(f's_add_u32 m0, {sW1K}, {L_W2 + i*4096}'), Ins(f's_xor_b32 {sT}, {sRG}, {q}'), Ins(f's_lshl_b32 {sT}, {sT}, 16')]
        if c: o.append(Ins(f's_add_u32 {sT}, {sT}, {c}'))
        o.append(Ins(f'buffer_load_dwordx4 {vW2d}, {SWO}, {sT} offen lds', lds=(L_W2 + i*4096, L_W2 + i*4096 + 4096)))
        return o
    W4SLOTS = [[8, 2, 3, 4, 5, 0, 1, 6, 7, 2, 3, 0, 1, 2], [8, 8, 8, 8, 0, 1, 2, 3, 4, 5, 6, 7, 8, 1]]
    @property
    def W4SLOT(self): return self.W4SLOTS[self.layer]
    def w4_setup(self):
        return [f'v_add_u32 {vW4[0]}, {sWd4}, {vW2d}'] + [f'v_add_u32 {vW4[i]}, {7168*i}, {vW4[0]}' for i in range(1, 4)]
    def w4_stage(self, s):
        c, j = divmod(s, 7)
        slot = self.W4SLOT[s] * 16384
        out = []; tk = []
        for h in range(2):
            g = [Ins(f's_add_u32 m0, {sW4K}, {slot}'), Ins(f's_lshl4_add_u32 {sT}, {sJ[j]}, {c*65536}')]
            for i in (2*h, 2*h+1):
                d = Ins(f'buffer_load_dwordx4 {vW4[i]}, {SWD}, {sT} offen offset:{i*1024} lds', lds=[(slot + q*4096 + i*1024, slot + q*4096 + i*1024 + 1024) for q in range(4)])
                g.append(d); tk.append(d)
            out.append(g)
        return out, tk
    def w3_quad(self, q, stg):
        c, kq = divmod(q, 8)
        o = [Ins(f's_add_u32 m0, {sW4K}, {stg}'), Ins(f's_xor_b32 {sU}, {sR3}, {kq}'), Ins(f's_mul_i32 {sU}, {sU}, {4*57344}')]
        if c: o.append(Ins(f's_add_u32 {sU}, {sU}, 128'))
        tk = [Ins(f'buffer_load_dwordx4 {vW3q[i]}, {SW3}, {sU} offen offset:{i*1024} lds', lds=[(stg + w*4096 + i*1024, stg + w*4096 + i*1024 + 1024) for w in range(4)]) for i in range(4)]
        self.w3tok[q] = tk; self.w3stg[q] = stg
        return self.split_dma(o + tk)
    def w3_reads(self, n):
        stg = self.w3stg[n >> 2]; i = n & 3
        va, off = [(vW3r, 0), ('v212', 49152), ('v213', 98304)][min(2, stg // 49152)]
        return [Ins(f'ds_read_b64_tr_b16 {ar(4*n+2*r,2)}, {va} offset:{stg - off + i*1024 + r*512}', lds=[(stg + w*4096 + i*1024, stg + w*4096 + i*1024 + 1024) for w in range(4)]) for r in range(2)]
    def w3_cs(self, n):
        return f'v_mfma_f32_16x16x32_bf16 v[216:219], v[220:223], {ar(4*n,4)}, {0 if n % 32 == 0 else "v[216:219]"}'
    def w3_setup(self):
        return [f'v_add_u32 v212, 49152, {vW3r}', f'v_add_u32 v213, 98304, {vW3r}']
    def w3_take(self, ns):
        p = self.p
        rs = [self.w3_reads(n) for n in ns]
        for i, n in enumerate(ns):
            p(rs[i])
            if i >= 3: p(self.w3_cs(ns[i-3]))
        for n in ns[-3:]: p(self.w3_cs(n))
        return sum(rs, [])
    def w3_sel(self):
        return lines(f"""v_lshrrev_b32 v220, 2, {vL}
v_lshrrev_b32 v221, 4, {vL}
v_xor_b32 v220, v220, v221
v_and_b32 v220, 1, v220
v_cmp_eq_u32 vcc, 0, v220
v_mov_b32 v221, 0x3f803f80
v_cndmask_b32 v220, 0, v221, vcc
v_mov_b32 v221, v220
v_mov_b32 v222, v220
v_mov_b32 v223, v220""")
    CSW = [34, 34]
    def w3_cs_store(self, c):
        o = lines(f"""v_cvt_pk_bf16_f32 v217, v216, v216
v_and_b32 v218, 0xffff0000, v217
v_sub_f32 v216, v216, v218
v_cvt_pk_bf16_f32 v218, v216, v216
v_and_b32 v219, 0xffff0000, v218
v_sub_f32 v216, v216, v219
v_and_b32 v217, 0xffff, v217
v_or_b32 v218, v219, v217
v_cvt_pk_bf16_f32 v219, v216, 0
v_lshlrev_b32 v217, 3, {vL}
s_lshl_b32 s90, {sW}, 9
s_add_u32 s90, s90, {L_CS3 + c*256}
v_add_u32 v217, s90, v217""")
        o.append(['s_mov_b64 exec, 0xffffffff', Ins('ds_write_b64 v217, v[218:219]', lds=(L_CS3, L_CS3 + 2048), private=True), 's_mov_b64 exec, -1'])
        return o

    ATT = dict(ST=144, VS=154, CQ=194, QB=202, KB=210, VB=220, CA=128, CB=132, CB0=136, MA=140, SB=96, PP=230, OA=56, T=246)
    def att_masks(self, T):
        A = self.ATT; CA, CB, CB0, MA = A['CA'], A['CB'], A['CB0'], A['MA']
        o = lines(f"""v_and_b32 v{T}, 15, {vL}
v_lshrrev_b32 v{T+1}, 4, {vL}
v_lshlrev_b32 v142, 2, v{T}
v_add_u32 v142, {L_NM}, v142
v_lshlrev_b32 v143, 4, v{T+1}
v_add_u32 v143, {L_NM}, v143
v_lshlrev_b32 v{T+1}, 2, v{T+1}
v_sub_u32 v{T}, v{T}, v{T+1}
v_mov_b32 v{T+4}, 0xff800000
v_mov_b32 v{T+5}, 0xffff
v_mov_b32 v{T+6}, 0xffff0000
s_cmp_eq_u32 {sHASP}, 0
s_cselect_b64 s[88:89], 0, -1""")
        for j in range(4):
            o += lines(f"""v_subrev_u32 v{T+1}, {j}, v{T}
v_add_u32 v{T+7}, 16, v{T+1}
v_cmp_gt_u32 vcc, 8, v{T+1}
v_cmp_gt_u32 s[90:91], 8, v{T+7}
v_cndmask_b32 v{CA+j}, v{T+4}, 0, vcc
v_cndmask_b32 v{T+8+j}, 0, v{T+5+(j&1)}, vcc
v_cndmask_b32 v{CB+j}, v{T+4}, 0, s[90:91]
v_cndmask_b32 v{CB0+j}, v{T+4}, v{CB+j}, s[88:89]""")
        o += [f'v_or_b32 v{MA}, v{T+8}, v{T+9}', f'v_or_b32 v{MA+1}, v{T+10}, v{T+11}']
        return o
    def att_ones(self): return [f'v_mov_b32 v{112+i}, 0x3f803f80' for i in range(4)]
    def att_tabreads(self):
        A = self.ATT; tab = (L_NM, L_NM + 640)
        o = [Ins(f'ds_read2_b32 {vr(A["ST"]+2*u,2)}, v142 offset0:{16*u} offset1:{80+16*u}', lds=tab) for u in range(5)]
        for u in range(5):
            o.append(Ins(f'ds_read_b128 {vr(A["VS"]+8*u,4)}, v143 offset:{64*u}', lds=tab))
            o.append(Ins(f'ds_read_b128 {vr(A["VS"]+8*u+4,4)}, v143 offset:{64*u+320}', lds=tab))
        return o
    def attention(self, L, extra):
        p = self.p
        QA, KA, VA = 40, 56, 76
        A = self.ATT
        ST, VS, CQ, QB, KB, VB, CA, CB, CB0, MA, SB, PP, OA, T = [A[k] for k in 'ST VS CQ QB KB VB CA CB CB0 MA SB PP OA T'.split()]
        lo, hi = 'op_sel_hi:[1,0,1]', 'op_sel:[0,1] op_sel_hi:[1,1]'
        ONES = 112
        for u in range(5):
            st = vr(ST + 2*u, 2)
            for j in (0, 2): p(f'v_pk_fma_f32 {vr(KA+4*u+j,2)}, {vr(CSK+j,2)}, {st}, {vr(KA+4*u+j,2)} {lo}')
            if u:
                for j in (0, 2): p(f'v_pk_fma_f32 {vr(QA+4*u-4+j,2)}, {vr(CSQ+j,2)}, {st}, {vr(QA+4*u-4+j,2)} {lo}')
            for j in (0, 2): p(f'v_pk_mul_f32 {vr(KA+4*u+j,2)}, {vr(KA+4*u+j,2)}, {st} {hi}')
            if u:
                for j in range(2): p(f'v_cvt_pk_bf16_f32 v{QB+2*u-2+j}, v{QA+4*u-4+2*j}, v{QA+4*u-4+2*j+1}')
            for j in range(2): p(f'v_cvt_pk_bf16_f32 v{KB+2*u+j}, v{KA+4*u+2*j}, v{KA+4*u+2*j+1}')
        p(extra.get('a', []))
        for t in range(4):
            p(f'v_mfma_f32_16x16x16_bf16 {vr(QA+4*t,4)}, {vr(KB+2*(t+1),2)}, {vr(QB+2*t,2)}, {vr(CA,4)}')
            p(f'v_mul_f32 v{CQ+2*t}, {f2u(0.25*LOG2E)}, v{ST+2*t+3}')
            p(f'v_mfma_f32_16x16x16_bf16 {vr(SB+4*t,4)}, {vr(KB+2*t,2)}, {vr(QB+2*t,2)}, {vr(CB0 if t == 0 else CB,4)}')
        p(self.att_ones()); p(extra.get('b', []))
        for u in range(5):
            for j in (0, 2): p(f'v_pk_fma_f32 {vr(VA+4*u+j,2)}, {vr(VS+8*u+j,2)}, {vr(CSV,2)}, {vr(VA+4*u+j,2)} {lo}')
            for j in (0, 2): p(f'v_pk_mul_f32 {vr(VA+4*u+j,2)}, {vr(VA+4*u+j,2)}, {vr(VS+8*u+4+j,2)}')
            for j in range(2): p(f'v_cvt_pk_bf16_f32 v{VB+2*u+j}, v{VA+4*u+2*j}, v{VA+4*u+2*j+1}')
        for t in range(4):
            for j in range(4): p(f'v_max_f32 v{QA+4*t+j}, v{QA+4*t+j}, v{SB+4*t+j}')
        for t in range(4): p(f'v_max3_f32 v{T+t}, v{QA+4*t}, v{QA+4*t+1}, v{QA+4*t+2}')
        for t in range(4): p(f'v_max_f32 v{T+t}, v{T+t}, v{QA+4*t+3}')
        def reduce4(op, ex=None):
            p(f"""v_permlane16_swap_b32 v{T}, v{T+1}
v_permlane16_swap_b32 v{T+2}, v{T+3}
{op} v{T}, v{T}, v{T+1}
{op} v{T+2}, v{T+2}, v{T+3}
v_permlane32_swap_b32 v{T}, v{T+2}
{op} v{T}, v{T}, v{T+2}""")
            if ex: p(ex)
            p(f"""v_mov_b32 v{T+2}, v{T}
v_permlane32_swap_b32 v{T}, v{T+2}
v_mov_b32 v{T+1}, v{T}
v_mov_b32 v{T+3}, v{T+2}
v_permlane16_swap_b32 v{T}, v{T+1}
v_permlane16_swap_b32 v{T+2}, v{T+3}""")
        reduce4('v_max_f32')
        for t in range(4): p(f'v_mul_f32 v{CQ+2*t+1}, v{T+t}, v{CQ+2*t}')
        for t in range(4):
            for j in (0, 2): p(f'v_pk_fma_f32 {vr(QA+4*t+j,2)}, {vr(QA+4*t+j,2)}, {vr(CQ+2*t,2)}, {vr(CQ+2*t,2)} op_sel:[0,0,1] op_sel_hi:[1,0,1] neg_lo:[0,0,1] neg_hi:[0,0,1]')
        for t in range(4):
            for j in range(4): p(f'v_exp_f32 v{QA+4*t+j}, v{QA+4*t+j}')
        for t in range(4):
            p(f"""v_cvt_pk_bf16_f32 v{PP+4*t}, v{QA+4*t}, v{QA+4*t+1}
v_cvt_pk_bf16_f32 v{PP+4*t+1}, v{QA+4*t+2}, v{QA+4*t+3}
v_and_b32 v{PP+4*t+2}, v{MA}, v{PP+4*t}
v_and_b32 v{PP+4*t+3}, v{MA+1}, v{PP+4*t+1}
v_xor_b32 v{PP+4*t}, v{PP+4*t}, v{PP+4*t+2}
v_xor_b32 v{PP+4*t+1}, v{PP+4*t+1}, v{PP+4*t+3}""")
            if t: p(f'v_mfma_f32_16x16x32_bf16 {vr(SB+4*t-4,4)}, {vr(ONES,4)}, {vr(PP+4*t-4,4)}, 0')
            if t: p(f'v_mfma_f32_16x16x32_bf16 {vr(OA+4*t-4,4)}, {vr(VB+2*t-2,4)}, {vr(PP+4*t-4,4)}, 0')
        p(f'v_rcp_f32 v{SB}, v{SB}')
        p(f'v_mfma_f32_16x16x32_bf16 {vr(SB+12,4)}, {vr(ONES,4)}, {vr(PP+12,4)}, 0')
        p(f'v_mfma_f32_16x16x32_bf16 {vr(OA+12,4)}, {vr(VB+6,4)}, {vr(PP+12,4)}, 0')
        for t in range(4):
            if t: p(f'v_rcp_f32 v{SB+4*t}, v{SB+4*t}')
            if t:
                for j in range(4): p(f'v_mul_f32 v{OA+4*t-4+j}, v{SB+4*t-4}, v{OA+4*t-4+j}')
        for j in range(4): p(f'v_mul_f32 v{OA+12+j}, v{SB+12}, v{OA+12+j}')
        for tp in range(2):
            b = PP + 4*tp
            for h in range(2):
                t = 2*tp + h
                for j in range(2): p(f'v_cvt_pk_bf16_f32 v{b+2*h+j}, v{OA+4*t+2*j}, v{OA+4*t+2*j+1}')
        for tp in range(2):
            b = PP + 4*tp
            p(f'v_permlane16_swap_b32 v{b}, v{b+2}\nv_permlane16_swap_b32 v{b+1}, v{b+3}')
        alt, st = self.stores([f'buffer_store_dwordx4 {vr(PP,4)}, {vL16}, {SWS}, {sX} offen', f'buffer_store_dwordx4 {vr(PP+4,4)}, {vL16}, {SWS}, {sY} offen'])
        p(alt)
        return st
    def o_addr(self, L):
        if self.alias:
            return lines(f"""s_mul_i32 {sX}, {sG}, {2*114688}
s_lshl_b32 {sY}, {sCB}, 12
s_add_u32 {sX}, {sX}, {sY}
s_add_u32 {sX}, {sX}, {sW1K}
s_add_u32 {sX}, {sX}, {WS_H[L]}
s_add_u32 {sY}, {sX}, 114688""")
        return lines(f"""s_lshl_b32 {sX}, {sG}, 16
s_lshl_b32 {sY}, {sCB}, 12
s_add_u32 {sX}, {sX}, {sY}
s_add_u32 {sX}, {sX}, {sW1K}
s_add_u32 {sX}, {sX}, {WS_O[L]}
s_add_u32 {sY}, {sX}, 32768""")
    def x1_addr(self, L, d):
        return lines(f"""s_lshl_b32 {d}, {sRB}, 15
s_lshl_b32 s89, {sCB}, 12
s_add_u32 {d}, {d}, s89
s_and_b32 s89, {sW1K}, 2048
s_add_u32 {d}, {d}, s89
s_add_u32 {d}, {d}, {WS_X1[L]}""")
    def st_addr(self, base, d):
        return lines(f"""s_lshl_b32 {d}, {sRB}, 12
s_lshl_b32 s89, {sCB}, 9
s_add_u32 {d}, {d}, s89
s_lshr_b32 s89, {sW}, 1
s_lshl_b32 s89, s89, 8
s_add_u32 {d}, {d}, s89
s_add_u32 {d}, {d}, {base}""")
    def h_addr(self, L):
        return lines(f"""s_mul_i32 {sH0}, {sG16}, {4*114688}
s_lshl_b32 s88, {sM16}, 13
s_add_u32 {sH0}, {sH0}, s88
s_add_u32 {sH0}, {sH0}, {sW1K}
s_add_u32 {sH0}, {sH0}, {WS_H[L]}
s_cmp_lg_u32 {sIDLE}, 0
s_cselect_b32 {sH0}, 0x7fe00000, {sH0}""")
    def touches_p1(self, L, t):
        if not self.o_touch or (self.alias and L == 1 and not self.o.get('t1', True)): return self.o_addr(L)
        o = self.o_addr(L) + [f'v_and_b32 {t}, 7, {vL}', f'v_lshlrev_b32 {t}, 7, {t}', f'v_bfe_u32 v34, {vL}, 3, 1', f'v_mul_u32_u24 v34, {114688 if self.alias else 32768}, v34', f'v_add_u32 {t}, {t}, v34']
        o.append(self.touch(t, sX, 0xffff))
        o += self.x1_addr(L, 's88') + [f'v_lshlrev_b32 {t}, 7, {vL}']
        o.append(self.touch(t, 's88', 0xffff))
        o += self.st_addr(WS_ST1[L], 's88')
        o.append(self.touch(t, 's88', 3))
        if L == 0: o.append(self.touch(vFLp, 0))
        return o
    def touches_h(self, L, t):
        if not self.o_touch or (self.alias and L == 1 and not self.o.get('th1', True)): return []
        o = self.h_addr(L) + lines(f"""v_and_b32 {t}, 7, {vL}
v_lshlrev_b32 {t}, 7, {t}
v_bfe_u32 v34, {vL}, 3, 1
v_lshl_add_u32 {t}, v34, 12, {t}
v_lshrrev_b32 v34, 4, {vL}
v_mul_u32_u24 v34, 114688, v34
v_add_u32 {t}, {t}, v34""")
        o.append(self.touch(t, sH0))
        return o
    def touches_x2(self, t):
        if not self.o_touch: return []
        if self.alias:
            if not self.o.get('tx2', True): return []
            o = self.x1_addr(0, 's88') + [f'v_lshlrev_b32 {t}, 7, {vL}', self.touch(t, 's88', 0xffff)]
            return o + self.st_addr(WS_ST2, 's88') + [self.touch(t, 's88', 3)]
        o = [f's_add_u32 s88, {sROW}, {WS_X2}', self.touch(vRM, 's88', 0xffffffff)]
        o += self.st_addr(WS_ST2, 's88') + [f'v_lshlrev_b32 {t}, 7, {vL}', self.touch(t, 's88', 3)]
        return o

    def p1_wreads(self, s, dq, dk, dv):
        slot = s % 7
        va, off = (vW1r0, slot*12288) if slot < 4 else (vW1r1, slot*12288 - 49152)
        lo = L_R1 + slot*12288
        return [Ins(f'ds_read_b64_tr_b16 {vr(dst+2*rd,2)}, {va} offset:{off + part*1024 + rd*512}', lds=[(lo + q*3072 + part*1024, lo + q*3072 + part*1024 + 1024) for q in range(4)])
                for part, dst in ((0, dq), (1, dk), (2, dv)) for rd in range(2)]
    def p1_aread(self, s, t, dst):
        o = (s >> 1)*8192 + t*2048
        return Ins(f'ds_read_b128 {vr(dst,4)}, {vA1r1 if s & 1 else vA1r0} offset:{o}', lds=(o, o+2048))
    def halo_addr(self, a, b):
        return lines(f"""v_and_b32 {a}, 1023, {vA1r0}
v_not_b32 {b}, {vL}
v_and_b32 {b}, 8, {b}
v_lshlrev_b32 {b}, 3, {b}
v_xor_b32 {a}, {a}, {b}
v_add_u32 {a}, {L_A1H}, {a}
v_xor_b32 {b}, 64, {a}""")
    def halo_read(self, s, dst, a, b):
        o = (s >> 1)*1024
        return Ins(f'ds_read_b128 {vr(dst,4)}, {b if s & 1 else a} offset:{o}', lds=(L_A1H + o, L_A1H + o + 1024))
    W2AT = {9: [1, 2, 3], 10: [4, 5, 6], 11: [7, 8, 9], 12: [10, 11, 12], 13: [13, 14, 15], 15: [0]}

    def split_dma(self, g):
        out = []; cur = []
        for i in g:
            cur.append(i)
            if i.kind in ('dma', 'vmld'): out.append(cur); cur = []
        assert not cur
        return out

    def p1_first(self):
        p = self.p
        QA, KA, VA, AF, ONE, WB, SA = 40, 56, 76, 96, 120, 224, 152
        wtok = {}; atok = {}
        def A(kc):
            o, tk = self.a1_chunk(0, kc); atok[kc] = tk; return self.split_dma(o)
        def W(s):
            o, tk = self.w1_stage(s, seq=True); wtok[s] = tk; return self.split_dma(o[0])
        p(A(0))
        hd, htok = self.halo_dma(0, 'v124'); p(hd)
        p(W(0)); p(W(1)); p(A(1))
        self.prologue_b()
        for i2 in range(2): p(f'buffer_load_dwordx4 {vr(RES+4*i2,4)}, {vRM}, {SX}, {sROW} offen offset:{32*i2}')
        p(self.halo_addr('v124', 'v125'))
        p(f'v_add_u32 v126, {sW2K}, {vA1r0}\nv_xor_b32 v127, 64, v126')
        for i in range(4): p(f'v_mov_b32 v{ONE+i}, 0x3f803f80')
        p(W(2)); p(W(3))
        self.ts('p1_go0')
        plan = {0: ['A2', 'W4'], 1: ['A3', 'W5'], 2: ['A4', 'W6'], 3: ['A5', 'W7'], 4: ['A6', 'W8'], 5: ['A7', 'W9'], 6: ['W10', 'W11'], 7: ['W12', 'W13'], 8: ['W14', 'W15']}
        wb = lambda s: WB + 12*(s & 1)
        one = vr(ONE, 4)
        p(WaitTok(wtok[0] + atok[0] + htok)); p('s_barrier')
        self.ts('a1_landed')
        wr = self.p1_wreads(0, wb(0), wb(0)+4, wb(0)+8); p(wr)
        p(self.halo_read(0, AF+16, 'v124', 'v125'))
        for t in range(4): p(self.p1_aread(0, t, AF + 4*t))
        spine = []; base = []
        for s in range(16):
            base.append(len(spine))
            z = (s == 0)
            wq, wk, wv = vr(wb(s), 4), vr(wb(s)+4, 4), vr(wb(s)+8, 4)
            mm = lambda d, x, y, zz=z: f'v_mfma_f32_16x16x32_bf16 {vr(d,4)}, {x}, {y}, {0 if zz else vr(d,4)}'
            h = vr(AF + 16, 4)
            spine += [mm(CSQ, wq, one), mm(CSK, wk, one), mm(248, one, wv), mm(KA, wk, h), mm(VA, h, wv)]
            for t in range(4):
                a = vr(AF + 4*t, 4)
                spine += [mm(QA + 4*t, wq, a), mm(KA + 4 + 4*t, wk, a), mm(VA + 4 + 4*t, a, wv)]
            kc = s - 2
            if 0 <= kc < 8:
                for hh in range(2):
                    fa, fh = vr(168 + 8*hh, 4), vr(172 + 8*hh, 4); zz = (kc == 0 and hh == 0)
                    spine += [mm(SA, one, fa, zz), mm(SA+4, fa, fa, zz), mm(SA+8, one, fh, zz), mm(SA+12, fh, fh, zz)]
        base.append(len(spine))
        S = Sched(spine)
        w2tok = []; nraw = 0
        for s in range(16):
            b, nb = base[s], base[s+1]
            for it in plan.get(s, []): S.add('dma', A(int(it[1:])) if it[0] == 'A' else W(int(it[1:])), e=b+1, d=nb+6, split=True)
            for i in self.W2AT.get(s, []):
                x = self.w2_piece(i); S.add('dma', [x], e=b+1, d=nb+6, split=True); w2tok.append(last(x))
            if s in (12, 14): S.add('dma', self.w3_quad(nraw, 16384 + 16384*nraw), e=b+1, d=base[s+2]-1, split=True); nraw += 1
        tabw = [Ins(f'ds_write2_b32 v169, v{SA}, v{SA+4} offset0:16 offset1:96', lds=(L_NM, L_NM+640)), Ins(f'ds_write2_b32 v168, v{SA+8}, v{SA+12} offset0:0 offset1:80', lds=(L_NM, L_NM+640))]
        for s in range(16):
            b, nb = base[s], base[s+1]
            toks = list(wr)
            if s < 15: toks += wtok[s+1] + atok[(s+1) >> 1]
            kc = s - 2
            if 0 <= kc < 8: toks += atok[kc]
            if s == 3: toks += self.clr
            if s == 15: toks += tabw
            S.before[b] = self.fts('p10', f'k{s}')
            S.at(b, [WaitTok(toks), 's_barrier'])
            if 0 <= kc < 8:
                x = []
                for hh in range(2):
                    x.append(Ins(f'ds_read_b128 {vr(168+8*hh,4)}, {"v127" if hh else "v126"} offset:{kc*8192}', lds=(kc*8192, kc*8192 + 8192)))
                    x.append(self.halo_read(2*kc + hh, 172 + 8*hh, 'v124', 'v125'))
                S.add('sr', x, e=b+1, d=b+13)
            if s < 15:
                wr = self.p1_wreads(s+1, wb(s+1), wb(s+1)+4, wb(s+1)+8)
                S.add('wr', wr, e=b+1, d=nb-5, step=1)
                S.add('ar', [self.halo_read(s+1, AF+16, 'v124', 'v125')], e=b+5, d=nb-3)
                for t in range(4): S.add('ar', [self.p1_aread(s+1, t, AF + 4*t)], e=b+8+3*t, d=nb+3*t, step=0)
        x = lines(f"""v_and_b32 v168, 3, {vL}
v_cmp_eq_u32 vcc, 1, v168
v_cmp_eq_u32 s[88:89], 2, v168
v_cmp_eq_u32 s[90:91], 3, v168""")
        for bb in (SA+4, SA+12):
            x += [f'v_cndmask_b32 v{bb}, v{bb}, v{bb+1}, vcc', f'v_cndmask_b32 v{bb}, v{bb}, v{bb+2}, s[88:89]', f'v_cndmask_b32 v{bb}, v{bb}, v{bb+3}, s[90:91]']
        x += self.stats_final(f'v{SA}', f'v{SA+4}', f'v{SA+1}') + self.stats_final(f'v{SA+8}', f'v{SA+12}', f'v{SA+9}')
        x += lines(f"""v_and_b32 v168, 15, {vL}
v_lshlrev_b32 v168, 2, v168
v_add_u32 v168, {L_NM}, v168
s_lshl_b32 s88, {sW}, 6
v_add_u32 v169, s88, v168""")
        x.append(['s_mov_b32 exec_lo, 0x00f0000f', 's_mov_b32 exec_hi, 0xf0000f00'] + tabw + ['s_mov_b64 exec, -1'])
        wt = self.o.get('wat', 0)
        S.add('misc', self.warm_touch('v196') + [[f's_cmp_lg_u32 {sIDLE}, 0', 's_cselect_b32 s18, 0, s18']], e=base[wt]+1, d=base[wt+1]-1)
        S.add('misc', self.att_masks(184), e=base[1]+1, d=base[3]-1)
        S.add('misc', self.publish_xcc(), e=base[3]+1, d=base[4])
        S.add('misc', self.touches_p1(0, 'v196'), e=base[6], d=base[9])
        S.add('misc', self.mode_issue('v197', 198), e=base[9], d=base[10]+1)
        S.add('misc', [f'v_add_u32 {vW3q[i]}, {i*(57344-1024)}, {vW3d}' for i in range(1, 4)], e=base[10], d=base[11])
        if self.o.get('ct2', False): S.add('misc', [self.code_touch()], e=base[10], d=base[11])
        S.add('misc', x, e=base[10]+2, d=base[14])
        S.add('misc', self.p2_setup(0), e=base[13], d=base[14])
        S.add('misc', [self.mode_check('v197', 198)], e=base[14], d=base[15]-1)
        S.add('misc', self.att_tabreads(), e=base[15]+1, d=base[16]-2)
        self.win(S, '10')
        S.emit(p, 'p1 L0')
        self.ts('p1_loop0')
        p(f'v_mov_b32 v{CSV}, v248')
        p('s_waitcnt lgkmcnt(0)'); p('s_barrier')
        p(self.w3_quad(2, 49152)); p(self.touches_h(0, 'v124'))
        st = self.attention(0, {'a': self.w3_quad(3, 65536)})
        self.ts('p1_attn0')
        self.post_flag(1, st)
        self.ts('p1_end0')
        return w2tok

    def p1_second(self, pre):
        p = self.p
        QA, KA, VA, AF, WQ, WK, WV = 40, 56, 76, 96, 112, 128, 192
        wtok = dict(pre); atok = {}
        def A(kc):
            o, tk = self.a1_chunk(1, kc); atok[kc] = tk; return self.split_dma(o)
        p('v_mov_b32 v120, v127')
        dst = lambda s: (WQ + 4*(s & 1), WK + 4*s, WV + 4*s)
        p(WaitTok(wtok[0])); p('s_barrier')
        wr = self.p1_wreads(0, *dst(0)); p(wr)
        self.poll(5, sMK1)
        self.ts('p1_go1')
        p(A(0)); p(A(1))
        p(self.stats_issue(WS_ST2, 's92', 240))
        p(A(2))
        p(WaitTok(atok[0])); p('s_barrier')
        for t in range(4): p(self.p1_aread(0, t, AF + 4*t))
        self.ts('p1_stats1')
        spine = []
        for s in range(16):
            z = (s == 0)
            dq, dk, dv = dst(s)
            mm = lambda d, x, y: f'v_mfma_f32_16x16x32_bf16 {vr(d,4)}, {x}, {y}, {0 if z else vr(d,4)}'
            for t in range(4):
                a = vr(AF + 4*t, 4)
                spine += [mm(QA + 4*t, vr(dq,4), a), mm(KA + 4 + 4*t, vr(dk,4), a), mm(VA + 4 + 4*t, a, vr(dv,4))]
        hb = len(spine)
        for s in range(16):
            a = vr(AF + 4*(s & 3), 4); k, v = vr(KA, 4), vr(VA, 4)
            spine.append(f'v_mfma_f32_16x16x32_bf16 {k}, {vr(WK+4*s,4)}, {a}, {0 if s == 0 else k}')
            spine.append(f'v_mfma_f32_16x16x32_bf16 {v}, {a}, {vr(WV+4*s,4)}, {0 if s == 0 else v}')
        S = Sched(spine)
        w2tok = []
        hd, htok = self.halo_dma(1, 'v120')
        for s in range(16):
            b = 12*s
            if s == 0:
                for st_ in range(7):
                    if st_ not in wtok:
                        o, tk = self.w1_stage(st_); wtok[st_] = tk; S.add('dma', self.split_dma(o[0]), e=0, d=12*(st_-1) - 14, step=3, split=True)
            if s < 5: S.add('dma', A(s+3), e=b+1, d=min(b+30, 12*(2*s+5) - 14), split=True)
            if s + 7 < 16:
                o, tk = self.w1_stage(s+7, seq=(s > 0)); wtok[s+7] = tk; S.add('dma', self.split_dma(o[0]), e=b+1, d=b+36, split=True)
            if s == 8: S.add('dma', self.split_dma(hd), e=b+1, d=b+36, split=True)
        w2 = [self.w2_piece(i) for i in list(range(1, 16)) + [0]]; w2tok = [last(x) for x in w2]
        NW2 = 9
        S.add('dma', w2[:NW2], e=12*14+1, d=hb+30, split=True)
        tabw = [Ins('ds_write2_b32 v125, v240, v241 offset0:16 offset1:96', lds=(L_NM, L_NM+640)), Ins('ds_write_b32 v126, v125', lds=[(L_NM, L_NM+64), (L_RS, L_RS+64)])]
        for s in range(16):
            b = 12*s
            toks = list(wr)
            if s < 15: toks += wtok[s+1] + atok[(s+1) >> 1]
            if s == 15: toks += tabw + htok
            S.before[b] = self.fts('p11', f'k{s}')
            S.at(b, [WaitTok(toks), 's_barrier'])
            if s < 15:
                wr = self.p1_wreads(s+1, *dst(s+1))
                S.add('wr', wr, e=b+1, d=b+9, step=1)
                for t in range(4): S.add('ar', [self.p1_aread(s+1, t, AF + 4*t)], e=b+3+3*t, d=b+8+3*t, step=0)
        S.before[hb] = self.cap(lambda: self.ts('p1_loop1'))
        for s in range(16):
            e = 12*15 + 3 + 3*s if s < 4 else hb + 2*(s-4) + 2
            S.add('ar', [self.halo_read(s, AF + 4*(s & 3), 'v122', 'v123')], e=e, d=max(e, hb + 2*s - 4))
        lh = self.lab('hs')
        S.add('misc', [Raw(f"""s_bitcmp1_b32 {sW}, 0
s_cbranch_scc0 {lh}
s_lshl_b32 s88, {sG}, 14
s_add_u32 s88, s88, {WS_HB - 56*2048}
s_mov_b32 exec_lo, 0xff000000
s_mov_b32 exec_hi, 0xff000000
buffer_store_dwordx4 {vr(RES,4)}, {vRM}, {SWS}, s88 offen sc1
buffer_store_dwordx4 {vr(RES+4,4)}, {vRM}, {SWS}, s88 offen offset:32 sc1
s_mov_b64 exec, -1
{lh}:""", rd=[vr(RES, 8)], wr=['s88'], states=2)], e=10, d=11)
        x = self.stats_reduce(240) + self.stats_final('v240', 'v241', 'v242') + lines(f"""v_and_b32 v124, 15, {vL}
v_lshlrev_b32 v124, 3, v124
v_bfe_u32 v125, {vL}, 4, 1
v_lshl_add_u32 v124, v125, 2, v124
s_and_b32 s88, {sW}, 1
s_lshl_b32 s88, s88, 7
s_add_u32 s88, s88, {L_NM}
v_add_u32 v125, s88, v124""")
        x.append(tabw[0])
        lh = self.lab('ht')
        x.append(Raw(f"""s_lshl_b32 s88, {sCB}, 2
s_add_u32 s88, s88, {sW}
s_cmp_lg_u32 s88, 1
s_cbranch_scc1 {lh}
s_lshl_b32 s88, {sG}, 7
s_add_u32 s88, s88, {WS_HS - 96}
s_mov_b32 exec_lo, 0xf000f000
s_mov_b32 exec_hi, 0
buffer_store_dword v240, v124, {SWS}, s88 offen sc1
buffer_store_dword v241, v124, {SWS}, s88 offen offset:32 sc1
s_mov_b64 exec, -1
{lh}:""", rd=['v240', 'v241', 'v124'], wr=['s88'], states=2))
        S.add('misc', x, e=12, d=12*5, step=0.8)
        S.add('misc', self.touches_p1(1, 'v121') + ([self.code_touch()] if self.o.get('ct2', False) else []), e=12*9, d=12*10 - 1)
        S.add('misc', [f's_lshl_b32 s88, {sPG}, 7', f's_add_u32 s94, s88, {WS_HS}', [f's_cmp_eq_u32 {sHASP}, 0', 's_cselect_b32 s94, 0x7ff00000, s94'], f'v_and_b32 v124, 15, {vL}', 'v_lshlrev_b32 v124, 2, v124',
                       f'buffer_load_dword v125, v124, {SWS}, s94 offen sc1', f's_add_u32 s88, {sW2K}, {L_A1H}', f'v_add_u32 v121, s88, {vL16}'], e=12*10, d=12*12, step=1)
        S.add('misc', lines(f"""v_and_b32 v126, 7, {vL}
v_lshlrev_b32 v126, 2, v126
v_bfe_u32 v127, {vL}, 3, 1
v_mul_u32_u24 v127, 320, v127
v_add_u32 v126, v126, v127
v_bfe_u32 v127, {vL}, 4, 1
v_lshl_add_u32 v126, v127, 5, v126
v_add_u32 v126, {L_NM}, v126"""), e=12*11, d=12*14, step=1)
        r = [Ins(f'ds_read_b32 v{122+u}, v121 offset:{u*1024}', lds=(L_A1H, L_A1H + 8192), private=True) for u in range(2)]
        for d in htok: d.private = True
        hd2, _ = self.halo_dma(1, 'v120', 's90')
        S.add('misc', [[WaitTok(htok)] + r], e=12*14, d=12*14+1)
        S.add('misc', [self.spin('s_mov_b32 s93, m0\n' + '\n'.join(i.text for i in hd2) + '\ns_mov_b32 m0, s93', 'v_max_u32 v122, v122, v123\nv_cmp_eq_u32 vcc, -1, v122', 'exec',
                                 pre='ds_read_b32 v122, v121\nds_read_b32 v123, v121 offset:1024\ns_waitcnt lgkmcnt(0)')], e=12*14+5, d=12*14+5)
        S.add('misc', [self.spin(f'buffer_load_dword v125, v124, {SWS}, s94 offen sc1', 'v_cmp_eq_u32 vcc, -1, v125', 'exec'), tabw[1]], e=12*14+7, d=12*14+10)
        S.add('misc', self.halo_addr('v122', 'v123'), e=12*14+8, d=12*15+1)
        S.add('misc', self.p2_setup(1), e=12*15+2, d=hb+7)
        S.add('misc', self.att_masks(192), e=hb+8, d=hb+29)
        tr = self.att_tabreads()
        S.add('tab', tr[:5], e=hb+20, d=hb+30); S.add('tab', tr[5:], e=hb+31)
        self.win(S, '11')
        S.emit(p, 'p1 L1')
        self.ts('p1_halo1')
        st = self.attention(1, {'a': w2[NW2:NW2+4], 'b': w2[NW2+4:] + self.touches_h(1, 'v121')})
        self.ts('p1_attn1')
        self.post_flag(6, st)
        self.ts('p1_end1')
        return w2tok

    def epi_pre(self):
        o = [f'v_add_u32 v122, {sW4K}, {vL16}', 'v_xor_b32 v123, 8192, v122']
        for i in range(8): o += [f'v_lshlrev_b32 v{224+2*i}, 16, v{RES+i}', f'v_and_b32 v{225+2*i}, 0xffff0000, v{RES+i}']
        o += lines(f"""v_and_b32 v240, 31, {vL}
v_lshlrev_b32 v240, 3, v240
v_lshrrev_b32 v241, 5, {vL}
v_lshl_add_u32 v240, v241, 2, v240""")
        return o
    def tile_spine(self, n, D=4):
        sp = sum((self.tile_mfmas(k, k == 0) for k in range(n - D)), [])
        tail = [self.tile_mfmas(k, False) for k in range(n - D, n)]
        return sp + [t[0] for t in tail] + [t[1] for t in tail]
    def xwrites(self):
        rng = lambda q: [(L_XB + w*4096 + q*1024, L_XB + w*4096 + q*1024 + 1024) for w in range(4)]
        return [Ins(f'ds_write_b128 v122, {vr(104+4*q,4)} offset:{L_XB + q*1024}', lds=rng(q)) for q in range(4)]
    def tile_epilogue(self, kind, L, ws):
        p = self.p
        OWN, OTH, X = 40, 104, 72
        rng = lambda q: [(L_XB + w*4096 + q*1024, L_XB + w*4096 + q*1024 + 1024) for w in range(4)]
        for i in range(0, 16, 2): p(f'v_pk_add_f32 {vr(OWN+i,2)}, {vr(OWN+i,2)}, {vr(224+i,2)}')
        p(WaitTok(ws)); p('s_barrier')
        for q in range(4): p(f'ds_read_b128 {vr(X+4*q,4)}, v123 offset:{L_XB + q*1024}', lds=rng(q))
        for q in range(4):
            for i in (4*q, 4*q+2): p(f'v_pk_add_f32 {vr(OWN+i,2)}, {vr(OWN+i,2)}, {vr(X+i,2)}')
            for i in (2*q, 2*q+1): p(f'v_cvt_pk_bf16_f32 v{RES+i}, v{OWN+2*i}, v{OWN+2*i+1}')
        if kind == 'out':
            p(f'buffer_store_dwordx4 {vr(RES,4)}, {vRM}, {SOUT}, {sROW} offen')
            p(f'buffer_store_dwordx4 {vr(RES+4,4)}, {vRM}, {SOUT}, {sROW} offen offset:32')
            return None
        if kind == 'x1': alt, st = self.stores([f'buffer_store_dwordx4 {vr(RES,4)}, {vL16}, {SWS}, {sX} offen', f'buffer_store_dwordx4 {vr(RES+4,4)}, {vL16}, {SWS}, {sX} offen offset:1024'])
        else:
            va = 'v242' if self.alias else vRM
            alt, st = self.stores([f'buffer_store_dwordx4 {vr(RES,4)}, {va}, {SWS}, {sX} offen', f'buffer_store_dwordx4 {vr(RES+4,4)}, {va}, {SWS}, {sX} offen offset:32'])
        p(alt)
        p(f'v_pk_add_f32 v[88:89], {vr(OWN,2)}, {vr(OWN+2,2)}\nv_pk_mul_f32 v[90:91], {vr(OWN,2)}, {vr(OWN,2)}\nv_pk_fma_f32 v[90:91], {vr(OWN+2,2)}, {vr(OWN+2,2)}, v[90:91]')
        for i in range(4, 16, 2):
            p(f'v_pk_add_f32 v[88:89], v[88:89], {vr(OWN+i,2)}\nv_pk_fma_f32 v[90:91], {vr(OWN+i,2)}, {vr(OWN+i,2)}, v[90:91]')
        p("""v_add_f32 v88, v88, v89
v_add_f32 v90, v90, v91
v_permlane32_swap_b32 v88, v90
v_add_f32 v88, v88, v90""")
        alt2, st2 = self.stores([f'buffer_store_dword v88, v240, {SWS}, {sY} offen'])
        p(alt2)
        return st + st2
    ARING = [128 + 4*i for i in range(16)] + [224, 228, 232, 236, 248, 252]
    WPRE = [128 + 4*i for i in range(16)] + [212, 216, 220, 224, 228, 232, 236, 248]
    big = False
    def wregs(self, k):
        if self.big and k < 4*self.NWP: return self.WPRE[2*k], self.WPRE[2*k+1]
        r = 72 + 8*((k + 2) % 4)
        return r, r + 4
    def areg(self, k):
        if self.big: return ar(4*k if k < 28 else 128 + 4*(k - 28), 4)
        return vr(self.ARING[k % 22], 4)
    def wfrag_reads(self, k, base, va, vb, lo):
        own, oth = self.wregs(k)
        return [Ins(f'ds_read_b64_tr_b16 {vr(r+2*rd,2)}, {ad} offset:{base + rd*512}', lds=lo) for r, ad in ((oth, vb), (own, va)) for rd in range(2)]
    def tile_mfmas(self, k, z):
        own, oth = self.wregs(k); a = self.areg(k)
        return [f'v_mfma_f32_32x32x16_bf16 {vr(104,16)}, {vr(oth,4)}, {a}, {0 if z else vr(104,16)}',
                f'v_mfma_f32_32x32x16_bf16 {vr(40,16)}, {vr(own,4)}, {a}, {0 if z else vr(40,16)}']

    def p2_setup(self, L):
        o = lines(f"""s_lshr_b32 s88, {sW}, 1
s_lshl_b32 s89, s88, 15
s_add_u32 s89, s89, {L_W2}
v_add_u32 v126, s89, {vWown}
v_add_u32 v127, s89, {vWoth}
s_lshl_b32 s88, s88, 14
s_mul_i32 s89, {sRB}, {114688 if self.alias else 32768}
s_add_u32 s89, s89, s88
s_add_u32 s89, s89, {WS_H[L] if self.alias else WS_O[L]}""")
        for q in range(4): o += lines(f's_xor_b32 {sA2[q]}, {sRG}, {q}\ns_lshl_b32 {sA2[q]}, {sA2[q]}, 12\ns_add_u32 {sA2[q]}, {sA2[q]}, s89')
        return o
    def p3_setup(self, L):
        return self.w4_setup() + lines(f"""v_add_u32 v124, 65536, {vL16}
v_and_b32 v125, 31, {vL}
v_lshlrev_b32 v125, 4, v125
v_add_u32 v125, {L_T3}, v125
v_lshlrev_b32 v206, 3, {vL}
s_lshl_b32 s88, {sW}, 9
s_add_u32 s88, s88, {L_CS3}
v_add_u32 v206, s88, v206
s_lshl_b32 s92, {sG16}, 2
s_add_u32 s92, s92, {sW}
s_lshl_b32 s92, s92, 12""") + self.h_addr(L)
    def p1_setup(self):
        if self.alias:
            return lines(f"""s_lshl_b32 {sX}, {sG}, 16
s_add_u32 {sX}, {sX}, {WS_X1[0]}
s_lshl_b32 {sA1}, {sW}, 14
s_add_u32 {sA1}, {sA1}, {sX}
s_lshl_b32 {sHB}, {sPG}, 14
s_add_u32 {sHB}, {sHB}, {WS_HB}
s_cmp_eq_u32 {sHASP}, 0
s_cselect_b32 {sHB}, {sX}, {sHB}
s_lshl_b32 s92, {sRB}, 12
v_xor_b32 v127, 64, {vA1e}
v_lshrrev_b32 v242, 11, {vA1e}
v_and_b32 {vA1e}, 127, {vA1e}
v_lshl_add_u32 {vA1e}, v242, 10, {vA1e}
v_xor_b32 {vA1o}, 64, {vA1e}
v_add_u32 {vA1o}, {8192 - 1024}, {vA1o}
v_lshrrev_b32 v242, 11, {vRM}
v_and_b32 v243, 1023, {vRM}
v_lshl_add_u32 v242, v242, 10, v243""")
        return lines(f"""s_add_u32 {sA1}, {sA1}, {WS_X2}
s_lshl_b32 {sHB}, {sPG}, 14
s_add_u32 {sHB}, {sHB}, {WS_HB}
s_add_u32 s88, {sROW}, {WS_X2}
s_cmp_eq_u32 {sHASP}, 0
s_cselect_b32 {sHB}, s88, {sHB}
s_lshl_b32 s92, {sRB}, 12
v_xor_b32 v127, 64, {vA1e}""")
    def p2(self, L, w2tok):
        p = self.p
        p(WaitTok(w2tok + sum(self.w3tok.values(), []))); p('s_barrier')
        rd = lambda k: self.wfrag_reads(k, k*2048, 'v126', 'v127', [(L_W2 + h*32768 + k*2048, L_W2 + h*32768 + k*2048 + 2048) for h in range(2)])
        for k in range(3): p(rd(k))
        if L == 0:
            p(self.w3_setup()); p(self.w3_sel())
            rs = self.w3_take(list(range(16)))
            p(WaitTok(rs)); p('s_barrier')
        self.poll(1 + 5*L, sMK2)
        self.ts(f'p2_go{L}')
        al = [f'buffer_load_dwordx4 {vr(128+4*k,4)}, {vL16}, {SWS}, {sA2[k >> 2]} offen offset:{(k%4)*1024} sc1' for k in range(16)]
        NP = 10
        p(al[:NP])
        S = Sched(self.tile_spine(16))
        ws = self.xwrites(); S.add('xw', ws, e=29, d=31, step=0.6)
        S.add('a', al[NP:], e=0, d=12, step=1, split=True)
        for k in range(13): S.add('wr', rd(k+3), e=2*k, d=min(2*k+2, 24), step=0.5)
        if L == 0: S.add('dma', sum((self.w3_quad(q, 16384*(q - 3)) for q in range(4, 7)), []), e=8, d=31, step=1.9, split=True)
        S.add('misc', self.p3_setup(L) + self.x1_addr(L, sX) + self.st_addr(WS_ST1[L], sY) + self.epi_pre(), e=2, d=26)
        S.emit(p, f'p2 L{L}')
        self.ts(f'p2_mm{L}')
        st = self.tile_epilogue('x1', L, ws)
        self.ts(f'p2_epi{L}')
        if L == 0:
            p(self.w3_quad(7, 98304))
        self.post_flag(2 + 5*L, st)
        self.ts(f'p2_end{L}')

    def p3(self, L):
        p = self.p
        ACC, AF, CS, TK, HO, SR = 40, 72, 120, 240, 192, 224
        lskip = self.lab('p3skip')
        w4 = {}
        self.layer = L
        if L == 0:
            p(WaitTok(sum((self.w3tok[q] for q in range(4, 7)), []))); p('s_barrier')
            self.w3_take(list(range(16, 28)))
        p('s_waitcnt lgkmcnt(0)'); p('s_barrier')
        p(f's_cmp_lg_u32 {sIDLE}, 0\ns_cbranch_scc1 {lskip}')
        self.poll(2 + 5*L, 'exec')
        self.ts(f'p3_go{L}')
        atok = {}
        def adma(rb, s, area=None):
            o = (rb if area is None else area)*32768 + s*16384
            d = [Ins(f'buffer_load_dwordx4 {vL16}, {SWS}, {sT} offen offset:{u*1024} sc1 lds', lds=[(o + q*4096 + u*1024, o + q*4096 + u*1024 + 1024) for q in range(4)]) for u in range(4)]
            atok[(rb, s, area)] = d
            return self.split_dma([Ins(f's_add_u32 m0, {sW4K}, {o}'), Ins(f's_add_u32 {sT}, {sA3[s]}, {WS_X1[L] + rb*32768}')] + d)
        for s in range(2): p(adma(0, s))
        if L == 0:
            tiles = [(0, 0), (0, 1), (0, 2), (0, 3), (1, 1), (1, 2), (1, 3), (1, 0)]; area = [0, 1, 2, 0, 1, 2, 0, 3]
        else:
            tiles = [(c, rb) for c in range(2) for rb in range(4)]; area = [0, 1, 2, 3, 0, 1, 2, 3]
        NR = 12
        def aread(n):
            ti, ks = divmod(n, 32)
            o = area[ti]*32768 + ks*1024
            return Ins(f'ds_read_b128 {vr(AF+4*(n % NR),4)}, {"v124" if o >= 65536 else vL16} offset:{o % 65536}', lds=(o, o+1024))
        def epilogue(ti):
            c, rb = tiles[ti]
            A = ACC + 16*(ti & 1); tk = TK + 4*(ti & 1); ho = HO + 4*(ti & 1)
            o = []
            gi = lambda i: (i >> 2)*8 + (i & 3)
            for i in range(9):
                if i < 8: o.append(f'v_mul_f32 v{A+gi(i)}, v{tk+3}, v{A+gi(i)}')
                if i: o.append(f'v_exp_f32 v{A+gi(i-1)}, v{A+gi(i-1)}')
            for i in range(8): o.append(f'v_fma_f32 v{A+gi(i)}, v{A+gi(i)}, v{tk+2}, v{tk+2}')
            for i in range(8):
                o.append(f'v_rcp_f32 v{A+gi(i)}, v{A+gi(i)}')
                if i: o.append(f'v_mul_f32 v{A+gi(i-1)}, v{A+gi(i-1)}, v{A+gi(i-1)+4}')
            o.append(f's_add_u32 s94, {sH0}, {rb*114688 + c*4096}')
            o.append(f'v_mul_f32 v{A+gi(7)}, v{A+gi(7)}, v{A+gi(7)+4}')
            for i in range(4): o.append(f'v_cvt_pk_bf16_f32 v{ho+i}, v{A+gi(2*i)}, v{A+gi(2*i+1)}')
            alt, st = self.stores([f'buffer_store_dwordx4 {vr(ho,4)}, {vL16}, {SWS}, s94 offen'])
            o.append(alt)
            return o, st
        def csreads(c):
            r = Ins(f'ds_read_b64 {vr(CS+2*c,2)}, v206 offset:{c*256}', lds=(L_CS3, L_CS3+2048), private=True)
            return [[f'v_mov_b32 v{CS+2*c}, 0', f'v_mov_b32 v{CS+2*c+1}, 0', 's_mov_b64 exec, 0xffffffff', r, 's_mov_b64 exec, -1']], r
        p(self.fts(f'p3{L}', 'issued'))
        p(WaitTok(atok[(0, 0, None)])); p('s_barrier')
        rds = [aread(n) for n in range(256)]
        for n in range(8): p(rds[n])
        CS0, CS1 = 20, self.o.get('cs1', 148)
        spine = []; slot = []
        for n in range(256):
            if L == 0 and n == CS0: spine += [self.w3_cs(x) for x in range(28, 32)]
            if L == 0 and n == CS1: spine += [self.w3_cs(x) for x in range(32, 64)]
            ti, ks = divmod(n, 32); c, rb = tiles[ti]
            A = vr(ACC + 16*(ti & 1), 16)
            slot.append(len(spine))
            spine.append(f'v_mfma_f32_32x32x16_bf16 {A}, {ar(c*128+4*ks,4)}, {vr(AF+4*(n % NR),4)}, {0 if ks == 0 else A}')
            if ks == 31: spine.append(f'v_mfma_f32_32x32x8_bf16 {A}, {vr(CS+2*c,2)}, {vr(TK+4*(ti&1),2)}, {A}')
        sl = lambda n: slot[max(0, min(int(n), 255))]
        self.big = (L == 1); self.NWP = 3
        B4 = len(spine)
        spine += self.tile_spine(56)
        S = Sched(spine)
        for n in range(0, 256, 4): S.before[sl(n)] = [WaitTok(rds[n:n+4])]
        for ti in range(8): S.before[sl(32*ti)] = self.fts(f'p3{L}', f't{ti}') + S.before[sl(32*ti)]
        bars = {}
        def bar(n, toks): bars.setdefault(n, []).extend(toks)
        gate = {}
        def publish(first, toks): bar(first - 9, toks); gate[first] = first - 9
        st_issue = self.stats_issue(WS_ST1[L], 's92', SR)
        S.add('dma', [st_issue[:2]] + st_issue[2:], e=0, d=8, step=1.5, split=True)
        publish(16, atok[(0, 1, None)])
        def astream(rb, ar_, e, first, step=2):
            for s in range(2):
                S.add('dma', adma(rb, s, ar_), e=sl(e + 4*step*s), d=sl(first + 16*s - 14), step=step, split=True)
            publish(first, atok[(rb, 0, ar_)]); publish(first + 16, atok[(rb, 1, ar_)])
        if L == 1:
            astream(1, None, 6, 32); astream(2, None, 24, 64); astream(3, None, 44, 96)
        else:
            SLOT = [98304, 114688, 131072]
            lag = self.o.get('lag', 26)
            rd_at = {7: 7}; iss = {8: self.o.get('i8', 20), 9: self.o.get('i9', 38)}
            for q in range(8, 16):
                if q >= 10: iss[q] = rd_at[q-2] + 1
                rd_at[q] = max(min(iss[q] + lag, 128 + 4*(q - 8) - 6, CS1 - 8), iss[q] + 12, rd_at[q-1] + 6)
            assert rd_at[15] + 6 <= CS1
            def wq(q):
                S.add('dma', self.w3_quad(q, SLOT[(q - 7) % 3]), e=sl(iss[q]), d=sl(iss[q] + 10), step=2, split=True, ta=72)
            ev = [(6, lambda: astream(1, None, 6, 32)), (self.o.get('a2', 21), lambda: astream(2, None, self.o.get('a2', 21), 64, 2)), (self.o.get('a3', 62), lambda: astream(3, 0, self.o.get('a3', 62), 96, 2))] + [(iss[q], (lambda q=q: wq(q))) for q in range(8, 16)]
            for _, f in sorted(ev, key=lambda t: t[0]): f()
            bar(39, rds[20:32])
            prevr = []
            for q in range(7, 16):
                at = rd_at[q]
                r = sum((self.w3_reads(n) for n in range(4*q, 4*q + 4)), [])
                bar(at, self.w3tok[q] + prevr); prevr = r
                S.add('w3r', r, e=sl(at), d=sl(at + 5))
            self.w3_last = prevr
            S.add('w3c', self.w3_cs_store(0) + csreads(0)[0], e=sl(CS0) + 3, d=sl(29))
            S.add('w3c', self.w3_cs_store(1) + csreads(1)[0], e=sl(CS1) + 3, d=sl(157))
        for m in range(8, 256):
            e = max(m - NR + 1, max([v for k_, v in gate.items() if k_ <= m], default=-1))
            S.add('ar', [rds[m]], e=sl(e), d=sl(max(e, (m & ~3) - 3)), step=0)
        x = self.stats_reduce(SR) + self.stats_final(f'v{SR}', f'v{SR+1}', f'v{SR+2}') + lines(f"""v_mul_f32 v{SR+3}, {f2u(-LOG2E)}, v{SR+1}
v_cvt_pk_bf16_f32 v{SR}, v{SR}, v{SR}
v_mov_b32 v{SR+1}, v{SR}
v_and_b32 v{SR+4}, 15, {vL}
v_lshlrev_b32 v{SR+4}, 5, v{SR+4}
v_bfe_u32 v{SR+5}, {vL}, 4, 1
v_lshl_add_u32 v{SR+4}, v{SR+5}, 4, v{SR+4}
s_lshl_b32 s88, {sW}, 9
s_add_u32 s88, s88, {L_T3}
v_add_u32 v{SR+4}, s88, v{SR+4}""")
        tw = Ins(f'ds_write_b128 v{SR+4}, {vr(SR,4)}', lds=(L_T3, L_T3 + 2048))
        S.add('epi', x + [tw], e=sl(10), d=sl(21))
        bar(23, [tw])
        if L == 1: S.add('w3c', csreads(0)[0] + csreads(1)[0], e=2, d=20)
        def rd4(k):
            s, w = divmod(k, 4)
            b = self.W4SLOT[s]*16384 + w*2048
            va, vb = [('v200', 'v201'), ('v202', 'v203'), ('v204', 'v205')][b >> 16]
            return self.wfrag_reads(k, b & 65535, va, vb, [(b + h*8192, b + h*8192 + 2048) for h in range(2)])
        def stage(s):
            x_, tk = self.w4_stage(s); w4[s] = tk
            return sum((self.split_dma(y) for y in x_), [])
        NWP = self.NWP if self.big else 0
        allreads = {}
        S.add('misc', self.p4_setup(L), e=sl(36), d=sl(52))
        sts = []
        for ti in range(8):
            c, rb = tiles[ti]
            S.add('epi', [Ins(f'ds_read_b128 {vr(TK+4*(ti&1),4)}, v125 offset:{rb*512}', lds=(L_T3, L_T3+2048))], e=sl(32*ti + 25), d=sl(32*ti + 28))
            e, st = epilogue(ti); sts.append(st)
            if ti < 7: S.add('epi', e, e=sl(32*ti + 35), d=sl(32*ti + 56), early=False)
            else: S.add('epi', e, e=B4 + 2, d=B4 + self.o.get('e7', 15))
            if ti >= 5:
                bar(32*ti + 1, rds[32*ti-12:32*ti] + (self.w3_last if L == 0 else []))
                s0 = NWP + 2*(ti-5) + 1
                S.add('dma', stage(s0) + stage(s0 + 1), e=sl(32*ti + 1), d=sl(32*ti + 31), ta=72, split=True)
            if ti == 4 and L == 0:
                fr = rd_at[15] + 7
                bar(fr, self.w3_last)
                S.add('dma', stage(0) + adma(0, 0, 3) + adma(0, 1, 3), e=sl(fr), d=sl(160), split=True)
                bar(193, atok[(0, 0, 3)] + atok[(0, 1, 3)] + w4[0])
            if ti == 1 and L == 1:
                t0 = self.o.get('wp0', 62); per = self.o.get('wpp', 32)
                prev = []
                for s in range(NWP + 1):
                    e0 = t0 + per*s
                    if s: bar(e0 - 1, prev)
                    S.add('dma', stage(s), e=sl(e0), d=sl(e0 + 8), step=1.5, split=True)
                    if s < NWP:
                        bar(e0 + per - 12, w4[s])
                        prev = sum((rd4(k) for k in range(4*s, 4*s + 4)), [])
                        S.add('wpre', prev, e=sl(e0 + per - 12), d=sl(e0 + per - 3))
                bar(193, w4[NWP])
        if L == 0:
            S.add('misc', [self.code_touch()], e=sl(CS1) - 28, d=sl(CS1) - 2)
        S.add('misc', [self.cap(lambda: self.post_flag(3 + 5*L, sum(sts[:4], [])))], e=sl(163), d=sl(164))
        NPRE = self.o.get('npre', 22) if L == 0 else self.o.get('npre1', 20)
        pc = self.o.get('pc', 192)
        S.add('misc', [self.poll_issue(vT0)], e=sl(pc - 14), d=sl(pc - 12))
        S.add('misc', [self.poll_check(vT0, 3 + 5*L, sMK4)], e=sl(pc), d=sl(pc + 1))
        if L == 0: S.add('misc', self.touches_x2('v127'), e=sl(pc + 2), d=sl(pc + 20))
        S.add('a', [self.p4_aload(k) for k in range(NPRE)], e=sl(pc + 2), d=sl(254), step=(252 - pc)/NPRE, split=True)
        K0 = 0 if self.big else 2
        for k in range(K0):
            r = rd4(k); allreads.setdefault(0, []).extend(r)
            S.add('wr', r, e=sl(247 + 2*k), d=sl(254), step=0.5)
        for n, toks in sorted(bars.items()):
            lo_, hi_ = self.o.get('blo', 0), self.o.get('bhi', 70)
            f = (lambda nm: self.fts(f'b3{L}', nm)) if lo_ <= n < hi_ else (lambda nm: [])
            S.at(sl(n), f(f'x{n}') + [WaitTok(toks)] + f(f'w{n}') + ['s_barrier'] + f(f'b{n}'), 'bar')

        lj = self.lab('p3join')
        S.before[B4] = self.cap(lambda: self.ts(f'p3_mm{L}')) + [Ins(f'{lj}:')]
        nlds = NWP + 7
        dac = self.o.get('dac', 9)
        ws = self.xwrites(); S.add('xw', ws, e=B4 + 109, d=B4 + 111, step=0.6)
        pre = {}
        S.at(B4, [WaitTok(rds[244:256] + sum((w4[s] for s in range(min(nlds, NWP + 3))), [])), 's_barrier'], 'bar4')
        fl = self.o.get('fl4', 24)
        S.add('misc', [self.cap(lambda: self.post_flag(4 + 5*L, sum(sts[4:], [])))], e=B4 + fl, d=B4 + fl + 1, needs=[sts[7][0]])
        ev = []
        pk = 2*(28 - dac)
        for m in range(NPRE, 56):
            e = 1 + 2*(m - NPRE) if self.big else max(1, 2*(m - 22) + 2)
            if m >= 28: e = max(e, pk + 1 + 1.6*(m - 28))
            ev.append((e, 2*m - 10, [self.p4_aload(m)], True))
        ev.append((pk - 8, pk - 6, [self.poll_issue('v127')], True))
        ev.append((pk, pk + 1, [self.poll_check('v127', 4 + 5*L, sMK4)], False))
        stage_at = {}
        for ns in range(nlds, 14):
            prevs = [x for x in range(NWP, ns) if self.W4SLOT[x] == self.W4SLOT[ns]]
            e = 2*(4*(max(prevs) + 2) - 3) + 1 if prevs else 1
            stage_at[ns] = max(e, stage_at.get(ns-1, -6) + 7)
        for ns, e in stage_at.items():
            for i, y in enumerate(stage(ns)): ev.append((e + 1.7*i, 2*(4*ns - 3) - 8, [y], True))
        if L == 0:
            e0 = max(x[0] for x in ev) + 1
            for i, st_ in enumerate(range(self.o.get('nw1', 4))):
                gq, tk = self.w1_stage(st_, seq=(i > 0)); pre[st_] = tk
                for j, y in enumerate(self.split_dma(gq[0])): ev.append((e0 + 1.3*(3*i + j), 111, [y], True))
        for e, d, gq, sp in sorted(ev, key=lambda t: t[0]): S.add('vm', gq, e=B4 + int(e), d=B4 + max(int(e), d), step=0, split=sp)
        for m in range(max(K0, 4*NWP), 56):
            k = m - 3
            s, w = divmod(m, 4)
            if w == 0 and s > NWP and (s >= NWP + 2): S.at(B4 + 2*k, [WaitTok(w4[s] + (w4[s+1] if s + 1 < min(nlds, 14) else []) + allreads.get(s-2, [])), 's_barrier'], 'bar4')
            r = rd4(m); allreads.setdefault(s, []).extend(r)
            e = max(2*k, 1)
            S.add('wr', r, e=B4 + e, d=B4 + max(e, min(2*k+3, 104)), step=0.5)
        for k in range(4, 56, 4): S.before[B4 + 2*k] = self.fts(f'p4{L}', f's{k//4}')
        x = self.epi_pre()
        if L == 0: x += [f's_add_u32 {sX}, {sROW}, {WS_X2}'] + self.st_addr(WS_ST2, sY) + self.p1_setup()
        S.add('misc', x, e=B4 + 90, d=B4 + 103)
        self.win(S, f'3{L}')
        S.emit(p, f'p3+p4 L{L}')
        sv = self.p; q = self.p = Prog(check_lds=False)
        q(f'{lskip}:')
        if L == 0: q(self.touches_x2('v127'))
        q(self.p4_setup(L))
        for s in range(NWP):
            q(self.w4_stage(s)[0]); q('s_waitcnt vmcnt(0)\ns_barrier')
            for k in range(4*s, 4*s + 4): q(rd4(k))
            q('s_waitcnt lgkmcnt(0)\ns_barrier')
        for s in range(NWP, nlds): q(self.w4_stage(s)[0])
        if L == 1: self.idle_prefetch(L)
        self.poll(3 + 5*L, sMK4)
        if L == 0: self.idle_prefetch(L)
        for k in range(NPRE): q(self.p4_aload(k))
        q('s_waitcnt vmcnt(0)\ns_barrier')
        for k in range(K0): q(rd4(k))
        q(f's_waitcnt lgkmcnt(0)\ns_branch {lj}')
        self.p = sv
        self.slow.append(q.finalize())
        self.ts(f'p4_mm{L}')
        st = self.tile_epilogue('x2' if L == 0 else 'out', L, ws)
        self.big = False
        self.ts(f'p4_epi{L}')
        if L == 0:
            self.post_flag(5, st)
            for st_ in range(len(pre), self.o.get('nw2', 6)):
                gq, tk = self.w1_stage(st_, seq=True); pre[st_] = tk; p(gq)
        self.ts(f'p4_end{L}')
        return pre

    def idle_prefetch(self, L):
        if not self.o.get('pf', True): return
        q = self.p
        q(f"""s_and_b32 s88, {sG16}, 1
s_lshl_b32 s88, s88, 1
s_add_u32 s88, s88, {sM16}
s_sub_u32 s88, s88, 14
s_lshl_b32 s88, s88, 2
s_add_u32 s88, s88, {sW}
v_lshlrev_b32 v40, 7, {vL}""")
        jobs = ([(SWD, self.o.get('pfc', 0), 'down0')] if L else []) + [(SWD, 7 if L else self.o.get('pfd', 7), 'down')] + ([(SWQKV, self.o.get('pfq', 0), 'qkv')] if L == 0 else [])
        for srd, n, kind in jobs:
            for i in range(n):
                if kind.startswith('down'):
                    q(f's_mul_i32 s89, s88, 7\ns_add_u32 s89, s89, {i}\ns_lshr_b32 s90, s89, 3\ns_lshl_b32 s90, s90, 17\ns_and_b32 s89, s89, 7\ns_lshl_b32 s89, s89, 13\ns_add_u32 s89, s89, s90\ns_add_u32 s89, s89, {0 if kind == "down0" else 65536}')
                else:
                    q(f's_lshl_b32 s89, s88, 13\ns_add_u32 s89, s89, {i*131072}')
                x = Ins(f'buffer_load_dword v41, v40, {srd}, s89 offen'); x.wr = set(); q(x)
                q('s_waitcnt vmcnt(1)')

    def p4_setup(self, L):
        return lines(f"""s_lshr_b32 s88, {sW}, 1
s_lshl_b32 s89, s88, 13
v_add_u32 v200, s89, {vWown}
v_add_u32 v201, s89, {vWoth}
v_add_u32 v202, 65536, v200
v_add_u32 v203, 65536, v201
v_add_u32 v204, 131072, v200
v_add_u32 v205, 131072, v201
s_mul_i32 s88, s88, 57344
s_mul_i32 {sX}, {sRB}, 114688
s_add_u32 {sX}, {sX}, s88
s_add_u32 {sX}, {sX}, {WS_H[L]}
s_add_u32 {sY}, {sX}, 4096""")
    def p4_aload(self, k):
        s, w = divmod(k, 4); c, j = divmod(s, 7)
        o = []
        if w == 0: o.append(Ins(f's_add_u32 {sH1}, {sY if c else sX}, {sJ[j]}'))
        o.append(Ins(f'buffer_load_dwordx4 {self.areg(k)}, {vL16}, {SWS}, {sH1} offen offset:{w*1024} sc1'))
        return o
    def build(self):
        p = self.p
        self.prologue_a()
        pre = {}
        for L in range(2):
            p(f'; PH 1{L}')
            w2 = self.p1_first() if L == 0 else self.p1_second(pre)
            if self.o_stop == f'p1_{L}': break
            p(f'; PH 2{L}')
            self.p2(L, w2)
            if self.o_stop == f'p2_{L}': break
            p(f'; PH 3{L}')
            pre = self.p3(L)
            if self.o_stop == f'p4_{L}': break
        p(self.bump_epoch())
        self.ts('end')
        if self.o_amp:
            p('s_waitcnt vmcnt(0)')
            p(Raw(f"""s_memrealtime s[62:63]
s_sub_u32 s96, s98, s96
s_mul_i32 s96, s96, {self.o_amp[2]}
s_min_u32 s96, s96, 100000
s_waitcnt lgkmcnt(0)
Lamp:
s_memrealtime s[98:99]
s_waitcnt lgkmcnt(0)
s_sub_u32 s98, s98, s62
s_cmp_lt_u32 s98, s96
s_cbranch_scc1 Lamp"""))
        if self.o_ts:
            p(f's_lshl_b32 s88, s2, 2\ns_add_u32 s88, s88, {sW}\ns_lshl_b32 s88, s88, 8\ns_add_u32 s88, s88, {WS_TS}\nv_lshlrev_b32 v40, 2, {vL}')
            p('s_memrealtime s[62:63]'); p(f'v_writelane_b32 {vTS}, s62, 62')
            p(f'buffer_store_dword {vTS}, v40, {SWS}, s88 offen')
            if self.o_dbg:
                sel = [self.tsn.index(n) for n in self.o_dbg] + [62, 63]
                l = self.lab('dbg')
                p(f's_lshl_b32 s88, s2, 2\ns_add_u32 s88, s88, {sW}\ns_cmp_lg_u32 s88, 0\ns_cbranch_scc1 {l}')
                p(f'v_readlane_b32 s89, {vTS}, 0')
                for i, s in enumerate(sel):
                    p(f'v_readlane_b32 s88, {vTS}, {s}')
                    if s < 62: p('s_sub_u32 s88, s88, s89')
                    p(f'v_writelane_b32 v41, s88, {i}')
                p(f's_mov_b64 exec, 0xffff\nbuffer_store_dword v41, v40, {SDBG}, 0 offen sc1\ns_mov_b64 exec, -1\n{l}:')
        kill = str(self.o.get('kill', '')).split('+')
        if kill != ['']:
            p.check_lds = False
            import re as _re
            inp3 = None
            for it in p.items:
                t = getattr(it, 'text', '')
                if t.startswith('; PH'): inp3 = t[5:]
                lst = [it] if it.kind != 'alt' else it.a
                for x in lst:
                    t = getattr(x, 'text', '')
                    tag = None
                    if x.kind == 'dma' and SW3 in t: tag = 'w3'
                    elif x.kind == 'dma' and SWD in t: tag = 'w4'
                    elif x.kind == 'dma' and SWQKV in t: tag = 'w1'
                    elif x.kind == 'dma' and SWO in t: tag = 'w2'
                    elif x.kind == 'dma': tag = 'adma'
                    elif x.kind == 'vmld' and 'x4' in t and SWS in t: tag = 'ald'
                    elif x.kind == 'vmld' and 'v34' in t: tag = 'touch'
                    elif x.kind == 'vmst' and 'x4' in t: tag = 'st'
                    elif x.kind == 'dsrd' and 'b128' in t and int(_re.search(r'offset:(\d+)', t).group(1)) & 1024: tag = 'half'
                    elif x.kind == 'trans': tag = 'trans'
                    elif x.kind == 'valu': tag = 'valu'
                    if tag and f'{inp3}{tag}' in kill:
                        x.text = '; killed'; x.kind = 'dir'; x.ops = ['0']; x.rd = set(); x.wr = set(); x.lds = None
                        if it.kind == 'alt':
                            for y in it.b: y.kind = 'dir'
        body = p.finalize()
        head = open('cdna_kernels/' + NAME + '.s.ref').read().split('; Override launch')[0]
        txt = head + '; @launch grid=(256,1,1) block=(256,1,1) lds=163840\n'
        txt += f'.amdgcn_target "amdgcn-amd-amdhsa--gfx950"\n.text\n.globl {NAME}_kernel\n.p2align 8\n.type {NAME}_kernel,@function\n{NAME}_kernel:\n'
        txt += body + 'L_end:\ns_endpgm\n' + '\n'.join(getattr(p, 'tail', [])) + '\n' + '\n'.join(self.slow) + '\nL_last:\ns_endpgm\n'
        txt += f""".section .rodata,"a"
.p2align 6
.amdhsa_kernel {NAME}_kernel
  .amdhsa_next_free_vgpr 512
  .amdhsa_next_free_sgpr 102
  .amdhsa_accum_offset 256
  .amdhsa_group_segment_fixed_size 0
  .amdhsa_kernarg_size 80
  .amdhsa_user_sgpr_count 2
  .amdhsa_user_sgpr_kernarg_segment_ptr 1
  .amdhsa_system_sgpr_workgroup_id_x 1
  .amdhsa_float_denorm_mode_32 3
.end_amdhsa_kernel
"""
        return txt

if __name__ == '__main__':
    out = sys.argv[1]
    kw = {}
    for a in sys.argv[2:]:
        k, _, v = a.partition('=')
        if k in ('amp', 'dbg', 'win'): kw[k] = v.split(',')
        elif v in ('0', '1', ''): kw[k] = (v != '0')
        elif v.replace('.', '').isdigit(): kw[k] = float(v) if '.' in v else int(v)
        else: kw[k] = v
    if kw.pop('reuse', False):
        WS_O[1] = WS_O[0]; WS_X1[1] = WS_X1[0]; WS_ST1[1] = WS_ST1[0]; WS_H[1] = WS_H[0]
    g = Gen(**kw)
    open(out, 'w').write(g.build())
    if g.o_ts: open(out + '.ts', 'w').write('\n'.join(g.tsn))
    print(out, g.p.stats)
```

```python
import sys, struct
from asmlib import *

NAME = 'interleave_layers__sliding_local_dilated__glu_gated_glu__prompt'
MB = 1 << 20
WS_O = [0, 2*MB]; WS_X1 = [4*MB, 6*MB]; WS_X2 = 8*MB
WS_ST1 = [10*MB, 10*MB + (256 << 10)]; WS_ST2 = 10*MB + (512 << 10)
WS_HB = 11*MB; WS_HS = 11*MB + (512 << 10); WS_FL = 11*MB + (768 << 10); WS_EP = WS_FL + 8192; WS_XC = WS_FL + 16384; WS_TS = 14*MB
WS_H = [16*MB, 24*MB]

SX, SWQKV, SWO, SW3, SWD, SOUT, SWS, SDBG = 's[4:7]', 's[8:11]', 's[12:15]', 's[16:19]', 's[20:23]', 's[24:27]', 's[28:31]', 's[32:35]'
sW, sMODE, sT, sROW, sHALO, sG, sG16, sM16, sCB, sW1K, sW4K, sHASP, sPG, sIDLE = ['s%d' % i for i in range(36, 50)]
sMK2, sMK4, sMK1 = 's[50:51]', 's[52:53]', 's[54:55]'
sA1, sRB, sSPIN, sV, sXCC, sW2K = 's56', 's57', 's58', 's59', 's60', 's61'
sW3K, sR8, sRG, sR3 = 's84', 's85', 's86', 's87'
sR8s, sU = 's3', 's95'
sCODE = 's[100:101]'
SW3F = SW3
sA2 = ['s40', 's67', 's68', 's77']
sWd4 = 's64'; sA3 = ['s65', 's66', 's67', 's68']; sJ = ['s%d' % i for i in range(69, 76)]
sH0, sH1, sHB, sX, sY, sE, sES, sSG = 's76', 's77', 's78', 's79', 's80', 's81', 's82', 's83'
vL, vL16, vA1e, vA1o, vW1d, vW1r0, vW1r1, vA1r0, vA1r1, vW2d, vCT, vWown, vWoth, vRM, vFLp, vFLo = ['v%d' % i for i in range(16)]
RES = 16
CSQ, CSK, CSV = 24, 28, 32
vW3d, vW3r, vT0, vTS = 'v36', 'v37', 'v38', 'v39'
vW4 = ['v208', 'v209', 'v210', 'v211']
vW3q = ['v36', 'v252', 'v253', 'v254']
L_A1H = 65536; L_R1 = 73728; L_TAB = 159744
L_W2 = L_TAB - 65536
L_XB = 0
L_NM = L_TAB; L_RS = L_TAB + 320
L_T3 = L_TAB
L_CS3 = L_TAB + 2048
LOG2E = 1.4426950408889634
def f2u(x): return '0x%08x' % struct.unpack('<I', struct.pack('<f', x))[0]
def vr(a, n): return f'v[{a}:{a+n-1}]' if n > 1 else f'v{a}'
def ar(a, n): return f'a[{a}:{a+n-1}]'
def lines(s): return [x.strip() for x in s.strip().split('\n') if x.strip()]
def last(x): return x[-1]

class Gen:
    def __init__(self, **kw):
        self.p = Prog(); self.nts = 0; self.tsn = []; self.slow = []; self.nlab = 0; self.w3tok = {}; self.w3stg = {}
        self.o = dict(ts=False, mimic=True, stop=None, glob=False, fine=None, amp=None, dbg=None, touch=True, rot=True, ctouch=True, wb=False)
        self.o.update(kw)
        self.alias = self.o.get('alias', True)
        if self.alias:
            global WS_ST2
            WS_X1[1] = WS_X1[0]; WS_ST1[1] = WS_ST1[0]; WS_H[1] = WS_H[0]; WS_ST2 = WS_ST1[0]
        for k, v in self.o.items(): setattr(self, 'o_' + k, v)

    def cap(self, fn):
        sv = self.p; self.p = Prog(); fn(); items = self.p.items; self.p = sv
        return items
    def lab(self, s):
        self.nlab += 1; return f'L{s}{self.nlab}'
    def ts(self, name):
        if self.o_amp and name == self.o_amp[0]: self.p('s_memrealtime s[96:97]\ns_waitcnt lgkmcnt(0)')
        if self.o_amp and name == self.o_amp[1]: self.p('s_memrealtime s[98:99]\ns_waitcnt lgkmcnt(0)')
        if not self.o_ts: return
        if self.o_fine and self.o_fine[0] == 'b' and name[0] == 'p' and name[:3] != 'p3_': return
        if self.o.get('win') and name[0] != 'n' and name not in ('start', 'end'): return
        if self.o.get('rt'):
            if name not in ('start', 'a1_landed', 'p1_loop0', 'p1_end0', 'p2_end0', 'p3_go0', 'p3_end0', 'p4_mm0', 'p1_stats1', 'p1_halo1', 'p1_end1', 'p3_go1', 'p3_end1', 'p4_mm1', 'end'): return
            self.p('s_memrealtime s[62:63]'); self.p(f'v_writelane_b32 {vTS}, s62, {self.nts + 31}')
        self.p('s_memtime s[62:63]'); self.p(f'v_writelane_b32 {vTS}, s62, {self.nts}')
        self.tsn.append(name); self.nts += 1
    def win(self, S, key):
        w = self.o.get('win')
        if not w or w[0] != key: return
        for n in range(int(w[1]), int(w[2]), int(w[3])):
            S.before[n] = self.cap(lambda: self.ts(f'n{n}')) + S.before.get(n, [])
    def fts(self, key, name):
        return self.cap(lambda: self.ts(name)) if self.o_fine == key else []

    def stores(self, texts):
        a = [Ins(t) for t in texts]; b = [Ins(t + ' sc1') for t in texts]
        return Alt(sMODE, a, b), a
    def post_flag(self, val, toks):
        p = self.p
        p(f's_add_u32 s91, {sE}, {val}\nv_mov_b32 {vT0}, s91'); p(WaitTok(toks))
        alt, a = self.stores([f'buffer_store_dword {vT0}, {vFLo}, {SWS}, 0 offen'])
        p(alt)
    def spin(self, load, cmp_, mask, pre=''):
        ls, lb = self.lab('s'), self.lab('b')
        items = [Ins(x) for x in lines(cmp_)] + [Ins(f's_and_b64 vcc, vcc, {mask}'), Ins(f's_cbranch_scc1 {ls}'), Ins(f'{lb}:')]
        self.slow.append(f"""{ls}:
s_mov_b32 {sSPIN}, 0
{ls}_l:
{load}
s_add_u32 {sSPIN}, {sSPIN}, 1
s_cmp_gt_u32 {sSPIN}, 30000
s_cbranch_scc1 {ls}_x
s_waitcnt vmcnt(0)
{pre}
{cmp_}
s_nop 0
s_and_b64 vcc, vcc, {mask}
s_cbranch_scc1 {ls}_l
{ls}_x:
s_waitcnt vmcnt(0) lgkmcnt(0)
s_branch {lb}""")
        return items
    def poll_issue(self, vf): return Ins(f'buffer_load_dword {vf}, {vFLp}, {SWS}, 0 offen sc1')
    def poll_check(self, vf, val, mask):
        return self.spin(f'buffer_load_dword {vf}, {vFLp}, {SWS}, 0 offen sc1', f's_add_u32 s91, {sE}, {val}\nv_subrev_u32 v33, s91, {vf}\nv_cmp_lt_u32 vcc, 7, v33', mask)
    def poll(self, val, mask):
        l = self.lab('pl')
        self.p(Raw(f"""s_add_u32 s91, {sE}, {val}
s_mov_b32 {sSPIN}, 30000
{l}:
buffer_load_dword {vT0}, {vFLp}, {SWS}, 0 offen sc1
s_sub_u32 {sSPIN}, {sSPIN}, 1
s_cmp_eq_u32 {sSPIN}, 0
s_cselect_b64 s[88:89], 0, {mask}
s_waitcnt vmcnt(0)
v_subrev_u32 v33, s91, {vT0}
v_cmp_lt_u32 vcc, 7, v33
s_nop 0
s_and_b64 vcc, vcc, s[88:89]
s_cbranch_scc1 {l}""", rd=[vT0], wr=[vT0, 'v33', 's88', 's89', 's91', 'vcc'], drains_vm=True, states=6))
    def touch(self, voff, soff, mask=None):
        if not self.o_touch: return []
        i = Ins(f'buffer_load_dword v34, {voff}, {SWS}, {soff} offen sc1'); i.wr = set()
        return [f's_mov_b64 exec, {mask}', i, 's_mov_b64 exec, -1'] if mask else [i]
    def warm_touch(self, t):
        if not self.o.get('warm', False): return []
        o = lines(f"""s_lshl_b32 s88, s2, 1
s_lshr_b32 s89, {sW}, 1
s_add_u32 s88, s88, s89
s_mul_i32 s88, s88, {28*128}
s_lshl_b32 s89, s2, 2
s_add_u32 s89, s89, {sW}
s_mul_i32 s90, s89, {14*128}
s_lshl_b32 s89, s89, 9
v_lshlrev_b32 {t}, 7, {vL}""")
        for srd, so, m in ((SW3F, 's88', 0xfffffff), (SWD, 's90', 0x3fff), (SWO, 's89', 0xf)):
            i = Ins(f'buffer_load_dword v34, {t}, {srd}, {so} offen'); i.wr = set()
            o.append([f's_mov_b64 exec, {m}', i, 's_mov_b64 exec, -1'])
        return o
    def pf_touch(self, srd, per, idx, t, lanes=16, base=0, half=False):
        o = [f's_mul_i32 s90, {idx}, {per*128}']
        if half: o += ['s_lshr_b32 s89, s90, 16', 's_lshl_b32 s89, s89, 16', 's_add_u32 s90, s90, s89', 's_add_u32 s90, s90, 65536']
        o += [f'v_lshlrev_b32 {t}, 7, {vL}']
        pre = o; o = []
        for i in range(per // lanes):
            x = Ins(f'buffer_load_dword v34, {t}, {srd}, s90 offen offset:{(i*lanes*128) % 4096}'); x.wr = set()
            gq = [f's_mov_b64 exec, {hex((1 << lanes) - 1)}', x, 's_mov_b64 exec, -1']
            if i and (i*lanes*128) % 4096 == 0: gq = ['s_add_u32 s90, s90, 4096'] + gq
            o.append(gq)
        return pre, o
    def code_touch(self):
        if not self.o_ctouch: return []
        i = Ins(f'global_load_dword v35, {vCT}, {sCODE}'); i.wr = set()
        return [i]

    def prologue_a(self):
        p = self.p
        if self.o_amp and self.o_amp[0] == 'entry': p('s_memrealtime s[96:97]')
        p('s_cmp_ge_u32 s2, 256'); p('s_cbranch_scc1 L_end')
        p('s_load_dwordx16 s[64:79], s[0:1], 0'); p('s_load_dwordx4 s[80:83], s[0:1], 64')
        p(f"""s_getpc_b64 {sCODE}
Lpc:
v_lshrrev_b32 v1, 6, v0
v_and_b32 {vL}, 63, v0
s_lshr_b32 s89, s2, 3
s_xor_b32 s89, s89, {int(self.o.get('idxx', 0))}
v_readfirstlane_b32 {sW}, v1
s_lshl_b32 s90, s89, 11
v_and_b32 {vCT}, 3, {vL}
v_lshl_add_u32 {vCT}, v1, 2, {vCT}
v_lshl_add_u32 {vCT}, {vCT}, 7, s90
v_min_u32 {vCT}, L_last-Lpc-4, {vCT}""")
        p(self.code_touch())
        if self.o_ts:
            p(f'v_mov_b32 {vTS}, 0'); p('s_memrealtime s[62:63]'); p(f'v_writelane_b32 {vTS}, s62, 63')
        self.ts('start')
        t = [f'v{i}' for i in range(40, 56)]
        p(f"""s_and_b32 s88, s2, 7
s_lshr_b32 {sRG}, s89, 3
s_and_b32 {sCB}, s89, 7
s_lshr_b32 s90, s88, 1
s_lshl_b32 s90, s90, 2
s_add_u32 s90, s90, {sRG}
s_and_b32 s91, s88, 1
s_lshl_b32 {sR8}, {sRG}, 1
s_add_u32 {sR8}, {sR8}, s91""")
        if not self.o_rot: p(f's_mov_b32 {sR8}, 0')
        if self.o.get('rotx', 1) & 1:
            p(f's_lshl_b32 {sR8}, {sRG}, 1\ns_cmp_eq_u32 {sCB}, {int(self.o.get("slowcb", 3))}\ns_cselect_b32 {sR8}, {sR8}, 0\ns_xor_b32 {sR8}, {sR8}, s88')
        p(f"""s_lshl_b32 {sR8s}, {sR8}, 7
s_lshl_b32 {sROW}, s90, 17
s_lshl_b32 s91, s91, 10
s_add_u32 {sROW}, {sROW}, s91
s_cmp_eq_u32 s90, 0
s_cselect_b32 {sHASP}, 0, 1
s_cselect_b32 s91, 0, 16384
s_sub_u32 {sHALO}, {sROW}, s91
s_lshl_b32 {sA1}, {sW}, 15
s_add_u32 {sA1}, {sA1}, {sROW}
s_lshl_b32 {sW2K}, {sW}, 11
s_mul_i32 {sW3K}, {sW}, 3072
v_lshrrev_b32 {t[0]}, 3, {vL}
v_and_b32 {t[1]}, 7, {vL}
v_lshrrev_b32 {t[2]}, 1, {t[0]}
v_xor_b32 {t[3]}, {t[1]}, {t[2]}
v_lshlrev_b32 {t[3]}, 4, {t[3]}
v_lshl_add_u32 {vA1e}, {t[0]}, 11, {t[3]}
v_xor_b32 v124, 64, {vA1e}
v_add_u32 {vA1o}, {16384-1024}, v124
v_and_b32 {t[4]}, 1, {t[2]}
s_and_b32 s91, {sW}, 1
s_lshl_b32 s91, s91, 2
v_lshl_add_u32 {t[5]}, {t[4]}, 1, s91
v_xor_b32 {t[5]}, {t[5]}, {t[1]}
v_lshlrev_b32 {t[5]}, 4, {t[5]}
s_mul_i32 s91, {sW}, 24576
s_lshl_b32 s92, {sCB}, 7
s_add_u32 s91, s91, s92
v_mul_u32_u24 {t[6]}, 3072, {t[0]}
v_add3_u32 {vW1d}, {t[5]}, {t[6]}, s91""")
        self.srd(4, 64, 2*MB); self.srd(8, 66, 512*3072)
    def srd(self, base, lo, size):
        self.p(f's_mov_b32 s{base}, s{lo}\ns_and_b32 s{base+1}, s{lo+1}, 0xffff\ns_mov_b32 s{base+2}, {size}\ns_mov_b32 s{base+3}, 0x20000')
    def prologue_b(self):
        p = self.p
        t = [f'v{i}' for i in range(40, 56)]
        p(f"""s_getreg_b32 {sXCC}, hwreg(HW_REG_XCC_ID)
s_and_b32 {sXCC}, {sXCC}, 15
s_add_u32 {sXCC}, {sXCC}, 1
s_and_b32 {sM16}, s89, 15
s_lshl_b32 {sG}, s88, 2
s_add_u32 {sG}, {sG}, {sRG}
s_lshr_b32 {sG16}, {sG}, 1
s_cmp_eq_u32 {sRG}, 0
s_cselect_b32 s91, 5, 1
s_sub_u32 {sPG}, {sG}, s91
s_cmp_eq_u32 s90, 0
s_cselect_b32 {sPG}, {sG}, {sPG}
s_lshl_b32 {sW1K}, {sW}, 10
s_lshl_b32 {sW4K}, {sW}, 12
s_and_b32 s91, {sW}, 1
s_lshl_b32 {sRB}, {sG}, 1
s_add_u32 {sRB}, {sRB}, s91
s_and_b32 s91, {sG16}, 1
s_and_b32 {sR3}, s88, 3
s_lshl_b32 {sR3}, {sR3}, 1
s_add_u32 {sR3}, {sR3}, s91
v_lshlrev_b32 {vL16}, 4, {vL}""")
        self.srd(12, 68, 512*1024)
        p(f's_bitcmp1_b32 {sW}, 0\ns_cselect_b32 s72, s74, s72\ns_cselect_b32 s73, s75, s73')
        self.srd(16, 72, 512*3584); self.srd(20, 76, 1792*1024); self.srd(24, 78, 2*MB); self.srd(28, 82, 256*MB); self.srd(32, 80, 256)
        p(f"""s_cmp_ge_u32 {sM16}, 14
s_cselect_b32 {sIDLE}, 1, 0""")
        if not self.o_rot: p(f's_mov_b32 {sR3}, 0')
        if self.o.get('rotx', 1) & 2: p(f's_mov_b32 {sR3}, s88')
        p(f"""s_lshr_b32 s93, {sW}, 1
s_and_b32 s94, {sRG}, 1
s_lshl_b32 s94, s94, 5
s_mov_b32 s62, -1
s_mov_b32 s63, 0
s_lshl_b64 {sMK1}, s[62:63], s94
s_lshl_b32 s91, s93, 4
s_add_u32 s91, s91, s94
s_mov_b32 s62, 0xffff
s_lshl_b64 {sMK2}, s[62:63], s91
s_mul_i32 s91, s93, 28
s_mov_b32 s62, 0xfffffff
s_lshl_b64 {sMK4}, s[62:63], s91""")
        p(f"""s_mul_i32 s91, s93, 28672
s_lshl_b32 s94, {sM16}, 8
s_add_u32 s91, s91, s94
v_mul_u32_u24 {t[6]}, 3584, {t[0]}
v_add3_u32 {vW3d}, {t[5]}, {t[6]}, s91
v_lshlrev_b32 {t[5]}, 2, {t[4]}
v_xor_b32 {t[5]}, {t[5]}, {t[1]}
v_lshlrev_b32 {t[5]}, 4, {t[5]}
v_lshl_add_u32 {t[5]}, {t[0]}, 10, {t[5]}
s_lshl_b32 s91, {sW}, 13
s_add_u32 s94, s91, s92
v_add_u32 {vW2d}, s94, {t[5]}
s_mul_i32 {sWd4}, s93, {7*128*1024}
s_and_b32 s94, {sW}, 1
s_lshl_b32 s94, s94, 15
s_add_u32 {sWd4}, {sWd4}, s94
s_sub_u32 {sWd4}, {sWd4}, s91""")
        p(f"""v_lshrrev_b32 {t[0]}, 4, {vL}
v_and_b32 {t[1]}, 15, {vL}
v_lshrrev_b32 {t[2]}, 2, {t[1]}
v_and_b32 {t[3]}, 3, {vL}
v_lshrrev_b32 {t[4]}, 1, {t[2]}
v_and_b32 {t[5]}, 1, {t[0]}
v_lshl_add_u32 {t[6]}, {t[5]}, 1, {t[4]}
v_xor_b32 {t[6]}, {sW}, {t[6]}
v_lshlrev_b32 {t[6]}, 5, {t[6]}
v_lshl_add_u32 {t[6]}, {t[3]}, 3, {t[6]}
v_lshl_add_u32 {t[6]}, {t[2]}, 7, {t[6]}
v_mul_u32_u24 {t[7]}, 3072, {t[0]}
v_add_u32 {t[6]}, {t[6]}, {t[7]}
v_add_u32 {vW1r0}, {L_R1}, {t[6]}
v_add_u32 {vW1r1}, {L_R1 + 49152}, {t[6]}
v_lshrrev_b32 {t[6]}, 1, {t[1]}
v_xor_b32 {t[6]}, {t[6]}, {t[0]}
v_lshlrev_b32 {t[6]}, 4, {t[6]}
v_lshl_add_u32 {vA1r0}, {t[1]}, 7, {t[6]}
v_xor_b32 {vA1r1}, 64, {vA1r0}
v_lshrrev_b32 {t[7]}, 1, {t[0]}
v_lshrrev_b32 {t[8]}, 1, {t[3]}
v_and_b32 {t[9]}, 1, {t[3]}
v_lshl_add_u32 {t[10]}, {t[9]}, 1, {t[8]}
v_lshl_add_u32 {t[10]}, {t[5]}, 2, {t[10]}
v_lshlrev_b32 {t[10]}, 3, {t[10]}
v_xor_b32 {t[11]}, s93, {t[4]}
v_lshl_add_u32 {t[10]}, {t[11]}, 6, {t[10]}
v_lshl_add_u32 {t[10]}, {t[2]}, 7, {t[10]}
v_lshl_add_u32 {vWown}, {t[7]}, 10, {t[10]}
v_xor_b32 {vWoth}, 64, {vWown}
v_lshl_add_u32 {t[10]}, {t[9]}, 1, {t[5]}
v_lshlrev_b32 {t[10]}, 3, {t[10]}
v_lshl_add_u32 {t[11]}, {t[8]}, 1, {t[4]}
v_xor_b32 {t[11]}, {sW}, {t[11]}
v_lshl_add_u32 {t[10]}, {t[11]}, 5, {t[10]}
v_lshl_add_u32 {t[10]}, {t[2]}, 7, {t[10]}
v_lshl_add_u32 {t[10]}, {t[8]}, 12, {t[10]}
v_lshl_add_u32 {vW3r}, {t[7]}, 13, {t[10]}
v_and_b32 {t[0]}, 31, {vL}
v_lshrrev_b32 {t[1]}, 5, {vL}
v_lshlrev_b32 {t[1]}, 4, {t[1]}
v_lshl_add_u32 {t[0]}, {t[0]}, 11, {t[1]}
s_and_b32 s91, {sW}, 1
s_lshl_b32 s91, s91, 16
s_lshl_b32 s94, s93, 6
s_add_u32 s91, s91, s94
s_add_u32 s91, s91, s92
v_add_u32 {vRM}, s91, {t[0]}
s_lshl_b32 s91, {sG16}, 8
s_add_u32 s91, s91, {WS_FL}
v_lshl_add_u32 {vFLp}, {vL}, 2, s91
s_lshl_b32 s94, {sM16}, 2
s_add_u32 s94, s94, {sW}
s_lshl_b32 s94, s94, 2
s_add_u32 s91, s91, s94
v_mov_b32 {vFLo}, s91
v_mov_b32 {t[0]}, 0x7ff00000
v_cmp_eq_u32 vcc, 0, {vL}
v_cndmask_b32 {vFLo}, {t[0]}, {vFLo}, vcc""")
        for s in range(2):
            p(f"""s_add_u32 s91, {sW}, {4*s}
s_xor_b32 s91, s91, {sR3}
s_lshl_b32 s91, s91, 12
s_lshl_b32 s94, {sG16}, 17
s_add_u32 {sA3[s]}, s91, s94""")
        p(f's_cmp_eq_u32 {sR8}, 7\ns_cselect_b32 s91, 3, {sR8}\ns_lshl_b32 {sJ[0]}, s91, 13')
        for j in range(1, 7):
            p(f's_add_u32 {sJ[j]}, {sJ[j-1]}, 8192\ns_cmp_eq_u32 {sJ[j]}, {7*8192}\ns_cselect_b32 {sJ[j]}, 0, {sJ[j]}')
        p(f"""s_cmp_eq_u32 {sRG}, 3
s_cselect_b32 s91, 5, 1
s_add_u32 {sSG}, {sG}, s91
s_cmp_eq_u32 s90, 15
s_cselect_b32 {sSG}, {sG}, {sSG}
s_lshr_b32 s91, {sSG}, 1
v_mov_b32 v252, {sG16}
v_mov_b32 v253, s91
v_cmp_eq_u32 vcc, 0, {vL}
v_cndmask_b32 v252, v253, v252, vcc
v_lshlrev_b32 v252, 7, v252
s_mov_b32 s91, {WS_EP}
buffer_load_dword v253, v252, {SWS}, s91 offen sc1""")
        c = 40
        p(f"""v_mov_b32 v{c}, -1
v_mov_b32 v{c+1}, -1
v_mov_b32 v{c+2}, -1
v_mov_b32 v{c+3}, -1
v_mov_b32 v{c+4}, 0
v_lshrrev_b32 v{c+5}, 3, {vL}
v_and_b32 v{c+6}, 7, {vL}
v_lshlrev_b32 v{c+6}, 4, v{c+6}
v_lshl_add_u32 v{c+5}, v{c+5}, 11, v{c+6}
s_lshl_b32 s88, {sG}, 14
s_add_u32 s88, s88, s92
s_add_u32 s88, s88, {sW4K}
s_add_u32 s88, s88, {WS_HB}
s_lshl_b32 s91, {sG}, 7
s_lshl_b32 s94, {sW}, 4
s_add_u32 s91, s91, s94
s_add_u32 s91, s91, {WS_HS}
s_cmp_eq_u32 {sCB}, 0
s_cselect_b32 s91, s91, 0x7ff00000
v_mov_b32 v{c+6}, s91
s_mov_b64 exec, 0xffff""")
        self.clr = [p(f'buffer_store_dwordx4 {vr(c,4)}, v{c+5}, {SWS}, s88 offen sc1')]
        p('s_mov_b64 exec, 1')
        self.clr.append(p(f'buffer_store_dwordx4 {vr(c,4)}, v{c+6}, {SWS}, 0 offen sc1'))
        p('s_mov_b64 exec, -1')
        if not self.o_rot: p(f's_mov_b32 {sRG}, 0')
        if self.o.get('rotx', 1) & 4: p(f's_and_b32 {sRG}, s2, 3')

    def publish_xcc(self):
        l = self.lab('px')
        return [f'v_readlane_b32 {sE}, v253, 0', f'v_readlane_b32 {sES}, v253, 1', Raw(f"""s_cmp_lg_u32 {sW}, 0
s_cbranch_scc1 {l}
s_lshl_b32 s88, {sG}, 3
s_add_u32 s88, s88, {sCB}
s_lshl_b32 s88, s88, 8
s_add_u32 s88, s88, {WS_XC}
v_sub_u32 v252, 15, {vL}
v_add_u32 v252, v252, v253
v_mov_b32 v253, {sXCC}
v_lshlrev_b32 v254, 7, {vL}
s_mov_b64 exec, 3
buffer_store_dwordx2 v[252:253], v254, {SWS}, s88 offen sc1
s_mov_b64 exec, -1
{l}:""", rd=['v253', sE, sES], wr=['v252', 'v253', 'v254', 's88'], states=2)]
    def mode_issue(self, va, vd):
        return lines(f"""s_lshl_b32 s88, {sG16}, 12
s_lshl_b32 s89, {sPG}, 11
s_sub_u32 s89, s89, {16*256 - 128}
v_lshlrev_b32 {va}, 8, {vL}
v_add_u32 v{vd}, s89, {va}
v_add_u32 {va}, s88, {va}
v_cmp_gt_u32 vcc, 16, {vL}
v_cndmask_b32 {va}, v{vd}, {va}, vcc
v_mov_b32 v{vd}, s88
v_cmp_gt_u32 vcc, 24, {vL}
v_cndmask_b32 {va}, v{vd}, {va}, vcc
v_add_u32 {va}, {WS_XC}, {va}
buffer_load_dwordx2 {vr(vd,2)}, {va}, {SWS}, 0 offen sc1""")
    def mode_check(self, va, vd):
        o = lines(f"""s_cmp_eq_u32 {sHASP}, 0
s_mov_b32 s92, 0xffffff
s_cselect_b32 s92, 0xffff, s92
s_mov_b32 s93, 0
v_lshrrev_b32 v33, 4, {vL}
v_sub_u32 v33, 15, v33
v_add_u32 v33, {sE}, v33""")
        o += self.spin(f'buffer_load_dwordx2 {vr(vd,2)}, {va}, {SWS}, 0 offen sc1', f'v_cmp_ne_u32 vcc, v33, v{vd}', 's[92:93]')
        o += lines(f'v_cmp_ne_u32 vcc, {sXCC}, v{vd+1}\ns_and_b32 {sMODE}, vcc_lo, 0xffff')
        if self.o_glob: o.append(f's_mov_b32 {sMODE}, 1')
        return o
    def bump_epoch(self):
        l = self.lab('ep')
        return Raw(f"""s_add_u32 s88, {sM16}, {sW}
s_cmp_lg_u32 s88, 0
s_cbranch_scc1 {l}
s_lshl_b32 s88, {sG16}, 7
s_add_u32 s88, s88, {WS_EP}
s_add_u32 s89, {sE}, 16
v_mov_b32 v33, s89
v_mov_b32 v34, 0
s_mov_b64 exec, 1
buffer_store_dword v33, v34, {SWS}, s88 offen
s_mov_b64 exec, -1
{l}:""", wr=['v33', 'v34', 's88', 's89'], states=2)

    def stats_final(self, S, Q, t):
        o = [f'v_mul_f32 {S}, {f2u(-1/512)}, {S}', f'v_mul_f32 {Q}, {f2u(1/512)}, {Q}', f'v_fma_f32 {Q}, -{S}, {S}, {Q}', f'v_max_f32 {Q}, 0, {Q}']
        rnd = lambda x: [f'v_cvt_pk_bf16_f32 {x}, {x}, {x}', f'v_and_b32 {x}, 0xffff0000, {x}']
        if self.o_mimic:
            o += rnd(Q) + [f'v_add_f32 {Q}, {f2u(1e-5)}, {Q}'] + rnd(Q) + [f'v_sqrt_f32 {t}, {Q}'] + rnd(S) + rnd(t) + [f'v_rcp_f32 {Q}, {t}']
        else:
            o += [f'v_add_f32 {Q}, {f2u(1e-5)}, {Q}', f'v_sqrt_f32 {t}, {Q}', f'v_rcp_f32 {Q}, {t}']
        return o
    def stats_issue(self, base, sbase, r):
        o = [Ins(f's_add_u32 {sT}, {sbase}, {base}')]
        for i in range(4): o.append(Ins(f'buffer_load_dwordx4 {vr(r+4*i,4)}, {vL16}, {SWS}, {sT} offen offset:{1024*i} sc1'))
        return o
    def stats_reduce(self, r):
        o = []
        for j in range(4): o.append(f'v_add_f32 v{r+j}, v{r+j}, v{r+4+j}')
        for j in range(4): o.append(f'v_add_f32 v{r+8+j}, v{r+8+j}, v{r+12+j}')
        for j in range(4): o.append(f'v_add_f32 v{r+j}, v{r+j}, v{r+8+j}')
        o += [f'v_permlane16_swap_b32 v{r}, v{r+2}', f'v_permlane16_swap_b32 v{r+1}, v{r+3}',
              f'v_add_f32 v{r}, v{r}, v{r+2}', f'v_add_f32 v{r+1}, v{r+1}, v{r+3}',
              f'v_permlane32_swap_b32 v{r}, v{r+1}', f'v_add_f32 v{r}, v{r}, v{r+1}', f'v_mov_b32 v{r+1}, v{r}',
              f'v_permlane32_swap_b32 v{r}, v{r+1}']
        return o

    def w1_stage(self, s, seq=False):
        slot = L_R1 + (s % 7) * 12288
        pre = []
        if not (seq and s & 1):
            pre += [Ins(f's_xor_b32 {sV}, {sR8}, {s >> 1}'), Ins(f's_mul_i32 {sV}, {sV}, 196608')]
        if s & 1: pre.append(Ins(f's_add_u32 {sV}, {sV}, 98304'))
        out = []
        for part in range(3):
            g = ([Ins(f's_add_u32 m0, {sW3K}, {slot}')] + pre) if part == 0 else []
            g.append(Ins(f'buffer_load_dwordx4 {vW1d}, {SWQKV}, {sV} offen offset:{part*1024} lds', lds=[(slot + q*3072 + part*1024, slot + q*3072 + part*1024 + 1024) for q in range(4)]))
            out.append(g)
        return [sum(out, [])], [last(g) for g in out]
    def a1_chunk(self, L, kc):
        srd = SX if L == 0 else SWS; fl = ' sc1' if L else ''
        rng = lambda o: [(kc*8192 + q*2048 + o*1024, kc*8192 + q*2048 + o*1024 + 1024) for q in range(4)]
        a = Ins(f'buffer_load_dwordx4 {vA1e}, {srd}, {sT} offen{fl} lds', lds=rng(0))
        b = Ins(f'buffer_load_dwordx4 {vA1o}, {srd}, {sT} offen offset:1024{fl} lds', lds=rng(1))
        return [Ins(f's_add_u32 m0, {sW2K}, {kc*8192}'), Ins(f's_xor_b32 {sT}, {sR8s}, {kc*128}'), Ins(f's_add_u32 {sT}, {sT}, {sA1}'), a, b], [a, b]
    def halo_dma(self, L, va, sT=sT):
        srd = SX if L == 0 else SWS; fl = ' sc1' if L else ''
        o = []; tk = []
        for u in range(2):
            d = Ins(f'buffer_load_dwordx4 {va}, {srd}, {sT} offen{fl} lds', lds=[(L_A1H + q*2048 + u*1024, L_A1H + q*2048 + u*1024 + 1024) for q in range(4)])
            o += [Ins(f's_add_u32 m0, {sW2K}, {L_A1H + u*1024}'), Ins(f's_lshl_b32 {sT}, {sW}, 8'), Ins(f's_add_u32 {sT}, {sT}, {u*128}'),
                  Ins(f's_xor_b32 {sT}, {sT}, {sR8s}'), Ins(f's_add_u32 {sT}, {sT}, {sHB if L else sHALO}'), d]
            tk.append(d)
        return o, tk
    def w2_piece(self, i):
        q = (i >> 1) & 3; c = (i & 1)*32768 + (i >> 3)*262144
        o = [Ins(f's_add_u32 m0, {sW1K}, {L_W2 + i*4096}'), Ins(f's_xor_b32 {sT}, {sRG}, {q}'), Ins(f's_lshl_b32 {sT}, {sT}, 16')]
        if c: o.append(Ins(f's_add_u32 {sT}, {sT}, {c}'))
        o.append(Ins(f'buffer_load_dwordx4 {vW2d}, {SWO}, {sT} offen lds', lds=(L_W2 + i*4096, L_W2 + i*4096 + 4096)))
        return o
    W4SLOTS = [[8, 2, 3, 4, 5, 0, 1, 6, 7, 2, 3, 0, 1, 2], [8, 8, 8, 8, 0, 1, 2, 3, 4, 5, 6, 7, 8, 1]]
    @property
    def W4SLOT(self): return self.W4SLOTS[self.layer]
    def w4_setup(self):
        return [f'v_add_u32 {vW4[0]}, {sWd4}, {vW2d}'] + [f'v_add_u32 {vW4[i]}, {7168*i}, {vW4[0]}' for i in range(1, 4)]
    def w4_stage(self, s):
        c, j = divmod(s, 7)
        slot = self.W4SLOT[s] * 16384
        out = []; tk = []
        for h in range(2):
            g = [Ins(f's_add_u32 m0, {sW4K}, {slot}'), Ins(f's_lshl4_add_u32 {sT}, {sJ[j]}, {c*65536}')]
            for i in (2*h, 2*h+1):
                d = Ins(f'buffer_load_dwordx4 {vW4[i]}, {SWD}, {sT} offen offset:{i*1024} lds', lds=[(slot + q*4096 + i*1024, slot + q*4096 + i*1024 + 1024) for q in range(4)])
                g.append(d); tk.append(d)
            out.append(g)
        return out, tk
    def w3_quad(self, q, stg):
        c, kq = divmod(q, 8)
        o = [Ins(f's_add_u32 m0, {sW4K}, {stg}'), Ins(f's_xor_b32 {sU}, {sR3}, {kq}'), Ins(f's_mul_i32 {sU}, {sU}, {4*57344}')]
        if c: o.append(Ins(f's_add_u32 {sU}, {sU}, 128'))
        tk = [Ins(f'buffer_load_dwordx4 {vW3q[i]}, {SW3}, {sU} offen offset:{i*1024} lds', lds=[(stg + w*4096 + i*1024, stg + w*4096 + i*1024 + 1024) for w in range(4)]) for i in range(4)]
        self.w3tok[q] = tk; self.w3stg[q] = stg
        return self.split_dma(o + tk)
    def w3_reads(self, n):
        stg = self.w3stg[n >> 2]; i = n & 3
        va, off = [(vW3r, 0), ('v212', 49152), ('v213', 98304)][min(2, stg // 49152)]
        return [Ins(f'ds_read_b64_tr_b16 {ar(4*n+2*r,2)}, {va} offset:{stg - off + i*1024 + r*512}', lds=[(stg + w*4096 + i*1024, stg + w*4096 + i*1024 + 1024) for w in range(4)]) for r in range(2)]
    def w3_cs(self, n):
        return f'v_mfma_f32_16x16x32_bf16 v[216:219], v[220:223], {ar(4*n,4)}, {0 if n % 32 == 0 else "v[216:219]"}'
    def w3_setup(self):
        return [f'v_add_u32 v212, 49152, {vW3r}', f'v_add_u32 v213, 98304, {vW3r}']
    def w3_take(self, ns):
        p = self.p
        rs = [self.w3_reads(n) for n in ns]
        for i, n in enumerate(ns):
            p(rs[i])
            if i >= 3: p(self.w3_cs(ns[i-3]))
        for n in ns[-3:]: p(self.w3_cs(n))
        return sum(rs, [])
    def w3_sel(self):
        return lines(f"""v_lshrrev_b32 v220, 2, {vL}
v_lshrrev_b32 v221, 4, {vL}
v_xor_b32 v220, v220, v221
v_and_b32 v220, 1, v220
v_cmp_eq_u32 vcc, 0, v220
v_mov_b32 v221, 0x3f803f80
v_cndmask_b32 v220, 0, v221, vcc
v_mov_b32 v221, v220
v_mov_b32 v222, v220
v_mov_b32 v223, v220""")
    CSW = [34, 34]
    def w3_cs_store(self, c):
        o = lines(f"""v_cvt_pk_bf16_f32 v217, v216, v216
v_and_b32 v218, 0xffff0000, v217
v_sub_f32 v216, v216, v218
v_cvt_pk_bf16_f32 v218, v216, v216
v_and_b32 v219, 0xffff0000, v218
v_sub_f32 v216, v216, v219
v_and_b32 v217, 0xffff, v217
v_or_b32 v218, v219, v217
v_cvt_pk_bf16_f32 v219, v216, 0
v_lshlrev_b32 v217, 3, {vL}
s_lshl_b32 s90, {sW}, 9
s_add_u32 s90, s90, {L_CS3 + c*256}
v_add_u32 v217, s90, v217""")
        o.append(['s_mov_b64 exec, 0xffffffff', Ins('ds_write_b64 v217, v[218:219]', lds=(L_CS3, L_CS3 + 2048), private=True), 's_mov_b64 exec, -1'])
        return o

    ATT = dict(ST=144, VS=154, CQ=194, QB=202, KB=210, VB=220, CA=128, CB=132, CB0=136, MA=140, SB=96, PP=230, OA=56, T=246)
    def att_masks(self, T):
        A = self.ATT; CA, CB, CB0, MA = A['CA'], A['CB'], A['CB0'], A['MA']
        o = lines(f"""v_and_b32 v{T}, 15, {vL}
v_lshrrev_b32 v{T+1}, 4, {vL}
v_lshlrev_b32 v142, 2, v{T}
v_add_u32 v142, {L_NM}, v142
v_lshlrev_b32 v143, 4, v{T+1}
v_add_u32 v143, {L_NM}, v143
v_lshlrev_b32 v{T+1}, 2, v{T+1}
v_sub_u32 v{T}, v{T}, v{T+1}
v_mov_b32 v{T+4}, 0xff800000
v_mov_b32 v{T+5}, 0xffff
v_mov_b32 v{T+6}, 0xffff0000
s_cmp_eq_u32 {sHASP}, 0
s_cselect_b64 s[88:89], 0, -1""")
        for j in range(4):
            o += lines(f"""v_subrev_u32 v{T+1}, {j}, v{T}
v_add_u32 v{T+7}, 16, v{T+1}
v_cmp_gt_u32 vcc, 8, v{T+1}
v_cmp_gt_u32 s[90:91], 8, v{T+7}
v_cndmask_b32 v{CA+j}, v{T+4}, 0, vcc
v_cndmask_b32 v{T+8+j}, 0, v{T+5+(j&1)}, vcc
v_cndmask_b32 v{CB+j}, v{T+4}, 0, s[90:91]
v_cndmask_b32 v{CB0+j}, v{T+4}, v{CB+j}, s[88:89]""")
        o += [f'v_or_b32 v{MA}, v{T+8}, v{T+9}', f'v_or_b32 v{MA+1}, v{T+10}, v{T+11}']
        return o
    def att_ones(self): return [f'v_mov_b32 v{112+i}, 0x3f803f80' for i in range(4)]
    def att_tabreads(self):
        A = self.ATT; tab = (L_NM, L_NM + 640)
        o = [Ins(f'ds_read2_b32 {vr(A["ST"]+2*u,2)}, v142 offset0:{16*u} offset1:{80+16*u}', lds=tab) for u in range(5)]
        for u in range(5):
            o.append(Ins(f'ds_read_b128 {vr(A["VS"]+8*u,4)}, v143 offset:{64*u}', lds=tab))
            o.append(Ins(f'ds_read_b128 {vr(A["VS"]+8*u+4,4)}, v143 offset:{64*u+320}', lds=tab))
        return o
    def attention(self, L, extra):
        p = self.p
        QA, KA, VA = 40, 56, 76
        A = self.ATT
        ST, VS, CQ, QB, KB, VB, CA, CB, CB0, MA, SB, PP, OA, T = [A[k] for k in 'ST VS CQ QB KB VB CA CB CB0 MA SB PP OA T'.split()]
        lo, hi = 'op_sel_hi:[1,0,1]', 'op_sel:[0,1] op_sel_hi:[1,1]'
        ONES = 112
        for u in range(5):
            st = vr(ST + 2*u, 2)
            for j in (0, 2): p(f'v_pk_fma_f32 {vr(KA+4*u+j,2)}, {vr(CSK+j,2)}, {st}, {vr(KA+4*u+j,2)} {lo}')
            if u:
                for j in (0, 2): p(f'v_pk_fma_f32 {vr(QA+4*u-4+j,2)}, {vr(CSQ+j,2)}, {st}, {vr(QA+4*u-4+j,2)} {lo}')
            for j in (0, 2): p(f'v_pk_mul_f32 {vr(KA+4*u+j,2)}, {vr(KA+4*u+j,2)}, {st} {hi}')
            if u:
                for j in range(2): p(f'v_cvt_pk_bf16_f32 v{QB+2*u-2+j}, v{QA+4*u-4+2*j}, v{QA+4*u-4+2*j+1}')
            for j in range(2): p(f'v_cvt_pk_bf16_f32 v{KB+2*u+j}, v{KA+4*u+2*j}, v{KA+4*u+2*j+1}')
        p(extra.get('a', []))
        for t in range(4):
            p(f'v_mfma_f32_16x16x16_bf16 {vr(QA+4*t,4)}, {vr(KB+2*(t+1),2)}, {vr(QB+2*t,2)}, {vr(CA,4)}')
            p(f'v_mul_f32 v{CQ+2*t}, {f2u(0.25*LOG2E)}, v{ST+2*t+3}')
            p(f'v_mfma_f32_16x16x16_bf16 {vr(SB+4*t,4)}, {vr(KB+2*t,2)}, {vr(QB+2*t,2)}, {vr(CB0 if t == 0 else CB,4)}')
        p(self.att_ones()); p(extra.get('b', []))
        for u in range(5):
            for j in (0, 2): p(f'v_pk_fma_f32 {vr(VA+4*u+j,2)}, {vr(VS+8*u+j,2)}, {vr(CSV,2)}, {vr(VA+4*u+j,2)} {lo}')
            for j in (0, 2): p(f'v_pk_mul_f32 {vr(VA+4*u+j,2)}, {vr(VA+4*u+j,2)}, {vr(VS+8*u+4+j,2)}')
            for j in range(2): p(f'v_cvt_pk_bf16_f32 v{VB+2*u+j}, v{VA+4*u+2*j}, v{VA+4*u+2*j+1}')
        for t in range(4):
            for j in range(4): p(f'v_max_f32 v{QA+4*t+j}, v{QA+4*t+j}, v{SB+4*t+j}')
        for t in range(4): p(f'v_max3_f32 v{T+t}, v{QA+4*t}, v{QA+4*t+1}, v{QA+4*t+2}')
        for t in range(4): p(f'v_max_f32 v{T+t}, v{T+t}, v{QA+4*t+3}')
        def reduce4(op, ex=None):
            p(f"""v_permlane16_swap_b32 v{T}, v{T+1}
v_permlane16_swap_b32 v{T+2}, v{T+3}
{op} v{T}, v{T}, v{T+1}
{op} v{T+2}, v{T+2}, v{T+3}
v_permlane32_swap_b32 v{T}, v{T+2}
{op} v{T}, v{T}, v{T+2}""")
            if ex: p(ex)
            p(f"""v_mov_b32 v{T+2}, v{T}
v_permlane32_swap_b32 v{T}, v{T+2}
v_mov_b32 v{T+1}, v{T}
v_mov_b32 v{T+3}, v{T+2}
v_permlane16_swap_b32 v{T}, v{T+1}
v_permlane16_swap_b32 v{T+2}, v{T+3}""")
        reduce4('v_max_f32')
        for t in range(4): p(f'v_mul_f32 v{CQ+2*t+1}, v{T+t}, v{CQ+2*t}')
        for t in range(4):
            for j in (0, 2): p(f'v_pk_fma_f32 {vr(QA+4*t+j,2)}, {vr(QA+4*t+j,2)}, {vr(CQ+2*t,2)}, {vr(CQ+2*t,2)} op_sel:[0,0,1] op_sel_hi:[1,0,1] neg_lo:[0,0,1] neg_hi:[0,0,1]')
        for t in range(4):
            for j in range(4): p(f'v_exp_f32 v{QA+4*t+j}, v{QA+4*t+j}')
        for t in range(4):
            p(f"""v_cvt_pk_bf16_f32 v{PP+4*t}, v{QA+4*t}, v{QA+4*t+1}
v_cvt_pk_bf16_f32 v{PP+4*t+1}, v{QA+4*t+2}, v{QA+4*t+3}
v_and_b32 v{PP+4*t+2}, v{MA}, v{PP+4*t}
v_and_b32 v{PP+4*t+3}, v{MA+1}, v{PP+4*t+1}
v_xor_b32 v{PP+4*t}, v{PP+4*t}, v{PP+4*t+2}
v_xor_b32 v{PP+4*t+1}, v{PP+4*t+1}, v{PP+4*t+3}""")
            if t: p(f'v_mfma_f32_16x16x32_bf16 {vr(SB+4*t-4,4)}, {vr(ONES,4)}, {vr(PP+4*t-4,4)}, 0')
            if t: p(f'v_mfma_f32_16x16x32_bf16 {vr(OA+4*t-4,4)}, {vr(VB+2*t-2,4)}, {vr(PP+4*t-4,4)}, 0')
        p(f'v_rcp_f32 v{SB}, v{SB}')
        p(f'v_mfma_f32_16x16x32_bf16 {vr(SB+12,4)}, {vr(ONES,4)}, {vr(PP+12,4)}, 0')
        p(f'v_mfma_f32_16x16x32_bf16 {vr(OA+12,4)}, {vr(VB+6,4)}, {vr(PP+12,4)}, 0')
        for t in range(4):
            if t: p(f'v_rcp_f32 v{SB+4*t}, v{SB+4*t}')
            if t:
                for j in range(4): p(f'v_mul_f32 v{OA+4*t-4+j}, v{SB+4*t-4}, v{OA+4*t-4+j}')
        for j in range(4): p(f'v_mul_f32 v{OA+12+j}, v{SB+12}, v{OA+12+j}')
        for tp in range(2):
            b = PP + 4*tp
            for h in range(2):
                t = 2*tp + h
                for j in range(2): p(f'v_cvt_pk_bf16_f32 v{b+2*h+j}, v{OA+4*t+2*j}, v{OA+4*t+2*j+1}')
        for tp in range(2):
            b = PP + 4*tp
            p(f'v_permlane16_swap_b32 v{b}, v{b+2}\nv_permlane16_swap_b32 v{b+1}, v{b+3}')
        alt, st = self.stores([f'buffer_store_dwordx4 {vr(PP,4)}, {vL16}, {SWS}, {sX} offen', f'buffer_store_dwordx4 {vr(PP+4,4)}, {vL16}, {SWS}, {sY} offen'])
        p(alt)
        return st
    def o_addr(self, L):
        if self.alias:
            return lines(f"""s_mul_i32 {sX}, {sG}, {2*114688}
s_lshl_b32 {sY}, {sCB}, 12
s_add_u32 {sX}, {sX}, {sY}
s_add_u32 {sX}, {sX}, {sW1K}
s_add_u32 {sX}, {sX}, {WS_H[L]}
s_add_u32 {sY}, {sX}, 114688""")
        return lines(f"""s_lshl_b32 {sX}, {sG}, 16
s_lshl_b32 {sY}, {sCB}, 12
s_add_u32 {sX}, {sX}, {sY}
s_add_u32 {sX}, {sX}, {sW1K}
s_add_u32 {sX}, {sX}, {WS_O[L]}
s_add_u32 {sY}, {sX}, 32768""")
    def x1_addr(self, L, d):
        return lines(f"""s_lshl_b32 {d}, {sRB}, 15
s_lshl_b32 s89, {sCB}, 12
s_add_u32 {d}, {d}, s89
s_and_b32 s89, {sW1K}, 2048
s_add_u32 {d}, {d}, s89
s_add_u32 {d}, {d}, {WS_X1[L]}""")
    def st_addr(self, base, d):
        return lines(f"""s_lshl_b32 {d}, {sRB}, 12
s_lshl_b32 s89, {sCB}, 9
s_add_u32 {d}, {d}, s89
s_lshr_b32 s89, {sW}, 1
s_lshl_b32 s89, s89, 8
s_add_u32 {d}, {d}, s89
s_add_u32 {d}, {d}, {base}""")
    def h_addr(self, L):
        return lines(f"""s_mul_i32 {sH0}, {sG16}, {4*114688}
s_lshl_b32 s88, {sM16}, 13
s_add_u32 {sH0}, {sH0}, s88
s_add_u32 {sH0}, {sH0}, {sW1K}
s_add_u32 {sH0}, {sH0}, {WS_H[L]}
s_cmp_lg_u32 {sIDLE}, 0
s_cselect_b32 {sH0}, 0x7fe00000, {sH0}""")
    def touches_p1(self, L, t):
        if not self.o_touch or (self.alias and L == 1 and not self.o.get('t1', True)): return self.o_addr(L)
        o = self.o_addr(L) + [f'v_and_b32 {t}, 7, {vL}', f'v_lshlrev_b32 {t}, 7, {t}', f'v_bfe_u32 v34, {vL}, 3, 1', f'v_mul_u32_u24 v34, {114688 if self.alias else 32768}, v34', f'v_add_u32 {t}, {t}, v34']
        o.append(self.touch(t, sX, 0xffff))
        o += self.x1_addr(L, 's88') + [f'v_lshlrev_b32 {t}, 7, {vL}']
        o.append(self.touch(t, 's88', 0xffff))
        o += self.st_addr(WS_ST1[L], 's88')
        o.append(self.touch(t, 's88', 3))
        if L == 0: o.append(self.touch(vFLp, 0))
        return o
    def touches_h(self, L, t):
        if not self.o_touch or (self.alias and L == 1 and not self.o.get('th1', True)): return []
        o = self.h_addr(L) + lines(f"""v_and_b32 {t}, 7, {vL}
v_lshlrev_b32 {t}, 7, {t}
v_bfe_u32 v34, {vL}, 3, 1
v_lshl_add_u32 {t}, v34, 12, {t}
v_lshrrev_b32 v34, 4, {vL}
v_mul_u32_u24 v34, 114688, v34
v_add_u32 {t}, {t}, v34""")
        o.append(self.touch(t, sH0))
        return o
    def touches_x2(self, t):
        if not self.o_touch: return []
        if self.alias:
            if not self.o.get('tx2', True): return []
            o = self.x1_addr(0, 's88') + [f'v_lshlrev_b32 {t}, 7, {vL}', self.touch(t, 's88', 0xffff)]
            return o + self.st_addr(WS_ST2, 's88') + [self.touch(t, 's88', 3)]
        o = [f's_add_u32 s88, {sROW}, {WS_X2}', self.touch(vRM, 's88', 0xffffffff)]
        o += self.st_addr(WS_ST2, 's88') + [f'v_lshlrev_b32 {t}, 7, {vL}', self.touch(t, 's88', 3)]
        return o

    def p1_wreads(self, s, dq, dk, dv):
        slot = s % 7
        va, off = (vW1r0, slot*12288) if slot < 4 else (vW1r1, slot*12288 - 49152)
        lo = L_R1 + slot*12288
        return [Ins(f'ds_read_b64_tr_b16 {vr(dst+2*rd,2)}, {va} offset:{off + part*1024 + rd*512}', lds=[(lo + q*3072 + part*1024, lo + q*3072 + part*1024 + 1024) for q in range(4)])
                for part, dst in ((0, dq), (1, dk), (2, dv)) for rd in range(2)]
    def p1_aread(self, s, t, dst):
        o = (s >> 1)*8192 + t*2048
        return Ins(f'ds_read_b128 {vr(dst,4)}, {vA1r1 if s & 1 else vA1r0} offset:{o}', lds=(o, o+2048))
    def halo_addr(self, a, b):
        return lines(f"""v_and_b32 {a}, 1023, {vA1r0}
v_not_b32 {b}, {vL}
v_and_b32 {b}, 8, {b}
v_lshlrev_b32 {b}, 3, {b}
v_xor_b32 {a}, {a}, {b}
v_add_u32 {a}, {L_A1H}, {a}
v_xor_b32 {b}, 64, {a}""")
    def halo_read(self, s, dst, a, b):
        o = (s >> 1)*1024
        return Ins(f'ds_read_b128 {vr(dst,4)}, {b if s & 1 else a} offset:{o}', lds=(L_A1H + o, L_A1H + o + 1024))
    W2AT = {9: [1, 2, 3], 10: [4, 5, 6], 11: [7, 8, 9], 12: [10, 11, 12], 13: [13, 14, 15], 15: [0]}

    def split_dma(self, g):
        out = []; cur = []
        for i in g:
            cur.append(i)
            if i.kind in ('dma', 'vmld'): out.append(cur); cur = []
        assert not cur
        return out

    def p1_first(self):
        p = self.p
        QA, KA, VA, AF, ONE, WB, SA = 40, 56, 76, 96, 120, 224, 152
        wtok = {}; atok = {}
        def A(kc):
            o, tk = self.a1_chunk(0, kc); atok[kc] = tk; return self.split_dma(o)
        def W(s):
            o, tk = self.w1_stage(s, seq=True); wtok[s] = tk; return self.split_dma(o[0])
        p(A(0))
        hd, htok = self.halo_dma(0, 'v124'); p(hd)
        p(W(0)); p(W(1)); p(A(1))
        self.prologue_b()
        for i2 in range(2): p(f'buffer_load_dwordx4 {vr(RES+4*i2,4)}, {vRM}, {SX}, {sROW} offen offset:{32*i2}')
        p(self.halo_addr('v124', 'v125'))
        p(f'v_add_u32 v126, {sW2K}, {vA1r0}\nv_xor_b32 v127, 64, v126')
        for i in range(4): p(f'v_mov_b32 v{ONE+i}, 0x3f803f80')
        p(W(2)); p(W(3))
        self.ts('p1_go0')
        plan = {0: ['A2', 'W4'], 1: ['A3', 'W5'], 2: ['A4', 'W6'], 3: ['A5', 'W7'], 4: ['A6', 'W8'], 5: ['A7', 'W9'], 6: ['W10', 'W11'], 7: ['W12', 'W13'], 8: ['W14', 'W15']}
        wb = lambda s: WB + 12*(s & 1)
        one = vr(ONE, 4)
        p(WaitTok(wtok[0] + atok[0] + htok)); p('s_barrier')
        self.ts('a1_landed')
        wr = self.p1_wreads(0, wb(0), wb(0)+4, wb(0)+8); p(wr)
        p(self.halo_read(0, AF+16, 'v124', 'v125'))
        for t in range(4): p(self.p1_aread(0, t, AF + 4*t))
        spine = []; base = []
        for s in range(16):
            base.append(len(spine))
            z = (s == 0)
            wq, wk, wv = vr(wb(s), 4), vr(wb(s)+4, 4), vr(wb(s)+8, 4)
            mm = lambda d, x, y, zz=z: f'v_mfma_f32_16x16x32_bf16 {vr(d,4)}, {x}, {y}, {0 if zz else vr(d,4)}'
            h = vr(AF + 16, 4)
            spine += [mm(CSQ, wq, one), mm(CSK, wk, one), mm(248, one, wv), mm(KA, wk, h), mm(VA, h, wv)]
            for t in range(4):
                a = vr(AF + 4*t, 4)
                spine += [mm(QA + 4*t, wq, a), mm(KA + 4 + 4*t, wk, a), mm(VA + 4 + 4*t, a, wv)]
            kc = s - 2
            if 0 <= kc < 8:
                for hh in range(2):
                    fa, fh = vr(168 + 8*hh, 4), vr(172 + 8*hh, 4); zz = (kc == 0 and hh == 0)
                    spine += [mm(SA, one, fa, zz), mm(SA+4, fa, fa, zz), mm(SA+8, one, fh, zz), mm(SA+12, fh, fh, zz)]
        base.append(len(spine))
        S = Sched(spine)
        w2tok = []; nraw = 0
        for s in range(16):
            b, nb = base[s], base[s+1]
            for it in plan.get(s, []): S.add('dma', A(int(it[1:])) if it[0] == 'A' else W(int(it[1:])), e=b+1, d=nb+6, split=True)
            for i in self.W2AT.get(s, []):
                x = self.w2_piece(i); S.add('dma', [x], e=b+1, d=nb+6, split=True); w2tok.append(last(x))
            if s in (12, 14): S.add('dma', self.w3_quad(nraw, 16384 + 16384*nraw), e=b+1, d=base[s+2]-1, split=True); nraw += 1
        tabw = [Ins(f'ds_write2_b32 v169, v{SA}, v{SA+4} offset0:16 offset1:96', lds=(L_NM, L_NM+640)), Ins(f'ds_write2_b32 v168, v{SA+8}, v{SA+12} offset0:0 offset1:80', lds=(L_NM, L_NM+640))]
        for s in range(16):
            b, nb = base[s], base[s+1]
            toks = list(wr)
            if s < 15: toks += wtok[s+1] + atok[(s+1) >> 1]
            kc = s - 2
            if 0 <= kc < 8: toks += atok[kc]
            if s == 3: toks += self.clr
            if s == 15: toks += tabw
            S.before[b] = self.fts('p10', f'k{s}')
            S.at(b, [WaitTok(toks), 's_barrier'])
            if 0 <= kc < 8:
                x = []
                for hh in range(2):
                    x.append(Ins(f'ds_read_b128 {vr(168+8*hh,4)}, {"v127" if hh else "v126"} offset:{kc*8192}', lds=(kc*8192, kc*8192 + 8192)))
                    x.append(self.halo_read(2*kc + hh, 172 + 8*hh, 'v124', 'v125'))
                S.add('sr', x, e=b+1, d=b+13)
            if s < 15:
                wr = self.p1_wreads(s+1, wb(s+1), wb(s+1)+4, wb(s+1)+8)
                S.add('wr', wr, e=b+1, d=nb-5, step=1)
                S.add('ar', [self.halo_read(s+1, AF+16, 'v124', 'v125')], e=b+5, d=nb-3)
                for t in range(4): S.add('ar', [self.p1_aread(s+1, t, AF + 4*t)], e=b+8+3*t, d=nb+3*t, step=0)
        x = lines(f"""v_and_b32 v168, 3, {vL}
v_cmp_eq_u32 vcc, 1, v168
v_cmp_eq_u32 s[88:89], 2, v168
v_cmp_eq_u32 s[90:91], 3, v168""")
        for bb in (SA+4, SA+12):
            x += [f'v_cndmask_b32 v{bb}, v{bb}, v{bb+1}, vcc', f'v_cndmask_b32 v{bb}, v{bb}, v{bb+2}, s[88:89]', f'v_cndmask_b32 v{bb}, v{bb}, v{bb+3}, s[90:91]']
        x += self.stats_final(f'v{SA}', f'v{SA+4}', f'v{SA+1}') + self.stats_final(f'v{SA+8}', f'v{SA+12}', f'v{SA+9}')
        x += lines(f"""v_and_b32 v168, 15, {vL}
v_lshlrev_b32 v168, 2, v168
v_add_u32 v168, {L_NM}, v168
s_lshl_b32 s88, {sW}, 6
v_add_u32 v169, s88, v168""")
        x.append(['s_mov_b32 exec_lo, 0x00f0000f', 's_mov_b32 exec_hi, 0xf0000f00'] + tabw + ['s_mov_b64 exec, -1'])
        wt = self.o.get('wat', 0)
        S.add('misc', self.warm_touch('v196') + [[f's_cmp_lg_u32 {sIDLE}, 0', 's_cselect_b32 s18, 0, s18']], e=base[wt]+1, d=base[wt+1]-1)
        S.add('misc', self.att_masks(184), e=base[1]+1, d=base[3]-1)
        S.add('misc', self.publish_xcc(), e=base[3]+1, d=base[4])
        S.add('misc', self.touches_p1(0, 'v196'), e=base[6], d=base[9])
        S.add('misc', self.mode_issue('v197', 198), e=base[9], d=base[10]+1)
        S.add('misc', [f'v_add_u32 {vW3q[i]}, {i*(57344-1024)}, {vW3d}' for i in range(1, 4)], e=base[10], d=base[11])
        if self.o.get('ct2', False): S.add('misc', [self.code_touch()], e=base[10], d=base[11])
        S.add('misc', x, e=base[10]+2, d=base[14])
        S.add('misc', self.p2_setup(0), e=base[13], d=base[14])
        S.add('misc', [self.mode_check('v197', 198)], e=base[14], d=base[15]-1)
        S.add('misc', self.att_tabreads(), e=base[15]+1, d=base[16]-2)
        self.win(S, '10')
        S.emit(p, 'p1 L0')
        self.ts('p1_loop0')
        p(f'v_mov_b32 v{CSV}, v248')
        p('s_waitcnt lgkmcnt(0)'); p('s_barrier')
        p(self.w3_quad(2, 49152)); p(self.touches_h(0, 'v124'))
        st = self.attention(0, {'a': self.w3_quad(3, 65536)})
        self.ts('p1_attn0')
        self.post_flag(1, st)
        self.ts('p1_end0')
        return w2tok

    def p1_second(self, pre):
        p = self.p
        QA, KA, VA, AF, WQ, WK, WV = 40, 56, 76, 96, 112, 128, 192
        wtok = dict(pre); atok = {}
        def A(kc):
            o, tk = self.a1_chunk(1, kc); atok[kc] = tk; return self.split_dma(o)
        p('v_mov_b32 v120, v127')
        dst = lambda s: (WQ + 4*(s & 1), WK + 4*s, WV + 4*s)
        p(WaitTok(wtok[0])); p('s_barrier')
        wr = self.p1_wreads(0, *dst(0)); p(wr)
        self.poll(5, sMK1)
        self.ts('p1_go1')
        p(A(0)); p(A(1))
        p(self.stats_issue(WS_ST2, 's92', 240))
        p(A(2))
        p(WaitTok(atok[0])); p('s_barrier')
        for t in range(4): p(self.p1_aread(0, t, AF + 4*t))
        self.ts('p1_stats1')
        spine = []
        for s in range(16):
            z = (s == 0)
            dq, dk, dv = dst(s)
            mm = lambda d, x, y: f'v_mfma_f32_16x16x32_bf16 {vr(d,4)}, {x}, {y}, {0 if z else vr(d,4)}'
            for t in range(4):
                a = vr(AF + 4*t, 4)
                spine += [mm(QA + 4*t, vr(dq,4), a), mm(KA + 4 + 4*t, vr(dk,4), a), mm(VA + 4 + 4*t, a, vr(dv,4))]
        hb = len(spine)
        for s in range(16):
            a = vr(AF + 4*(s & 3), 4); k, v = vr(KA, 4), vr(VA, 4)
            spine.append(f'v_mfma_f32_16x16x32_bf16 {k}, {vr(WK+4*s,4)}, {a}, {0 if s == 0 else k}')
            spine.append(f'v_mfma_f32_16x16x32_bf16 {v}, {a}, {vr(WV+4*s,4)}, {0 if s == 0 else v}')
        S = Sched(spine)
        w2tok = []
        hd, htok = self.halo_dma(1, 'v120')
        for s in range(16):
            b = 12*s
            if s == 0:
                for st_ in range(7):
                    if st_ not in wtok:
                        o, tk = self.w1_stage(st_); wtok[st_] = tk; S.add('dma', self.split_dma(o[0]), e=0, d=12*(st_-1) - 14, step=3, split=True)
            if s < 5: S.add('dma', A(s+3), e=b+1, d=min(b+30, 12*(2*s+5) - 14), split=True)
            if s + 7 < 16:
                o, tk = self.w1_stage(s+7, seq=(s > 0)); wtok[s+7] = tk; S.add('dma', self.split_dma(o[0]), e=b+1, d=b+36, split=True)
            if s == 8: S.add('dma', self.split_dma(hd), e=b+1, d=b+36, split=True)
        w2 = [self.w2_piece(i) for i in list(range(1, 16)) + [0]]; w2tok = [last(x) for x in w2]
        NW2 = 9
        S.add('dma', w2[:NW2], e=12*14+1, d=hb+30, split=True)
        tabw = [Ins('ds_write2_b32 v125, v240, v241 offset0:16 offset1:96', lds=(L_NM, L_NM+640)), Ins('ds_write_b32 v126, v125', lds=[(L_NM, L_NM+64), (L_RS, L_RS+64)])]
        for s in range(16):
            b = 12*s
            toks = list(wr)
            if s < 15: toks += wtok[s+1] + atok[(s+1) >> 1]
            if s == 15: toks += tabw + htok
            S.before[b] = self.fts('p11', f'k{s}')
            S.at(b, [WaitTok(toks), 's_barrier'])
            if s < 15:
                wr = self.p1_wreads(s+1, *dst(s+1))
                S.add('wr', wr, e=b+1, d=b+9, step=1)
                for t in range(4): S.add('ar', [self.p1_aread(s+1, t, AF + 4*t)], e=b+3+3*t, d=b+8+3*t, step=0)
        S.before[hb] = self.cap(lambda: self.ts('p1_loop1'))
        for s in range(16):
            e = 12*15 + 3 + 3*s if s < 4 else hb + 2*(s-4) + 2
            S.add('ar', [self.halo_read(s, AF + 4*(s & 3), 'v122', 'v123')], e=e, d=max(e, hb + 2*s - 4))
        lh = self.lab('hs')
        S.add('misc', [Raw(f"""s_bitcmp1_b32 {sW}, 0
s_cbranch_scc0 {lh}
s_lshl_b32 s88, {sG}, 14
s_add_u32 s88, s88, {WS_HB - 56*2048}
s_mov_b32 exec_lo, 0xff000000
s_mov_b32 exec_hi, 0xff000000
buffer_store_dwordx4 {vr(RES,4)}, {vRM}, {SWS}, s88 offen sc1
buffer_store_dwordx4 {vr(RES+4,4)}, {vRM}, {SWS}, s88 offen offset:32 sc1
s_mov_b64 exec, -1
{lh}:""", rd=[vr(RES, 8)], wr=['s88'], states=2)], e=10, d=11)
        x = self.stats_reduce(240) + self.stats_final('v240', 'v241', 'v242') + lines(f"""v_and_b32 v124, 15, {vL}
v_lshlrev_b32 v124, 3, v124
v_bfe_u32 v125, {vL}, 4, 1
v_lshl_add_u32 v124, v125, 2, v124
s_and_b32 s88, {sW}, 1
s_lshl_b32 s88, s88, 7
s_add_u32 s88, s88, {L_NM}
v_add_u32 v125, s88, v124""")
        x.append(tabw[0])
        lh = self.lab('ht')
        x.append(Raw(f"""s_lshl_b32 s88, {sCB}, 2
s_add_u32 s88, s88, {sW}
s_cmp_lg_u32 s88, 1
s_cbranch_scc1 {lh}
s_lshl_b32 s88, {sG}, 7
s_add_u32 s88, s88, {WS_HS - 96}
s_mov_b32 exec_lo, 0xf000f000
s_mov_b32 exec_hi, 0
buffer_store_dword v240, v124, {SWS}, s88 offen sc1
buffer_store_dword v241, v124, {SWS}, s88 offen offset:32 sc1
s_mov_b64 exec, -1
{lh}:""", rd=['v240', 'v241', 'v124'], wr=['s88'], states=2))
        S.add('misc', x, e=12, d=12*5, step=0.8)
        S.add('misc', self.touches_p1(1, 'v121') + ([self.code_touch()] if self.o.get('ct2', False) else []), e=12*9, d=12*10 - 1)
        S.add('misc', [f's_lshl_b32 s88, {sPG}, 7', f's_add_u32 s94, s88, {WS_HS}', [f's_cmp_eq_u32 {sHASP}, 0', 's_cselect_b32 s94, 0x7ff00000, s94'], f'v_and_b32 v124, 15, {vL}', 'v_lshlrev_b32 v124, 2, v124',
                       f'buffer_load_dword v125, v124, {SWS}, s94 offen sc1', f's_add_u32 s88, {sW2K}, {L_A1H}', f'v_add_u32 v121, s88, {vL16}'], e=12*10, d=12*12, step=1)
        S.add('misc', lines(f"""v_and_b32 v126, 7, {vL}
v_lshlrev_b32 v126, 2, v126
v_bfe_u32 v127, {vL}, 3, 1
v_mul_u32_u24 v127, 320, v127
v_add_u32 v126, v126, v127
v_bfe_u32 v127, {vL}, 4, 1
v_lshl_add_u32 v126, v127, 5, v126
v_add_u32 v126, {L_NM}, v126"""), e=12*11, d=12*14, step=1)
        r = [Ins(f'ds_read_b32 v{122+u}, v121 offset:{u*1024}', lds=(L_A1H, L_A1H + 8192), private=True) for u in range(2)]
        for d in htok: d.private = True
        hd2, _ = self.halo_dma(1, 'v120', 's90')
        S.add('misc', [[WaitTok(htok)] + r], e=12*14, d=12*14+1)
        S.add('misc', [self.spin('s_mov_b32 s93, m0\n' + '\n'.join(i.text for i in hd2) + '\ns_mov_b32 m0, s93', 'v_max_u32 v122, v122, v123\nv_cmp_eq_u32 vcc, -1, v122', 'exec',
                                 pre='ds_read_b32 v122, v121\nds_read_b32 v123, v121 offset:1024\ns_waitcnt lgkmcnt(0)')], e=12*14+5, d=12*14+5)
        S.add('misc', [self.spin(f'buffer_load_dword v125, v124, {SWS}, s94 offen sc1', 'v_cmp_eq_u32 vcc, -1, v125', 'exec'), tabw[1]], e=12*14+7, d=12*14+10)
        S.add('misc', self.halo_addr('v122', 'v123'), e=12*14+8, d=12*15+1)
        S.add('misc', self.p2_setup(1), e=12*15+2, d=hb+7)
        S.add('misc', self.att_masks(192), e=hb+8, d=hb+29)
        tr = self.att_tabreads()
        S.add('tab', tr[:5], e=hb+20, d=hb+30); S.add('tab', tr[5:], e=hb+31)
        self.win(S, '11')
        S.emit(p, 'p1 L1')
        self.ts('p1_halo1')
        st = self.attention(1, {'a': w2[NW2:NW2+4], 'b': w2[NW2+4:] + self.touches_h(1, 'v121')})
        self.ts('p1_attn1')
        self.post_flag(6, st)
        self.ts('p1_end1')
        return w2tok

    def epi_pre(self):
        o = [f'v_add_u32 v122, {sW4K}, {vL16}', 'v_xor_b32 v123, 8192, v122']
        for i in range(8): o += [f'v_lshlrev_b32 v{224+2*i}, 16, v{RES+i}', f'v_and_b32 v{225+2*i}, 0xffff0000, v{RES+i}']
        o += lines(f"""v_and_b32 v240, 31, {vL}
v_lshlrev_b32 v240, 3, v240
v_lshrrev_b32 v241, 5, {vL}
v_lshl_add_u32 v240, v241, 2, v240""")
        return o
    def tile_spine(self, n, D=4):
        sp = sum((self.tile_mfmas(k, k == 0) for k in range(n - D)), [])
        tail = [self.tile_mfmas(k, False) for k in range(n - D, n)]
        return sp + [t[0] for t in tail] + [t[1] for t in tail]
    def xwrites(self):
        rng = lambda q: [(L_XB + w*4096 + q*1024, L_XB + w*4096 + q*1024 + 1024) for w in range(4)]
        return [Ins(f'ds_write_b128 v122, {vr(104+4*q,4)} offset:{L_XB + q*1024}', lds=rng(q)) for q in range(4)]
    def tile_epilogue(self, kind, L, ws):
        p = self.p
        OWN, OTH, X = 40, 104, 72
        rng = lambda q: [(L_XB + w*4096 + q*1024, L_XB + w*4096 + q*1024 + 1024) for w in range(4)]
        for i in range(0, 16, 2): p(f'v_pk_add_f32 {vr(OWN+i,2)}, {vr(OWN+i,2)}, {vr(224+i,2)}')
        p(WaitTok(ws)); p('s_barrier')
        if kind == 'out' and self.o.get('pert'):
            mask = self.o.get('pmask', 1)
            p(f's_add_u32 s88, s2, {sW}\ns_cmp_eq_u32 s88, 0\ns_cselect_b32 s88, {f2u(float(self.o.get("pert")))}, 0\ns_mov_b64 exec, {mask}\nv_add_f32 v40, s88, v40\ns_mov_b64 exec, -1')
        if kind == 'out' and self.o.get('pall'):
            for i in range(16): p(f'v_add_f32 v{40+i}, {f2u(float(self.o.get("pall")))}, v{40+i}')
        for q in range(4): p(f'ds_read_b128 {vr(X+4*q,4)}, v123 offset:{L_XB + q*1024}', lds=rng(q))
        for q in range(4):
            for i in (4*q, 4*q+2): p(f'v_pk_add_f32 {vr(OWN+i,2)}, {vr(OWN+i,2)}, {vr(X+i,2)}')
            for i in (2*q, 2*q+1): p(f'v_cvt_pk_bf16_f32 v{RES+i}, v{OWN+2*i}, v{OWN+2*i+1}')
        if kind == 'out':
            p(f'buffer_store_dwordx4 {vr(RES,4)}, {vRM}, {SOUT}, {sROW} offen')
            p(f'buffer_store_dwordx4 {vr(RES+4,4)}, {vRM}, {SOUT}, {sROW} offen offset:32')
            return None
        if kind == 'x1': alt, st = self.stores([f'buffer_store_dwordx4 {vr(RES,4)}, {vL16}, {SWS}, {sX} offen', f'buffer_store_dwordx4 {vr(RES+4,4)}, {vL16}, {SWS}, {sX} offen offset:1024'])
        else:
            va = 'v242' if self.alias else vRM
            alt, st = self.stores([f'buffer_store_dwordx4 {vr(RES,4)}, {va}, {SWS}, {sX} offen', f'buffer_store_dwordx4 {vr(RES+4,4)}, {va}, {SWS}, {sX} offen offset:32'])
        p(alt)
        p(f'v_pk_add_f32 v[88:89], {vr(OWN,2)}, {vr(OWN+2,2)}\nv_pk_mul_f32 v[90:91], {vr(OWN,2)}, {vr(OWN,2)}\nv_pk_fma_f32 v[90:91], {vr(OWN+2,2)}, {vr(OWN+2,2)}, v[90:91]')
        for i in range(4, 16, 2):
            p(f'v_pk_add_f32 v[88:89], v[88:89], {vr(OWN+i,2)}\nv_pk_fma_f32 v[90:91], {vr(OWN+i,2)}, {vr(OWN+i,2)}, v[90:91]')
        p("""v_add_f32 v88, v88, v89
v_add_f32 v90, v90, v91
v_permlane32_swap_b32 v88, v90
v_add_f32 v88, v88, v90""")
        alt2, st2 = self.stores([f'buffer_store_dword v88, v240, {SWS}, {sY} offen'])
        p(alt2)
        return st + st2
    ARING = [128 + 4*i for i in range(16)] + [224, 228, 232, 236, 248, 252]
    WPRE = [128 + 4*i for i in range(16)] + [212, 216, 220, 224, 228, 232, 236, 248]
    big = False
    def wregs(self, k):
        if self.big and k < 4*self.NWP: return self.WPRE[2*k], self.WPRE[2*k+1]
        r = 72 + 8*((k + 2) % 4)
        return r, r + 4
    def areg(self, k):
        if self.big: return ar(4*k if k < 28 else 128 + 4*(k - 28), 4)
        return vr(self.ARING[k % 22], 4)
    def wfrag_reads(self, k, base, va, vb, lo):
        own, oth = self.wregs(k)
        return [Ins(f'ds_read_b64_tr_b16 {vr(r+2*rd,2)}, {ad} offset:{base + rd*512}', lds=lo) for r, ad in ((oth, vb), (own, va)) for rd in range(2)]
    def tile_mfmas(self, k, z):
        own, oth = self.wregs(k); a = self.areg(k)
        return [f'v_mfma_f32_32x32x16_bf16 {vr(104,16)}, {vr(oth,4)}, {a}, {0 if z else vr(104,16)}',
                f'v_mfma_f32_32x32x16_bf16 {vr(40,16)}, {vr(own,4)}, {a}, {0 if z else vr(40,16)}']

    def p2_setup(self, L):
        o = lines(f"""s_lshr_b32 s88, {sW}, 1
s_lshl_b32 s89, s88, 15
s_add_u32 s89, s89, {L_W2}
v_add_u32 v126, s89, {vWown}
v_add_u32 v127, s89, {vWoth}
s_lshl_b32 s88, s88, 14
s_mul_i32 s89, {sRB}, {114688 if self.alias else 32768}
s_add_u32 s89, s89, s88
s_add_u32 s89, s89, {WS_H[L] if self.alias else WS_O[L]}""")
        for q in range(4): o += lines(f's_xor_b32 {sA2[q]}, {sRG}, {q}\ns_lshl_b32 {sA2[q]}, {sA2[q]}, 12\ns_add_u32 {sA2[q]}, {sA2[q]}, s89')
        return o
    def p3_setup(self, L):
        return self.w4_setup() + lines(f"""v_add_u32 v124, 65536, {vL16}
v_and_b32 v125, 31, {vL}
v_lshlrev_b32 v125, 4, v125
v_add_u32 v125, {L_T3}, v125
v_lshlrev_b32 v206, 3, {vL}
s_lshl_b32 s88, {sW}, 9
s_add_u32 s88, s88, {L_CS3}
v_add_u32 v206, s88, v206
s_lshl_b32 s92, {sG16}, 2
s_add_u32 s92, s92, {sW}
s_lshl_b32 s92, s92, 12""") + self.h_addr(L)
    def p1_setup(self):
        if self.alias:
            return lines(f"""s_lshl_b32 {sX}, {sG}, 16
s_add_u32 {sX}, {sX}, {WS_X1[0]}
s_lshl_b32 {sA1}, {sW}, 14
s_add_u32 {sA1}, {sA1}, {sX}
s_lshl_b32 {sHB}, {sPG}, 14
s_add_u32 {sHB}, {sHB}, {WS_HB}
s_cmp_eq_u32 {sHASP}, 0
s_cselect_b32 {sHB}, {sX}, {sHB}
s_lshl_b32 s92, {sRB}, 12
v_xor_b32 v127, 64, {vA1e}
v_lshrrev_b32 v242, 11, {vA1e}
v_and_b32 {vA1e}, 127, {vA1e}
v_lshl_add_u32 {vA1e}, v242, 10, {vA1e}
v_xor_b32 {vA1o}, 64, {vA1e}
v_add_u32 {vA1o}, {8192 - 1024}, {vA1o}
v_lshrrev_b32 v242, 11, {vRM}
v_and_b32 v243, 1023, {vRM}
v_lshl_add_u32 v242, v242, 10, v243""")
        return lines(f"""s_add_u32 {sA1}, {sA1}, {WS_X2}
s_lshl_b32 {sHB}, {sPG}, 14
s_add_u32 {sHB}, {sHB}, {WS_HB}
s_add_u32 s88, {sROW}, {WS_X2}
s_cmp_eq_u32 {sHASP}, 0
s_cselect_b32 {sHB}, s88, {sHB}
s_lshl_b32 s92, {sRB}, 12
v_xor_b32 v127, 64, {vA1e}""")
    def p2(self, L, w2tok):
        p = self.p
        p(WaitTok(w2tok + sum(self.w3tok.values(), []))); p('s_barrier')
        rd = lambda k: self.wfrag_reads(k, k*2048, 'v126', 'v127', [(L_W2 + h*32768 + k*2048, L_W2 + h*32768 + k*2048 + 2048) for h in range(2)])
        for k in range(3): p(rd(k))
        if L == 0:
            p(self.w3_setup()); p(self.w3_sel())
            rs = self.w3_take(list(range(16)))
            p(WaitTok(rs)); p('s_barrier')
        self.poll(1 + 5*L, sMK2)
        self.ts(f'p2_go{L}')
        al = [f'buffer_load_dwordx4 {vr(128+4*k,4)}, {vL16}, {SWS}, {sA2[k >> 2]} offen offset:{(k%4)*1024} sc1' for k in range(16)]
        NP = 10
        p(al[:NP])
        S = Sched(self.tile_spine(16))
        ws = self.xwrites(); S.add('xw', ws, e=29, d=31, step=0.6)
        S.add('a', al[NP:], e=0, d=12, step=1, split=True)
        for k in range(13): S.add('wr', rd(k+3), e=2*k, d=min(2*k+2, 24), step=0.5)
        if L == 0: S.add('dma', sum((self.w3_quad(q, 16384*(q - 3)) for q in range(4, 7)), []), e=8, d=31, step=1.9, split=True)
        S.add('misc', self.p3_setup(L) + self.x1_addr(L, sX) + self.st_addr(WS_ST1[L], sY) + self.epi_pre(), e=2, d=26)
        S.emit(p, f'p2 L{L}')
        self.ts(f'p2_mm{L}')
        st = self.tile_epilogue('x1', L, ws)
        self.ts(f'p2_epi{L}')
        if L == 0:
            p(self.w3_quad(7, 98304))
        self.post_flag(2 + 5*L, st)
        self.ts(f'p2_end{L}')

    def p3(self, L):
        p = self.p
        ACC, AF, CS, TK, HO, SR = 40, 72, 120, 240, 192, 224
        lskip = self.lab('p3skip')
        w4 = {}
        self.layer = L
        if L == 0:
            p(WaitTok(sum((self.w3tok[q] for q in range(4, 7)), []))); p('s_barrier')
            self.w3_take(list(range(16, 28)))
        p('s_waitcnt lgkmcnt(0)'); p('s_barrier')
        p(f's_cmp_lg_u32 {sIDLE}, 0\ns_cbranch_scc1 {lskip}')
        self.poll(2 + 5*L, 'exec')
        self.ts(f'p3_go{L}')
        atok = {}
        def adma(rb, s, area=None):
            o = (rb if area is None else area)*32768 + s*16384
            d = [Ins(f'buffer_load_dwordx4 {vL16}, {SWS}, {sT} offen offset:{u*1024} sc1 lds', lds=[(o + q*4096 + u*1024, o + q*4096 + u*1024 + 1024) for q in range(4)]) for u in range(4)]
            atok[(rb, s, area)] = d
            return self.split_dma([Ins(f's_add_u32 m0, {sW4K}, {o}'), Ins(f's_add_u32 {sT}, {sA3[s]}, {WS_X1[L] + rb*32768}')] + d)
        for s in range(2): p(adma(0, s))
        if L == 0:
            tiles = [(0, 0), (0, 1), (0, 2), (0, 3), (1, 1), (1, 2), (1, 3), (1, 0)]; area = [0, 1, 2, 0, 1, 2, 0, 3]
        else:
            tiles = [(c, rb) for c in range(2) for rb in range(4)]; area = [0, 1, 2, 3, 0, 1, 2, 3]
        NR = 12
        def aread(n):
            ti, ks = divmod(n, 32)
            o = area[ti]*32768 + ks*1024
            return Ins(f'ds_read_b128 {vr(AF+4*(n % NR),4)}, {"v124" if o >= 65536 else vL16} offset:{o % 65536}', lds=(o, o+1024))
        def epilogue(ti):
            c, rb = tiles[ti]
            A = ACC + 16*(ti & 1); tk = TK + 4*(ti & 1); ho = HO + 4*(ti & 1)
            o = []
            gi = lambda i: (i >> 2)*8 + (i & 3)
            for i in range(9):
                if i < 8: o.append(f'v_mul_f32 v{A+gi(i)}, v{tk+3}, v{A+gi(i)}')
                if i: o.append(f'v_exp_f32 v{A+gi(i-1)}, v{A+gi(i-1)}')
            for i in range(8): o.append(f'v_fma_f32 v{A+gi(i)}, v{A+gi(i)}, v{tk+2}, v{tk+2}')
            for i in range(8):
                o.append(f'v_rcp_f32 v{A+gi(i)}, v{A+gi(i)}')
                if i: o.append(f'v_mul_f32 v{A+gi(i-1)}, v{A+gi(i-1)}, v{A+gi(i-1)+4}')
            o.append(f's_add_u32 s94, {sH0}, {rb*114688 + c*4096}')
            o.append(f'v_mul_f32 v{A+gi(7)}, v{A+gi(7)}, v{A+gi(7)+4}')
            for i in range(4): o.append(f'v_cvt_pk_bf16_f32 v{ho+i}, v{A+gi(2*i)}, v{A+gi(2*i+1)}')
            alt, st = self.stores([f'buffer_store_dwordx4 {vr(ho,4)}, {vL16}, {SWS}, s94 offen'])
            o.append(alt)
            return o, st
        def csreads(c):
            r = Ins(f'ds_read_b64 {vr(CS+2*c,2)}, v206 offset:{c*256}', lds=(L_CS3, L_CS3+2048), private=True)
            return [[f'v_mov_b32 v{CS+2*c}, 0', f'v_mov_b32 v{CS+2*c+1}, 0', 's_mov_b64 exec, 0xffffffff', r, 's_mov_b64 exec, -1']], r
        p(self.fts(f'p3{L}', 'issued'))
        p(WaitTok(atok[(0, 0, None)])); p('s_barrier')
        rds = [aread(n) for n in range(256)]
        for n in range(8): p(rds[n])
        CS0, CS1 = 20, self.o.get('cs1', 148)
        spine = []; slot = []
        for n in range(256):
            if L == 0 and n == CS0: spine += [self.w3_cs(x) for x in range(28, 32)]
            if L == 0 and n == CS1: spine += [self.w3_cs(x) for x in range(32, 64)]
            ti, ks = divmod(n, 32); c, rb = tiles[ti]
            A = vr(ACC + 16*(ti & 1), 16)
            slot.append(len(spine))
            spine.append(f'v_mfma_f32_32x32x16_bf16 {A}, {ar(c*128+4*ks,4)}, {vr(AF+4*(n % NR),4)}, {0 if ks == 0 else A}')
            if ks == 31: spine.append(f'v_mfma_f32_32x32x8_bf16 {A}, {vr(CS+2*c,2)}, {vr(TK+4*(ti&1),2)}, {A}')
        sl = lambda n: slot[max(0, min(int(n), 255))]
        self.big = (L == 1); self.NWP = 3
        B4 = len(spine)
        spine += self.tile_spine(56)
        S = Sched(spine)
        for n in range(0, 256, 4): S.before[sl(n)] = [WaitTok(rds[n:n+4])]
        for ti in range(8): S.before[sl(32*ti)] = self.fts(f'p3{L}', f't{ti}') + S.before[sl(32*ti)]
        bars = {}
        def bar(n, toks): bars.setdefault(n, []).extend(toks)
        gate = {}
        def publish(first, toks): bar(first - 9, toks); gate[first] = first - 9
        st_issue = self.stats_issue(WS_ST1[L], 's92', SR)
        S.add('dma', [st_issue[:2]] + st_issue[2:], e=0, d=8, step=1.5, split=True)
        publish(16, atok[(0, 1, None)])
        def astream(rb, ar_, e, first, step=2):
            for s in range(2):
                S.add('dma', adma(rb, s, ar_), e=sl(e + 4*step*s), d=sl(first + 16*s - 14), step=step, split=True)
            publish(first, atok[(rb, 0, ar_)]); publish(first + 16, atok[(rb, 1, ar_)])
        if L == 1:
            astream(1, None, 6, 32); astream(2, None, 24, 64); astream(3, None, 44, 96)
        else:
            SLOT = [98304, 114688, 131072]
            lag = self.o.get('lag', 26)
            rd_at = {7: 7}; iss = {8: self.o.get('i8', 20), 9: self.o.get('i9', 38)}
            for q in range(8, 16):
                if q >= 10: iss[q] = rd_at[q-2] + 1
                rd_at[q] = max(min(iss[q] + lag, 128 + 4*(q - 8) - 6, CS1 - 8), iss[q] + 12, rd_at[q-1] + 6)
            assert rd_at[15] + 6 <= CS1
            def wq(q):
                S.add('dma', self.w3_quad(q, SLOT[(q - 7) % 3]), e=sl(iss[q]), d=sl(iss[q] + 10), step=2, split=True, ta=72)
            ev = [(6, lambda: astream(1, None, 6, 32)), (self.o.get('a2', 21), lambda: astream(2, None, self.o.get('a2', 21), 64, 2)), (self.o.get('a3', 62), lambda: astream(3, 0, self.o.get('a3', 62), 96, 2))] + [(iss[q], (lambda q=q: wq(q))) for q in range(8, 16)]
            for _, f in sorted(ev, key=lambda t: t[0]): f()
            bar(39, rds[20:32])
            prevr = []
            for q in range(7, 16):
                at = rd_at[q]
                r = sum((self.w3_reads(n) for n in range(4*q, 4*q + 4)), [])
                bar(at, self.w3tok[q] + prevr); prevr = r
                S.add('w3r', r, e=sl(at), d=sl(at + 5))
            self.w3_last = prevr
            S.add('w3c', self.w3_cs_store(0) + csreads(0)[0], e=sl(CS0) + 3, d=sl(29))
            S.add('w3c', self.w3_cs_store(1) + csreads(1)[0], e=sl(CS1) + 3, d=sl(157))
        for m in range(8, 256):
            e = max(m - NR + 1, max([v for k_, v in gate.items() if k_ <= m], default=-1))
            S.add('ar', [rds[m]], e=sl(e), d=sl(max(e, (m & ~3) - 3)), step=0)
        x = self.stats_reduce(SR) + self.stats_final(f'v{SR}', f'v{SR+1}', f'v{SR+2}') + lines(f"""v_mul_f32 v{SR+3}, {f2u(-LOG2E)}, v{SR+1}
v_cvt_pk_bf16_f32 v{SR}, v{SR}, v{SR}
v_mov_b32 v{SR+1}, v{SR}
v_and_b32 v{SR+4}, 15, {vL}
v_lshlrev_b32 v{SR+4}, 5, v{SR+4}
v_bfe_u32 v{SR+5}, {vL}, 4, 1
v_lshl_add_u32 v{SR+4}, v{SR+5}, 4, v{SR+4}
s_lshl_b32 s88, {sW}, 9
s_add_u32 s88, s88, {L_T3}
v_add_u32 v{SR+4}, s88, v{SR+4}""")
        tw = Ins(f'ds_write_b128 v{SR+4}, {vr(SR,4)}', lds=(L_T3, L_T3 + 2048))
        S.add('epi', x + [tw], e=sl(10), d=sl(21))
        bar(23, [tw])
        if L == 1: S.add('w3c', csreads(0)[0] + csreads(1)[0], e=2, d=20)
        def rd4(k):
            s, w = divmod(k, 4)
            b = self.W4SLOT[s]*16384 + w*2048
            va, vb = [('v200', 'v201'), ('v202', 'v203'), ('v204', 'v205')][b >> 16]
            return self.wfrag_reads(k, b & 65535, va, vb, [(b + h*8192, b + h*8192 + 2048) for h in range(2)])
        def stage(s):
            x_, tk = self.w4_stage(s); w4[s] = tk
            return sum((self.split_dma(y) for y in x_), [])
        NWP = self.NWP if self.big else 0
        allreads = {}
        S.add('misc', self.p4_setup(L), e=sl(36), d=sl(52))
        sts = []
        for ti in range(8):
            c, rb = tiles[ti]
            S.add('epi', [Ins(f'ds_read_b128 {vr(TK+4*(ti&1),4)}, v125 offset:{rb*512}', lds=(L_T3, L_T3+2048))], e=sl(32*ti + 25), d=sl(32*ti + 28))
            e, st = epilogue(ti); sts.append(st)
            if ti < 7: S.add('epi', e, e=sl(32*ti + 35), d=sl(32*ti + 56), early=False)
            else: S.add('epi', e, e=B4 + 2, d=B4 + self.o.get('e7', 15))
            if ti >= 5:
                bar(32*ti + 1, rds[32*ti-12:32*ti] + (self.w3_last if L == 0 else []))
                s0 = NWP + 2*(ti-5) + 1
                S.add('dma', stage(s0) + stage(s0 + 1), e=sl(32*ti + 1), d=sl(32*ti + 31), ta=72, split=True)
            if ti == 4 and L == 0:
                fr = rd_at[15] + 7
                bar(fr, self.w3_last)
                S.add('dma', stage(0) + adma(0, 0, 3) + adma(0, 1, 3), e=sl(fr), d=sl(160), split=True)
                bar(193, atok[(0, 0, 3)] + atok[(0, 1, 3)] + w4[0])
            if ti == 1 and L == 1:
                t0 = self.o.get('wp0', 62); per = self.o.get('wpp', 32)
                prev = []
                for s in range(NWP + 1):
                    e0 = t0 + per*s
                    if s: bar(e0 - 1, prev)
                    S.add('dma', stage(s), e=sl(e0), d=sl(e0 + 8), step=1.5, split=True)
                    if s < NWP:
                        bar(e0 + per - 12, w4[s])
                        prev = sum((rd4(k) for k in range(4*s, 4*s + 4)), [])
                        S.add('wpre', prev, e=sl(e0 + per - 12), d=sl(e0 + per - 3))
                bar(193, w4[NWP])
        if L == 0:
            S.add('misc', [self.code_touch()], e=sl(CS1) - 28, d=sl(CS1) - 2)
        S.add('misc', [self.cap(lambda: self.post_flag(3 + 5*L, sum(sts[:4], [])))], e=sl(163), d=sl(164))
        NPRE = self.o.get('npre', 22) if L == 0 else self.o.get('npre1', 20)
        pc = self.o.get('pc', 192)
        S.add('misc', [self.poll_issue(vT0)], e=sl(pc - 14), d=sl(pc - 12))
        S.add('misc', [self.poll_check(vT0, 3 + 5*L, sMK4)], e=sl(pc), d=sl(pc + 1))
        if L == 0: S.add('misc', self.touches_x2('v127'), e=sl(pc + 2), d=sl(pc + 20))
        S.add('a', [self.p4_aload(k) for k in range(NPRE)], e=sl(pc + 2), d=sl(254), step=(252 - pc)/NPRE, split=True)
        K0 = 0 if self.big else 2
        for k in range(K0):
            r = rd4(k); allreads.setdefault(0, []).extend(r)
            S.add('wr', r, e=sl(247 + 2*k), d=sl(254), step=0.5)
        for n, toks in sorted(bars.items()):
            lo_, hi_ = self.o.get('blo', 0), self.o.get('bhi', 70)
            f = (lambda nm: self.fts(f'b3{L}', nm)) if lo_ <= n < hi_ else (lambda nm: [])
            S.at(sl(n), f(f'x{n}') + [WaitTok(toks)] + f(f'w{n}') + ['s_barrier'] + f(f'b{n}'), 'bar')

        lj = self.lab('p3join')
        S.before[B4] = self.cap(lambda: self.ts(f'p3_mm{L}')) + [Ins(f'{lj}:')]
        nlds = NWP + 7
        dac = self.o.get('dac', 9)
        ws = self.xwrites(); S.add('xw', ws, e=B4 + 109, d=B4 + 111, step=0.6)
        pre = {}
        S.at(B4, [WaitTok(rds[244:256] + sum((w4[s] for s in range(min(nlds, NWP + 3))), [])), 's_barrier'], 'bar4')
        fl = self.o.get('fl4', 24)
        S.add('misc', [self.cap(lambda: self.post_flag(4 + 5*L, sum(sts[4:], [])))], e=B4 + fl, d=B4 + fl + 1, needs=[sts[7][0]])
        ev = []
        pk = 2*(28 - dac)
        for m in range(NPRE, 56):
            e = 1 + 2*(m - NPRE) if self.big else max(1, 2*(m - 22) + 2)
            if m >= 28: e = max(e, pk + 1 + 1.6*(m - 28))
            ev.append((e, 2*m - 10, [self.p4_aload(m)], True))
        ev.append((pk - 8, pk - 6, [self.poll_issue('v127')], True))
        ev.append((pk, pk + 1, [self.poll_check('v127', 4 + 5*L, sMK4)], False))
        stage_at = {}
        for ns in range(nlds, 14):
            prevs = [x for x in range(NWP, ns) if self.W4SLOT[x] == self.W4SLOT[ns]]
            e = 2*(4*(max(prevs) + 2) - 3) + 1 if prevs else 1
            stage_at[ns] = max(e, stage_at.get(ns-1, -6) + 7)
        for ns, e in stage_at.items():
            for i, y in enumerate(stage(ns)): ev.append((e + 1.7*i, 2*(4*ns - 3) - 8, [y], True))
        if L == 0:
            e0 = max(x[0] for x in ev) + 1
            for i, st_ in enumerate(range(self.o.get('nw1', 4))):
                gq, tk = self.w1_stage(st_, seq=(i > 0)); pre[st_] = tk
                for j, y in enumerate(self.split_dma(gq[0])): ev.append((e0 + 1.3*(3*i + j), 111, [y], True))
        for e, d, gq, sp in sorted(ev, key=lambda t: t[0]): S.add('vm', gq, e=B4 + int(e), d=B4 + max(int(e), d), step=0, split=sp)
        for m in range(max(K0, 4*NWP), 56):
            k = m - 3
            s, w = divmod(m, 4)
            if w == 0 and s > NWP and (s >= NWP + 2): S.at(B4 + 2*k, [WaitTok(w4[s] + (w4[s+1] if s + 1 < min(nlds, 14) else []) + allreads.get(s-2, [])), 's_barrier'], 'bar4')
            r = rd4(m); allreads.setdefault(s, []).extend(r)
            e = max(2*k, 1)
            S.add('wr', r, e=B4 + e, d=B4 + max(e, min(2*k+3, 104)), step=0.5)
        for k in range(4, 56, 4): S.before[B4 + 2*k] = self.fts(f'p4{L}', f's{k//4}')
        x = self.epi_pre()
        if L == 0: x += [f's_add_u32 {sX}, {sROW}, {WS_X2}'] + self.st_addr(WS_ST2, sY) + self.p1_setup()
        S.add('misc', x, e=B4 + 90, d=B4 + 103)
        self.win(S, f'3{L}')
        S.emit(p, f'p3+p4 L{L}')
        sv = self.p; q = self.p = Prog(check_lds=False)
        q(f'{lskip}:')
        if L == 0: q(self.touches_x2('v127'))
        q(self.p4_setup(L))
        for s in range(NWP):
            q(self.w4_stage(s)[0]); q('s_waitcnt vmcnt(0)\ns_barrier')
            for k in range(4*s, 4*s + 4): q(rd4(k))
            q('s_waitcnt lgkmcnt(0)\ns_barrier')
        for s in range(NWP, nlds): q(self.w4_stage(s)[0])
        if L == 1: self.idle_prefetch(L)
        self.poll(3 + 5*L, sMK4)
        if L == 0: self.idle_prefetch(L)
        for k in range(NPRE): q(self.p4_aload(k))
        q('s_waitcnt vmcnt(0)\ns_barrier')
        for k in range(K0): q(rd4(k))
        q(f's_waitcnt lgkmcnt(0)\ns_branch {lj}')
        self.p = sv
        self.slow.append(q.finalize())
        self.ts(f'p4_mm{L}')
        st = self.tile_epilogue('x2' if L == 0 else 'out', L, ws)
        self.big = False
        self.ts(f'p4_epi{L}')
        if L == 0:
            self.post_flag(5, st)
            for st_ in range(len(pre), self.o.get('nw2', 6)):
                gq, tk = self.w1_stage(st_, seq=True); pre[st_] = tk; p(gq)
        self.ts(f'p4_end{L}')
        return pre

    def idle_prefetch(self, L):
        if not self.o.get('pf', True): return
        q = self.p
        q(f"""s_and_b32 s88, {sG16}, 1
s_lshl_b32 s88, s88, 1
s_add_u32 s88, s88, {sM16}
s_sub_u32 s88, s88, 14
s_lshl_b32 s88, s88, 2
s_add_u32 s88, s88, {sW}
v_lshlrev_b32 v40, 7, {vL}""")
        jobs = ([(SWD, self.o.get('pfc', 0), 'down0')] if L else []) + [(SWD, 7 if L else self.o.get('pfd', 7), 'down')] + ([(SWQKV, self.o.get('pfq', 0), 'qkv')] if L == 0 else [])
        for srd, n, kind in jobs:
            for i in range(n):
                if kind.startswith('down'):
                    q(f's_mul_i32 s89, s88, 7\ns_add_u32 s89, s89, {i}\ns_lshr_b32 s90, s89, 3\ns_lshl_b32 s90, s90, 17\ns_and_b32 s89, s89, 7\ns_lshl_b32 s89, s89, 13\ns_add_u32 s89, s89, s90\ns_add_u32 s89, s89, {0 if kind == "down0" else 65536}')
                else:
                    q(f's_lshl_b32 s89, s88, 13\ns_add_u32 s89, s89, {i*131072}')
                x = Ins(f'buffer_load_dword v41, v40, {srd}, s89 offen'); x.wr = set(); q(x)
                q('s_waitcnt vmcnt(1)')

    def p4_setup(self, L):
        return lines(f"""s_lshr_b32 s88, {sW}, 1
s_lshl_b32 s89, s88, 13
v_add_u32 v200, s89, {vWown}
v_add_u32 v201, s89, {vWoth}
v_add_u32 v202, 65536, v200
v_add_u32 v203, 65536, v201
v_add_u32 v204, 131072, v200
v_add_u32 v205, 131072, v201
s_mul_i32 s88, s88, 57344
s_mul_i32 {sX}, {sRB}, 114688
s_add_u32 {sX}, {sX}, s88
s_add_u32 {sX}, {sX}, {WS_H[L]}
s_add_u32 {sY}, {sX}, 4096""")
    def p4_aload(self, k):
        s, w = divmod(k, 4); c, j = divmod(s, 7)
        o = []
        if w == 0: o.append(Ins(f's_add_u32 {sH1}, {sY if c else sX}, {sJ[j]}'))
        o.append(Ins(f'buffer_load_dwordx4 {self.areg(k)}, {vL16}, {SWS}, {sH1} offen offset:{w*1024} sc1'))
        return o
    def build(self):
        p = self.p
        self.prologue_a()
        pre = {}
        for L in range(2):
            p(f'; PH 1{L}')
            w2 = self.p1_first() if L == 0 else self.p1_second(pre)
            if self.o_stop == f'p1_{L}': break
            p(f'; PH 2{L}')
            self.p2(L, w2)
            if self.o_stop == f'p2_{L}': break
            p(f'; PH 3{L}')
            pre = self.p3(L)
            if self.o_stop == f'p4_{L}': break
        p(self.bump_epoch())
        self.ts('end')
        if self.o_amp:
            p('s_waitcnt vmcnt(0)')
            p(Raw(f"""s_memrealtime s[62:63]
s_sub_u32 s96, s98, s96
s_mul_i32 s96, s96, {self.o_amp[2]}
s_min_u32 s96, s96, 100000
s_waitcnt lgkmcnt(0)
Lamp:
s_memrealtime s[98:99]
s_waitcnt lgkmcnt(0)
s_sub_u32 s98, s98, s62
s_cmp_lt_u32 s98, s96
s_cbranch_scc1 Lamp"""))
        if self.o_ts:
            p(f's_lshl_b32 s88, s2, 2\ns_add_u32 s88, s88, {sW}\ns_lshl_b32 s88, s88, 8\ns_add_u32 s88, s88, {WS_TS}\nv_lshlrev_b32 v40, 2, {vL}')
            p('s_memrealtime s[62:63]'); p(f'v_writelane_b32 {vTS}, s62, 62')
            p(f'buffer_store_dword {vTS}, v40, {SWS}, s88 offen')
            if self.o_dbg:
                sel = [self.tsn.index(n) for n in self.o_dbg] + [62, 63]
                l = self.lab('dbg')
                p(f's_lshl_b32 s88, s2, 2\ns_add_u32 s88, s88, {sW}\ns_cmp_lg_u32 s88, 0\ns_cbranch_scc1 {l}')
                p(f'v_readlane_b32 s89, {vTS}, 0')
                for i, s in enumerate(sel):
                    p(f'v_readlane_b32 s88, {vTS}, {s}')
                    if s < 62: p('s_sub_u32 s88, s88, s89')
                    p(f'v_writelane_b32 v41, s88, {i}')
                p(f's_mov_b64 exec, 0xffff\nbuffer_store_dword v41, v40, {SDBG}, 0 offen sc1\ns_mov_b64 exec, -1\n{l}:')
        kill = str(self.o.get('kill', '')).split('+')
        if kill != ['']:
            p.check_lds = False
            import re as _re
            inp3 = None
            for it in p.items:
                t = getattr(it, 'text', '')
                if t.startswith('; PH'): inp3 = t[5:]
                lst = [it] if it.kind != 'alt' else it.a
                for x in lst:
                    t = getattr(x, 'text', '')
                    tag = None
                    if x.kind == 'dma' and SW3 in t: tag = 'w3'
                    elif x.kind == 'dma' and SWD in t: tag = 'w4'
                    elif x.kind == 'dma' and SWQKV in t: tag = 'w1'
                    elif x.kind == 'dma' and SWO in t: tag = 'w2'
                    elif x.kind == 'dma': tag = 'adma'
                    elif x.kind == 'vmld' and 'x4' in t and SWS in t: tag = 'ald'
                    elif x.kind == 'vmld' and 'v34' in t: tag = 'touch'
                    elif x.kind == 'vmst' and 'x4' in t: tag = 'st'
                    elif x.kind == 'dsrd' and 'b128' in t and int(_re.search(r'offset:(\d+)', t).group(1)) & 1024: tag = 'half'
                    elif x.kind == 'trans': tag = 'trans'
                    elif x.kind == 'valu': tag = 'valu'
                    if tag and f'{inp3}{tag}' in kill:
                        x.text = '; killed'; x.kind = 'dir'; x.ops = ['0']; x.rd = set(); x.wr = set(); x.lds = None
                        if it.kind == 'alt':
                            for y in it.b: y.kind = 'dir'
        body = p.finalize()
        head = open('cdna_kernels/' + NAME + '.s.ref').read().split('; Override launch')[0]
        txt = head + '; @launch grid=(256,1,1) block=(256,1,1) lds=163840\n'
        txt += f'.amdgcn_target "amdgcn-amd-amdhsa--gfx950"\n.text\n.globl {NAME}_kernel\n.p2align 8\n.type {NAME}_kernel,@function\n{NAME}_kernel:\n'
        txt += body + 'L_end:\ns_endpgm\n' + '\n'.join(getattr(p, 'tail', [])) + '\n' + '\n'.join(self.slow) + '\nL_last:\ns_endpgm\n'
        txt += f""".section .rodata,"a"
.p2align 6
.amdhsa_kernel {NAME}_kernel
  .amdhsa_next_free_vgpr 512
  .amdhsa_next_free_sgpr 102
  .amdhsa_accum_offset 256
  .amdhsa_group_segment_fixed_size 0
  .amdhsa_kernarg_size 80
  .amdhsa_user_sgpr_count 2
  .amdhsa_user_sgpr_kernarg_segment_ptr 1
  .amdhsa_system_sgpr_workgroup_id_x 1
  .amdhsa_float_denorm_mode_32 3
.end_amdhsa_kernel
"""
        return txt

if __name__ == '__main__':
    out = sys.argv[1]
    kw = {}
    for a in sys.argv[2:]:
        k, _, v = a.partition('=')
        if k in ('amp', 'dbg', 'win'): kw[k] = v.split(',')
        elif v in ('0', '1', ''): kw[k] = (v != '0')
        elif v.replace('.', '').isdigit(): kw[k] = float(v) if '.' in v else int(v)
        else: kw[k] = v
    if kw.pop('reuse', False):
        WS_O[1] = WS_O[0]; WS_X1[1] = WS_X1[0]; WS_ST1[1] = WS_ST1[0]; WS_H[1] = WS_H[0]
    g = Gen(**kw)
    open(out, 'w').write(g.build())
    if g.o_ts: open(out + '.ts', 'w').write('\n'.join(g.tsn))
    print(out, g.p.stats)
```

```python
import re

def regs(op):
    op = op.strip()
    if op.startswith('-'): op = op[1:]
    if op.startswith('abs(') and op.endswith(')'): op = op[4:-1]
    if op.startswith('|') and op.endswith('|'): op = op[1:-1]
    m = re.fullmatch(r'([vas])(\d+)', op)
    if m: return [(m.group(1), int(m.group(2)))]
    m = re.fullmatch(r'([vas])\[(\d+):(\d+)\]', op)
    if m: return [(m.group(1), i) for i in range(int(m.group(2)), int(m.group(3)) + 1)]
    if op in ('vcc', 'vcc_lo', 'vcc_hi'): return [('s', 'vcc')]
    if op in ('exec', 'exec_lo', 'exec_hi'): return [('s', 'exec')]
    if op == 'm0': return [('s', 'm0')]
    return []

TRANS = ('v_exp_f32', 'v_log_f32', 'v_rcp_f32', 'v_rsq_f32', 'v_sqrt_f32')

class Ins:
    def __init__(self, text, lds=None, private=False, note=None):
        self.text = text.strip()
        self.lds = lds
        self.private = private
        self.done = False
        t = self.text
        sp = t.split(None, 1)
        mn = sp[0]
        self.mn = mn
        rest = sp[1] if len(sp) > 1 else ''
        ops = []
        mods = ''
        pieces = [o.strip() for o in rest.split(',')] if rest else []
        for n, o in enumerate(pieces):
            parts = o.split(None, 1)
            ops.append(parts[0] if parts else '')
            if len(parts) > 1:
                mods = ','.join([parts[1]] + pieces[n+1:]); break
        self.ops = ops; self.mods = mods
        rd, wr = [], []
        R = lambda lst: [x for o in lst for x in regs(o)]
        self.passes = 0
        self.dpp = ('row_' in mods or 'quad_perm' in mods or 'wave_' in mods)
        if mn.startswith('v_mfma'):
            self.kind = 'mfma'
            wr = R(ops[:1]); rd = R(ops[1:])
            self.ab = R(ops[1:3]); self.c = R(ops[3:4])
            self.passes = 8 if '32x32' in mn else 4
        elif mn.startswith('ds_read'):
            self.kind = 'dsrd'; wr = R(ops[:1]); rd = R(ops[1:])
        elif mn.startswith('ds_write') or mn.startswith('ds_add'):
            self.kind = 'dswr'; rd = R(ops)
        elif mn.startswith('buffer_load') or mn.startswith('global_load'):
            if ' lds' in ' ' + mods or 'load_lds' in mn:
                self.kind = 'dma'; rd = R(ops) + [('s', 'm0')]
            else:
                self.kind = 'vmld'; wr = R(ops[:1]); rd = R(ops[1:])
        elif mn.startswith('buffer_store') or mn.startswith('global_store'):
            self.kind = 'vmst'; rd = R(ops)
            self.data = R(ops[:1]) if mn.startswith('buffer') else R(ops[1:2])
            self.wide = ('x4' in mn or 'x3' in mn)
        elif mn.startswith('s_load') or mn.startswith('s_mem'):
            self.kind = 'smem'; wr = R(ops[:1]); rd = R(ops[1:])
        elif mn == 's_barrier': self.kind = 'barrier'
        elif mn == 's_waitcnt': self.kind = 'wait'
        elif mn == 's_nop': self.kind = 'nop'
        elif mn.endswith(':'): self.kind = 'label'
        elif mn.startswith('s_cbranch') or mn == 's_branch' or mn == 's_endpgm' or mn.startswith('s_set') or mn == 's_sleep':
            self.kind = 'ctl'
            if 'vcc' in mn: rd = [('s', 'vcc')]
        elif mn.startswith('s_cmp') or mn.startswith('s_bitcmp'):
            self.kind = 'salu'; rd = R(ops)
        elif mn.startswith('s_'):
            self.kind = 'salu'; wr = R(ops[:1]); rd = R(ops[1:])
            if 'saveexec' in mn: wr += [('s', 'exec')]
        elif mn.startswith('v_'):
            self.kind = 'trans' if mn.split('_e')[0] in TRANS or mn in TRANS else 'valu'
            if 'permlane' in mn and 'swap' in mn:
                wr = R(ops); rd = R(ops)
            elif mn.startswith('v_fmac') or mn.startswith('v_dot2c') or mn.startswith('v_writelane') or self.dpp:
                wr = R(ops[:1]); rd = R(ops)
            elif mn.startswith('v_add_co') or mn.startswith('v_addc_co') or mn.startswith('v_sub_co'):
                wr = R(ops[:2]); rd = R(ops[2:])
            else:
                wr = R(ops[:1]); rd = R(ops[1:])
        elif mn.startswith('.') or mn.startswith(';'):
            self.kind = 'dir'
        else:
            raise ValueError('unknown instruction ' + t)
        self.rd = set(rd); self.wr = set(wr)

class WaitTok:
    kind = 'waittok'
    def __init__(self, toks): self.toks = list(toks)

class Drained:
    kind = 'drained'
    def __init__(self, vm=True, lgkm=False): self.vm = vm; self.lgkm = lgkm

class Raw:
    mn = 'raw'
    kind = 'raw'
    def __init__(self, text, rd=(), wr=(), drains_vm=False, drains_lgkm=False, states=1):
        self.text = text; self.rd = set(x for o in rd for x in regs(o)); self.wr = set(x for o in wr for x in regs(o))
        self.drains_vm = drains_vm; self.drains_lgkm = drains_lgkm; self.states = states

class Alt:
    kind = 'alt'
    n = 0
    def __init__(self, sreg, a, b):
        self.sreg = sreg; self.a = a; self.b = b
        Alt.n += 1; self.id = Alt.n

class Prog:
    def __init__(self, check_lds=True):
        self.items = []
        self.check_lds = check_lds
    def __call__(self, x, **kw):
        if isinstance(x, str):
            out = None
            for line in x.split('\n'):
                line = line.strip()
                if not line: continue
                out = Ins(line, **kw); self.items.append(out)
            return out
        if isinstance(x, (list, tuple)):
            for y in x: self(y)
            return None
        self.items.append(x); return x

    def finalize(self):
        out = []
        vmq = []
        lgq = []
        pos = 0
        lastw = {}
        lastc = {}
        stdata = {}
        bar = 0
        G = 64
        NG = 163840 // G
        lw = [[] for _ in range(NG)]
        lr = [[] for _ in range(NG)]
        stats = dict(nop=0, wait=0, n=0)
        def complete(i):
            if not i.done:
                i.done = True; i.donebar = bar
        def do_wait(vm=None, lg=None):
            nonlocal pos
            w = []
            if vm is not None and vm < len(vmq):
                assert vm <= 63
                w.append(f'vmcnt({vm})')
                while len(vmq) > vm: complete(vmq.pop(0))
            if lg is not None and lg < len(lgq):
                if any(i.kind == 'smem' for i in lgq): lg = 0
                lg = min(lg, 15)
                w.append(f'lgkmcnt({lg})')
                while len(lgq) > lg: complete(lgq.pop(0))
            if w:
                out.append('s_waitcnt ' + ' '.join(w)); pos += 1; stats['wait'] += 1
        def need(queue, pred):
            idx = -1
            for n, i in enumerate(queue):
                if pred(i): idx = n
            return None if idx < 0 else len(queue) - 1 - idx
        def ranges(i):
            if i.lds is None: return []
            return i.lds if isinstance(i.lds, list) else [i.lds]
        def ldscheck(i):
            if not self.check_lds: return
            assert i.lds is not None, 'LDS range missing: ' + i.text
            for lo, hi in ranges(i):
                assert 0 <= lo < hi <= 163840, (lo, hi, i.text)
                for g in range(lo // G, (hi + G - 1) // G):
                    if i.kind == 'dsrd':
                        for wq in lw[g]:
                            if wq.private and i.private:
                                ok = wq.done or wq.kind == 'dswr'
                            else:
                                ok = wq.done and wq.donebar < bar
                            assert ok, f'LDS RAW: {i.text} @{g*G} vs {wq.text}'
                        lr[g].append(i)
                    else:
                        if lr[g]:
                            for rq in lr[g]:
                                if rq.private and i.private:
                                    ok = rq.done or i.kind == 'dswr'
                                else:
                                    ok = rq.done and rq.donebar < bar
                                assert ok, f'LDS WAR: {i.text} @{g*G} vs {rq.text}'
                            lr[g] = []; lw[g] = []
                        lw[g].append(i)
        def hazard(i):
            need_n = 0
            def req(p, n):
                nonlocal need_n
                need_n = max(need_n, n - (pos - p - 1))
            k = i.kind
            isv = k in ('valu', 'trans')
            for r in i.rd | i.wr:
                lw_ = lastw.get(r)
                if lw_:
                    p, j = lw_
                    if j.kind == 'mfma':
                        big = j.passes == 8
                        if k == 'mfma':
                            if r in i.ab: req(p, 12 if big else 8)
                            elif r in i.c:
                                if not (set(i.c) == j.wr and i.passes == j.passes): req(p, 10 if big else 6)
                            else: req(p, 12 if big else 8)
                        else: req(p, 12 if big else 8)
                    elif j.kind == 'valu' and j.mn.startswith('v_dot') and not (i.mn == j.mn and r in i.wr):
                        req(p, 3)
                    elif j.kind in ('valu', 'trans', 'raw') and r in i.rd:
                        if r[0] in 'va':
                            if k == 'mfma': req(p, 2)
                            if isv and getattr(i, 'dpp', False): req(p, 2)
                            if isv and 'permlane' in i.mn: req(p, 2)
                            if isv and (i.mn.startswith('v_readfirstlane') or i.mn.startswith('v_readlane')): req(p, 1)
                            if j.kind == 'trans' and isv: req(p, 1)
                            if j.kind == 'trans' and k in ('dswr', 'vmst'): req(p, 1)
                        else:
                            if isv: req(p, 2)
                            if k in ('vmld', 'vmst', 'dma'): req(p, 5)
                            if k in ('salu', 'ctl', 'smem'): req(p, 1)
                    elif j.kind == 'salu' and r == ('s', 'm0') and k == 'dma': req(p, 1)
            if isv or k in ('dsrd', 'vmld'):
                for r in i.wr:
                    if r in lastc:
                        p, ps = lastc[r]; req(p, 7 if ps == 8 else 3)
                    if r in stdata: req(stdata[r], 2)
            return need_n
        def issue(i):
            nonlocal pos, bar
            touched = i.rd | i.wr
            vm = need(vmq, lambda j: j.kind == 'vmld' and (j.wr & touched))
            lg = need(lgq, lambda j: j.kind in ('dsrd', 'smem') and (j.wr & touched))
            do_wait(vm, lg)
            n = hazard(i)
            if n > 0:
                stats['nop'] += n
                while n > 0:
                    c = min(n, 16); out.append(f's_nop {c-1}'); pos += c; n -= c
            if i.kind in ('dsrd', 'dswr', 'dma'): ldscheck(i)
            if not getattr(i, 'phantom', False): out.append(i.text)
            stats['n'] += 1; i.issued = True
            if i.kind == 'dir' or i.kind == 'label': return
            for r in i.wr: lastw[r] = (pos, i)
            if i.kind == 'mfma':
                for r in i.c: lastc[r] = (pos, i.passes)
            if i.kind == 'vmst' and i.wide:
                for r in i.data: stdata[r] = pos
            if i.kind in ('vmld', 'vmst', 'dma'):
                vmq.append(i)
                if len(vmq) > 63: complete(vmq.pop(0))
            if i.kind in ('dsrd', 'dswr', 'smem'): lgq.append(i)
            if i.kind == 'barrier': bar += 1
            if i.kind == 'wait':
                m = re.search(r'vmcnt\((\d+)\)', i.text)
                if m:
                    while len(vmq) > int(m.group(1)): complete(vmq.pop(0))
                m = re.search(r'lgkmcnt\((\d+)\)', i.text)
                if m:
                    nn = int(m.group(1))
                    assert nn == 0 or not any(j.kind == 'smem' for j in lgq)
                    while len(lgq) > nn: complete(lgq.pop(0))
            if i.kind == 'nop': pos += int(i.ops[0])
            pos += 1
        for it in self.items:
            if it.kind == 'waittok':
                for t_ in it.toks: assert getattr(t_, 'issued', False), 'wait on an instruction not yet issued: ' + t_.text
                ids = set(id(t) for t in it.toks)
                do_wait(need(vmq, lambda j: id(j) in ids), need(lgq, lambda j: id(j) in ids))
            elif it.kind == 'drained':
                if it.vm:
                    while vmq: complete(vmq.pop(0))
                if it.lgkm:
                    while lgq: complete(lgq.pop(0))
            elif it.kind == 'raw':
                touched = it.rd | it.wr
                do_wait(need(vmq, lambda j: j.kind == 'vmld' and (j.wr & touched)), need(lgq, lambda j: j.kind in ('dsrd', 'smem') and (j.wr & touched)))
                n = 0
                for kind in ('valu', 'vmst'):
                    probe = Ins('v_mov_b32 v0, v0'); probe.kind = kind; probe.rd = it.rd; probe.wr = it.wr; probe.dpp = True; probe.mn = 'v_permlane'
                    n = max(n, hazard(probe))
                if n > 0: out.append(f's_nop {n-1}'); pos += n
                out.append(it.text)
                pos += it.states
                for r in it.wr: lastw[r] = (pos - 1, it)
                if it.drains_vm:
                    while vmq: complete(vmq.pop(0))
                if it.drains_lgkm:
                    while lgq: complete(lgq.pop(0))
            elif it.kind == 'alt':
                allr = set()
                for j in it.a + it.b: allr |= j.rd | j.wr
                do_wait(need(vmq, lambda j: j.kind == 'vmld' and (j.wr & allr)), need(lgq, lambda j: j.kind in ('dsrd', 'smem') and (j.wr & allr)))
                pos += 2
                n = max(hazard(j) for j in it.a + it.b)
                pos -= 2
                if n > 0: out.append(f's_nop {n-1}'); pos += n
                assert [j.kind for j in it.a] == [j.kind for j in it.b]
                out.append(f's_cmp_lg_u32 {it.sreg}, 0\ns_cbranch_scc1 Lalt{it.id}_b')
                pos += 2
                for j in it.a: issue(j)
                out.append(f'Lalt{it.id}_e:')
                self.tail = getattr(self, 'tail', [])
                self.tail.append(f'Lalt{it.id}_b:\n' + '\n'.join(j.text for j in it.b) + f'\ns_branch Lalt{it.id}_e')
            else:
                issue(it)
        self.stats = stats
        return '\n'.join(out) + '\n'

def weave(p, spine, fill):
    for x in fill.get(-1, []): p(x)
    for n, s in enumerate(spine):
        p(s)
        for x in fill.get(n, []): p(x)
    extra = sorted(k for k in fill if k >= len(spine))
    for k in extra:
        for x in fill[k]: p(x)

def put(fill, slot, *items):
    fill.setdefault(slot, []).extend(items)

def spread(fill, items, start, end):
    n = len(items)
    for i, it in enumerate(items):
        put(fill, start + (i * (end - start)) // max(n, 1), it)

def _flat(x):
    if isinstance(x, str):
        return [Ins(l) for l in x.split('\n') if l.strip()]
    if isinstance(x, (list, tuple)):
        return [z for y in x for z in _flat(y)]
    return [x]

def _cost(i, tacost):
    k = i.kind
    if k == 'dsrd':
        return (4, 16 if 'b128' in i.mn else 8, 0)
    if k == 'dswr':
        return (4, 52 if 'b128' in i.mn else 16, 0)
    if k in ('dma', 'vmld', 'vmst'):
        return (6, 0, tacost if 'x4' in i.mn else 24)
    if k == 'trans': return (8, 0, 0)
    if k == 'mfma': return (16 if i.passes == 4 else 32, 0, 0)
    if k == 'barrier': return (8, 0, 0)
    if k == 'waittok': return (4, 0, 0)
    if k == 'alt': return (8 + 6*len(i.a), 0, tacost*len(i.a))
    if k == 'raw': return (4*min(6, i.text.count('\n') + 1), 0, 0)
    if k in ('label', 'dir', 'drained'): return (0, 0, 0)
    return (4, 0, 0)

class Sched:
    def __init__(self, spine, b32=20, b16=8):
        self.spine = [_flat(s)[0] for s in spine]
        self.before = {}
        self.streams = {}
        self.order = []
        self.b32 = b32; self.b16 = b16
        self.taq = 96; self.vmbonus = 4; self.vmstreams = ('dma', 'vm', 'a')
    def add(self, stream, items, e=0, d=None, ta=64, step=None, prio=1, slack=None, needs=None, split=False, early=None):
        if stream not in self.streams:
            self.streams[stream] = []; self.order.append(stream)
        groups = []
        for j, it in enumerate(items):
            g = _flat(it)
            if not g: continue
            parts = [[x] for x in g] if split else [g]
            for q in parts:
                mn = getattr(q[0], 'mn', '')
                if groups and (mn.startswith('s_cselect') or mn.startswith('s_cbranch') or mn.startswith('s_addc')): groups[-1][1].extend(q)
                else: groups.append((j, q))
        n = len(items)
        for j, g in groups:
            c = [_cost(i, ta) for i in g]
            if step is not None: tg = e + j*step
            elif d is not None and d > e: tg = e + (d - e)*(j + 0.3)/(n + 0.3)
            else: tg = e
            vm = any(x[2] for x in c)
            self.streams[stream].append(dict(ins=g, e=e, d=d, tg=tg, needs=list(needs or []), early=(not vm and step is None) if early is None else early,
                                             slack=3 if slack is None else slack, c=(sum(x[0] for x in c), sum(x[1] for x in c), sum(x[2] for x in c))))
    def at(self, slot, items, stream='fix'):
        self.add(stream + str(slot), [items], e=slot, d=slot)
        self.streams[stream + str(slot)][0]['tg'] = -1000
    def emit(self, p, verbose=None):
        N = len(self.spine)
        t = 0; lds_free = 0; ta_free = 0
        for s in self.streams.values():
            nd = None; nt = None
            for it in reversed(s):
                if it['d'] is None or (nd is not None and nd < it['d']): it['d'] = nd
                nd = it['d']
                if nt is not None and nt < it['tg']: it['tg'] = nt
                nt = it['tg']
        lost = 0
        done = set()
        self.load = []
        for slot in range(-1, N):
            used = 0; nvm = 0
            if slot >= 0:
                m = self.spine[slot]
                for x in self.before.get(slot, []): p(x)
                p(m)
                dur = 32 if m.passes == 8 else 16
                budget = self.b32 if dur == 32 else self.b16
                if slot + 1 in self.before: budget -= 4
            else:
                dur = 0; budget = 0
            while True:
                best = None
                for name in self.order:
                    s = self.streams[name]
                    if not s or s[0]['e'] > slot: continue
                    it = s[0]
                    d = it['d'] if it['d'] is not None else N + 1000
                    forced = d <= slot or slot == N - 1
                    if any(id(x) not in done for x in it['needs']):
                        assert not forced, ('dependency not issued', name, slot, it['ins'][0].text)
                        continue
                    if not forced:
                        if slot < 0: continue
                        if not it['early'] and it['tg'] > slot + 0.5: continue
                        over = slot - it['tg'] > it['slack']
                        if used + it['c'][0] > budget + (4 if over else 0) and not (used == 0): continue
                        if it['c'][1] and lds_free > t + dur + (16 if over else 0): continue
                        if it['c'][2] and (ta_free > t + dur + self.taq or nvm >= 1): continue
                    key = (0 if forced else 1, it['tg'] - (self.vmbonus if name in self.vmstreams else 0))
                    if best is None or key < best[0]: best = (key, name, forced)
                if best is None: break
                it = self.streams[best[1]].pop(0)
                p(it['ins'])
                for x in it['ins']:
                    done.add(id(x))
                    if x.kind == 'alt':
                        for y in x.a: done.add(id(y))
                used += it['c'][0]
                if it['c'][1]: lds_free = max(lds_free, t + used) + it['c'][1]
                if it['c'][2]:
                    ta_free = max(ta_free, t + used) + it['c'][2]; nvm += 1
                    if ta_free - t > 704: t = ta_free - 704
            if slot + 1 in self.before: used += 4
            step = max(dur, used + (12 if dur == 32 else 8)) if slot >= 0 else used
            lost += step - dur
            t += step
            self.load.append(used)
        self.time = t; self.lost = lost
        if verbose: print(f'   sched {verbose}: slots {N} est time {t} lost {lost}')
```

```python
import sys, struct
from asmlib import *

NAME = 'interleave_layers__sliding_local_dilated__glu_gated_glu__prompt'
MB = 1 << 20
WS_O = [0, 2*MB]; WS_X1 = [4*MB, 6*MB]; WS_X2 = 8*MB
WS_ST1 = [10*MB, 10*MB + (256 << 10)]; WS_ST2 = 10*MB + (512 << 10)
WS_HB = 11*MB; WS_HS = 11*MB + (512 << 10); WS_FL = 11*MB + (768 << 10); WS_EP = WS_FL + 8192; WS_XC = WS_FL + 16384; WS_TS = 14*MB
WS_H = [16*MB, 24*MB]

SX, SWQKV, SWO, SW3, SWD, SOUT, SWS, SDBG = 's[4:7]', 's[8:11]', 's[12:15]', 's[16:19]', 's[20:23]', 's[24:27]', 's[28:31]', 's[32:35]'
sW, sMODE, sT, sROW, sHALO, sG, sG16, sM16, sCB, sW1K, sW4K, sHASP, sPG, sIDLE = ['s%d' % i for i in range(36, 50)]
sMK2, sMK4, sMK1 = 's[50:51]', 's[52:53]', 's[54:55]'
sA1, sRB, sSPIN, sV, sXCC, sW2K = 's56', 's57', 's58', 's59', 's60', 's61'
sW3K, sR8, sRG, sR3 = 's84', 's85', 's86', 's87'
sR8s, sU = 's3', 's95'
sCODE = 's[100:101]'
SW3F = SW3
sA2 = ['s40', 's67', 's68', 's77']
sWd4 = 's64'; sA3 = ['s65', 's66', 's67', 's68']; sJ = ['s%d' % i for i in range(69, 76)]
sH0, sH1, sHB, sX, sY, sE, sES, sSG = 's76', 's77', 's78', 's79', 's80', 's81', 's82', 's83'
vL, vL16, vA1e, vA1o, vW1d, vW1r0, vW1r1, vA1r0, vA1r1, vW2d, vCT, vWown, vWoth, vRM, vFLp, vFLo = ['v%d' % i for i in range(16)]
RES = 16
CSQ, CSK, CSV = 24, 28, 32
vW3d, vW3r, vT0, vTS = 'v36', 'v37', 'v38', 'v39'
vW4 = ['v208', 'v209', 'v210', 'v211']
vW3q = ['v36', 'v252', 'v253', 'v254']
L_A1H = 65536; L_R1 = 73728; L_TAB = 159744
L_W2 = L_TAB - 65536
L_XB = 0
L_NM = L_TAB; L_RS = L_TAB + 320
L_T3 = L_TAB
L_CS3 = L_TAB + 2048
LOG2E = 1.4426950408889634
def f2u(x): return '0x%08x' % struct.unpack('<I', struct.pack('<f', x))[0]
def vr(a, n): return f'v[{a}:{a+n-1}]' if n > 1 else f'v{a}'
def ar(a, n): return f'a[{a}:{a+n-1}]'
def lines(s): return [x.strip() for x in s.strip().split('\n') if x.strip()]
def last(x): return x[-1]

class Gen:
    def __init__(self, **kw):
        self.p = Prog(); self.nts = 0; self.tsn = []; self.slow = []; self.nlab = 0; self.w3tok = {}; self.w3stg = {}
        self.o = dict(ts=False, mimic=True, stop=None, glob=False, fine=None, amp=None, dbg=None, touch=True, rot=True, ctouch=True, wb=False)
        self.o.update(kw)
        self.alias = self.o.get('alias', True)
        if self.alias:
            global WS_ST2
            WS_X1[1] = WS_X1[0]; WS_ST1[1] = WS_ST1[0]; WS_H[1] = WS_H[0]; WS_ST2 = WS_ST1[0]
        for k, v in self.o.items(): setattr(self, 'o_' + k, v)

    def cap(self, fn):
        sv = self.p; self.p = Prog(); fn(); items = self.p.items; self.p = sv
        return items
    def lab(self, s):
        self.nlab += 1; return f'L{s}{self.nlab}'
    def ts(self, name):
        if self.o_amp and name == self.o_amp[0]: self.p('s_memrealtime s[96:97]\ns_waitcnt lgkmcnt(0)')
        if self.o_amp and name == self.o_amp[1]: self.p('s_memrealtime s[98:99]\ns_waitcnt lgkmcnt(0)')
        if not self.o_ts: return
        if self.o_fine and self.o_fine[0] == 'b' and name[0] == 'p' and name[:3] != 'p3_': return
        if self.o.get('win') and name[0] != 'n' and name not in ('start', 'end') and not name.startswith('p' + self.o['win'][0][0]): return
        if self.o.get('rt'):
            if name not in ('start', 'a1_landed', 'p1_loop0', 'p1_end0', 'p2_end0', 'p3_go0', 'p3_end0', 'p4_mm0', 'p1_stats1', 'p1_halo1', 'p1_end1', 'p3_go1', 'p3_end1', 'p4_mm1', 'end'): return
            self.p('s_memrealtime s[62:63]'); self.p(f'v_writelane_b32 {vTS}, s62, {self.nts + 31}')
        self.p('s_memtime s[62:63]'); self.p(f'v_writelane_b32 {vTS}, s62, {self.nts}')
        self.tsn.append(name); self.nts += 1
    def win(self, S, key):
        w = self.o.get('win')
        if not w or w[0] != key: return
        for n in range(int(w[1]), int(w[2]), int(w[3])):
            S.before[n] = self.cap(lambda: self.ts(f'n{n}')) + S.before.get(n, [])
    def fts(self, key, name):
        return self.cap(lambda: self.ts(name)) if self.o_fine == key else []

    def stores(self, texts):
        a = [Ins(t) for t in texts]; b = [Ins(t + ' sc1') for t in texts]
        return Alt(sMODE, a, b), a
    def post_flag(self, val, toks):
        p = self.p
        p(f's_add_u32 s91, {sE}, {val}\nv_mov_b32 {vT0}, s91'); p(WaitTok(toks))
        alt, a = self.stores([f'buffer_store_dword {vT0}, {vFLo}, {SWS}, 0 offen'])
        p(alt)
    def spin(self, load, cmp_, mask, pre=''):
        ls, lb = self.lab('s'), self.lab('b')
        items = [Ins(x) for x in lines(cmp_)] + [Ins(f's_and_b64 vcc, vcc, {mask}'), Ins(f's_cbranch_scc1 {ls}'), Ins(f'{lb}:')]
        self.slow.append(f"""{ls}:
s_mov_b32 {sSPIN}, 0
{ls}_l:
{load}
s_add_u32 {sSPIN}, {sSPIN}, 1
s_cmp_gt_u32 {sSPIN}, 30000
s_cbranch_scc1 {ls}_x
s_waitcnt vmcnt(0)
{pre}
{cmp_}
s_nop 0
s_and_b64 vcc, vcc, {mask}
s_cbranch_scc1 {ls}_l
{ls}_x:
s_waitcnt vmcnt(0) lgkmcnt(0)
s_branch {lb}""")
        return items
    def poll_issue(self, vf): return Ins(f'buffer_load_dword {vf}, {vFLp}, {SWS}, 0 offen sc1')
    def poll_check(self, vf, val, mask):
        return self.spin(f'buffer_load_dword {vf}, {vFLp}, {SWS}, 0 offen sc1', f's_add_u32 s91, {sE}, {val}\nv_subrev_u32 v33, s91, {vf}\nv_cmp_lt_u32 vcc, 7, v33', mask)
    def poll(self, val, mask):
        l = self.lab('pl')
        ld = lambda r: f'buffer_load_dword {r}, {vFLp}, {SWS}, 0 offen sc1'
        chk = lambda r: f"""v_subrev_u32 v33, s91, {r}
v_cmp_lt_u32 vcc, 7, v33
s_nop 0
s_and_b64 vcc, vcc, s[88:89]"""
        if not self.o.get('pp', False):
            body = f"""{l}:
{ld(vT0)}
s_sub_u32 {sSPIN}, {sSPIN}, 1
s_cmp_eq_u32 {sSPIN}, 0
s_cselect_b64 s[88:89], 0, {mask}
s_waitcnt vmcnt(0)
{chk(vT0)}
s_cbranch_scc1 {l}"""
        else:
            body = f"""{ld(vT0)}
s_mov_b64 s[88:89], {mask}
s_nop 7
s_nop 7
{l}:
{ld('v35')}
s_waitcnt vmcnt(1)
{chk(vT0)}
s_cbranch_scc0 {l}x
{ld(vT0)}
s_sub_u32 {sSPIN}, {sSPIN}, 1
s_cmp_eq_u32 {sSPIN}, 0
s_cselect_b64 s[88:89], 0, {mask}
s_waitcnt vmcnt(1)
{chk('v35')}
s_cbranch_scc1 {l}
{l}x:"""
        self.p(f's_add_u32 s91, {sE}, {val}\ns_mov_b32 {sSPIN}, 30000')
        self.p(Raw(body, rd=[vT0, 's91'], wr=[vT0, 'v33', 'v35', 's88', 's89', 'vcc'], drains_vm=True, states=6))
        if self.o.get('pp', False):
            x = Ins(f'buffer_load_dword {vT0}, {vFLp}, {SWS}, 0 offen sc1'); x.phantom = True; x.wr |= {('v', 35)}
            self.p(x)
    def touch(self, voff, soff, mask=None):
        if not self.o_touch: return []
        i = Ins(f'buffer_load_dword v34, {voff}, {SWS}, {soff} offen sc1'); i.wr = set()
        return [f's_mov_b64 exec, {mask}', i, 's_mov_b64 exec, -1'] if mask else [i]
    def warm_touch(self, t):
        if not self.o.get('warm', False): return []
        o = lines(f"""s_lshl_b32 s88, s2, 1
s_lshr_b32 s89, {sW}, 1
s_add_u32 s88, s88, s89
s_mul_i32 s88, s88, {28*128}
s_lshl_b32 s89, s2, 2
s_add_u32 s89, s89, {sW}
s_mul_i32 s90, s89, {14*128}
s_lshl_b32 s89, s89, 9
v_lshlrev_b32 {t}, 7, {vL}""")
        for srd, so, m in ((SW3F, 's88', 0xfffffff), (SWD, 's90', 0x3fff), (SWO, 's89', 0xf)):
            i = Ins(f'buffer_load_dword v34, {t}, {srd}, {so} offen'); i.wr = set()
            o.append([f's_mov_b64 exec, {m}', i, 's_mov_b64 exec, -1'])
        return o
    def pf_touch(self, srd, per, idx, t, lanes=16, base=0, half=False):
        o = [f's_mul_i32 s90, {idx}, {per*128}']
        if half: o += ['s_lshr_b32 s89, s90, 16', 's_lshl_b32 s89, s89, 16', 's_add_u32 s90, s90, s89', 's_add_u32 s90, s90, 65536']
        o += [f'v_lshlrev_b32 {t}, 7, {vL}']
        pre = o; o = []
        for i in range(per // lanes):
            x = Ins(f'buffer_load_dword v34, {t}, {srd}, s90 offen offset:{(i*lanes*128) % 4096}'); x.wr = set()
            gq = [f's_mov_b64 exec, {hex((1 << lanes) - 1)}', x, 's_mov_b64 exec, -1']
            if i and (i*lanes*128) % 4096 == 0: gq = ['s_add_u32 s90, s90, 4096'] + gq
            o.append(gq)
        return pre, o
    def code_touch(self):
        if not self.o_ctouch: return []
        i = Ins(f'global_load_dword v35, {vCT}, {sCODE}'); i.wr = set()
        return [i]

    def prologue_a(self):
        p = self.p
        if self.o_amp and self.o_amp[0] == 'entry': p('s_memrealtime s[96:97]')
        p('s_cmp_ge_u32 s2, 256'); p('s_cbranch_scc1 L_end')
        p('s_load_dwordx16 s[64:79], s[0:1], 0'); p('s_load_dwordx4 s[80:83], s[0:1], 64')
        p(f"""s_getpc_b64 {sCODE}
Lpc:
v_lshrrev_b32 v1, 6, v0
v_and_b32 {vL}, 63, v0
s_lshr_b32 s89, s2, 3
s_xor_b32 s89, s89, {int(self.o.get('idxx', 0))}
v_readfirstlane_b32 {sW}, v1
s_lshl_b32 s90, s89, 11
v_and_b32 {vCT}, 3, {vL}
v_lshl_add_u32 {vCT}, v1, 2, {vCT}
v_lshl_add_u32 {vCT}, {vCT}, 7, s90
v_min_u32 {vCT}, L_last-Lpc-4, {vCT}""")
        p(self.code_touch())
        if self.o_ts:
            p(f'v_mov_b32 {vTS}, 0'); p('s_memrealtime s[62:63]'); p(f'v_writelane_b32 {vTS}, s62, 63')
        self.ts('start')
        t = [f'v{i}' for i in range(40, 56)]
        p(f"""s_and_b32 s88, s2, 7
s_lshr_b32 {sRG}, s89, 3
s_and_b32 {sCB}, s89, 7
s_lshr_b32 s90, s88, 1
s_lshl_b32 s90, s90, 2
s_add_u32 s90, s90, {sRG}
s_and_b32 s91, s88, 1
s_lshl_b32 {sR8}, {sRG}, 1
s_add_u32 {sR8}, {sR8}, s91""")
        if not self.o_rot: p(f's_mov_b32 {sR8}, 0')
        if self.o.get('rotx', 1) & 1:
            p(f's_lshl_b32 {sR8}, {sRG}, 1\ns_cmp_eq_u32 {sCB}, {int(self.o.get("slowcb", 3))}\ns_cselect_b32 {sR8}, {sR8}, 0\ns_xor_b32 {sR8}, {sR8}, s88')
        p(f"""s_lshl_b32 {sR8s}, {sR8}, 7
s_lshl_b32 {sROW}, s90, 17
s_lshl_b32 s91, s91, 10
s_add_u32 {sROW}, {sROW}, s91
s_cmp_eq_u32 s90, 0
s_cselect_b32 {sHASP}, 0, 1
s_cselect_b32 s91, 0, 16384
s_sub_u32 {sHALO}, {sROW}, s91
s_lshl_b32 {sA1}, {sW}, 15
s_add_u32 {sA1}, {sA1}, {sROW}
s_lshl_b32 {sW2K}, {sW}, 11
s_mul_i32 {sW3K}, {sW}, 3072
v_lshrrev_b32 {t[0]}, 3, {vL}
v_and_b32 {t[1]}, 7, {vL}
v_lshrrev_b32 {t[2]}, 1, {t[0]}
v_xor_b32 {t[3]}, {t[1]}, {t[2]}
v_lshlrev_b32 {t[3]}, 4, {t[3]}
v_lshl_add_u32 {vA1e}, {t[0]}, 11, {t[3]}
v_xor_b32 v124, 64, {vA1e}
v_add_u32 {vA1o}, {16384-1024}, v124
v_and_b32 {t[4]}, 1, {t[2]}
s_and_b32 s91, {sW}, 1
s_lshl_b32 s91, s91, 2
v_lshl_add_u32 {t[5]}, {t[4]}, 1, s91
v_xor_b32 {t[5]}, {t[5]}, {t[1]}
v_lshlrev_b32 {t[5]}, 4, {t[5]}
s_mul_i32 s91, {sW}, 24576
s_lshl_b32 s92, {sCB}, 7
s_add_u32 s91, s91, s92
v_mul_u32_u24 {t[6]}, 3072, {t[0]}
v_add3_u32 {vW1d}, {t[5]}, {t[6]}, s91""")
        self.srd(4, 64, 2*MB); self.srd(8, 66, 512*3072)
    def srd(self, base, lo, size):
        self.p(f's_mov_b32 s{base}, s{lo}\ns_and_b32 s{base+1}, s{lo+1}, 0xffff\ns_mov_b32 s{base+2}, {size}\ns_mov_b32 s{base+3}, 0x20000')
    def prologue_b(self):
        p = self.p
        t = [f'v{i}' for i in range(40, 56)]
        p(f"""s_getreg_b32 {sXCC}, hwreg(HW_REG_XCC_ID)
s_and_b32 {sXCC}, {sXCC}, 15
s_add_u32 {sXCC}, {sXCC}, 1
s_and_b32 {sM16}, s89, 15
s_lshl_b32 {sG}, s88, 2
s_add_u32 {sG}, {sG}, {sRG}
s_lshr_b32 {sG16}, {sG}, 1
s_cmp_eq_u32 {sRG}, 0
s_cselect_b32 s91, 5, 1
s_sub_u32 {sPG}, {sG}, s91
s_cmp_eq_u32 s90, 0
s_cselect_b32 {sPG}, {sG}, {sPG}
s_lshl_b32 {sW1K}, {sW}, 10
s_lshl_b32 {sW4K}, {sW}, 12
s_and_b32 s91, {sW}, 1
s_lshl_b32 {sRB}, {sG}, 1
s_add_u32 {sRB}, {sRB}, s91
s_and_b32 s91, {sG16}, 1
s_and_b32 {sR3}, s88, 3
s_lshl_b32 {sR3}, {sR3}, 1
s_add_u32 {sR3}, {sR3}, s91
v_lshlrev_b32 {vL16}, 4, {vL}""")
        self.srd(12, 68, 512*1024)
        p(f's_bitcmp1_b32 {sW}, 0\ns_cselect_b32 s72, s74, s72\ns_cselect_b32 s73, s75, s73')
        self.srd(16, 72, 512*3584); self.srd(20, 76, 1792*1024); self.srd(24, 78, 2*MB); self.srd(28, 82, 256*MB)
        if self.o_dbg: self.srd(32, 80, 256)
        else: p('s_mov_b32 s32, 0xff00ff00\ns_mov_b32 s33, 0xff00ff00')
        p(f"""s_cmp_ge_u32 {sM16}, 14
s_cselect_b32 {sIDLE}, 1, 0""")
        if not self.o_rot: p(f's_mov_b32 {sR3}, 0')
        if self.o.get('rotx', 1) & 2: p(f's_mov_b32 {sR3}, s88')
        p(f"""s_lshr_b32 s93, {sW}, 1
s_and_b32 s94, {sRG}, 1
s_lshl_b32 s94, s94, 5
s_mov_b32 s62, -1
s_mov_b32 s63, 0
s_lshl_b64 {sMK1}, s[62:63], s94
s_lshl_b32 s91, s93, 4
s_add_u32 s91, s91, s94
s_mov_b32 s62, 0xffff
s_lshl_b64 {sMK2}, s[62:63], s91
s_mul_i32 s91, s93, 28
s_mov_b32 s62, 0xfffffff
s_lshl_b64 {sMK4}, s[62:63], s91""")
        p(f"""s_mul_i32 s91, s93, 28672
s_lshl_b32 s94, {sM16}, 8
s_add_u32 s91, s91, s94
v_mul_u32_u24 {t[6]}, 3584, {t[0]}
v_add3_u32 {vW3d}, {t[5]}, {t[6]}, s91
v_lshlrev_b32 {t[5]}, 2, {t[4]}
v_xor_b32 {t[5]}, {t[5]}, {t[1]}
v_lshlrev_b32 {t[5]}, 4, {t[5]}
v_lshl_add_u32 {t[5]}, {t[0]}, 10, {t[5]}
s_lshl_b32 s91, {sW}, 13
s_add_u32 s94, s91, s92
v_add_u32 {vW2d}, s94, {t[5]}
s_mul_i32 {sWd4}, s93, {7*128*1024}
s_and_b32 s94, {sW}, 1
s_lshl_b32 s94, s94, 15
s_add_u32 {sWd4}, {sWd4}, s94
s_sub_u32 {sWd4}, {sWd4}, s91""")
        p(f"""v_lshrrev_b32 {t[0]}, 4, {vL}
v_and_b32 {t[1]}, 15, {vL}
v_lshrrev_b32 {t[2]}, 2, {t[1]}
v_and_b32 {t[3]}, 3, {vL}
v_lshrrev_b32 {t[4]}, 1, {t[2]}
v_and_b32 {t[5]}, 1, {t[0]}
v_lshl_add_u32 {t[6]}, {t[5]}, 1, {t[4]}
v_xor_b32 {t[6]}, {sW}, {t[6]}
v_lshlrev_b32 {t[6]}, 5, {t[6]}
v_lshl_add_u32 {t[6]}, {t[3]}, 3, {t[6]}
v_lshl_add_u32 {t[6]}, {t[2]}, 7, {t[6]}
v_mul_u32_u24 {t[7]}, 3072, {t[0]}
v_add_u32 {t[6]}, {t[6]}, {t[7]}
v_add_u32 {vW1r0}, {L_R1}, {t[6]}
v_add_u32 {vW1r1}, {L_R1 + 49152}, {t[6]}
v_lshrrev_b32 {t[6]}, 1, {t[1]}
v_xor_b32 {t[6]}, {t[6]}, {t[0]}
v_lshlrev_b32 {t[6]}, 4, {t[6]}
v_lshl_add_u32 {vA1r0}, {t[1]}, 7, {t[6]}
v_xor_b32 {vA1r1}, 64, {vA1r0}
v_lshrrev_b32 {t[7]}, 1, {t[0]}
v_lshrrev_b32 {t[8]}, 1, {t[3]}
v_and_b32 {t[9]}, 1, {t[3]}
v_lshl_add_u32 {t[10]}, {t[9]}, 1, {t[8]}
v_lshl_add_u32 {t[10]}, {t[5]}, 2, {t[10]}
v_lshlrev_b32 {t[10]}, 3, {t[10]}
v_xor_b32 {t[11]}, s93, {t[4]}
v_lshl_add_u32 {t[10]}, {t[11]}, 6, {t[10]}
v_lshl_add_u32 {t[10]}, {t[2]}, 7, {t[10]}
v_lshl_add_u32 {vWown}, {t[7]}, 10, {t[10]}
v_xor_b32 {vWoth}, 64, {vWown}
v_lshl_add_u32 {t[10]}, {t[9]}, 1, {t[5]}
v_lshlrev_b32 {t[10]}, 3, {t[10]}
v_lshl_add_u32 {t[11]}, {t[8]}, 1, {t[4]}
v_xor_b32 {t[11]}, {sW}, {t[11]}
v_lshl_add_u32 {t[10]}, {t[11]}, 5, {t[10]}
v_lshl_add_u32 {t[10]}, {t[2]}, 7, {t[10]}
v_lshl_add_u32 {t[10]}, {t[8]}, 12, {t[10]}
v_lshl_add_u32 {vW3r}, {t[7]}, 13, {t[10]}
v_and_b32 {t[0]}, 31, {vL}
v_lshrrev_b32 {t[1]}, 5, {vL}
v_lshlrev_b32 {t[1]}, 4, {t[1]}
v_lshl_add_u32 {t[0]}, {t[0]}, 11, {t[1]}
s_and_b32 s91, {sW}, 1
s_lshl_b32 s91, s91, 16
s_lshl_b32 s94, s93, 6
s_add_u32 s91, s91, s94
s_add_u32 s91, s91, s92
v_add_u32 {vRM}, s91, {t[0]}
s_lshl_b32 s91, {sG16}, 8
s_add_u32 s91, s91, {WS_FL}
v_lshl_add_u32 {vFLp}, {vL}, 2, s91
s_lshl_b32 s94, {sM16}, 2
s_add_u32 s94, s94, {sW}
s_lshl_b32 s94, s94, 2
s_add_u32 s91, s91, s94
v_mov_b32 {vFLo}, s91
v_mov_b32 {t[0]}, 0x7ff00000
v_cmp_eq_u32 vcc, 0, {vL}
v_cndmask_b32 {vFLo}, {t[0]}, {vFLo}, vcc""")
        for s in range(2):
            p(f"""s_add_u32 s91, {sW}, {4*s}
s_xor_b32 s91, s91, {sR3}
s_lshl_b32 s91, s91, 12
s_lshl_b32 s94, {sG16}, 17
s_add_u32 {sA3[s]}, s91, s94""")
        p(f's_cmp_eq_u32 {sR8}, 7\ns_cselect_b32 s91, 3, {sR8}\ns_lshl_b32 {sJ[0]}, s91, 13')
        for j in range(1, 7):
            p(f's_add_u32 {sJ[j]}, {sJ[j-1]}, 8192\ns_cmp_eq_u32 {sJ[j]}, {7*8192}\ns_cselect_b32 {sJ[j]}, 0, {sJ[j]}')
        p(f"""s_cmp_eq_u32 {sRG}, 3
s_cselect_b32 s91, 5, 1
s_add_u32 {sSG}, {sG}, s91
s_cmp_eq_u32 s90, 15
s_cselect_b32 {sSG}, {sG}, {sSG}
s_lshr_b32 s91, {sSG}, 1
v_mov_b32 v252, {sG16}
v_mov_b32 v253, s91
v_cmp_eq_u32 vcc, 0, {vL}
v_cndmask_b32 v252, v253, v252, vcc
v_lshlrev_b32 v252, 7, v252
s_mov_b32 s91, {WS_EP}
buffer_load_dword v253, v252, {SWS}, s91 offen sc1""")
        c = 40
        p(f"""v_mov_b32 v{c}, -1
v_mov_b32 v{c+1}, -1
v_mov_b32 v{c+2}, -1
v_mov_b32 v{c+3}, -1
v_mov_b32 v{c+4}, 0
v_lshrrev_b32 v{c+5}, 3, {vL}
v_and_b32 v{c+6}, 7, {vL}
v_lshlrev_b32 v{c+6}, 4, v{c+6}
v_lshl_add_u32 v{c+5}, v{c+5}, 11, v{c+6}
s_lshl_b32 s88, {sG}, 14
s_add_u32 s88, s88, s92
s_add_u32 s88, s88, {sW4K}
s_add_u32 s88, s88, {WS_HB}
s_lshl_b32 s91, {sG}, 7
s_lshl_b32 s94, {sW}, 4
s_add_u32 s91, s91, s94
s_add_u32 s91, s91, {WS_HS}
s_cmp_eq_u32 {sCB}, 0
s_cselect_b32 s91, s91, 0x7ff00000
v_mov_b32 v{c+6}, s91
s_mov_b64 exec, 0xffff""")
        self.clr = [p(f'buffer_store_dwordx4 {vr(c,4)}, v{c+5}, {SWS}, s88 offen sc1')]
        p('s_mov_b64 exec, 1')
        self.clr.append(p(f'buffer_store_dwordx4 {vr(c,4)}, v{c+6}, {SWS}, 0 offen sc1'))
        p('s_mov_b64 exec, -1')
        if not self.o_rot: p(f's_mov_b32 {sRG}, 0')
        if self.o.get('rotx', 1) & 4: p(f's_and_b32 {sRG}, s2, 3')

    def publish_xcc(self):
        l = self.lab('px')
        return [f'v_readlane_b32 {sE}, v253, 0', f'v_readlane_b32 {sES}, v253, 1', Raw(f"""s_cmp_lg_u32 {sW}, 0
s_cbranch_scc1 {l}
s_lshl_b32 s88, {sG}, 3
s_add_u32 s88, s88, {sCB}
s_lshl_b32 s88, s88, 8
s_add_u32 s88, s88, {WS_XC}
v_sub_u32 v252, 15, {vL}
v_add_u32 v252, v252, v253
v_mov_b32 v253, {sXCC}
v_lshlrev_b32 v254, 7, {vL}
s_mov_b64 exec, 3
buffer_store_dwordx2 v[252:253], v254, {SWS}, s88 offen sc1
s_mov_b64 exec, -1
{l}:""", rd=['v253', sE, sES], wr=['v252', 'v253', 'v254', 's88'], states=2)]
    def mode_issue(self, va, vd):
        return lines(f"""s_lshl_b32 s88, {sG16}, 12
s_lshl_b32 s89, {sPG}, 11
s_sub_u32 s89, s89, {16*256 - 128}
v_lshlrev_b32 {va}, 8, {vL}
v_add_u32 v{vd}, s89, {va}
v_add_u32 {va}, s88, {va}
v_cmp_gt_u32 vcc, 16, {vL}
v_cndmask_b32 {va}, v{vd}, {va}, vcc
v_mov_b32 v{vd}, s88
v_cmp_gt_u32 vcc, 24, {vL}
v_cndmask_b32 {va}, v{vd}, {va}, vcc
v_add_u32 {va}, {WS_XC}, {va}
buffer_load_dwordx2 {vr(vd,2)}, {va}, {SWS}, 0 offen sc1""")
    def mode_check(self, va, vd):
        o = lines(f"""s_cmp_eq_u32 {sHASP}, 0
s_mov_b32 s92, 0xffffff
s_cselect_b32 s92, 0xffff, s92
s_mov_b32 s93, 0
v_lshrrev_b32 v33, 4, {vL}
v_sub_u32 v33, 15, v33
v_add_u32 v33, {sE}, v33""")
        o += self.spin(f'buffer_load_dwordx2 {vr(vd,2)}, {va}, {SWS}, 0 offen sc1', f'v_cmp_ne_u32 vcc, v33, v{vd}', 's[92:93]')
        o += lines(f'v_cmp_ne_u32 vcc, {sXCC}, v{vd+1}\ns_and_b32 {sMODE}, vcc_lo, 0xffff')
        if self.o_glob: o.append(f's_mov_b32 {sMODE}, 1')
        return o
    def bump_epoch(self):
        l = self.lab('ep')
        return Raw(f"""s_add_u32 s88, {sM16}, {sW}
s_cmp_lg_u32 s88, 0
s_cbranch_scc1 {l}
s_lshl_b32 s88, {sG16}, 7
s_add_u32 s88, s88, {WS_EP}
s_add_u32 s89, {sE}, 16
v_mov_b32 v33, s89
v_mov_b32 v34, 0
s_mov_b64 exec, 1
buffer_store_dword v33, v34, {SWS}, s88 offen
s_mov_b64 exec, -1
{l}:""", wr=['v33', 'v34', 's88', 's89'], states=2)

    def stats_final(self, S, Q, t):
        o = [f'v_mul_f32 {S}, {f2u(-1/512)}, {S}', f'v_mul_f32 {Q}, {f2u(1/512)}, {Q}', f'v_fma_f32 {Q}, -{S}, {S}, {Q}', f'v_max_f32 {Q}, 0, {Q}']
        rnd = lambda x: [f'v_cvt_pk_bf16_f32 {x}, {x}, {x}', f'v_and_b32 {x}, 0xffff0000, {x}']
        if self.o_mimic:
            o += rnd(Q) + [f'v_add_f32 {Q}, {f2u(1e-5)}, {Q}'] + rnd(Q) + [f'v_sqrt_f32 {t}, {Q}'] + rnd(S) + rnd(t) + [f'v_rcp_f32 {Q}, {t}']
        else:
            o += [f'v_add_f32 {Q}, {f2u(1e-5)}, {Q}', f'v_sqrt_f32 {t}, {Q}', f'v_rcp_f32 {Q}, {t}']
        return o
    def stats_issue(self, base, sbase, r):
        o = [Ins(f's_add_u32 {sT}, {sbase}, {base}')]
        for i in range(4): o.append(Ins(f'buffer_load_dwordx4 {vr(r+4*i,4)}, {vL16}, {SWS}, {sT} offen offset:{1024*i} sc1'))
        return o
    def stats_reduce(self, r):
        o = []
        for j in range(4): o.append(f'v_add_f32 v{r+j}, v{r+j}, v{r+4+j}')
        for j in range(4): o.append(f'v_add_f32 v{r+8+j}, v{r+8+j}, v{r+12+j}')
        for j in range(4): o.append(f'v_add_f32 v{r+j}, v{r+j}, v{r+8+j}')
        o += [f'v_permlane16_swap_b32 v{r}, v{r+2}', f'v_permlane16_swap_b32 v{r+1}, v{r+3}',
              f'v_add_f32 v{r}, v{r}, v{r+2}', f'v_add_f32 v{r+1}, v{r+1}, v{r+3}',
              f'v_permlane32_swap_b32 v{r}, v{r+1}', f'v_add_f32 v{r}, v{r}, v{r+1}', f'v_mov_b32 v{r+1}, v{r}',
              f'v_permlane32_swap_b32 v{r}, v{r+1}']
        return o

    w1off = 0
    def w1_stage(self, s, seq=False):
        slot = L_R1 + ((s + self.w1off) % 7) * 12288
        pre = []
        if not (seq and s & 1):
            pre += [Ins(f's_xor_b32 {sV}, {sR8}, {s >> 1}'), Ins(f's_mul_i32 {sV}, {sV}, 196608')]
        if s & 1: pre.append(Ins(f's_add_u32 {sV}, {sV}, 98304'))
        out = []
        for part in range(3):
            g = ([Ins(f's_add_u32 m0, {sW3K}, {slot}')] + pre) if part == 0 else []
            g.append(Ins(f'buffer_load_dwordx4 {vW1d}, {SWQKV}, {sV} offen offset:{part*1024} lds', lds=[(slot + q*3072 + part*1024, slot + q*3072 + part*1024 + 1024) for q in range(4)]))
            out.append(g)
        return [sum(out, [])], [last(g) for g in out]
    def a1_chunk(self, L, kc):
        srd = SX if L == 0 else SWS; fl = ' sc1' if L else ''
        rng = lambda o: [(kc*8192 + q*2048 + o*1024, kc*8192 + q*2048 + o*1024 + 1024) for q in range(4)]
        a = Ins(f'buffer_load_dwordx4 {vA1e}, {srd}, {sT} offen{fl} lds', lds=rng(0))
        b = Ins(f'buffer_load_dwordx4 {vA1o}, {srd}, {sT} offen offset:1024{fl} lds', lds=rng(1))
        return [Ins(f's_add_u32 m0, {sW2K}, {kc*8192}'), Ins(f's_xor_b32 {sT}, {sR8s}, {kc*128}'), Ins(f's_add_u32 {sT}, {sT}, {sA1}'), a, b], [a, b]
    def halo_dma(self, L, va, sT=sT):
        srd = SX if L == 0 else SWS; fl = ' sc1' if L else ''
        o = []; tk = []
        for u in range(2):
            d = Ins(f'buffer_load_dwordx4 {va}, {srd}, {sT} offen{fl} lds', lds=[(L_A1H + q*2048 + u*1024, L_A1H + q*2048 + u*1024 + 1024) for q in range(4)])
            o += [Ins(f's_add_u32 m0, {sW2K}, {L_A1H + u*1024}'), Ins(f's_lshl_b32 {sT}, {sW}, 8'), Ins(f's_add_u32 {sT}, {sT}, {u*128}'),
                  Ins(f's_xor_b32 {sT}, {sT}, {sR8s}'), Ins(f's_add_u32 {sT}, {sT}, {sHB if L else sHALO}'), d]
            tk.append(d)
        return o, tk
    def w2_piece(self, i):
        q = (i >> 1) & 3; c = (i & 1)*32768 + (i >> 3)*262144
        o = [Ins(f's_add_u32 m0, {sW1K}, {L_W2 + i*4096}'), Ins(f's_xor_b32 {sT}, {sRG}, {q}'), Ins(f's_lshl_b32 {sT}, {sT}, 16')]
        if c: o.append(Ins(f's_add_u32 {sT}, {sT}, {c}'))
        o.append(Ins(f'buffer_load_dwordx4 {vW2d}, {SWO}, {sT} offen lds', lds=(L_W2 + i*4096, L_W2 + i*4096 + 4096)))
        return o
    def w2_quads(self, t):
        pre = [f's_mul_i32 s93, {sW}, {131072 - 8192}', f'v_add_u32 {t[0]}, s93, {vW2d}'] + [f'v_add_u32 {t[i]}, {7168*i}, {t[0]}' for i in range(1, 4)] + [f's_lshl_b32 s93, {sW}, 14']
        out = []; tk = []
        for i in range(4):
            o = L_W2 + i*4096
            d = [Ins(f'buffer_load_dwordx4 {t[u]}, {SWO}, {sT} offen offset:{u*1024} lds', lds=[(o + w*16384 + u*1024, o + w*16384 + u*1024 + 1024) for w in range(4)]) for u in range(4)]
            out += self.split_dma([Ins(f's_add_u32 m0, s93, {o}'), Ins(f's_mov_b32 {sT}, {i*32768}')] + d); tk += d
        return pre, out, tk
    W4SLOTS = [[8, 2, 3, 4, 5, 0, 1, 6, 7, 8, 2, 3, 4, 5], [8, 8, 8, 8, 0, 1, 2, 3, 4, 5, 6, 7, 8, 1]]
    @property
    def W4SLOT(self):
        if self.layer == 0: return self.W4SLOTS[0]
        n = self.o.get('nwp', 2)
        return ([8]*(n + 1) + list(range(8)) + [8, 1, 2, 3, 4])[:14]
    def w4_setup(self):
        return [f'v_add_u32 {vW4[0]}, {sWd4}, {vW2d}'] + [f'v_add_u32 {vW4[i]}, {7168*i}, {vW4[0]}' for i in range(1, 4)]
    def w4_stage(self, s):
        c, j = divmod(s, 7)
        slot = self.W4SLOT[s] * 16384
        out = []; tk = []
        for h in range(2):
            g = [Ins(f's_add_u32 m0, {sW4K}, {slot}'), Ins(f's_lshl4_add_u32 {sT}, {sJ[j]}, {c*65536}')]
            for i in (2*h, 2*h+1):
                d = Ins(f'buffer_load_dwordx4 {vW4[i]}, {SWD}, {sT} offen offset:{i*1024} lds', lds=[(slot + q*4096 + i*1024, slot + q*4096 + i*1024 + 1024) for q in range(4)])
                g.append(d); tk.append(d)
            out.append(g)
        return out, tk
    def w3_quad(self, q, stg):
        c, kq = divmod(q, 8)
        o = [Ins(f's_add_u32 m0, {sW4K}, {stg}'), Ins(f's_xor_b32 {sU}, {sR3}, {kq}'), Ins(f's_mul_i32 {sU}, {sU}, {4*57344}')]
        if c: o.append(Ins(f's_add_u32 {sU}, {sU}, 128'))
        tk = [Ins(f'buffer_load_dwordx4 {vW3q[i]}, {SW3}, {sU} offen offset:{i*1024} lds', lds=[(stg + w*4096 + i*1024, stg + w*4096 + i*1024 + 1024) for w in range(4)]) for i in range(4)]
        self.w3tok[q] = tk; self.w3stg[q] = stg
        return self.split_dma(o + tk)
    def w3_reads(self, n):
        stg = self.w3stg[n >> 2]; i = n & 3
        va, off = [(vW3r, 0), ('v212', 49152), ('v213', 98304)][min(2, stg // 49152)]
        return [Ins(f'ds_read_b64_tr_b16 {ar(4*n+2*r,2)}, {va} offset:{stg - off + i*1024 + r*512}', lds=[(stg + w*4096 + i*1024, stg + w*4096 + i*1024 + 1024) for w in range(4)]) for r in range(2)]
    def w3_cs(self, n):
        return f'v_mfma_f32_16x16x32_bf16 v[216:219], v[220:223], {ar(4*n,4)}, {0 if n % 32 == 0 else "v[216:219]"}'
    def w3_setup(self):
        return [f'v_add_u32 v212, 49152, {vW3r}', f'v_add_u32 v213, 98304, {vW3r}']
    def w3_take(self, ns):
        p = self.p
        rs = [self.w3_reads(n) for n in ns]
        for i, n in enumerate(ns):
            p(rs[i])
            if i >= 3: p(self.w3_cs(ns[i-3]))
        for n in ns[-3:]: p(self.w3_cs(n))
        return sum(rs, [])
    def w3_sel(self):
        return lines(f"""v_lshrrev_b32 v220, 2, {vL}
v_lshrrev_b32 v221, 4, {vL}
v_xor_b32 v220, v220, v221
v_and_b32 v220, 1, v220
v_cmp_eq_u32 vcc, 0, v220
v_mov_b32 v221, 0x3f803f80
v_cndmask_b32 v220, 0, v221, vcc
v_mov_b32 v221, v220
v_mov_b32 v222, v220
v_mov_b32 v223, v220""")
    CSW = [34, 34]
    def w3_cs_store(self, c):
        o = lines(f"""v_cvt_pk_bf16_f32 v217, v216, v216
v_and_b32 v218, 0xffff0000, v217
v_sub_f32 v216, v216, v218
v_cvt_pk_bf16_f32 v218, v216, v216
v_and_b32 v219, 0xffff0000, v218
v_sub_f32 v216, v216, v219
v_and_b32 v217, 0xffff, v217
v_or_b32 v218, v219, v217
v_cvt_pk_bf16_f32 v219, v216, 0
v_lshlrev_b32 v217, 3, {vL}
s_lshl_b32 s90, {sW}, 9
s_add_u32 s90, s90, {L_CS3 + c*256}
v_add_u32 v217, s90, v217""")
        o.append(['s_mov_b64 exec, 0xffffffff', Ins('ds_write_b64 v217, v[218:219]', lds=(L_CS3, L_CS3 + 2048), private=True), 's_mov_b64 exec, -1'])
        return o

    ATT = dict(ST=144, VS=154, CQ=194, QB=202, KB=210, VB=220, CA=128, CB=132, CB0=136, MA=140, SB=96, PP=230, OA=56, T=246)
    def att_masks(self, T):
        A = self.ATT; CA, CB, CB0, MA = A['CA'], A['CB'], A['CB0'], A['MA']
        o = lines(f"""v_and_b32 v{T}, 15, {vL}
v_lshrrev_b32 v{T+1}, 4, {vL}
v_lshlrev_b32 v142, 2, v{T}
v_add_u32 v142, {L_NM}, v142
v_lshlrev_b32 v143, 4, v{T+1}
v_add_u32 v143, {L_NM}, v143
v_lshlrev_b32 v{T+1}, 2, v{T+1}
v_sub_u32 v{T}, v{T}, v{T+1}
v_mov_b32 v{T+4}, 0xff800000
v_mov_b32 v{T+5}, 0xffff
v_mov_b32 v{T+6}, 0xffff0000
s_cmp_eq_u32 {sHASP}, 0
s_cselect_b64 s[88:89], 0, -1""")
        for j in range(4):
            o += lines(f"""v_subrev_u32 v{T+1}, {j}, v{T}
v_add_u32 v{T+7}, 16, v{T+1}
v_cmp_gt_u32 vcc, 8, v{T+1}
v_cmp_gt_u32 s[90:91], 8, v{T+7}
v_cndmask_b32 v{CA+j}, v{T+4}, 0, vcc
v_cndmask_b32 v{T+8+j}, 0, v{T+5+(j&1)}, vcc
v_cndmask_b32 v{CB+j}, v{T+4}, 0, s[90:91]
v_cndmask_b32 v{CB0+j}, v{T+4}, v{CB+j}, s[88:89]""")
        o += [f'v_or_b32 v{MA}, v{T+8}, v{T+9}', f'v_or_b32 v{MA+1}, v{T+10}, v{T+11}']
        return o
    def att_ones(self): return [f'v_mov_b32 v{112+i}, 0x3f803f80' for i in range(4)]
    def att_tabreads(self):
        A = self.ATT; tab = (L_NM, L_NM + 640)
        o = [Ins(f'ds_read2_b32 {vr(A["ST"]+2*u,2)}, v142 offset0:{16*u} offset1:{80+16*u}', lds=tab) for u in range(5)]
        for u in range(5):
            o.append(Ins(f'ds_read_b128 {vr(A["VS"]+8*u,4)}, v143 offset:{64*u}', lds=tab))
            o.append(Ins(f'ds_read_b128 {vr(A["VS"]+8*u+4,4)}, v143 offset:{64*u+320}', lds=tab))
        return o
    def attention(self, L, extra):
        p = self.p
        QA, KA, VA = 40, 56, 76
        A = self.ATT
        ST, VS, CQ, QB, KB, VB, CA, CB, CB0, MA, SB, PP, OA, T = [A[k] for k in 'ST VS CQ QB KB VB CA CB CB0 MA SB PP OA T'.split()]
        lo, hi = 'op_sel_hi:[1,0,1]', 'op_sel:[0,1] op_sel_hi:[1,1]'
        ONES = 112
        for u in range(5):
            st = vr(ST + 2*u, 2)
            for j in (0, 2): p(f'v_pk_fma_f32 {vr(KA+4*u+j,2)}, {vr(CSK+j,2)}, {st}, {vr(KA+4*u+j,2)} {lo}')
            if u:
                for j in (0, 2): p(f'v_pk_fma_f32 {vr(QA+4*u-4+j,2)}, {vr(CSQ+j,2)}, {st}, {vr(QA+4*u-4+j,2)} {lo}')
            for j in (0, 2): p(f'v_pk_mul_f32 {vr(KA+4*u+j,2)}, {vr(KA+4*u+j,2)}, {st} {hi}')
            if u:
                for j in range(2): p(f'v_cvt_pk_bf16_f32 v{QB+2*u-2+j}, v{QA+4*u-4+2*j}, v{QA+4*u-4+2*j+1}')
            for j in range(2): p(f'v_cvt_pk_bf16_f32 v{KB+2*u+j}, v{KA+4*u+2*j}, v{KA+4*u+2*j+1}')
        p(extra.get('a', []))
        for t in range(4):
            p(f'v_mfma_f32_16x16x16_bf16 {vr(QA+4*t,4)}, {vr(KB+2*(t+1),2)}, {vr(QB+2*t,2)}, {vr(CA,4)}')
            p(f'v_mul_f32 v{CQ+2*t}, {f2u(0.25*LOG2E)}, v{ST+2*t+3}')
            p(f'v_mfma_f32_16x16x16_bf16 {vr(SB+4*t,4)}, {vr(KB+2*t,2)}, {vr(QB+2*t,2)}, {vr(CB0 if t == 0 else CB,4)}')
        p(self.att_ones()); p(extra.get('b', []))
        for u in range(5):
            for j in (0, 2): p(f'v_pk_fma_f32 {vr(VA+4*u+j,2)}, {vr(VS+8*u+j,2)}, {vr(CSV,2)}, {vr(VA+4*u+j,2)} {lo}')
            for j in (0, 2): p(f'v_pk_mul_f32 {vr(VA+4*u+j,2)}, {vr(VA+4*u+j,2)}, {vr(VS+8*u+4+j,2)}')
            for j in range(2): p(f'v_cvt_pk_bf16_f32 v{VB+2*u+j}, v{VA+4*u+2*j}, v{VA+4*u+2*j+1}')
        for t in range(4):
            for j in range(4): p(f'v_max_f32 v{QA+4*t+j}, v{QA+4*t+j}, v{SB+4*t+j}')
        for t in range(4): p(f'v_max3_f32 v{T+t}, v{QA+4*t}, v{QA+4*t+1}, v{QA+4*t+2}')
        for t in range(4): p(f'v_max_f32 v{T+t}, v{T+t}, v{QA+4*t+3}')
        def reduce4(op, ex=None):
            p(f"""v_permlane16_swap_b32 v{T}, v{T+1}
v_permlane16_swap_b32 v{T+2}, v{T+3}
{op} v{T}, v{T}, v{T+1}
{op} v{T+2}, v{T+2}, v{T+3}
v_permlane32_swap_b32 v{T}, v{T+2}
{op} v{T}, v{T}, v{T+2}""")
            if ex: p(ex)
            p(f"""v_mov_b32 v{T+2}, v{T}
v_permlane32_swap_b32 v{T}, v{T+2}
v_mov_b32 v{T+1}, v{T}
v_mov_b32 v{T+3}, v{T+2}
v_permlane16_swap_b32 v{T}, v{T+1}
v_permlane16_swap_b32 v{T+2}, v{T+3}""")
        reduce4('v_max_f32')
        for t in range(4): p(f'v_mul_f32 v{CQ+2*t+1}, v{T+t}, v{CQ+2*t}')
        for t in range(4):
            for j in (0, 2): p(f'v_pk_fma_f32 {vr(QA+4*t+j,2)}, {vr(QA+4*t+j,2)}, {vr(CQ+2*t,2)}, {vr(CQ+2*t,2)} op_sel:[0,0,1] op_sel_hi:[1,0,1] neg_lo:[0,0,1] neg_hi:[0,0,1]')
        for t in range(4):
            for j in range(4): p(f'v_exp_f32 v{QA+4*t+j}, v{QA+4*t+j}')
        for t in range(4):
            p(f"""v_cvt_pk_bf16_f32 v{PP+4*t}, v{QA+4*t}, v{QA+4*t+1}
v_cvt_pk_bf16_f32 v{PP+4*t+1}, v{QA+4*t+2}, v{QA+4*t+3}
v_and_b32 v{PP+4*t+2}, v{MA}, v{PP+4*t}
v_and_b32 v{PP+4*t+3}, v{MA+1}, v{PP+4*t+1}
v_xor_b32 v{PP+4*t}, v{PP+4*t}, v{PP+4*t+2}
v_xor_b32 v{PP+4*t+1}, v{PP+4*t+1}, v{PP+4*t+3}""")
            if t: p(f'v_mfma_f32_16x16x32_bf16 {vr(SB+4*t-4,4)}, {vr(ONES,4)}, {vr(PP+4*t-4,4)}, 0')
            if t: p(f'v_mfma_f32_16x16x32_bf16 {vr(OA+4*t-4,4)}, {vr(VB+2*t-2,4)}, {vr(PP+4*t-4,4)}, 0')
        p(f'v_rcp_f32 v{SB}, v{SB}')
        p(f'v_mfma_f32_16x16x32_bf16 {vr(SB+12,4)}, {vr(ONES,4)}, {vr(PP+12,4)}, 0')
        p(f'v_mfma_f32_16x16x32_bf16 {vr(OA+12,4)}, {vr(VB+6,4)}, {vr(PP+12,4)}, 0')
        for t in range(4):
            if t: p(f'v_rcp_f32 v{SB+4*t}, v{SB+4*t}')
            if t:
                for j in range(4): p(f'v_mul_f32 v{OA+4*t-4+j}, v{SB+4*t-4}, v{OA+4*t-4+j}')
        for j in range(4): p(f'v_mul_f32 v{OA+12+j}, v{SB+12}, v{OA+12+j}')
        for tp in range(2):
            b = PP + 4*tp
            for h in range(2):
                t = 2*tp + h
                for j in range(2): p(f'v_cvt_pk_bf16_f32 v{b+2*h+j}, v{OA+4*t+2*j}, v{OA+4*t+2*j+1}')
        for tp in range(2):
            b = PP + 4*tp
            p(f'v_permlane16_swap_b32 v{b}, v{b+2}\nv_permlane16_swap_b32 v{b+1}, v{b+3}')
        alt, st = self.stores([f'buffer_store_dwordx4 {vr(PP,4)}, {vL16}, {SWS}, {sX} offen', f'buffer_store_dwordx4 {vr(PP+4,4)}, {vL16}, {SWS}, {sY} offen'])
        p(alt)
        return st
    def o_addr(self, L):
        if self.alias:
            return lines(f"""s_mul_i32 {sX}, {sG}, {2*114688}
s_lshl_b32 {sY}, {sCB}, 12
s_add_u32 {sX}, {sX}, {sY}
s_add_u32 {sX}, {sX}, {sW1K}
s_add_u32 {sX}, {sX}, {WS_H[L]}
s_add_u32 {sY}, {sX}, 114688""")
        return lines(f"""s_lshl_b32 {sX}, {sG}, 16
s_lshl_b32 {sY}, {sCB}, 12
s_add_u32 {sX}, {sX}, {sY}
s_add_u32 {sX}, {sX}, {sW1K}
s_add_u32 {sX}, {sX}, {WS_O[L]}
s_add_u32 {sY}, {sX}, 32768""")
    def x1_addr(self, L, d):
        return lines(f"""s_lshl_b32 {d}, {sRB}, 15
s_lshl_b32 s89, {sCB}, 12
s_add_u32 {d}, {d}, s89
s_and_b32 s89, {sW1K}, 2048
s_add_u32 {d}, {d}, s89
s_add_u32 {d}, {d}, {WS_X1[L]}""")
    def st_addr(self, base, d):
        return lines(f"""s_lshl_b32 {d}, {sRB}, 12
s_lshl_b32 s89, {sCB}, 9
s_add_u32 {d}, {d}, s89
s_lshr_b32 s89, {sW}, 1
s_lshl_b32 s89, s89, 8
s_add_u32 {d}, {d}, s89
s_add_u32 {d}, {d}, {base}""")
    def h_addr(self, L):
        return lines(f"""s_mul_i32 {sH0}, {sG16}, {4*114688}
s_lshl_b32 s88, {sM16}, 13
s_add_u32 {sH0}, {sH0}, s88
s_add_u32 {sH0}, {sH0}, {sW1K}
s_add_u32 {sH0}, {sH0}, {WS_H[L]}
s_cmp_lg_u32 {sIDLE}, 0
s_cselect_b32 {sH0}, 0x7fe00000, {sH0}""")
    def touches_p1(self, L, t):
        if not self.o_touch or (self.alias and L == 1 and not self.o.get('t1', True)): return self.o_addr(L)
        o = self.o_addr(L) + [f'v_and_b32 {t}, 7, {vL}', f'v_lshlrev_b32 {t}, 7, {t}', f'v_bfe_u32 v34, {vL}, 3, 1', f'v_mul_u32_u24 v34, {114688 if self.alias else 32768}, v34', f'v_add_u32 {t}, {t}, v34']
        o.append(self.touch(t, sX, 0xffff))
        o += self.x1_addr(L, 's88') + [f'v_lshlrev_b32 {t}, 7, {vL}']
        o.append(self.touch(t, 's88', 0xffff))
        o += self.st_addr(WS_ST1[L], 's88')
        o.append(self.touch(t, 's88', 3))
        if L == 0: o.append(self.touch(vFLp, 0))
        return o
    def touches_h(self, L, t):
        if not self.o_touch or (self.alias and L == 1 and not self.o.get('th1', True)): return []
        o = self.h_addr(L) + lines(f"""v_and_b32 {t}, 7, {vL}
v_lshlrev_b32 {t}, 7, {t}
v_bfe_u32 v34, {vL}, 3, 1
v_lshl_add_u32 {t}, v34, 12, {t}
v_lshrrev_b32 v34, 4, {vL}
v_mul_u32_u24 v34, 114688, v34
v_add_u32 {t}, {t}, v34""")
        o.append(self.touch(t, sH0))
        return o
    def touches_x2(self, t):
        if not self.o_touch: return []
        if self.alias:
            if not self.o.get('tx2', True): return []
            o = self.x1_addr(0, 's88') + [f'v_lshlrev_b32 {t}, 7, {vL}', self.touch(t, 's88', 0xffff)]
            return o + self.st_addr(WS_ST2, 's88') + [self.touch(t, 's88', 3)]
        o = [f's_add_u32 s88, {sROW}, {WS_X2}', self.touch(vRM, 's88', 0xffffffff)]
        o += self.st_addr(WS_ST2, 's88') + [f'v_lshlrev_b32 {t}, 7, {vL}', self.touch(t, 's88', 3)]
        return o

    def p1_wreads(self, s, dq, dk, dv):
        slot = (s + self.w1off) % 7
        va, off = (vW1r0, slot*12288) if slot < 4 else (vW1r1, slot*12288 - 49152)
        lo = L_R1 + slot*12288
        return [Ins(f'ds_read_b64_tr_b16 {vr(dst+2*rd,2)}, {va} offset:{off + part*1024 + rd*512}', lds=[(lo + q*3072 + part*1024, lo + q*3072 + part*1024 + 1024) for q in range(4)])
                for part, dst in ((0, dq), (1, dk), (2, dv)) for rd in range(2)]
    def p1_aread(self, s, t, dst):
        o = (s >> 1)*8192 + t*2048
        return Ins(f'ds_read_b128 {vr(dst,4)}, {vA1r1 if s & 1 else vA1r0} offset:{o}', lds=(o, o+2048))
    def halo_addr(self, a, b):
        return lines(f"""v_and_b32 {a}, 1023, {vA1r0}
v_not_b32 {b}, {vL}
v_and_b32 {b}, 8, {b}
v_lshlrev_b32 {b}, 3, {b}
v_xor_b32 {a}, {a}, {b}
v_add_u32 {a}, {L_A1H}, {a}
v_xor_b32 {b}, 64, {a}""")
    def halo_read(self, s, dst, a, b):
        o = (s >> 1)*1024
        return Ins(f'ds_read_b128 {vr(dst,4)}, {b if s & 1 else a} offset:{o}', lds=(L_A1H + o, L_A1H + o + 1024))
    W2AT = {9: [1, 2, 3], 10: [4, 5, 6], 11: [7, 8, 9], 12: [10, 11, 12], 13: [13, 14, 15], 15: [0]}

    def edf(self, S, items, sigma, name, stream='dma', lead=2):
        t = float(min(x['e'] for x in items)); left = list(items); plan = []
        while left:
            seen = set(); el = []
            for x in left:
                c = x.get('chain')
                if c in seen: continue
                if c is not None: seen.add(c)
                if x['e'] <= t: el.append(x)
            if not el: t = float(min(x['e'] for x in left if x['e'] > t)); continue
            x = min(el, key=lambda y: y['need'])
            gq = x['make']()
            x['t'] = t; x['n'] = len(gq); plan.append(x); left.remove(x)
            for j, y in enumerate(gq):
                tt = min(int(t + sigma*j), len(S.spine) - 1)
                if len(y) > 1: S.add(stream, [y[:-1]], e=max(tt - lead, 0), d=tt, split=True, step=0)
                S.add(stream, [y[-1:]], e=tt, d=tt, step=0)
            t += sigma*len(gq)
        print(f'   edf {name}: min slack', sorted(round(x['need'] - x['t'] - sigma*(x['n']-1), 1) for x in plan)[:5], 'end', round(t, 1))
    def split_dma(self, g):
        out = []; cur = []
        for i in g:
            cur.append(i)
            if i.kind in ('dma', 'vmld'): out.append(cur); cur = []
        assert not cur
        return out

    def p1_first(self):
        p = self.p
        QA, KA, VA, AF, ONE, WB, SA = 40, 56, 76, 96, 120, 224, 152
        wtok = {}; atok = {}
        def A(kc):
            o, tk = self.a1_chunk(0, kc); atok[kc] = tk; return self.split_dma(o)
        def W(s):
            o, tk = self.w1_stage(s, seq=True); wtok[s] = tk; return self.split_dma(o[0])
        p(A(0))
        hd, htok = self.halo_dma(0, 'v124'); p(hd)
        p(W(0)); p(W(1)); p(A(1))
        self.prologue_b()
        for i2 in range(2): p(f'buffer_load_dwordx4 {vr(RES+4*i2,4)}, {vRM}, {SX}, {sROW} offen offset:{32*i2}')
        p(self.halo_addr('v124', 'v125'))
        p(f'v_add_u32 v126, {sW2K}, {vA1r0}\nv_xor_b32 v127, 64, v126')
        for b_ in (ONE, AF + 16, 172, 180):
            for i in range(4): p(f'v_mov_b32 v{b_+i}, 0x3f803f80')
        hm = lambda x: ['s_mov_b64 exec, s[32:33]', x, 's_mov_b64 exec, -1']
        p(W(2)); p(W(3))
        self.ts('p1_go0')
        plan = {0: ['A2', 'W4'], 1: ['A3', 'W5'], 2: ['A4', 'W6'], 3: ['A5', 'W7'], 4: ['A6', 'W8'], 5: ['A7', 'W9'], 6: ['W10', 'W11'], 7: ['W12', 'W13'], 8: ['W14', 'W15']}
        wb = lambda s: WB + 12*(s & 1)
        one = vr(ONE, 4)
        p(WaitTok(wtok[0] + atok[0] + htok)); p('s_barrier')
        self.ts('a1_landed')
        wr = self.p1_wreads(0, wb(0), wb(0)+4, wb(0)+8); p(wr)
        p(hm(self.halo_read(0, AF+16, 'v124', 'v125')))
        for t in range(4): p(self.p1_aread(0, t, AF + 4*t))
        spine = []; base = []
        for s in range(16):
            base.append(len(spine))
            z = (s == 0)
            wq, wk, wv = vr(wb(s), 4), vr(wb(s)+4, 4), vr(wb(s)+8, 4)
            mm = lambda d, x, y, zz=z: f'v_mfma_f32_16x16x32_bf16 {vr(d,4)}, {x}, {y}, {0 if zz else vr(d,4)}'
            h = vr(AF + 16, 4)
            spine += [mm(CSQ, wq, one), mm(KA, wk, h), mm(VA, h, wv)]
            for t in range(4):
                a = vr(AF + 4*t, 4)
                spine += [mm(QA + 4*t, wq, a), mm(KA + 4 + 4*t, wk, a), mm(VA + 4 + 4*t, a, wv)]
            kc = s - 2
            if 0 <= kc < 8:
                for hh in range(2):
                    fa, fh = vr(168 + 8*hh, 4), vr(172 + 8*hh, 4); zz = (kc == 0 and hh == 0)
                    spine += [mm(SA, one, fa, zz), mm(SA+4, fa, fa, zz), mm(SA+12, fh, fh, zz)]
        base.append(len(spine))
        S = Sched(spine)
        w2tok = []
        items = []
        B2 = self.o.get('b20', True)
        ev = (lambda x: x & ~1) if B2 else (lambda x: x)
        nx = (lambda x: (x + 1) & ~1) if B2 else (lambda x: x)
        for kc in range(2, 8): items.append(dict(e=1, need=min(base[ev(2*kc - 1)], base[ev(kc + 2)]), chain='A', make=lambda kc=kc: A(kc)))
        for s in range(4, 16): items.append(dict(e=base[nx(s-7)] + 1 if s >= 7 else 1, need=base[ev(s-1)], chain='W', make=lambda s=s: W(s)))
        def w2mk(i):
            x = self.w2_piece(i); w2tok.append(last(x)); return [x]
        for s, lst in self.W2AT.items():
            for i in lst: items.append(dict(e=base[min(15, nx(s))] + 1, need=base[16] + 40, chain='W2', make=lambda i=i: w2mk(i)))
        for q, s in ((0, 11), (1, 12)): items.append(dict(e=base[nx(s)] + 1, need=base[16] + 30 + q, chain='W3', make=lambda q=q: self.w3_quad(q, 16384 + 16384*q)))
        self.edf(S, items, self.o.get('sg10', 3.2), 'p1 L0')
        tabw = [Ins(f'ds_write2_b32 v169, v{SA}, v{SA+4} offset0:16 offset1:96', lds=(L_NM, L_NM+640)), Ins(f'ds_write2_b32 v168, v{SA+8}, v{SA+12} offset0:0 offset1:80', lds=(L_NM, L_NM+640))]
        ard = None
        for s in range(16):
            b, nb = base[s], base[s+1]
            S.before[b] = self.fts('p10', f'k{s}')
            if ard:
                S.before[b] += [WaitTok(wr + ard[:1])]; S.before[b + 3] = [WaitTok(ard[1:3])]; S.before[b + 9] = [WaitTok(ard[3:])]
            kc = s - 2
            if not B2 or s % 2 == 0 or s == 15:
                toks = list(wr)
                for u in ((s + 1, s + 2) if B2 else (s + 1,)):
                    if u < 16: toks += wtok[u] + atok[u >> 1]
                for u in ((kc, kc + 1) if B2 else (kc,)):
                    if 0 <= u < 8: toks += atok[u]
                if s == (4 if B2 else 3): toks += self.clr
                if s == 15: toks += tabw
                S.at(b, [WaitTok(toks), 's_barrier'])
            if 0 <= kc < 8:
                x = []; tk = []
                for hh in range(2):
                    r1 = Ins(f'ds_read_b128 {vr(168+8*hh,4)}, {"v127" if hh else "v126"} offset:{kc*8192}', lds=(kc*8192, kc*8192 + 8192))
                    r2 = self.halo_read(2*kc + hh, 172 + 8*hh, 'v124', 'v125')
                    x += [r1, hm(r2)]; tk += [r1, r2]
                S.add('sr', x, e=b+1, d=b+11)
                S.before[b + 15] = [WaitTok(tk)]
            if s < 15:
                wr = self.p1_wreads(s+1, wb(s+1), wb(s+1)+4, wb(s+1)+8)
                S.add('wr', wr, e=b+1, d=nb-5, step=1)
                ard = [self.halo_read(s+1, AF+16, 'v124', 'v125')] + [self.p1_aread(s+1, t, AF + 4*t) for t in range(4)]
                S.add('ar', [hm(ard[0])], e=b+3, d=nb-4)
                for t in range(4): S.add('ar', [ard[t+1]], e=b+6+3*t, d=nb+(-3, -1, 3, 4)[t], step=0)
        x = lines(f"""v_and_b32 v168, 3, {vL}
v_cmp_eq_u32 vcc, 1, v168
v_cmp_eq_u32 s[88:89], 2, v168
v_cmp_eq_u32 s[90:91], 3, v168""")
        x += [f'v_mov_b32 v{SA+8}, v{SA+12}', f'v_mov_b32 v{SA+9}, v{SA+12}', f'v_permlane32_swap_b32 v{SA+8}, v{SA+9}']
        for bb in (SA+4, SA+12):
            x += [f'v_cndmask_b32 v{bb}, v{bb}, v{bb+1}, vcc', f'v_cndmask_b32 v{bb}, v{bb}, v{bb+2}, s[88:89]', f'v_cndmask_b32 v{bb}, v{bb}, v{bb+3}, s[90:91]']
        x += self.stats_final(f'v{SA}', f'v{SA+4}', f'v{SA+1}') + self.stats_final(f'v{SA+8}', f'v{SA+12}', f'v{SA+9}')
        x += lines(f"""v_and_b32 v168, 15, {vL}
v_lshlrev_b32 v168, 2, v168
v_add_u32 v168, {L_NM}, v168
s_lshl_b32 s88, {sW}, 6
v_add_u32 v169, s88, v168""")
        x.append(['s_mov_b32 exec_lo, 0x00f0000f', 's_mov_b32 exec_hi, 0xf0000f00'] + tabw + ['s_mov_b64 exec, -1'])
        wt = self.o.get('wat', 0)
        S.add('misc', self.warm_touch('v196') + [[f's_cmp_lg_u32 {sIDLE}, 0', 's_cselect_b32 s18, 0, s18']], e=base[wt]+1, d=base[wt+1]-1)
        S.add('misc', self.att_masks(184), e=base[1]+1, d=base[3]-1)
        S.add('misc', self.publish_xcc(), e=base[4 if B2 else 3]+1, d=base[5 if B2 else 4])
        S.add('misc', self.touches_p1(0, 'v196'), e=base[6], d=base[9])
        S.add('misc', self.mode_issue('v197', 198), e=base[9], d=base[10]+1)
        S.add('misc', [f'v_add_u32 {vW3q[i]}, {i*(57344-1024)}, {vW3d}' for i in range(1, 4)], e=base[10], d=base[11] - 3)
        if self.o.get('ct2', False): S.add('misc', [self.code_touch()], e=base[10], d=base[11])
        S.add('misc', x, e=base[10]+2, d=base[14])
        th0 = self.touches_h(0, 'v200') if not self.o.get('th3', 1) & 1 else []; thi0 = th0[-1:]
        self.th0 = thi0
        S.add('misc', th0[:-1] + (thi0 if self.o.get('tha', 0) == 1 else []), e=base[12], d=base[13])
        S.add('misc', self.p2_setup(0), e=base[13], d=base[14])
        S.add('misc', [self.mode_check('v197', 198)], e=base[14], d=base[15]-1)
        S.add('misc', self.att_tabreads(), e=base[15]+1, d=base[16]-2)
        self.win(S, '10')
        S.emit(p, 'p1 L0')
        self.ts('p1_loop0')
        for j in range(4): p(f'v_mov_b32_dpp v{CSK+j}, v{KA+j} row_newbcast:0 row_mask:0xf bank_mask:0xf')
        p(f'v_mov_b32 v{CSV}, v{VA}\nv_mov_b32 v33, v{VA}\nv_permlane32_swap_b32 v{CSV}, v33')
        p('s_waitcnt lgkmcnt(0)'); p('s_barrier')
        nq = self.o.get('nqa', 2); tha = self.o.get('tha', 0)
        if nq >= 1: p(self.w3_quad(2, 49152))
        if tha == 0 and not self.o.get('th3', 1) & 1: p(thi0)
        st = self.attention(0, {'a': self.w3_quad(3, 65536) if nq >= 2 else []})
        self.nq1 = 2 + nq
        self.ts('p1_attn0')
        self.post_flag(1, st)
        self.ts('p1_end0')
        return w2tok

    def p1_second(self, pre):
        p = self.p
        QA, KA, VA, AF, WQ, WK, WV = 40, 56, 76, 96, 112, 128, 192
        wtok = dict(pre); atok = {}
        def A(kc):
            o, tk = self.a1_chunk(1, kc); atok[kc] = tk; return self.split_dma(o)
        p('v_mov_b32 v120, v127')
        dst = lambda s: (WQ + 4*(s & 1), WK + 4*s, WV + 4*s)
        p(WaitTok(wtok[0])); p('s_barrier')
        wr = self.p1_wreads(0, *dst(0)); p(wr)
        self.poll(5, sMK1)
        self.ts('p1_go1')
        p(A(0)); p(A(1))
        p(self.stats_issue(WS_ST2, 's92', 240))
        p(A(2))
        p(WaitTok(atok[0])); p('s_barrier')
        for t in range(4): p(self.p1_aread(0, t, AF + 4*t))
        self.ts('p1_stats1')
        spine = []
        for s in range(16):
            z = (s == 0)
            dq, dk, dv = dst(s)
            mm = lambda d, x, y: f'v_mfma_f32_16x16x32_bf16 {vr(d,4)}, {x}, {y}, {0 if z else vr(d,4)}'
            for t in range(4):
                a = vr(AF + 4*t, 4)
                spine += [mm(QA + 4*t, vr(dq,4), a), mm(KA + 4 + 4*t, vr(dk,4), a), mm(VA + 4 + 4*t, a, vr(dv,4))]
        hb = len(spine)
        for s in range(16):
            a = vr(AF + 4*(s & 3), 4); k, v = vr(KA, 4), vr(VA, 4)
            spine.append(f'v_mfma_f32_16x16x32_bf16 {k}, {vr(WK+4*s,4)}, {a}, {0 if s == 0 else k}')
            spine.append(f'v_mfma_f32_16x16x32_bf16 {v}, {a}, {vr(WV+4*s,4)}, {0 if s == 0 else v}')
        S = Sched(spine)
        w2tok = []
        hd, htok = self.halo_dma(1, 'v120')
        items = []
        def W(s):
            o, tk = self.w1_stage(s, seq=True); wtok[s] = tk; return self.split_dma(o[0])
        B2 = self.o.get('b2', True)
        ev = (lambda x: x & ~1) if B2 else (lambda x: x)
        nx = (lambda x: (x + 1) & ~1) if B2 else (lambda x: x)
        for kc in range(3, 8): items.append(dict(e=0, need=12*ev(2*kc - 1), chain='A', make=lambda kc=kc: A(kc)))
        for s in range(16):
            if s not in wtok: items.append(dict(e=12*nx(s - 7) + 1 if s >= 7 else 0, need=12*ev(s - 1), chain='W', make=lambda s=s: W(s)))
        items.append(dict(e=12*self.o.get('hat', 9), need=12*11, make=lambda: self.split_dma(hd)))
        self.edf(S, items, self.o.get('sg11', 2.7), 'p1 L1', lead=3)
        w2pre, w2, w2tok = self.w2_quads(['v36', 'v37', 'v10', 'v121'])
        NW2 = self.o.get('nw2h', 12)
        S.add('dma', w2[:NW2], e=12*15+1, d=hb+30, split=True)
        tabw = [Ins('ds_write2_b32 v125, v240, v241 offset0:16 offset1:96', lds=(L_NM, L_NM+640)), Ins('ds_write_b32 v126, v125', lds=[(L_NM, L_NM+64), (L_RS, L_RS+64)])]
        ard = None
        for s in range(16):
            b = 12*s
            S.before[b] = self.fts('p11', f'k{s}')
            if ard:
                S.before[b] += [WaitTok(wr + ard[:2])]; S.before[b + 6] = [WaitTok(ard[2:])]
            if not B2 or s % 2 == 0 or s == 15:
                toks = list(wr)
                for u in ((s + 1, s + 2) if B2 else (s + 1,)):
                    if u < 16: toks += wtok[u] + atok[u >> 1]
                if s == 15: toks += tabw + htok
                S.at(b, [WaitTok(toks), 's_barrier'])
            if s < 15:
                wr = self.p1_wreads(s+1, *dst(s+1))
                S.add('wr', wr, e=b+1, d=b+9, step=1)
                ard = [self.p1_aread(s+1, t, AF + 4*t) for t in range(4)]
                for t in range(4): S.add('ar', [ard[t]], e=b+3+3*t, d=b+(7, 9, 13, 14)[t], step=0)
        S.before[hb] = self.cap(lambda: self.ts('p1_loop1'))
        for s in range(16):
            e = 12*15 + 3 + 3*s if s < 4 else hb + 2*(s-4) + 2
            S.add('ar', [self.halo_read(s, AF + 4*(s & 3), 'v122', 'v123')], e=e, d=max(e, hb + 2*s - 4))
        lh = self.lab('hs')
        S.add('misc', [Raw(f"""s_bitcmp1_b32 {sW}, 0
s_cbranch_scc0 {lh}
s_lshl_b32 s88, {sG}, 14
s_add_u32 s88, s88, {WS_HB - 56*2048}
s_mov_b32 exec_lo, 0xff000000
s_mov_b32 exec_hi, 0xff000000
buffer_store_dwordx4 {vr(RES,4)}, {vRM}, {SWS}, s88 offen sc1
buffer_store_dwordx4 {vr(RES+4,4)}, {vRM}, {SWS}, s88 offen offset:32 sc1
s_mov_b64 exec, -1
{lh}:""", rd=[vr(RES, 8)], wr=['s88'], states=2)], e=10, d=11)
        x = self.stats_reduce(240) + self.stats_final('v240', 'v241', 'v242') + lines(f"""v_and_b32 v124, 15, {vL}
v_lshlrev_b32 v124, 3, v124
v_bfe_u32 v125, {vL}, 4, 1
v_lshl_add_u32 v124, v125, 2, v124
s_and_b32 s88, {sW}, 1
s_lshl_b32 s88, s88, 7
s_add_u32 s88, s88, {L_NM}
v_add_u32 v125, s88, v124""")
        x.append(tabw[0])
        lh = self.lab('ht')
        x.append(Raw(f"""s_lshl_b32 s88, {sCB}, 2
s_add_u32 s88, s88, {sW}
s_cmp_lg_u32 s88, 1
s_cbranch_scc1 {lh}
s_lshl_b32 s88, {sG}, 7
s_add_u32 s88, s88, {WS_HS - 96}
s_mov_b32 exec_lo, 0xf000f000
s_mov_b32 exec_hi, 0
buffer_store_dword v240, v124, {SWS}, s88 offen sc1
buffer_store_dword v241, v124, {SWS}, s88 offen offset:32 sc1
s_mov_b64 exec, -1
{lh}:""", rd=['v240', 'v241', 'v124'], wr=['s88'], states=2))
        S.add('misc', x, e=12, d=12*5, step=0.8)
        S.add('misc', self.touches_p1(1, 'v121') + ([self.code_touch()] if self.o.get('ct2', False) else []), e=12*9, d=12*10 - 1)
        S.add('misc', [f's_lshl_b32 s88, {sPG}, 7', f's_add_u32 s94, s88, {WS_HS}', [f's_cmp_eq_u32 {sHASP}, 0', 's_cselect_b32 s94, 0x7ff00000, s94'], f'v_and_b32 v124, 15, {vL}', 'v_lshlrev_b32 v124, 2, v124',
                       f'buffer_load_dword v125, v124, {SWS}, s94 offen sc1', f's_add_u32 s88, {sW2K}, {L_A1H}', f'v_add_u32 v121, s88, {vL16}'], e=12*10, d=12*12, step=1)
        S.add('misc', lines(f"""v_and_b32 v126, 7, {vL}
v_lshlrev_b32 v126, 2, v126
v_bfe_u32 v127, {vL}, 3, 1
v_mul_u32_u24 v127, 320, v127
v_add_u32 v126, v126, v127
v_bfe_u32 v127, {vL}, 4, 1
v_lshl_add_u32 v126, v127, 5, v126
v_add_u32 v126, {L_NM}, v126"""), e=12*11, d=12*14, step=1)
        r = [Ins(f'ds_read_b32 v{122+u}, v121 offset:{u*1024}', lds=(L_A1H, L_A1H + 8192), private=True) for u in range(2)]
        for d in htok: d.private = True
        hd2, _ = self.halo_dma(1, 'v120', 's90')
        S.add('misc', [[WaitTok(htok)] + r], e=12*14, d=12*14+1)
        S.add('misc', [self.spin('s_mov_b32 s93, m0\n' + '\n'.join(i.text for i in hd2) + '\ns_mov_b32 m0, s93', 'v_max_u32 v122, v122, v123\nv_cmp_eq_u32 vcc, -1, v122', 'exec',
                                 pre='ds_read_b32 v122, v121\nds_read_b32 v123, v121 offset:1024\ns_waitcnt lgkmcnt(0)')], e=12*14+5, d=12*14+5)
        S.add('misc', [self.spin(f'buffer_load_dword v125, v124, {SWS}, s94 offen sc1', 'v_cmp_eq_u32 vcc, -1, v125', 'exec'), tabw[1]], e=12*14+7, d=12*14+10)
        S.add('misc', self.halo_addr('v122', 'v123') + w2pre, e=12*14+8, d=12*15)
        th = self.touches_h(1, 'v120') if not self.o.get('th3', 1) & 2 else []; thi = th[-1:]
        S.add('misc', self.p2_setup(1, rot=False) + th[:-1], e=12*15+2, d=hb+7)
        S.add('misc', self.att_masks(192), e=hb+8, d=hb+29)
        tr = self.att_tabreads()
        S.add('tab', tr[:5], e=hb+20, d=hb+30); S.add('tab', tr[5:], e=hb+31)
        self.win(S, '11')
        S.emit(p, 'p1 L1')
        self.ts('p1_halo1')
        st = self.attention(1, {'a': w2[NW2:], 'b': thi})
        self.ts('p1_attn1')
        self.post_flag(6, st)
        self.ts('p1_end1')
        return w2tok

    def epi_pre(self):
        o = [f'v_add_u32 v122, {sW4K}, {vL16}', 'v_xor_b32 v123, 8192, v122']
        o += lines(f"""v_and_b32 v240, 31, {vL}
v_lshlrev_b32 v240, 3, v240
v_lshrrev_b32 v241, 5, {vL}
v_lshl_add_u32 v240, v241, 2, v240""")
        return o
    def tile_spine(self, n):
        D = self.o.get('dsk', 5)
        sp = sum((self.tile_mfmas(k, k == 0) for k in range(n - D)), [])
        tail = [self.tile_mfmas(k, False) for k in range(n - D, n)]
        return sp + [t[0] for t in tail] + [t[1] for t in tail]
    def xwrites(self):
        rng = lambda q: [(L_XB + w*4096 + q*1024, L_XB + w*4096 + q*1024 + 1024) for w in range(4)]
        return [Ins(f'ds_write_b128 v122, {vr(104+4*q,4)} offset:{L_XB + q*1024}', lds=rng(q)) for q in range(4)]
    def tile_epilogue(self, kind, L):
        p = self.p
        OWN, X = 40, 56
        for q in range(4):
            for i in (4*q, 4*q+2): p(f'v_pk_add_f32 {vr(OWN+i,2)}, {vr(OWN+i,2)}, {vr(X+i,2)}')
            for i in (2*q, 2*q+1): p(f'v_cvt_pk_bf16_f32 v{RES+i}, v{OWN+2*i}, v{OWN+2*i+1}')
        if kind == 'out':
            p(f'buffer_store_dwordx4 {vr(RES,4)}, {vRM}, {SOUT}, {sROW} offen')
            p(f'buffer_store_dwordx4 {vr(RES+4,4)}, {vRM}, {SOUT}, {sROW} offen offset:32')
            return None
        if kind == 'x1': alt, st = self.stores([f'buffer_store_dwordx4 {vr(RES,4)}, {vL16}, {SWS}, {sX} offen', f'buffer_store_dwordx4 {vr(RES+4,4)}, {vL16}, {SWS}, {sX} offen offset:1024'])
        else:
            va = 'v242' if self.alias else vRM
            alt, st = self.stores([f'buffer_store_dwordx4 {vr(RES,4)}, {va}, {SWS}, {sX} offen', f'buffer_store_dwordx4 {vr(RES+4,4)}, {va}, {SWS}, {sX} offen offset:32'])
        p(alt)
        p(f'v_pk_add_f32 v[88:89], {vr(OWN,2)}, {vr(OWN+2,2)}\nv_pk_mul_f32 v[90:91], {vr(OWN,2)}, {vr(OWN,2)}\nv_pk_fma_f32 v[90:91], {vr(OWN+2,2)}, {vr(OWN+2,2)}, v[90:91]')
        for i in range(4, 16, 2):
            p(f'v_pk_add_f32 v[88:89], v[88:89], {vr(OWN+i,2)}\nv_pk_fma_f32 v[90:91], {vr(OWN+i,2)}, {vr(OWN+i,2)}, v[90:91]')
        p("""v_add_f32 v88, v88, v89
v_add_f32 v90, v90, v91
v_permlane32_swap_b32 v88, v90
v_add_f32 v88, v88, v90""")
        alt2, st2 = self.stores([f'buffer_store_dword v88, v240, {SWS}, {sY} offen'])
        p(alt2)
        return st + st2
    ARING = [128 + 4*i for i in range(16)] + [224, 228, 232, 236, 248, 252]
    WPRE = [128 + 4*i for i in range(16)] + [212, 216, 220, 224, 228, 232, 236, 248]
    big = False
    def wregs(self, k):
        if self.big and k < 4*self.NWP: return self.WPRE[2*k], self.WPRE[2*k+1]
        r = 72 + 8*((k + 2) % 4)
        return r, r + 4
    def areg(self, k):
        if self.big: return ar(4*k if k < 28 else 128 + 4*(k - 28), 4)
        return vr(self.ARING[k % 22], 4)
    def wfrag_reads(self, k, base, va, vb, lo):
        own, oth = self.wregs(k)
        return [Ins(f'ds_read_b64_tr_b16 {vr(r+2*rd,2)}, {ad} offset:{base + rd*512}', lds=lo) for r, ad in ((oth, vb), (own, va)) for rd in range(2)]
    def tile_mfmas(self, k, z):
        own, oth = self.wregs(k); a = self.areg(k)
        return [f'v_mfma_f32_32x32x16_bf16 {vr(104,16)}, {vr(oth,4)}, {a}, {0 if z else vr(104,16)}',
                f'v_mfma_f32_32x32x16_bf16 {vr(40,16)}, {vr(own,4)}, {a}, {vr(40,16)}']
    def res_unpack(self):
        return sum(([f'v_lshlrev_b32 v{40+2*i}, 16, v{RES+i}', f'v_and_b32 v{41+2*i}, 0xffff0000, v{RES+i}'] for i in range(8)), [])
    def tile_pos(self, n):
        D = self.o.get('dsk', 5)
        return [(2*k, 2*k + 1) if k < n - D else (2*(n - D) + (k - (n - D)), 2*(n - D) + D + (k - (n - D))) for k in range(n)]
    def add_wreads(self, S, B, n, k0, rd, gate=None, note=None):
        pos = self.tile_pos(n)
        for m in range(k0, n):
            r = rd(m)
            if note: note(m, r)
            if pos[m][1] == pos[m][0] + 1: S.before[B + pos[m][0]] = S.before.get(B + pos[m][0], []) + [WaitTok(r)]
            for h in range(2):
                e = pos[m-4][h] + 1 if m >= 4 else 0
                e = max(e, pos[m][h] - 8, gate(m) if gate else 0)
                S.add('wr%d' % h, r[2*h:2*h+2], e=B + e, d=B + max(e, min(pos[m][h] - 3, pos[m][0] - 2 if pos[m][1] == pos[m][0] + 1 else 999)), step=0.5)
    def add_exchange(self, S, B, n):
        D = self.o.get('dsk', 5)
        rng = lambda q: [(L_XB + w*4096 + q*1024, L_XB + w*4096 + q*1024 + 1024) for w in range(4)]
        ws = self.xwrites(); last_oth = B + 2*n - D - 1
        S.add('xw', ws, e=last_oth + 2, d=last_oth + 5, step=0.9)
        rs = [Ins(f'ds_read_b128 {vr(56+4*q,4)}, v123 offset:{L_XB + q*1024}', lds=rng(q)) for q in range(4)]
        at = min(last_oth + 6, B + 2*n - 1)
        S.add('xw', [[WaitTok(ws), 's_barrier']] + rs, e=at, d=B + 2*n - 1, step=0)

    def p2_setup(self, L, rot=True):
        o = lines(f"""s_lshr_b32 s88, {sW}, 1
s_lshl_b32 s89, s88, 15
s_add_u32 s89, s89, {L_W2}
v_add_u32 v126, s89, {vWown}
v_add_u32 v127, s89, {vWoth}
s_lshl_b32 s88, s88, 14
s_mul_i32 s89, {sRB}, {114688 if self.alias else 32768}
s_add_u32 s89, s89, s88
s_add_u32 s89, s89, {WS_H[L] if self.alias else WS_O[L]}""")
        if not rot: return o + [f's_add_u32 {sA2[q]}, s89, {q*4096}' for q in range(4)]
        for q in range(4): o += lines(f's_xor_b32 {sA2[q]}, {sRG}, {q}\ns_lshl_b32 {sA2[q]}, {sA2[q]}, 12\ns_add_u32 {sA2[q]}, {sA2[q]}, s89')
        return o
    def p3_setup(self, L):
        return self.w4_setup() + lines(f"""v_add_u32 v124, 65536, {vL16}
v_and_b32 v125, 31, {vL}
v_lshlrev_b32 v125, 4, v125
v_add_u32 v125, {L_T3}, v125
v_lshlrev_b32 v206, 3, {vL}
s_lshl_b32 s88, {sW}, 9
s_add_u32 s88, s88, {L_CS3}
v_add_u32 v206, s88, v206
s_lshl_b32 s92, {sG16}, 2
s_add_u32 s92, s92, {sW}
s_lshl_b32 s92, s92, 12""") + self.h_addr(L)
    def p1_setup(self):
        if self.alias:
            return lines(f"""s_lshl_b32 {sX}, {sG}, 16
s_add_u32 {sX}, {sX}, {WS_X1[0]}
s_lshl_b32 {sA1}, {sW}, 14
s_add_u32 {sA1}, {sA1}, {sX}
s_lshl_b32 {sHB}, {sPG}, 14
s_add_u32 {sHB}, {sHB}, {WS_HB}
s_cmp_eq_u32 {sHASP}, 0
s_cselect_b32 {sHB}, {sX}, {sHB}
s_lshl_b32 s92, {sRB}, 12
v_xor_b32 v127, 64, {vA1e}
v_lshrrev_b32 v242, 11, {vA1e}
v_and_b32 {vA1e}, 127, {vA1e}
v_lshl_add_u32 {vA1e}, v242, 10, {vA1e}
v_xor_b32 {vA1o}, 64, {vA1e}
v_add_u32 {vA1o}, {8192 - 1024}, {vA1o}
v_lshrrev_b32 v242, 11, {vRM}
v_and_b32 v243, 1023, {vRM}
v_lshl_add_u32 v242, v242, 10, v243""")
        return lines(f"""s_add_u32 {sA1}, {sA1}, {WS_X2}
s_lshl_b32 {sHB}, {sPG}, 14
s_add_u32 {sHB}, {sHB}, {WS_HB}
s_add_u32 s88, {sROW}, {WS_X2}
s_cmp_eq_u32 {sHASP}, 0
s_cselect_b32 {sHB}, s88, {sHB}
s_lshl_b32 s92, {sRB}, 12
v_xor_b32 v127, 64, {vA1e}""")
    def p2(self, L, w2tok):
        p = self.p
        p(WaitTok(w2tok + sum(self.w3tok.values(), []))); p('s_barrier')
        rd = lambda k: self.wfrag_reads(k, k*2048, 'v126', 'v127', [(L_W2 + h*32768 + k*2048, L_W2 + h*32768 + k*2048 + 2048) for h in range(2)])
        for k in range(3): p(rd(k))
        p(self.res_unpack())
        if L == 0:
            p(self.w3_setup()); p(self.w3_sel())
            rs = self.w3_take(list(range(4*self.nq1)))
            p(WaitTok(rs)); p('s_barrier')
        self.poll(1 + 5*L, sMK2)
        self.ts(f'p2_go{L}')
        al = [f'buffer_load_dwordx4 {vr(128+4*k,4)}, {vL16}, {SWS}, {sA2[k >> 2]} offen offset:{(k%4)*1024} sc1' for k in range(16)]
        NP = 10
        p(al[:NP])
        S = Sched(self.tile_spine(16))
        self.add_exchange(S, 0, 16)
        S.add('a', al[NP:], e=0, d=12, step=1, split=True)
        self.add_wreads(S, 0, 16, 3, rd)
        if L == 0:
            nq2 = min(7, self.nq1 + 4)
            self.nq2 = nq2
            S.add('dma', sum((self.w3_quad(q, 16384*(q - self.nq1 + 1)) for q in range(self.nq1, nq2)), []), e=8, d=31, step=self.o.get('q2s', 1.9) if nq2 - self.nq1 == 3 else 1.4, split=True)
            if self.o.get('tha', 0) == 2: S.add('misc', self.th0, e=26, d=30)
        S.add('misc', self.p3_setup(L) + self.x1_addr(L, sX) + self.st_addr(WS_ST1[L], sY) + self.epi_pre(), e=2, d=22)
        self.win(S, f'2{L}')
        S.emit(p, f'p2 L{L}')
        self.ts(f'p2_mm{L}')
        st = self.tile_epilogue('x1', L)
        self.ts(f'p2_epi{L}')
        if L == 0:
            p(self.w3_quad(7, 98304))
        self.post_flag(2 + 5*L, st)
        self.ts(f'p2_end{L}')

    def p3(self, L):
        p = self.p
        ACC, AF, CS, TK, HO, SR = 40, 72, 120, 240, 192, 224
        lskip = self.lab('p3skip')
        w4 = {}
        self.layer = L
        self.w1off = 2
        if L == 0:
            assert self.nq2 == 7
            p(WaitTok(sum((self.w3tok[q] for q in range(self.nq1, 7)), []))); p('s_barrier')
            self.w3_take(list(range(4*self.nq1, 28)))
        p('s_waitcnt lgkmcnt(0)'); p('s_barrier')
        p(f's_cmp_lg_u32 {sIDLE}, 0\ns_cbranch_scc1 {lskip}')
        self.poll(2 + 5*L, 'exec')
        self.ts(f'p3_go{L}')
        atok = {}
        def adma(rb, s, area=None):
            o = (rb if area is None else area)*32768 + s*16384
            d = [Ins(f'buffer_load_dwordx4 {vL16}, {SWS}, {sT} offen offset:{u*1024} sc1 lds', lds=[(o + q*4096 + u*1024, o + q*4096 + u*1024 + 1024) for q in range(4)]) for u in range(4)]
            atok[(rb, s, area)] = d
            return self.split_dma([Ins(f's_add_u32 m0, {sW4K}, {o}'), Ins(f's_add_u32 {sT}, {sA3[s]}, {WS_X1[L] + rb*32768}')] + d)
        for s in range(2): p(adma(0, s))
        if L == 0:
            tiles = [(0, 0), (0, 1), (0, 2), (0, 3), (1, 1), (1, 2), (1, 3), (1, 0)]; area = [0, 1, 2, 0, 1, 2, 0, 3]
        else:
            tiles = [(c, rb) for c in range(2) for rb in range(4)]; area = [0, 1, 2, 3, 0, 1, 2, 3]
        NR = 12
        def aread(n):
            ti, ks = divmod(n, 32)
            o = area[ti]*32768 + ks*1024
            return Ins(f'ds_read_b128 {vr(AF+4*(n % NR),4)}, {"v124" if o >= 65536 else vL16} offset:{o % 65536}', lds=(o, o+1024))
        def epilogue(ti):
            c, rb = tiles[ti]
            A = ACC + 16*(ti & 1); tk = TK + 4*(ti & 1); ho = HO + 4*(ti & 1)
            o = []
            gi = lambda i: (i >> 2)*8 + (i & 3)
            for i in range(9):
                if i < 8: o.append(f'v_mul_f32 v{A+gi(i)}, v{tk+3}, v{A+gi(i)}')
                if i: o.append(f'v_exp_f32 v{A+gi(i-1)}, v{A+gi(i-1)}')
            for i in range(8): o.append(f'v_fma_f32 v{A+gi(i)}, v{A+gi(i)}, v{tk+2}, v{tk+2}')
            for i in range(8):
                o.append(f'v_rcp_f32 v{A+gi(i)}, v{A+gi(i)}')
                if i: o.append(f'v_mul_f32 v{A+gi(i-1)}, v{A+gi(i-1)}, v{A+gi(i-1)+4}')
            o.append(f's_add_u32 s94, {sH0}, {rb*114688 + c*4096}')
            o.append(f'v_mul_f32 v{A+gi(7)}, v{A+gi(7)}, v{A+gi(7)+4}')
            for i in range(4): o.append(f'v_cvt_pk_bf16_f32 v{ho+i}, v{A+gi(2*i)}, v{A+gi(2*i+1)}')
            alt, st = self.stores([f'buffer_store_dwordx4 {vr(ho,4)}, {vL16}, {SWS}, s94 offen'])
            o.append(alt)
            return o, st
        def csreads(c):
            r = Ins(f'ds_read_b64 {vr(CS+2*c,2)}, v206 offset:{c*256}', lds=(L_CS3, L_CS3+2048), private=True)
            return [[f'v_mov_b32 v{CS+2*c}, 0', f'v_mov_b32 v{CS+2*c+1}, 0', 's_mov_b64 exec, 0xffffffff', r, 's_mov_b64 exec, -1']], r
        p(self.fts(f'p3{L}', 'issued'))
        p(WaitTok(atok[(0, 0, None)])); p('s_barrier')
        rds = [aread(n) for n in range(256)]
        for n in range(8): p(rds[n])
        CS0, CS1 = 20, self.o.get('cs1', 148)
        spine = []; slot = []
        for n in range(256):
            if L == 0 and n == CS0: spine += [self.w3_cs(x) for x in range(28, 32)]
            if L == 0 and n == CS1: spine += [self.w3_cs(x) for x in range(32, 64)]
            ti, ks = divmod(n, 32); c, rb = tiles[ti]
            A = vr(ACC + 16*(ti & 1), 16)
            slot.append(len(spine))
            spine.append(f'v_mfma_f32_32x32x16_bf16 {A}, {ar(c*128+4*ks,4)}, {vr(AF+4*(n % NR),4)}, {0 if ks == 0 else A}')
            if ks == 31: spine.append(f'v_mfma_f32_32x32x8_bf16 {A}, {vr(CS+2*c,2)}, {vr(TK+4*(ti&1),2)}, {A}')
        sl = lambda n: slot[max(0, min(int(n), 255))]
        self.big = (L == 1); self.NWP = self.o.get('nwp', 2)
        B4 = len(spine)
        spine += self.tile_spine(56)
        S = Sched(spine)
        for n in range(0, 256, 4): S.before[sl(n)] = [WaitTok(rds[n:n+4])]
        for ti in range(8): S.before[sl(32*ti)] = self.fts(f'p3{L}', f't{ti}') + S.before[sl(32*ti)]
        bars = {}
        def bar(n, toks): bars.setdefault(n, []).extend(toks)
        gate = {}
        def publish(first, toks): bar(first - 9, toks); gate[first] = first - 9
        st_issue = self.stats_issue(WS_ST1[L], 's92', SR)
        items = [dict(e=0, need=sl(8), make=lambda: [st_issue[:2]] + [[y] for y in st_issue[2:]])]
        publish(16, atok[(0, 1, None)])
        pubs = []
        def aitem(rb, s, ar_, e, first):
            items.append(dict(e=sl(e), need=sl(first - 9), chain='A', make=lambda: adma(rb, s, ar_))); pubs.append((first, (rb, s, ar_)))
        aitem(1, 0, None, 0, 32); aitem(1, 1, None, 0, 48); aitem(2, 0, None, 0, 64); aitem(2, 1, None, 0, 64 if L else 80)
        if L == 1:
            aitem(3, 0, None, 0, 96); aitem(3, 1, None, 0, 96)
        else:
            aitem(3, 0, 0, 40, 96); aitem(3, 1, 0, 40, 112)
            bar(39, rds[20:32])
            SLOT = [98304, 114688, 131072]
            iss = {8: 8, 9: 8, 10: 24, 11: 56, 12: 56, 13: 72, 14: 104, 15: 104}
            rd_at = {7: 7, 8: 39, 9: 39, 10: 55, 11: 87, 12: 87, 13: 103, 14: 135, 15: 135}
            for q in range(8, 16): items.append(dict(e=sl(iss[q]), need=sl(rd_at[q] - 8), chain='W', make=lambda q=q: self.w3_quad(q, SLOT[(q - 7) % 3])))
        self.edf(S, items, self.o.get('sg3%d' % L, 1.4 if L == 0 else 1.8), f'p3 L{L}')
        for first, key in pubs: publish(first, atok[key])
        if L == 0:
            for q in range(7, 16):
                at = rd_at[q]
                r = sum((self.w3_reads(n) for n in range(4*q, 4*q + 4)), [])
                bar(at, self.w3tok[q])
                if q < 14: bar(at + 16, r)
                S.add('w3r', r, e=sl(at), d=sl(min(at + 14, CS1 - 3 if q >= 14 else 999, CS0 - 3 if q == 7 else 999)))
                if q == 14: self.w3_last = list(r)
                if q == 15: self.w3_last += r
            S.add('w3c', self.w3_cs_store(0) + csreads(0)[0], e=sl(CS0) + 3, d=sl(29))
            S.add('w3c', self.w3_cs_store(1) + csreads(1)[0], e=sl(CS1) + 3, d=sl(157))
        for m in range(8, 256):
            e = max(m - NR + 1, max([v for k_, v in gate.items() if k_ <= m], default=-1))
            S.add('ar', [rds[m]], e=sl(e), d=sl(max(e, (m & ~3) - 3)), step=0)
        x = self.stats_reduce(SR) + self.stats_final(f'v{SR}', f'v{SR+1}', f'v{SR+2}') + lines(f"""v_mul_f32 v{SR+3}, {f2u(-LOG2E)}, v{SR+1}
v_cvt_pk_bf16_f32 v{SR}, v{SR}, v{SR}
v_mov_b32 v{SR+1}, v{SR}
v_and_b32 v{SR+4}, 15, {vL}
v_lshlrev_b32 v{SR+4}, 5, v{SR+4}
v_bfe_u32 v{SR+5}, {vL}, 4, 1
v_lshl_add_u32 v{SR+4}, v{SR+5}, 4, v{SR+4}
s_lshl_b32 s88, {sW}, 9
s_add_u32 s88, s88, {L_T3}
v_add_u32 v{SR+4}, s88, v{SR+4}""")
        tw = Ins(f'ds_write_b128 v{SR+4}, {vr(SR,4)}', lds=(L_T3, L_T3 + 2048))
        S.add('epi', x + [tw], e=sl(10), d=sl(21))
        bar(23, [tw])
        if L == 1: S.add('w3c', csreads(0)[0] + csreads(1)[0], e=2, d=20)
        def rd4(k):
            s, w = divmod(k, 4)
            b = self.W4SLOT[s]*16384 + w*2048
            va, vb = [('v200', 'v201'), ('v202', 'v203'), ('v204', 'v205')][b >> 16]
            return self.wfrag_reads(k, b & 65535, va, vb, [(b + h*8192, b + h*8192 + 2048) for h in range(2)])
        def stage(s):
            x_, tk = self.w4_stage(s); w4[s] = tk
            return sum((self.split_dma(y) for y in x_), [])
        NWP = self.NWP if self.big else 0
        allreads = {}
        if self.o_touch and self.o.get('th3', 1) >> L & 1:
            S.add('misc', lines(f'v_and_b32 v127, 7, {vL}\nv_lshlrev_b32 v127, 7, v127\nv_and_b32 v34, 8, {vL}\nv_lshl_add_u32 v127, v34, 9, v127'), e=sl(24), d=sl(30))
        S.add('misc', self.p4_setup(L), e=sl(36), d=sl(52))
        if self.o_touch and self.o.get('th3', 1) >> L & 1:
            for rb in range(4): S.add('misc', [f's_add_u32 s89, {sH0}, {rb*114688}', self.touch('v127', 's89')], e=sl(54 + 22*rb), d=sl(58 + 22*rb))
        sts = []
        for ti in range(8):
            c, rb = tiles[ti]
            S.add('epi', [Ins(f'ds_read_b128 {vr(TK+4*(ti&1),4)}, v125 offset:{rb*512}', lds=(L_T3, L_T3+2048))], e=sl(32*ti + 25), d=sl(32*ti + 28))
            e, st = epilogue(ti); sts.append(st)
            if ti < 7: S.add('epi', e, e=sl(32*ti + 35), d=sl(32*ti + 56), early=False)
            else: S.add('epi', e, e=B4 + 2, d=B4 + self.o.get('e7', 12))
            if ti >= 5:
                bar(32*ti + 1, rds[32*ti-12:32*ti] + (self.w3_last if L == 0 else []))
            if ti == 4 and L == 0:
                fr = CS1 - 1
                bar(fr, self.w3_last)
                S.add('dma', stage(0) + adma(0, 0, 3) + adma(0, 1, 3), e=sl(fr), d=sl(160), split=True)
                bar(193, atok[(0, 0, 3)] + atok[(0, 1, 3)] + w4[0])
            if ti == 1 and L == 1:
                plan = {0: [(100, None)], 1: [(56, 87), (100, None)], 2: [(56, 87), (98, 129), (140, None)], 3: [(56, 87), (97, 120), (130, 152), (162, None)]}[NWP]
                prev = []
                for s, (e0, pub) in enumerate(plan):
                    if s: bar(e0 - 1, prev)
                    S.add('dma', stage(s), e=sl(e0), d=sl(e0 + 8), step=1.5, split=True)
                    if pub:
                        bar(pub, w4[s])
                        prev = sum((rd4(k) for k in range(4*s, 4*s + 4)), [])
                        S.add('wpre', prev, e=sl(pub), d=sl(plan[s+1][0] - 3))
                bar(193, w4[NWP])
        if L == 0:
            S.add('misc', [self.code_touch()], e=sl(CS1) - 28, d=sl(CS1) - 2)
        S.add('misc', [self.cap(lambda: self.post_flag(3 + 5*L, sum(sts[:4], [])))], e=sl(163), d=sl(164))
        pc = self.o.get('pc', 192)
        S.add('misc', [self.poll_issue(vT0)], e=sl(pc - 14), d=sl(pc - 12))
        S.add('misc', [self.poll_check(vT0, 3 + 5*L, sMK4)], e=sl(pc), d=sl(pc + 1))
        if L == 0: S.add('misc', self.touches_x2('v127'), e=sl(pc + 2), d=sl(pc + 20))
        K0 = 0 if self.big else 2
        for k in range(K0):
            r = rd4(k); allreads.setdefault(0, []).extend(r)
            S.add('wr', r, e=sl(247 + 2*k), d=sl(254), step=0.5)
        for n, toks in sorted(bars.items()):
            lo_, hi_ = self.o.get('blo', 0), self.o.get('bhi', 70)
            f = (lambda nm: self.fts(f'b3{L}', nm)) if lo_ <= n < hi_ else (lambda nm: [])
            S.at(sl(n), f(f'x{n}') + [WaitTok(toks)] + f(f'w{n}') + ['s_barrier'] + f(f'b{n}'), 'bar')

        lj = self.lab('p3join')
        S.before[B4] = self.cap(lambda: self.ts(f'p3_mm{L}')) + [Ins(f'{lj}:')] + S.before.get(B4, [])
        dac = self.o.get('dac', 9)
        self.add_exchange(S, B4, 56)
        S.add('epi2', self.res_unpack(), e=sl(250), d=sl(255))
        pre = {}
        fl = self.o.get('fl4', 19)
        S.add('misc', [self.cap(lambda: self.post_flag(4 + 5*L, sum(sts[4:], [])))], e=B4 + fl, d=B4 + fl + 1, needs=[sts[7][0]])
        pk = 2*(28 - dac)
        pos = self.tile_pos(56)
        bstep = self.o.get('bstep', 1)
        BS = list(range(NWP + 3, 14, bstep))
        bsl = lambda s: min(2*(4*s - 3), pos[4*s][0] - 6)
        items = []
        for m in range(56):
            e = sl(pc + 2) if m < 28 else B4 + pk + 2
            if not self.big and m >= 22: e = max(e, B4 + pos[m-22][1] + 1)
            items.append(dict(kind='a', i=m, e=e, need=B4 + pos[m][0], n=1))
        for ns in range(NWP + 1, 14):
            j = ns - NWP - 1
            if j < 6: e = sl(161 + 32*(j // 2)) + 1
            elif j < 8: e = B4 + 1
            else:
                prev = max(x for x in range(NWP, ns) if self.W4SLOT[x] == self.W4SLOT[ns])
                e = B4 + bsl(min(b for b in BS if b >= prev + 2)) + 1
            nb = [b for b in BS if b <= ns]
            items.append(dict(kind='w', i=ns, e=e, need=B4 + (bsl(max(nb)) if nb else 0), n=4))
        items.append(dict(kind='p', i=0, e=B4 + pk - self.o.get('plead', 12), need=B4 + pk - 60, n=1))
        if L == 0:
            for i in range(self.o.get('nw1', 4)): items.append(dict(kind='q', i=i, e=B4 + max(self.o.get('w1e', 76), bsl(10 if i < 2 else 11) + 1), need=B4 + 200 + i, n=3))
        sigma = self.o.get('sig%d' % L, 1.5)
        t_ = float(min(x['e'] for x in items)); left = list(items); plan = []
        while left:
            el = [x for x in left if x['e'] <= t_ and not (x['kind'] == 'a' and any(y['kind'] == 'a' and y['i'] < x['i'] for y in left))]
            if not el: t_ = float(min(x['e'] for x in left if x['e'] > t_)); continue
            x = min(el, key=lambda y: y['need'])
            if t_ < B4 <= t_ + sigma*(x['n'] - 1) + 0.99: t_ = float(B4 + 1)
            x['t'] = t_; plan.append(x); left.remove(x); t_ += sigma*x['n']
        print('   edf min slack', sorted((x['need'] - x['t'] - sigma*(x['n']-1), x['kind'], x['i']) for x in plan if x['kind'] in 'aw')[:4], 'end', t_ - B4)
        NPRE = sum(1 for x in plan if x['kind'] == 'a' and x['t'] < B4)
        prew = [x['i'] for x in plan if x['kind'] == 'w' and x['t'] < B4]
        nlds = NWP + 1 + len(prew)
        assert prew == list(range(NWP + 1, nlds))
        for x in plan:
            if x['kind'] == 'a':
                gq = [self.p4_aload(x['i'])]
                if x['i'] == 52: need52 = gq[0][0]
            elif x['kind'] == 'w': gq = stage(x['i'])
            elif x['kind'] == 'p': gq = [[self.poll_issue('v127')]]
            else:
                y, tk = self.w1_stage(x['i'], seq=(x['i'] > 0)); pre[x['i']] = tk; gq = self.split_dma(y[0])
            for j, y in enumerate(gq):
                tt = min(int(x['t'] + sigma*j), len(spine) - 1)
                if len(y) > 1: S.add('vm', [y[:-1]], e=tt - 2 if tt - 2 >= B4 or tt < B4 else tt, d=tt, split=True, step=0)
                S.add('vm', [y[-1:]], e=tt, d=tt, step=0)
            if x['kind'] == 'p': S.add('pchk', [self.poll_check('v127', 4 + 5*L, sMK4)], e=B4 + pk, d=B4 + pk + 1)
        S.at(B4, [WaitTok(rds[244:256] + sum((w4[s] for s in range(min(nlds, NWP + 3))), [])), 's_barrier'], 'bar4')
        bslot = {s: min(2*(4*s - 3), self.tile_pos(56)[4*s][0] - 6) for s in BS}
        self.add_wreads(S, B4, 56, max(K0, 4*NWP), rd4, gate=lambda m: max([1] + [v for s_, v in bslot.items() if s_ <= m // 4]), note=lambda m, r: allreads.setdefault(m // 4, []).extend(r))
        for s in BS: S.at(B4 + bslot[s], [WaitTok(sum((w4[x_] for x_ in range(s, min(14, s + bstep))), []) + allreads.get(s-2, [])), 's_barrier'], 'bar4')
        for k in range(4, 56, 4): S.before[B4 + 2*k] = self.fts(f'p4{L}', f's{k//4}') + S.before.get(B4 + 2*k, [])
        S.add('misc', self.epi_pre(), e=B4 + 70, d=B4 + 90)
        if L == 0: S.add('misc', [f's_add_u32 {sX}, {sROW}, {WS_X2}'] + self.st_addr(WS_ST2, sY) + self.p1_setup(), e=B4 + 86, d=B4 + 108, needs=[need52])
        self.win(S, f'3{L}')
        S.emit(p, f'p3+p4 L{L}')
        sv = self.p; q = self.p = Prog(check_lds=False)
        q(f'{lskip}:')
        if L == 0: q(self.touches_x2('v127'))
        q(self.p4_setup(L))
        if self.o.get('pfs', True): self.idle_prefetch([(SWD, 2, 'slow')])
        for s in range(NWP):
            q(self.w4_stage(s)[0]); q('s_waitcnt vmcnt(0)\ns_barrier')
            for k in range(4*s, 4*s + 4): q(rd4(k))
            q('s_waitcnt lgkmcnt(0)\ns_barrier')
        for s in range(NWP, nlds): q(self.w4_stage(s)[0])
        if L == 1: self.idle_prefetch([(SWD, self.o.get('pfe', 7), 'down')])
        if L == 0: self.idle_prefetch([(SWD, self.o.get('pfa', 0), 'down')])
        self.poll(3 + 5*L, sMK4)
        if L == 0: self.idle_prefetch(([(SWQKV, 2, 'slow'), (SWO, 1, 'slow')] if self.o.get('pfs', True) else []) + [(SWD, self.o.get('pfd', 0), 'down')])
        for k in range(NPRE): q(self.p4_aload(k))
        q('s_waitcnt vmcnt(0)\ns_barrier')
        for k in range(K0): q(rd4(k))
        q(self.res_unpack())
        q(f's_waitcnt lgkmcnt(0)\ns_branch {lj}')
        self.p = sv
        self.slow.append(q.finalize())
        self.ts(f'p4_mm{L}')
        st = self.tile_epilogue('x2' if L == 0 else 'out', L)
        self.big = False
        self.ts(f'p4_epi{L}')
        if L == 0:
            self.post_flag(5, st)
            for st_ in range(len(pre), self.o.get('nw2', 5)):
                gq, tk = self.w1_stage(st_, seq=True); pre[st_] = tk; p(gq)
        self.ts(f'p4_end{L}')
        return pre

    def idle_prefetch(self, jobs):
        if not self.o.get('pf', True): return
        q = self.p
        q(f"""s_and_b32 s88, {sG16}, 1
s_lshl_b32 s88, s88, 1
s_add_u32 s88, s88, {sM16}
s_sub_u32 s88, s88, 14
s_lshl_b32 s88, s88, 2
s_add_u32 s88, s88, {sW}
v_lshlrev_b32 v40, 7, {vL}
v_lshlrev_b32 v42, 10, {vL}
v_add_u32 v42, 384, v42""")
        for srd, n, kind in jobs:
            for i in range(n):
                va = 'v40'
                if kind.startswith('down'):
                    q(f's_mul_i32 s89, s88, 7\ns_add_u32 s89, s89, {i}\ns_lshr_b32 s90, s89, 3\ns_lshl_b32 s90, s90, 17\ns_and_b32 s89, s89, 7\ns_lshl_b32 s89, s89, 13\ns_add_u32 s89, s89, s90\ns_add_u32 s89, s89, {0 if kind == "down0" else 65536}')
                else:
                    q(f's_lshl_b32 s89, s88, 16\ns_add_u32 s89, s89, {i << 20}'); va = 'v42'
                x = Ins(f'buffer_load_dword v41, {va}, {srd}, s89 offen'); x.wr = set(); q(x)
                q('s_waitcnt vmcnt(1)')

    def p4_setup(self, L):
        return lines(f"""s_lshr_b32 s88, {sW}, 1
s_lshl_b32 s89, s88, 13
v_add_u32 v200, s89, {vWown}
v_add_u32 v201, s89, {vWoth}
v_add_u32 v202, 65536, v200
v_add_u32 v203, 65536, v201
v_add_u32 v204, 131072, v200
v_add_u32 v205, 131072, v201
s_mul_i32 s88, s88, 57344
s_mul_i32 {sX}, {sRB}, 114688
s_add_u32 {sX}, {sX}, s88
s_add_u32 {sX}, {sX}, {WS_H[L]}
s_add_u32 {sY}, {sX}, 4096""")
    def p4_aload(self, k):
        s, w = divmod(k, 4); c, j = divmod(s, 7)
        o = []
        if w == 0: o.append(Ins(f's_add_u32 {sH1}, {sY if c else sX}, {sJ[j]}'))
        o.append(Ins(f'buffer_load_dwordx4 {self.areg(k)}, {vL16}, {SWS}, {sH1} offen offset:{w*1024} sc1'))
        return o
    def build(self):
        p = self.p
        self.prologue_a()
        pre = {}
        for L in range(2):
            p(f'; PH 1{L}')
            w2 = self.p1_first() if L == 0 else self.p1_second(pre)
            if self.o_stop == f'p1_{L}': break
            p(f'; PH 2{L}')
            self.p2(L, w2)
            if self.o_stop == f'p2_{L}': break
            p(f'; PH 3{L}')
            pre = self.p3(L)
            if self.o_stop == f'p4_{L}': break
        p(self.bump_epoch())
        self.ts('end')
        if self.o_amp:
            p('s_waitcnt vmcnt(0)')
            p(Raw(f"""s_memrealtime s[62:63]
s_sub_u32 s96, s98, s96
s_mul_i32 s96, s96, {self.o_amp[2]}
s_min_u32 s96, s96, 100000
s_waitcnt lgkmcnt(0)
Lamp:
s_memrealtime s[98:99]
s_waitcnt lgkmcnt(0)
s_sub_u32 s98, s98, s62
s_cmp_lt_u32 s98, s96
s_cbranch_scc1 Lamp"""))
        if self.o_ts:
            p(f's_lshl_b32 s88, s2, 2\ns_add_u32 s88, s88, {sW}\ns_lshl_b32 s88, s88, 8\ns_add_u32 s88, s88, {WS_TS}\nv_lshlrev_b32 v40, 2, {vL}')
            p('s_memrealtime s[62:63]'); p(f'v_writelane_b32 {vTS}, s62, 62')
            p(f'buffer_store_dword {vTS}, v40, {SWS}, s88 offen')
            if self.o_dbg:
                sel = [self.tsn.index(n) for n in self.o_dbg] + [62, 63]
                l = self.lab('dbg')
                p(f's_lshl_b32 s88, s2, 2\ns_add_u32 s88, s88, {sW}\ns_cmp_lg_u32 s88, 0\ns_cbranch_scc1 {l}')
                p(f'v_readlane_b32 s89, {vTS}, 0')
                for i, s in enumerate(sel):
                    p(f'v_readlane_b32 s88, {vTS}, {s}')
                    if s < 62: p('s_sub_u32 s88, s88, s89')
                    p(f'v_writelane_b32 v41, s88, {i}')
                p(f's_mov_b64 exec, 0xffff\nbuffer_store_dword v41, v40, {SDBG}, 0 offen sc1\ns_mov_b64 exec, -1\n{l}:')
        kill = str(self.o.get('kill', '')).split('+')
        if kill != ['']:
            p.check_lds = False
            import re as _re
            inp3 = None
            for it in p.items:
                t = getattr(it, 'text', '')
                if t.startswith('; PH'): inp3 = t[5:]
                lst = [it] if it.kind != 'alt' else it.a
                for x in lst:
                    t = getattr(x, 'text', '')
                    tag = None
                    if x.kind == 'dma' and SW3 in t: tag = 'w3'
                    elif x.kind == 'dma' and SWD in t: tag = 'w4'
                    elif x.kind == 'dma' and SWQKV in t: tag = 'w1'
                    elif x.kind == 'dma' and SWO in t: tag = 'w2'
                    elif x.kind == 'dma': tag = 'adma'
                    elif x.kind == 'vmld' and 'x4' in t and SWS in t: tag = 'ald'
                    elif x.kind == 'vmld' and 'v34' in t: tag = 'touch'
                    elif x.kind == 'vmst' and 'x4' in t: tag = 'st'
                    elif x.kind == 'dsrd' and 'b128' in t and int(_re.search(r'offset:(\d+)', t).group(1)) & 1024: tag = 'half'
                    elif x.kind == 'dsrd' and 'tr_b16' in t: tag = 'tr'
                    elif x.kind == 'dsrd' and 'b128' in t: tag = 'half2'
                    elif x.kind == 'barrier': tag = 'bar'
                    elif x.kind == 'trans': tag = 'trans'
                    elif x.kind == 'valu': tag = 'valu'
                    if tag and f'{inp3}{tag}' in kill:
                        x.text = '; killed'; x.kind = 'dir'; x.ops = ['0']; x.rd = set(); x.wr = set(); x.lds = None
                        if it.kind == 'alt':
                            for y in it.b: y.kind = 'dir'
        body = p.finalize()
        head = open('cdna_kernels/' + NAME + '.s.ref').read().split('; Override launch')[0]
        txt = head + '; @launch grid=(256,1,1) block=(256,1,1) lds=163840\n'
        txt += f'.amdgcn_target "amdgcn-amd-amdhsa--gfx950"\n.text\n.globl {NAME}_kernel\n.p2align 8\n.type {NAME}_kernel,@function\n{NAME}_kernel:\n'
        txt += body + 'L_end:\ns_endpgm\n' + '\n'.join(getattr(p, 'tail', [])) + '\n' + '\n'.join(self.slow) + '\nL_last:\ns_endpgm\n'
        txt += f""".section .rodata,"a"
.p2align 6
.amdhsa_kernel {NAME}_kernel
  .amdhsa_next_free_vgpr 512
  .amdhsa_next_free_sgpr 102
  .amdhsa_accum_offset 256
  .amdhsa_group_segment_fixed_size 0
  .amdhsa_kernarg_size 80
  .amdhsa_user_sgpr_count 2
  .amdhsa_user_sgpr_kernarg_segment_ptr 1
  .amdhsa_system_sgpr_workgroup_id_x 1
  .amdhsa_float_denorm_mode_32 3
.end_amdhsa_kernel
"""
        return txt

if __name__ == '__main__':
    out = sys.argv[1]
    kw = {}
    for a in sys.argv[2:]:
        k, _, v = a.partition('=')
        if k in ('amp', 'dbg', 'win'): kw[k] = v.split(',')
        elif v in ('0', '1', ''): kw[k] = (v != '0')
        elif v.replace('.', '').isdigit(): kw[k] = float(v) if '.' in v else int(v)
        else: kw[k] = v
    if kw.pop('reuse', False):
        WS_O[1] = WS_O[0]; WS_X1[1] = WS_X1[0]; WS_ST1[1] = WS_ST1[0]; WS_H[1] = WS_H[0]
    g = Gen(**kw)
    open(out, 'w').write(g.build())
    if g.o_ts: open(out + '.ts', 'w').write('\n'.join(g.tsn))
    print(out, g.p.stats)
```

```python
import sys, struct
from asmlib import *

NAME = 'interleave_layers__sliding_local_dilated__glu_gated_glu__prompt'
MB = 1 << 20
WS_O = [0, 2*MB]; WS_X1 = [4*MB, 6*MB]; WS_X2 = 8*MB
WS_ST1 = [10*MB, 10*MB + (256 << 10)]; WS_ST2 = 10*MB + (512 << 10)
WS_HB = 11*MB; WS_HS = 11*MB + (512 << 10); WS_FL = 11*MB + (768 << 10); WS_EP = WS_FL + 8192; WS_XC = WS_FL + 16384; WS_TS = 14*MB
WS_H = [16*MB, 24*MB]

SX, SWQKV, SWO, SW3, SWD, SOUT, SWS, SDBG = 's[4:7]', 's[8:11]', 's[12:15]', 's[16:19]', 's[20:23]', 's[24:27]', 's[28:31]', 's[32:35]'
sW, sMODE, sT, sROW, sHALO, sG, sG16, sM16, sCB, sW1K, sW4K, sHASP, sPG, sIDLE = ['s%d' % i for i in range(36, 50)]
sMK2, sMK4, sMK1 = 's[50:51]', 's[52:53]', 's[54:55]'
sA1, sRB, sSPIN, sV, sXCC, sW2K = 's56', 's57', 's58', 's59', 's60', 's61'
sW3K, sR8, sRG, sR3 = 's84', 's85', 's86', 's87'
sR8s, sU = 's3', 's95'
sCODE = 's[100:101]'
SW3F = SW3
sA2 = ['s40', 's67', 's68', 's77']
sWd4 = 's64'; sA3 = ['s65', 's66', 's67', 's68']; sJ = ['s%d' % i for i in range(69, 76)]
sH0, sH1, sHB, sX, sY, sE, sES, sSG = 's76', 's77', 's78', 's79', 's80', 's81', 's82', 's83'
vL, vL16, vA1e, vA1o, vW1d, vW1r0, vW1r1, vA1r0, vA1r1, vW2d, vCT, vWown, vWoth, vRM, vFLp, vFLo = ['v%d' % i for i in range(16)]
RES = 16
CSQ, CSK, CSV = 24, 28, 32
vW3d, vW3r, vT0, vTS = 'v36', 'v37', 'v38', 'v39'
vW4 = ['v208', 'v209', 'v210', 'v211']
vW3q = ['v36', 'v252', 'v253', 'v254']
L_A1H = 65536; L_R1 = 73728; L_TAB = 159744
L_W2 = L_TAB - 65536
L_XB = 0
L_NM = L_TAB; L_RS = L_TAB + 320
L_T3 = L_TAB
L_CS3 = L_TAB + 2048
LOG2E = 1.4426950408889634
def f2u(x): return '0x%08x' % struct.unpack('<I', struct.pack('<f', x))[0]
def vr(a, n): return f'v[{a}:{a+n-1}]' if n > 1 else f'v{a}'
def ar(a, n): return f'a[{a}:{a+n-1}]'
def lines(s): return [x.strip() for x in s.strip().split('\n') if x.strip()]
def last(x): return x[-1]

class Gen:
    def __init__(self, **kw):
        self.p = Prog(); self.nts = 0; self.tsn = []; self.slow = []; self.nlab = 0; self.w3tok = {}; self.w3stg = {}
        self.o = dict(ts=False, mimic=True, stop=None, glob=False, fine=None, amp=None, dbg=None, touch=True, rot=True, ctouch=True, wb=False)
        self.o.update(kw)
        self.alias = self.o.get('alias', True)
        if self.alias:
            global WS_ST2
            WS_X1[1] = WS_X1[0]; WS_ST1[1] = WS_ST1[0]; WS_H[1] = WS_H[0]; WS_ST2 = WS_ST1[0]
        for k, v in self.o.items(): setattr(self, 'o_' + k, v)

    def cap(self, fn):
        sv = self.p; self.p = Prog(); fn(); items = self.p.items; self.p = sv
        return items
    def lab(self, s):
        self.nlab += 1; return f'L{s}{self.nlab}'
    def ts(self, name):
        if self.o_amp and name == self.o_amp[0]: self.p('s_memrealtime s[96:97]\ns_waitcnt lgkmcnt(0)')
        if self.o_amp and name == self.o_amp[1]: self.p('s_memrealtime s[98:99]\ns_waitcnt lgkmcnt(0)')
        if not self.o_ts: return
        if self.o_fine and self.o_fine[0] == 'b' and name[0] == 'p' and name[:3] != 'p3_': return
        if self.o.get('win') and name[0] != 'n' and name not in ('start', 'end') and not name.startswith('p' + self.o['win'][0][0]): return
        if self.o.get('rt'):
            if name not in ('start', 'a1_landed', 'p1_loop0', 'p1_end0', 'p2_end0', 'p3_go0', 'p3_end0', 'p4_mm0', 'p1_stats1', 'p1_halo1', 'p1_end1', 'p3_go1', 'p3_end1', 'p4_mm1', 'end'): return
            self.p('s_memrealtime s[62:63]'); self.p(f'v_writelane_b32 {vTS}, s62, {self.nts + 31}')
        self.p('s_memtime s[62:63]'); self.p(f'v_writelane_b32 {vTS}, s62, {self.nts}')
        self.tsn.append(name); self.nts += 1
    def win(self, S, key):
        w = self.o.get('win')
        if not w or w[0] != key: return
        for n in range(int(w[1]), int(w[2]), int(w[3])):
            S.before[n] = self.cap(lambda: self.ts(f'n{n}')) + S.before.get(n, [])
    def fts(self, key, name):
        return self.cap(lambda: self.ts(name)) if self.o_fine == key else []

    def stores(self, texts):
        a = [Ins(t) for t in texts]; b = [Ins(t + ' sc1') for t in texts]
        return Alt(sMODE, a, b), a
    def post_flag(self, val, toks):
        p = self.p
        p(f's_add_u32 s91, {sE}, {val}\nv_mov_b32 {vT0}, s91'); p(WaitTok(toks))
        alt, a = self.stores([f'buffer_store_dword {vT0}, {vFLo}, {SWS}, 0 offen'])
        p(alt)
    def spin(self, load, cmp_, mask, pre=''):
        ls, lb = self.lab('s'), self.lab('b')
        items = [Ins(x) for x in lines(cmp_)] + [Ins(f's_and_b64 vcc, vcc, {mask}'), Ins(f's_cbranch_scc1 {ls}'), Ins(f'{lb}:')]
        self.slow.append(f"""{ls}:
s_mov_b32 {sSPIN}, 0
{ls}_l:
{load}
s_add_u32 {sSPIN}, {sSPIN}, 1
s_cmp_gt_u32 {sSPIN}, 30000
s_cbranch_scc1 {ls}_x
s_waitcnt vmcnt(0)
{pre}
{cmp_}
s_nop 0
s_and_b64 vcc, vcc, {mask}
s_cbranch_scc1 {ls}_l
{ls}_x:
s_waitcnt vmcnt(0) lgkmcnt(0)
s_branch {lb}""")
        return items
    def poll_issue(self, vf): return Ins(f'buffer_load_dword {vf}, {vFLp}, {SWS}, 0 offen sc1')
    def poll_check(self, vf, val, mask):
        return self.spin(f'buffer_load_dword {vf}, {vFLp}, {SWS}, 0 offen sc1', f's_add_u32 s91, {sE}, {val}\nv_subrev_u32 v33, s91, {vf}\nv_cmp_lt_u32 vcc, 7, v33', mask)
    def poll(self, val, mask):
        l = self.lab('pl')
        ld = lambda r: f'buffer_load_dword {r}, {vFLp}, {SWS}, 0 offen sc1'
        chk = lambda r: f"""v_subrev_u32 v33, s91, {r}
v_cmp_lt_u32 vcc, 7, v33
s_nop 0
s_and_b64 vcc, vcc, s[88:89]"""
        if not self.o.get('pp', False):
            body = f"""{l}:
{ld(vT0)}
s_sub_u32 {sSPIN}, {sSPIN}, 1
s_cmp_eq_u32 {sSPIN}, 0
s_cselect_b64 s[88:89], 0, {mask}
s_waitcnt vmcnt(0)
{chk(vT0)}
s_cbranch_scc1 {l}"""
        else:
            body = f"""{ld(vT0)}
s_mov_b64 s[88:89], {mask}
s_nop 7
s_nop 7
{l}:
{ld('v35')}
s_waitcnt vmcnt(1)
{chk(vT0)}
s_cbranch_scc0 {l}x
{ld(vT0)}
s_sub_u32 {sSPIN}, {sSPIN}, 1
s_cmp_eq_u32 {sSPIN}, 0
s_cselect_b64 s[88:89], 0, {mask}
s_waitcnt vmcnt(1)
{chk('v35')}
s_cbranch_scc1 {l}
{l}x:"""
        self.p(f's_add_u32 s91, {sE}, {val}\ns_mov_b32 {sSPIN}, 30000')
        self.p(Raw(body, rd=[vT0, 's91'], wr=[vT0, 'v33', 'v35', 's88', 's89', 'vcc'], drains_vm=True, states=6))
        if self.o.get('pp', False):
            x = Ins(f'buffer_load_dword {vT0}, {vFLp}, {SWS}, 0 offen sc1'); x.phantom = True; x.wr |= {('v', 35)}
            self.p(x)
    def touch(self, voff, soff, mask=None):
        if not self.o_touch: return []
        i = Ins(f'buffer_load_dword v34, {voff}, {SWS}, {soff} offen sc1'); i.wr = set()
        return [f's_mov_b64 exec, {mask}', i, 's_mov_b64 exec, -1'] if mask else [i]
    def warm_touch(self, t):
        if not self.o.get('warm', False): return []
        o = lines(f"""s_lshl_b32 s88, s2, 1
s_lshr_b32 s89, {sW}, 1
s_add_u32 s88, s88, s89
s_mul_i32 s88, s88, {28*128}
s_lshl_b32 s89, s2, 2
s_add_u32 s89, s89, {sW}
s_mul_i32 s90, s89, {14*128}
s_lshl_b32 s89, s89, 9
v_lshlrev_b32 {t}, 7, {vL}""")
        for srd, so, m in ((SW3F, 's88', 0xfffffff), (SWD, 's90', 0x3fff), (SWO, 's89', 0xf)):
            i = Ins(f'buffer_load_dword v34, {t}, {srd}, {so} offen'); i.wr = set()
            o.append([f's_mov_b64 exec, {m}', i, 's_mov_b64 exec, -1'])
        return o
    def pf_touch(self, srd, per, idx, t, lanes=16, base=0, half=False):
        o = [f's_mul_i32 s90, {idx}, {per*128}']
        if half: o += ['s_lshr_b32 s89, s90, 16', 's_lshl_b32 s89, s89, 16', 's_add_u32 s90, s90, s89', 's_add_u32 s90, s90, 65536']
        o += [f'v_lshlrev_b32 {t}, 7, {vL}']
        pre = o; o = []
        for i in range(per // lanes):
            x = Ins(f'buffer_load_dword v34, {t}, {srd}, s90 offen offset:{(i*lanes*128) % 4096}'); x.wr = set()
            gq = [f's_mov_b64 exec, {hex((1 << lanes) - 1)}', x, 's_mov_b64 exec, -1']
            if i and (i*lanes*128) % 4096 == 0: gq = ['s_add_u32 s90, s90, 4096'] + gq
            o.append(gq)
        return pre, o
    def code_touch(self):
        if not self.o_ctouch: return []
        i = Ins(f'global_load_dword v35, {vCT}, {sCODE}'); i.wr = set()
        return [i]

    def prologue_a(self):
        p = self.p
        if self.o_amp and self.o_amp[0] == 'entry': p('s_memrealtime s[96:97]')
        p('s_cmp_ge_u32 s2, 256'); p('s_cbranch_scc1 L_end')
        p('s_load_dwordx16 s[64:79], s[0:1], 0'); p('s_load_dwordx4 s[80:83], s[0:1], 64')
        p(f"""s_getpc_b64 {sCODE}
Lpc:
v_lshrrev_b32 v1, 6, v0
v_and_b32 {vL}, 63, v0
s_lshr_b32 s89, s2, 3
s_xor_b32 s89, s89, {int(self.o.get('idxx', 0))}
v_readfirstlane_b32 {sW}, v1
s_lshl_b32 s90, s89, 11
v_and_b32 {vCT}, 3, {vL}
v_lshl_add_u32 {vCT}, v1, 2, {vCT}
v_lshl_add_u32 {vCT}, {vCT}, 7, s90
v_min_u32 {vCT}, L_last-Lpc-4, {vCT}""")
        p(self.code_touch())
        if self.o_ts:
            p(f'v_mov_b32 {vTS}, 0'); p('s_memrealtime s[62:63]'); p(f'v_writelane_b32 {vTS}, s62, 63')
        self.ts('start')
        t = [f'v{i}' for i in range(40, 56)]
        p(f"""s_and_b32 s88, s2, 7
s_lshr_b32 {sRG}, s89, 3
s_and_b32 {sCB}, s89, 7
s_lshr_b32 s90, s88, 1
s_lshl_b32 s90, s90, 2
s_add_u32 s90, s90, {sRG}
s_and_b32 s91, s88, 1
s_lshl_b32 {sR8}, {sRG}, 1
s_add_u32 {sR8}, {sR8}, s91""")
        if not self.o_rot: p(f's_mov_b32 {sR8}, 0')
        if self.o.get('rotx', 1) & 1:
            p(f's_lshl_b32 {sR8}, {sRG}, 1\ns_cmp_eq_u32 {sCB}, {int(self.o.get("slowcb", 3))}\ns_cselect_b32 {sR8}, {sR8}, 0\ns_xor_b32 {sR8}, {sR8}, s88')
        p(f"""s_lshl_b32 {sR8s}, {sR8}, 7
s_lshl_b32 {sROW}, s90, 17
s_lshl_b32 s91, s91, 10
s_add_u32 {sROW}, {sROW}, s91
s_cmp_eq_u32 s90, 0
s_cselect_b32 {sHASP}, 0, 1
s_cselect_b32 s91, 0, 16384
s_sub_u32 {sHALO}, {sROW}, s91
s_lshl_b32 {sA1}, {sW}, 15
s_add_u32 {sA1}, {sA1}, {sROW}
s_lshl_b32 {sW2K}, {sW}, 11
s_mul_i32 {sW3K}, {sW}, 3072
v_lshrrev_b32 {t[0]}, 3, {vL}
v_and_b32 {t[1]}, 7, {vL}
v_lshrrev_b32 {t[2]}, 1, {t[0]}
v_xor_b32 {t[3]}, {t[1]}, {t[2]}
v_lshlrev_b32 {t[3]}, 4, {t[3]}
v_lshl_add_u32 {vA1e}, {t[0]}, 11, {t[3]}
v_xor_b32 v124, 64, {vA1e}
v_add_u32 {vA1o}, {16384-1024}, v124
v_and_b32 {t[4]}, 1, {t[2]}
s_and_b32 s91, {sW}, 1
s_lshl_b32 s91, s91, 2
v_lshl_add_u32 {t[5]}, {t[4]}, 1, s91
v_xor_b32 {t[5]}, {t[5]}, {t[1]}
v_lshlrev_b32 {t[5]}, 4, {t[5]}
s_mul_i32 s91, {sW}, 24576
s_lshl_b32 s92, {sCB}, 7
s_add_u32 s91, s91, s92
v_mul_u32_u24 {t[6]}, 3072, {t[0]}
v_add3_u32 {vW1d}, {t[5]}, {t[6]}, s91""")
        self.srd(4, 64, 2*MB); self.srd(8, 66, 512*3072)
    def srd(self, base, lo, size):
        self.p(f's_mov_b32 s{base}, s{lo}\ns_and_b32 s{base+1}, s{lo+1}, 0xffff\ns_mov_b32 s{base+2}, {size}\ns_mov_b32 s{base+3}, 0x20000')
    def prologue_b(self):
        p = self.p
        t = [f'v{i}' for i in range(40, 56)]
        p(f"""s_getreg_b32 {sXCC}, hwreg(HW_REG_XCC_ID)
s_and_b32 {sXCC}, {sXCC}, 15
s_add_u32 {sXCC}, {sXCC}, 1
s_and_b32 {sM16}, s89, 15
s_lshl_b32 {sG}, s88, 2
s_add_u32 {sG}, {sG}, {sRG}
s_lshr_b32 {sG16}, {sG}, 1
s_cmp_eq_u32 {sRG}, 0
s_cselect_b32 s91, 5, 1
s_sub_u32 {sPG}, {sG}, s91
s_cmp_eq_u32 s90, 0
s_cselect_b32 {sPG}, {sG}, {sPG}
s_lshl_b32 {sW1K}, {sW}, 10
s_lshl_b32 {sW4K}, {sW}, 12
s_and_b32 s91, {sW}, 1
s_lshl_b32 {sRB}, {sG}, 1
s_add_u32 {sRB}, {sRB}, s91
s_and_b32 s91, {sG16}, 1
s_and_b32 {sR3}, s88, 3
s_lshl_b32 {sR3}, {sR3}, 1
s_add_u32 {sR3}, {sR3}, s91
v_lshlrev_b32 {vL16}, 4, {vL}""")
        self.srd(12, 68, 512*1024)
        p(f's_bitcmp1_b32 {sW}, 0\ns_cselect_b32 s72, s74, s72\ns_cselect_b32 s73, s75, s73')
        self.srd(16, 72, 512*3584); self.srd(20, 76, 1792*1024); self.srd(24, 78, 2*MB); self.srd(28, 82, 256*MB)
        if self.o_dbg: self.srd(32, 80, 256)
        else: p('s_mov_b32 s32, 0xff00ff00\ns_mov_b32 s33, 0xff00ff00')
        p(f"""s_cmp_ge_u32 {sM16}, 14
s_cselect_b32 {sIDLE}, 1, 0""")
        if not self.o_rot: p(f's_mov_b32 {sR3}, 0')
        if self.o.get('rotx', 1) & 2: p(f's_mov_b32 {sR3}, s88')
        p(f"""s_lshr_b32 s93, {sW}, 1
s_and_b32 s94, {sRG}, 1
s_lshl_b32 s94, s94, 5
s_mov_b32 s62, -1
s_mov_b32 s63, 0
s_lshl_b64 {sMK1}, s[62:63], s94
s_lshl_b32 s91, s93, 4
s_add_u32 s91, s91, s94
s_mov_b32 s62, 0xffff
s_lshl_b64 {sMK2}, s[62:63], s91
s_mul_i32 s91, s93, 28
s_mov_b32 s62, 0xfffffff
s_lshl_b64 {sMK4}, s[62:63], s91""")
        p(f"""s_mul_i32 s91, s93, 28672
s_lshl_b32 s94, {sM16}, 8
s_add_u32 s91, s91, s94
v_mul_u32_u24 {t[6]}, 3584, {t[0]}
v_add3_u32 {vW3d}, {t[5]}, {t[6]}, s91
v_lshlrev_b32 {t[5]}, 2, {t[4]}
v_xor_b32 {t[5]}, {t[5]}, {t[1]}
v_lshlrev_b32 {t[5]}, 4, {t[5]}
v_lshl_add_u32 {t[5]}, {t[0]}, 10, {t[5]}
s_lshl_b32 s91, {sW}, 13
s_add_u32 s94, s91, s92
v_add_u32 {vW2d}, s94, {t[5]}
s_mul_i32 {sWd4}, s93, {7*128*1024}
s_and_b32 s94, {sW}, 1
s_lshl_b32 s94, s94, 15
s_add_u32 {sWd4}, {sWd4}, s94
s_sub_u32 {sWd4}, {sWd4}, s91""")
        p(f"""v_lshrrev_b32 {t[0]}, 4, {vL}
v_and_b32 {t[1]}, 15, {vL}
v_lshrrev_b32 {t[2]}, 2, {t[1]}
v_and_b32 {t[3]}, 3, {vL}
v_lshrrev_b32 {t[4]}, 1, {t[2]}
v_and_b32 {t[5]}, 1, {t[0]}
v_lshl_add_u32 {t[6]}, {t[5]}, 1, {t[4]}
v_xor_b32 {t[6]}, {sW}, {t[6]}
v_lshlrev_b32 {t[6]}, 5, {t[6]}
v_lshl_add_u32 {t[6]}, {t[3]}, 3, {t[6]}
v_lshl_add_u32 {t[6]}, {t[2]}, 7, {t[6]}
v_mul_u32_u24 {t[7]}, 3072, {t[0]}
v_add_u32 {t[6]}, {t[6]}, {t[7]}
v_add_u32 {vW1r0}, {L_R1}, {t[6]}
v_add_u32 {vW1r1}, {L_R1 + 49152}, {t[6]}
v_lshrrev_b32 {t[6]}, 1, {t[1]}
v_xor_b32 {t[6]}, {t[6]}, {t[0]}
v_lshlrev_b32 {t[6]}, 4, {t[6]}
v_lshl_add_u32 {vA1r0}, {t[1]}, 7, {t[6]}
v_xor_b32 {vA1r1}, 64, {vA1r0}
v_lshrrev_b32 {t[7]}, 1, {t[0]}
v_lshrrev_b32 {t[8]}, 1, {t[3]}
v_and_b32 {t[9]}, 1, {t[3]}
v_lshl_add_u32 {t[10]}, {t[9]}, 1, {t[8]}
v_lshl_add_u32 {t[10]}, {t[5]}, 2, {t[10]}
v_lshlrev_b32 {t[10]}, 3, {t[10]}
v_xor_b32 {t[11]}, s93, {t[4]}
v_lshl_add_u32 {t[10]}, {t[11]}, 6, {t[10]}
v_lshl_add_u32 {t[10]}, {t[2]}, 7, {t[10]}
v_lshl_add_u32 {vWown}, {t[7]}, 10, {t[10]}
v_xor_b32 {vWoth}, 64, {vWown}
v_lshl_add_u32 {t[10]}, {t[9]}, 1, {t[5]}
v_lshlrev_b32 {t[10]}, 3, {t[10]}
v_lshl_add_u32 {t[11]}, {t[8]}, 1, {t[4]}
v_xor_b32 {t[11]}, {sW}, {t[11]}
v_lshl_add_u32 {t[10]}, {t[11]}, 5, {t[10]}
v_lshl_add_u32 {t[10]}, {t[2]}, 7, {t[10]}
v_lshl_add_u32 {t[10]}, {t[8]}, 12, {t[10]}
v_lshl_add_u32 {vW3r}, {t[7]}, 13, {t[10]}
v_and_b32 {t[0]}, 31, {vL}
v_lshrrev_b32 {t[1]}, 5, {vL}
v_lshlrev_b32 {t[1]}, 4, {t[1]}
v_lshl_add_u32 {t[0]}, {t[0]}, 11, {t[1]}
s_and_b32 s91, {sW}, 1
s_lshl_b32 s91, s91, 16
s_lshl_b32 s94, s93, 6
s_add_u32 s91, s91, s94
s_add_u32 s91, s91, s92
v_add_u32 {vRM}, s91, {t[0]}
s_lshl_b32 s91, {sG16}, 8
s_add_u32 s91, s91, {WS_FL}
v_lshl_add_u32 {vFLp}, {vL}, 2, s91
s_lshl_b32 s94, {sM16}, 2
s_add_u32 s94, s94, {sW}
s_lshl_b32 s94, s94, 2
s_add_u32 s91, s91, s94
v_mov_b32 {vFLo}, s91
v_mov_b32 {t[0]}, 0x7ff00000
v_cmp_eq_u32 vcc, 0, {vL}
v_cndmask_b32 {vFLo}, {t[0]}, {vFLo}, vcc""")
        for s in range(2):
            p(f"""s_add_u32 s91, {sW}, {4*s}
s_xor_b32 s91, s91, {sR3}
s_lshl_b32 s91, s91, 12
s_lshl_b32 s94, {sG16}, 17
s_add_u32 {sA3[s]}, s91, s94""")
        p(f's_cmp_eq_u32 {sR8}, 7\ns_cselect_b32 s91, 3, {sR8}\ns_lshl_b32 {sJ[0]}, s91, 13')
        for j in range(1, 7):
            p(f's_add_u32 {sJ[j]}, {sJ[j-1]}, 8192\ns_cmp_eq_u32 {sJ[j]}, {7*8192}\ns_cselect_b32 {sJ[j]}, 0, {sJ[j]}')
        p(f"""s_cmp_eq_u32 {sRG}, 3
s_cselect_b32 s91, 5, 1
s_add_u32 {sSG}, {sG}, s91
s_cmp_eq_u32 s90, 15
s_cselect_b32 {sSG}, {sG}, {sSG}
s_lshr_b32 s91, {sSG}, 1
v_mov_b32 v252, {sG16}
v_mov_b32 v253, s91
v_cmp_eq_u32 vcc, 0, {vL}
v_cndmask_b32 v252, v253, v252, vcc
v_lshlrev_b32 v252, 7, v252
s_mov_b32 s91, {WS_EP}
buffer_load_dword v253, v252, {SWS}, s91 offen sc1""")
        c = 40
        p(f"""v_mov_b32 v{c}, -1
v_mov_b32 v{c+1}, -1
v_mov_b32 v{c+2}, -1
v_mov_b32 v{c+3}, -1
v_mov_b32 v{c+4}, 0
v_lshrrev_b32 v{c+5}, 3, {vL}
v_and_b32 v{c+6}, 7, {vL}
v_lshlrev_b32 v{c+6}, 4, v{c+6}
v_lshl_add_u32 v{c+5}, v{c+5}, 11, v{c+6}
s_lshl_b32 s88, {sG}, 14
s_add_u32 s88, s88, s92
s_add_u32 s88, s88, {sW4K}
s_add_u32 s88, s88, {WS_HB}
s_lshl_b32 s91, {sG}, 7
s_lshl_b32 s94, {sW}, 4
s_add_u32 s91, s91, s94
s_add_u32 s91, s91, {WS_HS}
s_cmp_eq_u32 {sCB}, 0
s_cselect_b32 s91, s91, 0x7ff00000
v_mov_b32 v{c+6}, s91
s_mov_b64 exec, 0xffff""")
        self.clr = [p(f'buffer_store_dwordx4 {vr(c,4)}, v{c+5}, {SWS}, s88 offen sc1')]
        p('s_mov_b64 exec, 1')
        self.clr.append(p(f'buffer_store_dwordx4 {vr(c,4)}, v{c+6}, {SWS}, 0 offen sc1'))
        p('s_mov_b64 exec, -1')
        if not self.o_rot: p(f's_mov_b32 {sRG}, 0')
        if self.o.get('rotx', 1) & 4: p(f's_and_b32 {sRG}, s2, 3')

    def publish_xcc(self):
        l = self.lab('px')
        return [f'v_readlane_b32 {sE}, v253, 0', f'v_readlane_b32 {sES}, v253, 1', Raw(f"""s_cmp_lg_u32 {sW}, 0
s_cbranch_scc1 {l}
s_lshl_b32 s88, {sG}, 3
s_add_u32 s88, s88, {sCB}
s_lshl_b32 s88, s88, 8
s_add_u32 s88, s88, {WS_XC}
v_sub_u32 v252, 15, {vL}
v_add_u32 v252, v252, v253
v_mov_b32 v253, {sXCC}
v_lshlrev_b32 v254, 7, {vL}
s_mov_b64 exec, 3
buffer_store_dwordx2 v[252:253], v254, {SWS}, s88 offen sc1
s_mov_b64 exec, -1
{l}:""", rd=['v253', sE, sES], wr=['v252', 'v253', 'v254', 's88'], states=2)]
    def mode_issue(self, va, vd):
        return lines(f"""s_lshl_b32 s88, {sG16}, 12
s_lshl_b32 s89, {sPG}, 11
s_sub_u32 s89, s89, {16*256 - 128}
v_lshlrev_b32 {va}, 8, {vL}
v_add_u32 v{vd}, s89, {va}
v_add_u32 {va}, s88, {va}
v_cmp_gt_u32 vcc, 16, {vL}
v_cndmask_b32 {va}, v{vd}, {va}, vcc
v_mov_b32 v{vd}, s88
v_cmp_gt_u32 vcc, 24, {vL}
v_cndmask_b32 {va}, v{vd}, {va}, vcc
v_add_u32 {va}, {WS_XC}, {va}
buffer_load_dwordx2 {vr(vd,2)}, {va}, {SWS}, 0 offen sc1""")
    def mode_check(self, va, vd):
        o = lines(f"""s_cmp_eq_u32 {sHASP}, 0
s_mov_b32 s92, 0xffffff
s_cselect_b32 s92, 0xffff, s92
s_mov_b32 s93, 0
v_lshrrev_b32 v33, 4, {vL}
v_sub_u32 v33, 15, v33
v_add_u32 v33, {sE}, v33""")
        o += self.spin(f'buffer_load_dwordx2 {vr(vd,2)}, {va}, {SWS}, 0 offen sc1', f'v_cmp_ne_u32 vcc, v33, v{vd}', 's[92:93]')
        o += lines(f'v_cmp_ne_u32 vcc, {sXCC}, v{vd+1}\ns_and_b32 {sMODE}, vcc_lo, 0xffff')
        if self.o_glob: o.append(f's_mov_b32 {sMODE}, 1')
        return o
    def bump_epoch(self):
        l = self.lab('ep')
        return Raw(f"""s_add_u32 s88, {sM16}, {sW}
s_cmp_lg_u32 s88, 0
s_cbranch_scc1 {l}
s_lshl_b32 s88, {sG16}, 7
s_add_u32 s88, s88, {WS_EP}
s_add_u32 s89, {sE}, 16
v_mov_b32 v33, s89
v_mov_b32 v34, 0
s_mov_b64 exec, 1
buffer_store_dword v33, v34, {SWS}, s88 offen
s_mov_b64 exec, -1
{l}:""", wr=['v33', 'v34', 's88', 's89'], states=2)

    def stats_final(self, S, Q, t):
        o = [f'v_mul_f32 {S}, {f2u(-1/512)}, {S}', f'v_mul_f32 {Q}, {f2u(1/512)}, {Q}', f'v_fma_f32 {Q}, -{S}, {S}, {Q}', f'v_max_f32 {Q}, 0, {Q}']
        rnd = lambda x: [f'v_cvt_pk_bf16_f32 {x}, {x}, {x}', f'v_and_b32 {x}, 0xffff0000, {x}']
        if self.o_mimic:
            o += rnd(Q) + [f'v_add_f32 {Q}, {f2u(1e-5)}, {Q}'] + rnd(Q) + [f'v_sqrt_f32 {t}, {Q}'] + rnd(S) + rnd(t) + [f'v_rcp_f32 {Q}, {t}']
        else:
            o += [f'v_add_f32 {Q}, {f2u(1e-5)}, {Q}', f'v_sqrt_f32 {t}, {Q}', f'v_rcp_f32 {Q}, {t}']
        return o
    def stats_issue(self, base, sbase, r):
        o = [Ins(f's_add_u32 {sT}, {sbase}, {base}')]
        for i in range(4): o.append(Ins(f'buffer_load_dwordx4 {vr(r+4*i,4)}, {vL16}, {SWS}, {sT} offen offset:{1024*i} sc1'))
        return o
    def stats_reduce(self, r):
        o = []
        for j in range(4): o.append(f'v_add_f32 v{r+j}, v{r+j}, v{r+4+j}')
        for j in range(4): o.append(f'v_add_f32 v{r+8+j}, v{r+8+j}, v{r+12+j}')
        for j in range(4): o.append(f'v_add_f32 v{r+j}, v{r+j}, v{r+8+j}')
        o += [f'v_permlane16_swap_b32 v{r}, v{r+2}', f'v_permlane16_swap_b32 v{r+1}, v{r+3}',
              f'v_add_f32 v{r}, v{r}, v{r+2}', f'v_add_f32 v{r+1}, v{r+1}, v{r+3}',
              f'v_permlane32_swap_b32 v{r}, v{r+1}', f'v_add_f32 v{r}, v{r}, v{r+1}', f'v_mov_b32 v{r+1}, v{r}',
              f'v_permlane32_swap_b32 v{r}, v{r+1}']
        return o

    w1off = 0
    def w1_stage(self, s, seq=False):
        slot = L_R1 + ((s + self.w1off) % 7) * 12288
        pre = []
        if not (seq and s & 1):
            pre += [Ins(f's_xor_b32 {sV}, {sR8}, {s >> 1}'), Ins(f's_mul_i32 {sV}, {sV}, 196608')]
        if s & 1: pre.append(Ins(f's_add_u32 {sV}, {sV}, 98304'))
        out = []
        for part in range(3):
            g = ([Ins(f's_add_u32 m0, {sW3K}, {slot}')] + pre) if part == 0 else []
            g.append(Ins(f'buffer_load_dwordx4 {vW1d}, {SWQKV}, {sV} offen offset:{part*1024} lds', lds=[(slot + q*3072 + part*1024, slot + q*3072 + part*1024 + 1024) for q in range(4)]))
            out.append(g)
        return [sum(out, [])], [last(g) for g in out]
    def a1_chunk(self, L, kc):
        srd = SX if L == 0 else SWS; fl = ' sc1' if L else ''
        rng = lambda o: [(kc*8192 + q*2048 + o*1024, kc*8192 + q*2048 + o*1024 + 1024) for q in range(4)]
        a = Ins(f'buffer_load_dwordx4 {vA1e}, {srd}, {sT} offen{fl} lds', lds=rng(0))
        b = Ins(f'buffer_load_dwordx4 {vA1o}, {srd}, {sT} offen offset:1024{fl} lds', lds=rng(1))
        return [Ins(f's_add_u32 m0, {sW2K}, {kc*8192}'), Ins(f's_xor_b32 {sT}, {sR8s}, {kc*128}'), Ins(f's_add_u32 {sT}, {sT}, {sA1}'), a, b], [a, b]
    def halo_dma(self, L, va, sT=sT):
        srd = SX if L == 0 else SWS; fl = ' sc1' if L else ''
        o = []; tk = []
        for u in range(2):
            d = Ins(f'buffer_load_dwordx4 {va}, {srd}, {sT} offen{fl} lds', lds=[(L_A1H + q*2048 + u*1024, L_A1H + q*2048 + u*1024 + 1024) for q in range(4)])
            o += [Ins(f's_add_u32 m0, {sW2K}, {L_A1H + u*1024}'), Ins(f's_lshl_b32 {sT}, {sW}, 8'), Ins(f's_add_u32 {sT}, {sT}, {u*128}'),
                  Ins(f's_xor_b32 {sT}, {sT}, {sR8s}'), Ins(f's_add_u32 {sT}, {sT}, {sHB if L else sHALO}'), d]
            tk.append(d)
        return o, tk
    def w2_piece(self, i):
        q = (i >> 1) & 3; c = (i & 1)*32768 + (i >> 3)*262144
        o = [Ins(f's_add_u32 m0, {sW1K}, {L_W2 + i*4096}'), Ins(f's_xor_b32 {sT}, {sRG}, {q}'), Ins(f's_lshl_b32 {sT}, {sT}, 16')]
        if c: o.append(Ins(f's_add_u32 {sT}, {sT}, {c}'))
        o.append(Ins(f'buffer_load_dwordx4 {vW2d}, {SWO}, {sT} offen lds', lds=(L_W2 + i*4096, L_W2 + i*4096 + 4096)))
        return o
    def w2_quads(self, t):
        pre = [f's_mul_i32 s93, {sW}, {131072 - 8192}', f'v_add_u32 {t[0]}, s93, {vW2d}'] + [f'v_add_u32 {t[i]}, {7168*i}, {t[0]}' for i in range(1, 4)] + [f's_lshl_b32 s93, {sW}, 14']
        out = []; tk = []
        for i in range(4):
            o = L_W2 + i*4096
            d = [Ins(f'buffer_load_dwordx4 {t[u]}, {SWO}, {sT} offen offset:{u*1024} lds', lds=[(o + w*16384 + u*1024, o + w*16384 + u*1024 + 1024) for w in range(4)]) for u in range(4)]
            out += self.split_dma([Ins(f's_add_u32 m0, s93, {o}'), Ins(f's_mov_b32 {sT}, {i*32768}')] + d); tk += d
        return pre, out, tk
    W4SLOTS = [[8, 2, 3, 4, 5, 0, 1, 6, 7, 8, 2, 3, 4, 5], [8, 8, 8, 8, 0, 1, 2, 3, 4, 5, 6, 7, 8, 1]]
    @property
    def W4SLOT(self):
        if self.layer == 0: return self.W4SLOTS[0]
        n = self.o.get('nwp', 2)
        return ([8]*(n + 1) + list(range(8)) + [8, 1, 2, 3, 4])[:14]
    def w4_setup(self):
        return [f'v_add_u32 {vW4[0]}, {sWd4}, {vW2d}'] + [f'v_add_u32 {vW4[i]}, {7168*i}, {vW4[0]}' for i in range(1, 4)]
    def w4_stage(self, s):
        c, j = divmod(s, 7)
        slot = self.W4SLOT[s] * 16384
        out = []; tk = []
        for h in range(2):
            g = [Ins(f's_add_u32 m0, {sW4K}, {slot}'), Ins(f's_lshl4_add_u32 {sT}, {sJ[j]}, {c*65536}')]
            for i in (2*h, 2*h+1):
                d = Ins(f'buffer_load_dwordx4 {vW4[i]}, {SWD}, {sT} offen offset:{i*1024} lds', lds=[(slot + q*4096 + i*1024, slot + q*4096 + i*1024 + 1024) for q in range(4)])
                g.append(d); tk.append(d)
            out.append(g)
        return out, tk
    def w3_quad(self, q, stg):
        c, kq = divmod(q, 8)
        o = [Ins(f's_add_u32 m0, {sW4K}, {stg}'), Ins(f's_xor_b32 {sU}, {sR3}, {kq}'), Ins(f's_mul_i32 {sU}, {sU}, {4*57344}')]
        if c: o.append(Ins(f's_add_u32 {sU}, {sU}, 128'))
        tk = [Ins(f'buffer_load_dwordx4 {vW3q[i]}, {SW3}, {sU} offen offset:{i*1024} lds', lds=[(stg + w*4096 + i*1024, stg + w*4096 + i*1024 + 1024) for w in range(4)]) for i in range(4)]
        self.w3tok[q] = tk; self.w3stg[q] = stg
        return self.split_dma(o + tk)
    def w3_reads(self, n):
        stg = self.w3stg[n >> 2]; i = n & 3
        va, off = [(vW3r, 0), ('v212', 49152), ('v213', 98304)][min(2, stg // 49152)]
        return [Ins(f'ds_read_b64_tr_b16 {ar(4*n+2*r,2)}, {va} offset:{stg - off + i*1024 + r*512}', lds=[(stg + w*4096 + i*1024, stg + w*4096 + i*1024 + 1024) for w in range(4)]) for r in range(2)]
    def w3_cs(self, n):
        return f'v_mfma_f32_16x16x32_bf16 v[216:219], v[220:223], {ar(4*n,4)}, {0 if n % 32 == 0 else "v[216:219]"}'
    def w3_setup(self):
        return [f'v_add_u32 v212, 49152, {vW3r}', f'v_add_u32 v213, 98304, {vW3r}']
    def w3_take(self, ns):
        p = self.p
        rs = [self.w3_reads(n) for n in ns]
        for i, n in enumerate(ns):
            p(rs[i])
            if i >= 3: p(self.w3_cs(ns[i-3]))
        for n in ns[-3:]: p(self.w3_cs(n))
        return sum(rs, [])
    def w3_sel(self):
        return lines(f"""v_lshrrev_b32 v220, 2, {vL}
v_lshrrev_b32 v221, 4, {vL}
v_xor_b32 v220, v220, v221
v_and_b32 v220, 1, v220
v_cmp_eq_u32 vcc, 0, v220
v_mov_b32 v221, 0x3f803f80
v_cndmask_b32 v220, 0, v221, vcc
v_mov_b32 v221, v220
v_mov_b32 v222, v220
v_mov_b32 v223, v220""")
    CSW = [34, 34]
    def w3_cs_store(self, c):
        o = lines(f"""v_cvt_pk_bf16_f32 v217, v216, v216
v_and_b32 v218, 0xffff0000, v217
v_sub_f32 v216, v216, v218
v_cvt_pk_bf16_f32 v218, v216, v216
v_and_b32 v219, 0xffff0000, v218
v_sub_f32 v216, v216, v219
v_and_b32 v217, 0xffff, v217
v_or_b32 v218, v219, v217
v_cvt_pk_bf16_f32 v219, v216, 0
v_lshlrev_b32 v217, 3, {vL}
s_lshl_b32 s90, {sW}, 9
s_add_u32 s90, s90, {L_CS3 + c*256}
v_add_u32 v217, s90, v217""")
        o.append(['s_mov_b64 exec, 0xffffffff', Ins('ds_write_b64 v217, v[218:219]', lds=(L_CS3, L_CS3 + 2048), private=True), 's_mov_b64 exec, -1'])
        return o

    ATT = dict(ST=144, VS=154, CQ=194, QB=202, KB=210, VB=220, CA=128, CB=132, CB0=136, MA=140, SB=96, PP=230, OA=56, T=246)
    def att_masks(self, T):
        A = self.ATT; CA, CB, CB0, MA = A['CA'], A['CB'], A['CB0'], A['MA']
        o = lines(f"""v_and_b32 v{T}, 15, {vL}
v_lshrrev_b32 v{T+1}, 4, {vL}
v_lshlrev_b32 v142, 2, v{T}
v_add_u32 v142, {L_NM}, v142
v_lshlrev_b32 v143, 4, v{T+1}
v_add_u32 v143, {L_NM}, v143
v_lshlrev_b32 v{T+1}, 2, v{T+1}
v_sub_u32 v{T}, v{T}, v{T+1}
v_mov_b32 v{T+4}, 0xff800000
v_mov_b32 v{T+5}, 0xffff
v_mov_b32 v{T+6}, 0xffff0000
s_cmp_eq_u32 {sHASP}, 0
s_cselect_b64 s[88:89], 0, -1""")
        for j in range(4):
            o += lines(f"""v_subrev_u32 v{T+1}, {j}, v{T}
v_add_u32 v{T+7}, 16, v{T+1}
v_cmp_gt_u32 vcc, 8, v{T+1}
v_cmp_gt_u32 s[90:91], 8, v{T+7}
v_cndmask_b32 v{CA+j}, v{T+4}, 0, vcc
v_cndmask_b32 v{T+8+j}, 0, v{T+5+(j&1)}, vcc
v_cndmask_b32 v{CB+j}, v{T+4}, 0, s[90:91]
v_cndmask_b32 v{CB0+j}, v{T+4}, v{CB+j}, s[88:89]""")
        o += [f'v_or_b32 v{MA}, v{T+8}, v{T+9}', f'v_or_b32 v{MA+1}, v{T+10}, v{T+11}']
        return o
    def att_ones(self): return [f'v_mov_b32 v{112+i}, 0x3f803f80' for i in range(4)]
    def att_tabreads(self):
        A = self.ATT; tab = (L_NM, L_NM + 640)
        o = [Ins(f'ds_read2_b32 {vr(A["ST"]+2*u,2)}, v142 offset0:{16*u} offset1:{80+16*u}', lds=tab) for u in range(5)]
        for u in range(5):
            o.append(Ins(f'ds_read_b128 {vr(A["VS"]+8*u,4)}, v143 offset:{64*u}', lds=tab))
            o.append(Ins(f'ds_read_b128 {vr(A["VS"]+8*u+4,4)}, v143 offset:{64*u+320}', lds=tab))
        return o
    def attention(self, L, extra):
        p = self.p
        QA, KA, VA = 40, 56, 76
        A = self.ATT
        ST, VS, CQ, QB, KB, VB, CA, CB, CB0, MA, SB, PP, OA, T = [A[k] for k in 'ST VS CQ QB KB VB CA CB CB0 MA SB PP OA T'.split()]
        lo, hi = 'op_sel_hi:[1,0,1]', 'op_sel:[0,1] op_sel_hi:[1,1]'
        ONES = 112
        for u in range(5):
            st = vr(ST + 2*u, 2)
            for j in (0, 2): p(f'v_pk_fma_f32 {vr(KA+4*u+j,2)}, {vr(CSK+j,2)}, {st}, {vr(KA+4*u+j,2)} {lo}')
            if u:
                for j in (0, 2): p(f'v_pk_fma_f32 {vr(QA+4*u-4+j,2)}, {vr(CSQ+j,2)}, {st}, {vr(QA+4*u-4+j,2)} {lo}')
            for j in (0, 2): p(f'v_pk_mul_f32 {vr(KA+4*u+j,2)}, {vr(KA+4*u+j,2)}, {st} {hi}')
            if u:
                for j in range(2): p(f'v_cvt_pk_bf16_f32 v{QB+2*u-2+j}, v{QA+4*u-4+2*j}, v{QA+4*u-4+2*j+1}')
            for j in range(2): p(f'v_cvt_pk_bf16_f32 v{KB+2*u+j}, v{KA+4*u+2*j}, v{KA+4*u+2*j+1}')
        p(extra.get('a', []))
        for t in range(4):
            p(f'v_mfma_f32_16x16x16_bf16 {vr(QA+4*t,4)}, {vr(KB+2*(t+1),2)}, {vr(QB+2*t,2)}, {vr(CA,4)}')
            p(f'v_mul_f32 v{CQ+2*t}, {f2u(0.25*LOG2E)}, v{ST+2*t+3}')
            p(f'v_mfma_f32_16x16x16_bf16 {vr(SB+4*t,4)}, {vr(KB+2*t,2)}, {vr(QB+2*t,2)}, {vr(CB0 if t == 0 else CB,4)}')
        p(self.att_ones()); p(extra.get('b', []))
        for u in range(5):
            for j in (0, 2): p(f'v_pk_fma_f32 {vr(VA+4*u+j,2)}, {vr(VS+8*u+j,2)}, {vr(CSV,2)}, {vr(VA+4*u+j,2)} {lo}')
            for j in (0, 2): p(f'v_pk_mul_f32 {vr(VA+4*u+j,2)}, {vr(VA+4*u+j,2)}, {vr(VS+8*u+4+j,2)}')
            for j in range(2): p(f'v_cvt_pk_bf16_f32 v{VB+2*u+j}, v{VA+4*u+2*j}, v{VA+4*u+2*j+1}')
        for t in range(4):
            for j in range(4): p(f'v_max_f32 v{QA+4*t+j}, v{QA+4*t+j}, v{SB+4*t+j}')
        for t in range(4): p(f'v_max3_f32 v{T+t}, v{QA+4*t}, v{QA+4*t+1}, v{QA+4*t+2}')
        for t in range(4): p(f'v_max_f32 v{T+t}, v{T+t}, v{QA+4*t+3}')
        def reduce4(op, ex=None):
            p(f"""v_permlane16_swap_b32 v{T}, v{T+1}
v_permlane16_swap_b32 v{T+2}, v{T+3}
{op} v{T}, v{T}, v{T+1}
{op} v{T+2}, v{T+2}, v{T+3}
v_permlane32_swap_b32 v{T}, v{T+2}
{op} v{T}, v{T}, v{T+2}""")
            if ex: p(ex)
            p(f"""v_mov_b32 v{T+2}, v{T}
v_permlane32_swap_b32 v{T}, v{T+2}
v_mov_b32 v{T+1}, v{T}
v_mov_b32 v{T+3}, v{T+2}
v_permlane16_swap_b32 v{T}, v{T+1}
v_permlane16_swap_b32 v{T+2}, v{T+3}""")
        reduce4('v_max_f32')
        for t in range(4): p(f'v_mul_f32 v{CQ+2*t+1}, v{T+t}, v{CQ+2*t}')
        for t in range(4):
            for j in (0, 2): p(f'v_pk_fma_f32 {vr(QA+4*t+j,2)}, {vr(QA+4*t+j,2)}, {vr(CQ+2*t,2)}, {vr(CQ+2*t,2)} op_sel:[0,0,1] op_sel_hi:[1,0,1] neg_lo:[0,0,1] neg_hi:[0,0,1]')
        for t in range(4):
            for j in range(4): p(f'v_exp_f32 v{QA+4*t+j}, v{QA+4*t+j}')
        for t in range(4):
            p(f"""v_cvt_pk_bf16_f32 v{PP+4*t}, v{QA+4*t}, v{QA+4*t+1}
v_cvt_pk_bf16_f32 v{PP+4*t+1}, v{QA+4*t+2}, v{QA+4*t+3}
v_and_b32 v{PP+4*t+2}, v{MA}, v{PP+4*t}
v_and_b32 v{PP+4*t+3}, v{MA+1}, v{PP+4*t+1}
v_xor_b32 v{PP+4*t}, v{PP+4*t}, v{PP+4*t+2}
v_xor_b32 v{PP+4*t+1}, v{PP+4*t+1}, v{PP+4*t+3}""")
            if t: p(f'v_mfma_f32_16x16x32_bf16 {vr(SB+4*t-4,4)}, {vr(ONES,4)}, {vr(PP+4*t-4,4)}, 0')
            if t: p(f'v_mfma_f32_16x16x32_bf16 {vr(OA+4*t-4,4)}, {vr(VB+2*t-2,4)}, {vr(PP+4*t-4,4)}, 0')
        p(f'v_rcp_f32 v{SB}, v{SB}')
        p(f'v_mfma_f32_16x16x32_bf16 {vr(SB+12,4)}, {vr(ONES,4)}, {vr(PP+12,4)}, 0')
        p(f'v_mfma_f32_16x16x32_bf16 {vr(OA+12,4)}, {vr(VB+6,4)}, {vr(PP+12,4)}, 0')
        for t in range(4):
            if t: p(f'v_rcp_f32 v{SB+4*t}, v{SB+4*t}')
            if t:
                for j in range(4): p(f'v_mul_f32 v{OA+4*t-4+j}, v{SB+4*t-4}, v{OA+4*t-4+j}')
        for j in range(4): p(f'v_mul_f32 v{OA+12+j}, v{SB+12}, v{OA+12+j}')
        for tp in range(2):
            b = PP + 4*tp
            for h in range(2):
                t = 2*tp + h
                for j in range(2): p(f'v_cvt_pk_bf16_f32 v{b+2*h+j}, v{OA+4*t+2*j}, v{OA+4*t+2*j+1}')
        for tp in range(2):
            b = PP + 4*tp
            p(f'v_permlane16_swap_b32 v{b}, v{b+2}\nv_permlane16_swap_b32 v{b+1}, v{b+3}')
        alt, st = self.stores([f'buffer_store_dwordx4 {vr(PP,4)}, {vL16}, {SWS}, {sX} offen', f'buffer_store_dwordx4 {vr(PP+4,4)}, {vL16}, {SWS}, {sY} offen'])
        p(alt)
        return st
    def o_addr(self, L):
        if self.alias:
            return lines(f"""s_mul_i32 {sX}, {sG}, {2*114688}
s_lshl_b32 {sY}, {sCB}, 12
s_add_u32 {sX}, {sX}, {sY}
s_add_u32 {sX}, {sX}, {sW1K}
s_add_u32 {sX}, {sX}, {WS_H[L]}
s_add_u32 {sY}, {sX}, 114688""")
        return lines(f"""s_lshl_b32 {sX}, {sG}, 16
s_lshl_b32 {sY}, {sCB}, 12
s_add_u32 {sX}, {sX}, {sY}
s_add_u32 {sX}, {sX}, {sW1K}
s_add_u32 {sX}, {sX}, {WS_O[L]}
s_add_u32 {sY}, {sX}, 32768""")
    def x1_addr(self, L, d):
        return lines(f"""s_lshl_b32 {d}, {sRB}, 15
s_lshl_b32 s89, {sCB}, 12
s_add_u32 {d}, {d}, s89
s_and_b32 s89, {sW1K}, 2048
s_add_u32 {d}, {d}, s89
s_add_u32 {d}, {d}, {WS_X1[L]}""")
    def st_addr(self, base, d):
        return lines(f"""s_lshl_b32 {d}, {sRB}, 12
s_lshl_b32 s89, {sCB}, 9
s_add_u32 {d}, {d}, s89
s_lshr_b32 s89, {sW}, 1
s_lshl_b32 s89, s89, 8
s_add_u32 {d}, {d}, s89
s_add_u32 {d}, {d}, {base}""")
    def h_addr(self, L):
        return lines(f"""s_mul_i32 {sH0}, {sG16}, {4*114688}
s_lshl_b32 s88, {sM16}, 13
s_add_u32 {sH0}, {sH0}, s88
s_add_u32 {sH0}, {sH0}, {sW1K}
s_add_u32 {sH0}, {sH0}, {WS_H[L]}
s_cmp_lg_u32 {sIDLE}, 0
s_cselect_b32 {sH0}, 0x7fe00000, {sH0}""")
    def touches_p1(self, L, t):
        if not self.o_touch or (self.alias and L == 1 and not self.o.get('t1', True)): return self.o_addr(L)
        o = self.o_addr(L) + [f'v_and_b32 {t}, 7, {vL}', f'v_lshlrev_b32 {t}, 7, {t}', f'v_bfe_u32 v34, {vL}, 3, 1', f'v_mul_u32_u24 v34, {114688 if self.alias else 32768}, v34', f'v_add_u32 {t}, {t}, v34']
        o.append(self.touch(t, sX, 0xffff))
        o += self.x1_addr(L, 's88') + [f'v_lshlrev_b32 {t}, 7, {vL}']
        o.append(self.touch(t, 's88', 0xffff))
        o += self.st_addr(WS_ST1[L], 's88')
        o.append(self.touch(t, 's88', 3))
        if L == 0: o.append(self.touch(vFLp, 0))
        return o
    def touches_h(self, L, t):
        if not self.o_touch or (self.alias and L == 1 and not self.o.get('th1', True)): return []
        o = self.h_addr(L) + lines(f"""v_and_b32 {t}, 7, {vL}
v_lshlrev_b32 {t}, 7, {t}
v_bfe_u32 v34, {vL}, 3, 1
v_lshl_add_u32 {t}, v34, 12, {t}
v_lshrrev_b32 v34, 4, {vL}
v_mul_u32_u24 v34, 114688, v34
v_add_u32 {t}, {t}, v34""")
        o.append(self.touch(t, sH0))
        return o
    def touches_x2(self, t):
        if not self.o_touch: return []
        if self.alias:
            if not self.o.get('tx2', True): return []
            o = self.x1_addr(0, 's88') + [f'v_lshlrev_b32 {t}, 7, {vL}', self.touch(t, 's88', 0xffff)]
            return o + self.st_addr(WS_ST2, 's88') + [self.touch(t, 's88', 3)]
        o = [f's_add_u32 s88, {sROW}, {WS_X2}', self.touch(vRM, 's88', 0xffffffff)]
        o += self.st_addr(WS_ST2, 's88') + [f'v_lshlrev_b32 {t}, 7, {vL}', self.touch(t, 's88', 3)]
        return o

    def p1_wreads(self, s, dq, dk, dv):
        slot = (s + self.w1off) % 7
        va, off = (vW1r0, slot*12288) if slot < 4 else (vW1r1, slot*12288 - 49152)
        lo = L_R1 + slot*12288
        return [Ins(f'ds_read_b64_tr_b16 {vr(dst+2*rd,2)}, {va} offset:{off + part*1024 + rd*512}', lds=[(lo + q*3072 + part*1024, lo + q*3072 + part*1024 + 1024) for q in range(4)])
                for part, dst in ((0, dq), (1, dk), (2, dv)) for rd in range(2)]
    def p1_aread(self, s, t, dst):
        o = (s >> 1)*8192 + t*2048
        return Ins(f'ds_read_b128 {vr(dst,4)}, {vA1r1 if s & 1 else vA1r0} offset:{o}', lds=(o, o+2048))
    def halo_addr(self, a, b):
        return lines(f"""v_and_b32 {a}, 1023, {vA1r0}
v_not_b32 {b}, {vL}
v_and_b32 {b}, 8, {b}
v_lshlrev_b32 {b}, 3, {b}
v_xor_b32 {a}, {a}, {b}
v_add_u32 {a}, {L_A1H}, {a}
v_xor_b32 {b}, 64, {a}""")
    def halo_read(self, s, dst, a, b):
        o = (s >> 1)*1024
        return Ins(f'ds_read_b128 {vr(dst,4)}, {b if s & 1 else a} offset:{o}', lds=(L_A1H + o, L_A1H + o + 1024))
    W2AT = {9: [1, 2, 3], 10: [4, 5, 6], 11: [7, 8, 9], 12: [10, 11, 12], 13: [13, 14, 15], 15: [0]}

    def edf(self, S, items, sigma, name, stream='dma', lead=2):
        t = float(min(x['e'] for x in items)); left = list(items); plan = []
        while left:
            seen = set(); el = []
            for x in left:
                c = x.get('chain')
                if c in seen: continue
                if c is not None: seen.add(c)
                if x['e'] <= t: el.append(x)
            if not el: t = float(min(x['e'] for x in left if x['e'] > t)); continue
            x = min(el, key=lambda y: y['need'])
            gq = x['make']()
            x['t'] = t; x['n'] = len(gq); plan.append(x); left.remove(x)
            for j, y in enumerate(gq):
                tt = min(int(t + sigma*j), len(S.spine) - 1)
                if len(y) > 1: S.add(stream, [y[:-1]], e=max(tt - lead, 0), d=tt, split=True, step=0)
                S.add(stream, [y[-1:]], e=tt, d=tt, step=0)
            t += sigma*len(gq)
        print(f'   edf {name}: min slack', sorted(round(x['need'] - x['t'] - sigma*(x['n']-1), 1) for x in plan)[:5], 'end', round(t, 1))
    def split_dma(self, g):
        out = []; cur = []
        for i in g:
            cur.append(i)
            if i.kind in ('dma', 'vmld'): out.append(cur); cur = []
        assert not cur
        return out

    def p1_first(self):
        p = self.p
        QA, KA, VA, AF, ONE, WB, SA = 40, 56, 76, 96, 120, 224, 152
        wtok = {}; atok = {}
        def A(kc):
            o, tk = self.a1_chunk(0, kc); atok[kc] = tk; return self.split_dma(o)
        def W(s):
            o, tk = self.w1_stage(s, seq=True); wtok[s] = tk; return self.split_dma(o[0])
        p(A(0))
        hd, htok = self.halo_dma(0, 'v124'); p(hd)
        p(W(0)); p(W(1)); p(A(1))
        self.prologue_b()
        for i2 in range(2): p(f'buffer_load_dwordx4 {vr(RES+4*i2,4)}, {vRM}, {SX}, {sROW} offen offset:{32*i2}')
        p(self.halo_addr('v124', 'v125'))
        p(f'v_add_u32 v126, {sW2K}, {vA1r0}\nv_xor_b32 v127, 64, v126')
        for b_ in (ONE, AF + 16, 172, 180):
            for i in range(4): p(f'v_mov_b32 v{b_+i}, 0x3f803f80')
        hm = lambda x: ['s_mov_b64 exec, s[32:33]', x, 's_mov_b64 exec, -1']
        p(W(2)); p(W(3))
        self.ts('p1_go0')
        plan = {0: ['A2', 'W4'], 1: ['A3', 'W5'], 2: ['A4', 'W6'], 3: ['A5', 'W7'], 4: ['A6', 'W8'], 5: ['A7', 'W9'], 6: ['W10', 'W11'], 7: ['W12', 'W13'], 8: ['W14', 'W15']}
        wb = lambda s: WB + 12*(s & 1)
        one = vr(ONE, 4)
        p(WaitTok(wtok[0] + atok[0] + htok)); p('s_barrier')
        self.ts('a1_landed')
        wr = self.p1_wreads(0, wb(0), wb(0)+4, wb(0)+8); p(wr)
        p(hm(self.halo_read(0, AF+16, 'v124', 'v125')))
        for t in range(4): p(self.p1_aread(0, t, AF + 4*t))
        spine = []; base = []
        for s in range(16):
            base.append(len(spine))
            z = (s == 0)
            wq, wk, wv = vr(wb(s), 4), vr(wb(s)+4, 4), vr(wb(s)+8, 4)
            mm = lambda d, x, y, zz=z: f'v_mfma_f32_16x16x32_bf16 {vr(d,4)}, {x}, {y}, {0 if zz else vr(d,4)}'
            h = vr(AF + 16, 4)
            spine += [mm(CSQ, wq, one), mm(KA, wk, h), mm(VA, h, wv)]
            for t in range(4):
                a = vr(AF + 4*t, 4)
                spine += [mm(QA + 4*t, wq, a), mm(KA + 4 + 4*t, wk, a), mm(VA + 4 + 4*t, a, wv)]
            kc = s - 2
            if 0 <= kc < 8:
                for hh in range(2):
                    fa, fh = vr(168 + 8*hh, 4), vr(172 + 8*hh, 4); zz = (kc == 0 and hh == 0)
                    spine += [mm(SA, one, fa, zz), mm(SA+4, fa, fa, zz), mm(SA+12, fh, fh, zz)]
        base.append(len(spine))
        S = Sched(spine)
        w2tok = []
        items = []
        B2 = self.o.get('b20', True)
        ev = (lambda x: x & ~1) if B2 else (lambda x: x)
        nx = (lambda x: (x + 1) & ~1) if B2 else (lambda x: x)
        for kc in range(2, 8): items.append(dict(e=1, need=min(base[ev(2*kc - 1)], base[ev(kc + 2)]), chain='A', make=lambda kc=kc: A(kc)))
        for s in range(4, 16): items.append(dict(e=base[nx(s-7)] + 1 if s >= 7 else 1, need=base[ev(s-1)], chain='W', make=lambda s=s: W(s)))
        def w2mk(i):
            x = self.w2_piece(i); w2tok.append(last(x)); return [x]
        for s, lst in self.W2AT.items():
            for i in lst: items.append(dict(e=base[min(15, nx(s))] + 1, need=base[16] + 40, chain='W2', make=lambda i=i: w2mk(i)))
        for q, s in ((0, 11), (1, 12)): items.append(dict(e=base[nx(s)] + 1, need=base[16] + 30 + q, chain='W3', make=lambda q=q: self.w3_quad(q, 16384 + 16384*q)))
        self.edf(S, items, self.o.get('sg10', 3.2), 'p1 L0')
        tabw = [Ins(f'ds_write2_b32 v169, v{SA}, v{SA+4} offset0:16 offset1:96', lds=(L_NM, L_NM+640)), Ins(f'ds_write2_b32 v168, v{SA+8}, v{SA+12} offset0:0 offset1:80', lds=(L_NM, L_NM+640))]
        ard = None
        for s in range(16):
            b, nb = base[s], base[s+1]
            S.before[b] = self.fts('p10', f'k{s}')
            if ard:
                S.before[b] += [WaitTok(wr + ard[:1])]; S.before[b + 3] = [WaitTok(ard[1:3])]; S.before[b + 9] = [WaitTok(ard[3:])]
            kc = s - 2
            if not B2 or s % 2 == 0 or s == 15:
                toks = list(wr)
                for u in ((s + 1, s + 2) if B2 else (s + 1,)):
                    if u < 16: toks += wtok[u] + atok[u >> 1]
                for u in ((kc, kc + 1) if B2 else (kc,)):
                    if 0 <= u < 8: toks += atok[u]
                if s == (4 if B2 else 3): toks += self.clr
                if s == 15: toks += tabw
                S.at(b, [WaitTok(toks), 's_barrier'])
            if 0 <= kc < 8:
                x = []; tk = []
                for hh in range(2):
                    r1 = Ins(f'ds_read_b128 {vr(168+8*hh,4)}, {"v127" if hh else "v126"} offset:{kc*8192}', lds=(kc*8192, kc*8192 + 8192))
                    r2 = self.halo_read(2*kc + hh, 172 + 8*hh, 'v124', 'v125')
                    x += [r1, hm(r2)]; tk += [r1, r2]
                S.add('sr', x, e=b+1, d=b+11)
                S.before[b + 15] = [WaitTok(tk)]
            if s < 15:
                wr = self.p1_wreads(s+1, wb(s+1), wb(s+1)+4, wb(s+1)+8)
                S.add('wr', wr, e=b+1, d=nb-5, step=1)
                ard = [self.halo_read(s+1, AF+16, 'v124', 'v125')] + [self.p1_aread(s+1, t, AF + 4*t) for t in range(4)]
                S.add('ar', [hm(ard[0])], e=b+3, d=nb-4)
                for t in range(4): S.add('ar', [ard[t+1]], e=b+6+3*t, d=nb+(-3, -1, 3, 4)[t], step=0)
        x = lines(f"""v_and_b32 v168, 3, {vL}
v_cmp_eq_u32 vcc, 1, v168
v_cmp_eq_u32 s[88:89], 2, v168
v_cmp_eq_u32 s[90:91], 3, v168""")
        x += [f'v_mov_b32 v{SA+8}, v{SA+12}', f'v_mov_b32 v{SA+9}, v{SA+12}', f'v_permlane32_swap_b32 v{SA+8}, v{SA+9}']
        for bb in (SA+4, SA+12):
            x += [f'v_cndmask_b32 v{bb}, v{bb}, v{bb+1}, vcc', f'v_cndmask_b32 v{bb}, v{bb}, v{bb+2}, s[88:89]', f'v_cndmask_b32 v{bb}, v{bb}, v{bb+3}, s[90:91]']
        x += self.stats_final(f'v{SA}', f'v{SA+4}', f'v{SA+1}') + self.stats_final(f'v{SA+8}', f'v{SA+12}', f'v{SA+9}')
        x += lines(f"""v_and_b32 v168, 15, {vL}
v_lshlrev_b32 v168, 2, v168
v_add_u32 v168, {L_NM}, v168
s_lshl_b32 s88, {sW}, 6
v_add_u32 v169, s88, v168""")
        x.append(['s_mov_b32 exec_lo, 0x00f0000f', 's_mov_b32 exec_hi, 0xf0000f00'] + tabw + ['s_mov_b64 exec, -1'])
        wt = self.o.get('wat', 0)
        S.add('misc', self.warm_touch('v196') + [[f's_cmp_lg_u32 {sIDLE}, 0', 's_cselect_b32 s18, 0, s18']], e=base[wt]+1, d=base[wt+1]-1)
        S.add('misc', self.att_masks(184), e=base[1]+1, d=base[3]-1)
        S.add('misc', self.publish_xcc(), e=base[4 if B2 else 3]+1, d=base[5 if B2 else 4])
        S.add('misc', self.touches_p1(0, 'v196'), e=base[6], d=base[9])
        S.add('misc', self.mode_issue('v197', 198), e=base[9], d=base[10]+1)
        S.add('misc', [f'v_add_u32 {vW3q[i]}, {i*(57344-1024)}, {vW3d}' for i in range(1, 4)], e=base[10], d=base[11] - 3)
        if self.o.get('ct2', False): S.add('misc', [self.code_touch()], e=base[10], d=base[11])
        S.add('misc', x, e=base[10]+2, d=base[14])
        th0 = self.touches_h(0, 'v200') if not self.o.get('th3', 3) & 1 else []; thi0 = th0[-1:]
        self.th0 = thi0
        S.add('misc', th0[:-1] + (thi0 if self.o.get('tha', 0) == 1 else []), e=base[12], d=base[13])
        S.add('misc', self.p2_setup(0), e=base[13], d=base[14])
        S.add('misc', [self.mode_check('v197', 198)], e=base[14], d=base[15]-1)
        S.add('misc', self.att_tabreads(), e=base[15]+1, d=base[16]-2)
        self.win(S, '10')
        S.emit(p, 'p1 L0')
        self.ts('p1_loop0')
        for j in range(4): p(f'v_mov_b32_dpp v{CSK+j}, v{KA+j} row_newbcast:0 row_mask:0xf bank_mask:0xf')
        p(f'v_mov_b32 v{CSV}, v{VA}\nv_mov_b32 v33, v{VA}\nv_permlane32_swap_b32 v{CSV}, v33')
        p('s_waitcnt lgkmcnt(0)'); p('s_barrier')
        nq = self.o.get('nqa', 2); tha = self.o.get('tha', 0)
        if nq >= 1: p(self.w3_quad(2, 49152))
        if tha == 0 and not self.o.get('th3', 3) & 1: p(thi0)
        st = self.attention(0, {'a': self.w3_quad(3, 65536) if nq >= 2 else []})
        self.nq1 = 2 + nq
        self.ts('p1_attn0')
        self.post_flag(1, st)
        self.ts('p1_end0')
        return w2tok

    def p1_second(self, pre):
        p = self.p
        QA, KA, VA, AF, WQ, WK, WV = 40, 56, 76, 96, 112, 128, 192
        wtok = dict(pre); atok = {}
        def A(kc):
            o, tk = self.a1_chunk(1, kc); atok[kc] = tk; return self.split_dma(o)
        p('v_mov_b32 v120, v127')
        dst = lambda s: (WQ + 4*(s & 1), WK + 4*s, WV + 4*s)
        p(WaitTok(wtok[0])); p('s_barrier')
        wr = self.p1_wreads(0, *dst(0)); p(wr)
        self.poll(5, sMK1)
        self.ts('p1_go1')
        p(A(0)); p(A(1))
        p(self.stats_issue(WS_ST2, 's92', 240))
        p(A(2))
        p(WaitTok(atok[0])); p('s_barrier')
        for t in range(4): p(self.p1_aread(0, t, AF + 4*t))
        self.ts('p1_stats1')
        spine = []
        for s in range(16):
            z = (s == 0)
            dq, dk, dv = dst(s)
            mm = lambda d, x, y: f'v_mfma_f32_16x16x32_bf16 {vr(d,4)}, {x}, {y}, {0 if z else vr(d,4)}'
            for t in range(4):
                a = vr(AF + 4*t, 4)
                spine += [mm(QA + 4*t, vr(dq,4), a), mm(KA + 4 + 4*t, vr(dk,4), a), mm(VA + 4 + 4*t, a, vr(dv,4))]
        hb = len(spine)
        for s in range(16):
            a = vr(AF + 4*(s & 3), 4); k, v = vr(KA, 4), vr(VA, 4)
            spine.append(f'v_mfma_f32_16x16x32_bf16 {k}, {vr(WK+4*s,4)}, {a}, {0 if s == 0 else k}')
            spine.append(f'v_mfma_f32_16x16x32_bf16 {v}, {a}, {vr(WV+4*s,4)}, {0 if s == 0 else v}')
        S = Sched(spine)
        w2tok = []
        hd, htok = self.halo_dma(1, 'v120')
        items = []
        def W(s):
            o, tk = self.w1_stage(s, seq=True); wtok[s] = tk; return self.split_dma(o[0])
        B2 = self.o.get('b2', True)
        ev = (lambda x: x & ~1) if B2 else (lambda x: x)
        nx = (lambda x: (x + 1) & ~1) if B2 else (lambda x: x)
        for kc in range(3, 8): items.append(dict(e=0, need=12*ev(2*kc - 1), chain='A', make=lambda kc=kc: A(kc)))
        for s in range(16):
            if s not in wtok: items.append(dict(e=12*nx(s - 7) + 1 if s >= 7 else 0, need=12*ev(s - 1), chain='W', make=lambda s=s: W(s)))
        items.append(dict(e=12*self.o.get('hat', 9), need=12*11, make=lambda: self.split_dma(hd)))
        self.edf(S, items, self.o.get('sg11', 2.7), 'p1 L1', lead=3)
        w2pre, w2, w2tok = self.w2_quads(['v36', 'v37', 'v10', 'v121'])
        NW2 = self.o.get('nw2h', 12)
        S.add('dma', w2[:NW2], e=12*15+1, d=hb+30, split=True)
        tabw = [Ins('ds_write2_b32 v125, v240, v241 offset0:16 offset1:96', lds=(L_NM, L_NM+640)), Ins('ds_write_b32 v126, v125', lds=[(L_NM, L_NM+64), (L_RS, L_RS+64)])]
        ard = None
        for s in range(16):
            b = 12*s
            S.before[b] = self.fts('p11', f'k{s}')
            if ard:
                S.before[b] += [WaitTok(wr + ard[:2])]; S.before[b + 6] = [WaitTok(ard[2:])]
            if not B2 or s % 2 == 0 or s == 15:
                toks = list(wr)
                for u in ((s + 1, s + 2) if B2 else (s + 1,)):
                    if u < 16: toks += wtok[u] + atok[u >> 1]
                if s == 15: toks += tabw + htok
                S.at(b, [WaitTok(toks), 's_barrier'])
            if s < 15:
                wr = self.p1_wreads(s+1, *dst(s+1))
                S.add('wr', wr, e=b+1, d=b+9, step=1)
                ard = [self.p1_aread(s+1, t, AF + 4*t) for t in range(4)]
                for t in range(4): S.add('ar', [ard[t]], e=b+3+3*t, d=b+(7, 9, 13, 14)[t], step=0)
        S.before[hb] = self.cap(lambda: self.ts('p1_loop1'))
        for s in range(16):
            e = 12*15 + 3 + 3*s if s < 4 else hb + 2*(s-4) + 2
            S.add('ar', [self.halo_read(s, AF + 4*(s & 3), 'v122', 'v123')], e=e, d=max(e, hb + 2*s - 4))
        lh = self.lab('hs')
        S.add('misc', [Raw(f"""s_bitcmp1_b32 {sW}, 0
s_cbranch_scc0 {lh}
s_lshl_b32 s88, {sG}, 14
s_add_u32 s88, s88, {WS_HB - 56*2048}
s_mov_b32 exec_lo, 0xff000000
s_mov_b32 exec_hi, 0xff000000
buffer_store_dwordx4 {vr(RES,4)}, {vRM}, {SWS}, s88 offen sc1
buffer_store_dwordx4 {vr(RES+4,4)}, {vRM}, {SWS}, s88 offen offset:32 sc1
s_mov_b64 exec, -1
{lh}:""", rd=[vr(RES, 8)], wr=['s88'], states=2)], e=10, d=11)
        x = self.stats_reduce(240) + self.stats_final('v240', 'v241', 'v242') + lines(f"""v_and_b32 v124, 15, {vL}
v_lshlrev_b32 v124, 3, v124
v_bfe_u32 v125, {vL}, 4, 1
v_lshl_add_u32 v124, v125, 2, v124
s_and_b32 s88, {sW}, 1
s_lshl_b32 s88, s88, 7
s_add_u32 s88, s88, {L_NM}
v_add_u32 v125, s88, v124""")
        x.append(tabw[0])
        lh = self.lab('ht')
        x.append(Raw(f"""s_lshl_b32 s88, {sCB}, 2
s_add_u32 s88, s88, {sW}
s_cmp_lg_u32 s88, 1
s_cbranch_scc1 {lh}
s_lshl_b32 s88, {sG}, 7
s_add_u32 s88, s88, {WS_HS - 96}
s_mov_b32 exec_lo, 0xf000f000
s_mov_b32 exec_hi, 0
buffer_store_dword v240, v124, {SWS}, s88 offen sc1
buffer_store_dword v241, v124, {SWS}, s88 offen offset:32 sc1
s_mov_b64 exec, -1
{lh}:""", rd=['v240', 'v241', 'v124'], wr=['s88'], states=2))
        S.add('misc', x, e=12, d=12*5, step=0.8)
        S.add('misc', self.touches_p1(1, 'v121') + ([self.code_touch()] if self.o.get('ct2', False) else []), e=12*9, d=12*10 - 1)
        S.add('misc', [f's_lshl_b32 s88, {sPG}, 7', f's_add_u32 s94, s88, {WS_HS}', [f's_cmp_eq_u32 {sHASP}, 0', 's_cselect_b32 s94, 0x7ff00000, s94'], f'v_and_b32 v124, 15, {vL}', 'v_lshlrev_b32 v124, 2, v124',
                       f'buffer_load_dword v125, v124, {SWS}, s94 offen sc1', f's_add_u32 s88, {sW2K}, {L_A1H}', f'v_add_u32 v121, s88, {vL16}'], e=12*10, d=12*12, step=1)
        S.add('misc', lines(f"""v_and_b32 v126, 7, {vL}
v_lshlrev_b32 v126, 2, v126
v_bfe_u32 v127, {vL}, 3, 1
v_mul_u32_u24 v127, 320, v127
v_add_u32 v126, v126, v127
v_bfe_u32 v127, {vL}, 4, 1
v_lshl_add_u32 v126, v127, 5, v126
v_add_u32 v126, {L_NM}, v126"""), e=12*11, d=12*14, step=1)
        r = [Ins(f'ds_read_b32 v{122+u}, v121 offset:{u*1024}', lds=(L_A1H, L_A1H + 8192), private=True) for u in range(2)]
        for d in htok: d.private = True
        hd2, _ = self.halo_dma(1, 'v120', 's90')
        S.add('misc', [[WaitTok(htok)] + r], e=12*14, d=12*14+1)
        S.add('misc', [self.spin('s_mov_b32 s93, m0\n' + '\n'.join(i.text for i in hd2) + '\ns_mov_b32 m0, s93', 'v_max_u32 v122, v122, v123\nv_cmp_eq_u32 vcc, -1, v122', 'exec',
                                 pre='ds_read_b32 v122, v121\nds_read_b32 v123, v121 offset:1024\ns_waitcnt lgkmcnt(0)')], e=12*14+5, d=12*14+5)
        S.add('misc', [self.spin(f'buffer_load_dword v125, v124, {SWS}, s94 offen sc1', 'v_cmp_eq_u32 vcc, -1, v125', 'exec'), tabw[1]], e=12*14+7, d=12*14+10)
        S.add('misc', self.halo_addr('v122', 'v123') + w2pre, e=12*14+8, d=12*15)
        th = self.touches_h(1, 'v120') if not self.o.get('th3', 3) & 2 else []; thi = th[-1:]
        S.add('misc', self.p2_setup(1, rot=False) + th[:-1], e=12*15+2, d=hb+7)
        S.add('misc', self.att_masks(192), e=hb+8, d=hb+29)
        tr = self.att_tabreads()
        S.add('tab', tr[:5], e=hb+20, d=hb+30); S.add('tab', tr[5:], e=hb+31)
        self.win(S, '11')
        S.emit(p, 'p1 L1')
        self.ts('p1_halo1')
        st = self.attention(1, {'a': w2[NW2:], 'b': thi})
        self.ts('p1_attn1')
        self.post_flag(6, st)
        self.ts('p1_end1')
        return w2tok

    def epi_pre(self):
        o = [f'v_add_u32 v122, {sW4K}, {vL16}', 'v_xor_b32 v123, 8192, v122']
        o += lines(f"""v_and_b32 v240, 31, {vL}
v_lshlrev_b32 v240, 3, v240
v_lshrrev_b32 v241, 5, {vL}
v_lshl_add_u32 v240, v241, 2, v240""")
        return o
    def tile_spine(self, n):
        D = self.o.get('dsk', 5)
        sp = sum((self.tile_mfmas(k, k == 0) for k in range(n - D)), [])
        tail = [self.tile_mfmas(k, False) for k in range(n - D, n)]
        return sp + [t[0] for t in tail] + [t[1] for t in tail]
    def xwrites(self):
        rng = lambda q: [(L_XB + w*4096 + q*1024, L_XB + w*4096 + q*1024 + 1024) for w in range(4)]
        return [Ins(f'ds_write_b128 v122, {vr(104+4*q,4)} offset:{L_XB + q*1024}', lds=rng(q)) for q in range(4)]
    def tile_epilogue(self, kind, L):
        p = self.p
        OWN, X = 40, 56
        for q in range(4):
            for i in (4*q, 4*q+2): p(f'v_pk_add_f32 {vr(OWN+i,2)}, {vr(OWN+i,2)}, {vr(X+i,2)}')
            for i in (2*q, 2*q+1): p(f'v_cvt_pk_bf16_f32 v{RES+i}, v{OWN+2*i}, v{OWN+2*i+1}')
        if kind == 'out':
            p(f'buffer_store_dwordx4 {vr(RES,4)}, {vRM}, {SOUT}, {sROW} offen')
            p(f'buffer_store_dwordx4 {vr(RES+4,4)}, {vRM}, {SOUT}, {sROW} offen offset:32')
            return None
        if kind == 'x1': alt, st = self.stores([f'buffer_store_dwordx4 {vr(RES,4)}, {vL16}, {SWS}, {sX} offen', f'buffer_store_dwordx4 {vr(RES+4,4)}, {vL16}, {SWS}, {sX} offen offset:1024'])
        else:
            va = 'v242' if self.alias else vRM
            alt, st = self.stores([f'buffer_store_dwordx4 {vr(RES,4)}, {va}, {SWS}, {sX} offen', f'buffer_store_dwordx4 {vr(RES+4,4)}, {va}, {SWS}, {sX} offen offset:32'])
        p(alt)
        p(f'v_pk_add_f32 v[88:89], {vr(OWN,2)}, {vr(OWN+2,2)}\nv_pk_mul_f32 v[90:91], {vr(OWN,2)}, {vr(OWN,2)}\nv_pk_fma_f32 v[90:91], {vr(OWN+2,2)}, {vr(OWN+2,2)}, v[90:91]')
        for i in range(4, 16, 2):
            p(f'v_pk_add_f32 v[88:89], v[88:89], {vr(OWN+i,2)}\nv_pk_fma_f32 v[90:91], {vr(OWN+i,2)}, {vr(OWN+i,2)}, v[90:91]')
        p("""v_add_f32 v88, v88, v89
v_add_f32 v90, v90, v91
v_permlane32_swap_b32 v88, v90
v_add_f32 v88, v88, v90""")
        alt2, st2 = self.stores([f'buffer_store_dword v88, v240, {SWS}, {sY} offen'])
        p(alt2)
        return st + st2
    ARING = [128 + 4*i for i in range(16)] + [224, 228, 232, 236, 248, 252]
    WPRE = [128 + 4*i for i in range(16)] + [212, 216, 220, 224, 228, 232, 236, 248]
    big = False
    def wregs(self, k):
        if self.big and k < 4*self.NWP: return self.WPRE[2*k], self.WPRE[2*k+1]
        r = 72 + 8*((k + 2) % 4)
        return r, r + 4
    def areg(self, k):
        if self.big: return ar(4*k if k < 28 else 128 + 4*(k - 28), 4)
        return vr(self.ARING[k % 22], 4)
    def wfrag_reads(self, k, base, va, vb, lo):
        own, oth = self.wregs(k)
        return [Ins(f'ds_read_b64_tr_b16 {vr(r+2*rd,2)}, {ad} offset:{base + rd*512}', lds=lo) for r, ad in ((oth, vb), (own, va)) for rd in range(2)]
    def tile_mfmas(self, k, z):
        own, oth = self.wregs(k); a = self.areg(k)
        return [f'v_mfma_f32_32x32x16_bf16 {vr(104,16)}, {vr(oth,4)}, {a}, {0 if z else vr(104,16)}',
                f'v_mfma_f32_32x32x16_bf16 {vr(40,16)}, {vr(own,4)}, {a}, {vr(40,16)}']
    def res_unpack(self):
        return sum(([f'v_lshlrev_b32 v{40+2*i}, 16, v{RES+i}', f'v_and_b32 v{41+2*i}, 0xffff0000, v{RES+i}'] for i in range(8)), [])
    def tile_pos(self, n):
        D = self.o.get('dsk', 5)
        return [(2*k, 2*k + 1) if k < n - D else (2*(n - D) + (k - (n - D)), 2*(n - D) + D + (k - (n - D))) for k in range(n)]
    def add_wreads(self, S, B, n, k0, rd, gate=None, note=None):
        pos = self.tile_pos(n)
        for m in range(k0, n):
            r = rd(m)
            if note: note(m, r)
            if pos[m][1] == pos[m][0] + 1: S.before[B + pos[m][0]] = S.before.get(B + pos[m][0], []) + [WaitTok(r)]
            for h in range(2):
                e = pos[m-4][h] + 1 if m >= 4 else 0
                e = max(e, pos[m][h] - 8, gate(m) if gate else 0)
                S.add('wr%d' % h, r[2*h:2*h+2], e=B + e, d=B + max(e, min(pos[m][h] - 3, pos[m][0] - 2 if pos[m][1] == pos[m][0] + 1 else 999)), step=0.5)
    def add_exchange(self, S, B, n):
        D = self.o.get('dsk', 5)
        rng = lambda q: [(L_XB + w*4096 + q*1024, L_XB + w*4096 + q*1024 + 1024) for w in range(4)]
        ws = self.xwrites(); last_oth = B + 2*n - D - 1
        S.add('xw', ws, e=last_oth + 2, d=last_oth + 5, step=0.9)
        rs = [Ins(f'ds_read_b128 {vr(56+4*q,4)}, v123 offset:{L_XB + q*1024}', lds=rng(q)) for q in range(4)]
        at = min(last_oth + 6, B + 2*n - 1)
        S.add('xw', [[WaitTok(ws), 's_barrier']] + rs, e=at, d=B + 2*n - 1, step=0)

    def p2_setup(self, L, rot=True):
        o = lines(f"""s_lshr_b32 s88, {sW}, 1
s_lshl_b32 s89, s88, 15
s_add_u32 s89, s89, {L_W2}
v_add_u32 v126, s89, {vWown}
v_add_u32 v127, s89, {vWoth}
s_lshl_b32 s88, s88, 14
s_mul_i32 s89, {sRB}, {114688 if self.alias else 32768}
s_add_u32 s89, s89, s88
s_add_u32 s89, s89, {WS_H[L] if self.alias else WS_O[L]}""")
        if not rot: return o + [f's_add_u32 {sA2[q]}, s89, {q*4096}' for q in range(4)]
        for q in range(4): o += lines(f's_xor_b32 {sA2[q]}, {sRG}, {q}\ns_lshl_b32 {sA2[q]}, {sA2[q]}, 12\ns_add_u32 {sA2[q]}, {sA2[q]}, s89')
        return o
    def p3_setup(self, L):
        return self.w4_setup() + lines(f"""v_add_u32 v124, 65536, {vL16}
v_and_b32 v125, 31, {vL}
v_lshlrev_b32 v125, 4, v125
v_add_u32 v125, {L_T3}, v125
v_lshlrev_b32 v206, 3, {vL}
s_lshl_b32 s88, {sW}, 9
s_add_u32 s88, s88, {L_CS3}
v_add_u32 v206, s88, v206
s_lshl_b32 s92, {sG16}, 2
s_add_u32 s92, s92, {sW}
s_lshl_b32 s92, s92, 12""") + self.h_addr(L)
    def p1_setup(self):
        if self.alias:
            return lines(f"""s_lshl_b32 {sX}, {sG}, 16
s_add_u32 {sX}, {sX}, {WS_X1[0]}
s_lshl_b32 {sA1}, {sW}, 14
s_add_u32 {sA1}, {sA1}, {sX}
s_lshl_b32 {sHB}, {sPG}, 14
s_add_u32 {sHB}, {sHB}, {WS_HB}
s_cmp_eq_u32 {sHASP}, 0
s_cselect_b32 {sHB}, {sX}, {sHB}
s_lshl_b32 s92, {sRB}, 12
v_xor_b32 v127, 64, {vA1e}
v_lshrrev_b32 v242, 11, {vA1e}
v_and_b32 {vA1e}, 127, {vA1e}
v_lshl_add_u32 {vA1e}, v242, 10, {vA1e}
v_xor_b32 {vA1o}, 64, {vA1e}
v_add_u32 {vA1o}, {8192 - 1024}, {vA1o}
v_lshrrev_b32 v242, 11, {vRM}
v_and_b32 v243, 1023, {vRM}
v_lshl_add_u32 v242, v242, 10, v243""")
        return lines(f"""s_add_u32 {sA1}, {sA1}, {WS_X2}
s_lshl_b32 {sHB}, {sPG}, 14
s_add_u32 {sHB}, {sHB}, {WS_HB}
s_add_u32 s88, {sROW}, {WS_X2}
s_cmp_eq_u32 {sHASP}, 0
s_cselect_b32 {sHB}, s88, {sHB}
s_lshl_b32 s92, {sRB}, 12
v_xor_b32 v127, 64, {vA1e}""")
    def p2(self, L, w2tok):
        p = self.p
        p(WaitTok(w2tok + sum(self.w3tok.values(), []))); p('s_barrier')
        rd = lambda k: self.wfrag_reads(k, k*2048, 'v126', 'v127', [(L_W2 + h*32768 + k*2048, L_W2 + h*32768 + k*2048 + 2048) for h in range(2)])
        for k in range(3): p(rd(k))
        p(self.res_unpack())
        if L == 0:
            p(self.w3_setup()); p(self.w3_sel())
            rs = self.w3_take(list(range(4*self.nq1)))
            p(WaitTok(rs)); p('s_barrier')
        self.poll(1 + 5*L, sMK2)
        self.ts(f'p2_go{L}')
        al = [f'buffer_load_dwordx4 {vr(128+4*k,4)}, {vL16}, {SWS}, {sA2[k >> 2]} offen offset:{(k%4)*1024} sc1' for k in range(16)]
        NP = 10
        p(al[:NP])
        S = Sched(self.tile_spine(16))
        self.add_exchange(S, 0, 16)
        S.add('a', al[NP:], e=0, d=12, step=1, split=True)
        self.add_wreads(S, 0, 16, 3, rd)
        if L == 0:
            nq2 = min(7, self.nq1 + 4)
            self.nq2 = nq2
            S.add('dma', sum((self.w3_quad(q, 16384*(q - self.nq1 + 1)) for q in range(self.nq1, nq2)), []), e=8, d=31, step=self.o.get('q2s', 1.9) if nq2 - self.nq1 == 3 else 1.4, split=True)
            if self.o.get('tha', 0) == 2: S.add('misc', self.th0, e=26, d=30)
        S.add('misc', self.p3_setup(L) + self.x1_addr(L, sX) + self.st_addr(WS_ST1[L], sY) + self.epi_pre(), e=2, d=22)
        self.win(S, f'2{L}')
        S.emit(p, f'p2 L{L}')
        self.ts(f'p2_mm{L}')
        st = self.tile_epilogue('x1', L)
        self.ts(f'p2_epi{L}')
        if L == 0:
            p(self.w3_quad(7, 98304))
        self.post_flag(2 + 5*L, st)
        self.ts(f'p2_end{L}')

    def p3(self, L):
        p = self.p
        ACC, AF, CS, TK, HO, SR = 40, 72, 120, 240, 192, 224
        lskip = self.lab('p3skip')
        w4 = {}
        self.layer = L
        self.w1off = 2
        if L == 0:
            assert self.nq2 == 7
            p(WaitTok(sum((self.w3tok[q] for q in range(self.nq1, 7)), []))); p('s_barrier')
            self.w3_take(list(range(4*self.nq1, 28)))
        p('s_waitcnt lgkmcnt(0)'); p('s_barrier')
        p(f's_cmp_lg_u32 {sIDLE}, 0\ns_cbranch_scc1 {lskip}')
        self.poll(2 + 5*L, 'exec')
        self.ts(f'p3_go{L}')
        atok = {}
        def adma(rb, s, area=None):
            o = (rb if area is None else area)*32768 + s*16384
            d = [Ins(f'buffer_load_dwordx4 {vL16}, {SWS}, {sT} offen offset:{u*1024} sc1 lds', lds=[(o + q*4096 + u*1024, o + q*4096 + u*1024 + 1024) for q in range(4)]) for u in range(4)]
            atok[(rb, s, area)] = d
            return self.split_dma([Ins(f's_add_u32 m0, {sW4K}, {o}'), Ins(f's_add_u32 {sT}, {sA3[s]}, {WS_X1[L] + rb*32768}')] + d)
        for s in range(2): p(adma(0, s))
        if L == 0:
            tiles = [(0, 0), (0, 1), (0, 2), (0, 3), (1, 1), (1, 2), (1, 3), (1, 0)]; area = [0, 1, 2, 0, 1, 2, 0, 3]
        else:
            tiles = [(c, rb) for c in range(2) for rb in range(4)]; area = [0, 1, 2, 3, 0, 1, 2, 3]
        NR = 12
        def aread(n):
            ti, ks = divmod(n, 32)
            o = area[ti]*32768 + ks*1024
            return Ins(f'ds_read_b128 {vr(AF+4*(n % NR),4)}, {"v124" if o >= 65536 else vL16} offset:{o % 65536}', lds=(o, o+1024))
        def epilogue(ti):
            c, rb = tiles[ti]
            A = ACC + 16*(ti & 1); tk = TK + 4*(ti & 1); ho = HO + 4*(ti & 1)
            o = []
            gi = lambda i: (i >> 2)*8 + (i & 3)
            for i in range(9):
                if i < 8: o.append(f'v_mul_f32 v{A+gi(i)}, v{tk+3}, v{A+gi(i)}')
                if i: o.append(f'v_exp_f32 v{A+gi(i-1)}, v{A+gi(i-1)}')
            for i in range(8): o.append(f'v_fma_f32 v{A+gi(i)}, v{A+gi(i)}, v{tk+2}, v{tk+2}')
            for i in range(8):
                o.append(f'v_rcp_f32 v{A+gi(i)}, v{A+gi(i)}')
                if i: o.append(f'v_mul_f32 v{A+gi(i-1)}, v{A+gi(i-1)}, v{A+gi(i-1)+4}')
            o.append(f's_add_u32 s94, {sH0}, {rb*114688 + c*4096}')
            o.append(f'v_mul_f32 v{A+gi(7)}, v{A+gi(7)}, v{A+gi(7)+4}')
            for i in range(4): o.append(f'v_cvt_pk_bf16_f32 v{ho+i}, v{A+gi(2*i)}, v{A+gi(2*i+1)}')
            alt, st = self.stores([f'buffer_store_dwordx4 {vr(ho,4)}, {vL16}, {SWS}, s94 offen'])
            o.append(alt)
            return o, st
        def csreads(c):
            r = Ins(f'ds_read_b64 {vr(CS+2*c,2)}, v206 offset:{c*256}', lds=(L_CS3, L_CS3+2048), private=True)
            return [[f'v_mov_b32 v{CS+2*c}, 0', f'v_mov_b32 v{CS+2*c+1}, 0', 's_mov_b64 exec, 0xffffffff', r, 's_mov_b64 exec, -1']], r
        p(self.fts(f'p3{L}', 'issued'))
        p(WaitTok(atok[(0, 0, None)])); p('s_barrier')
        rds = [aread(n) for n in range(256)]
        for n in range(8): p(rds[n])
        CS0, CS1 = 20, self.o.get('cs1', 148)
        spine = []; slot = []
        for n in range(256):
            if L == 0 and n == CS0: spine += [self.w3_cs(x) for x in range(28, 32)]
            if L == 0 and n == CS1: spine += [self.w3_cs(x) for x in range(32, 64)]
            ti, ks = divmod(n, 32); c, rb = tiles[ti]
            A = vr(ACC + 16*(ti & 1), 16)
            slot.append(len(spine))
            spine.append(f'v_mfma_f32_32x32x16_bf16 {A}, {ar(c*128+4*ks,4)}, {vr(AF+4*(n % NR),4)}, {0 if ks == 0 else A}')
            if ks == 31: spine.append(f'v_mfma_f32_32x32x8_bf16 {A}, {vr(CS+2*c,2)}, {vr(TK+4*(ti&1),2)}, {A}')
        sl = lambda n: slot[max(0, min(int(n), 255))]
        self.big = (L == 1); self.NWP = self.o.get('nwp', 2)
        B4 = len(spine)
        spine += self.tile_spine(56)
        S = Sched(spine)
        for n in range(0, 256, 4): S.before[sl(n)] = [WaitTok(rds[n:n+4])]
        for ti in range(8): S.before[sl(32*ti)] = self.fts(f'p3{L}', f't{ti}') + S.before[sl(32*ti)]
        bars = {}
        def bar(n, toks): bars.setdefault(n, []).extend(toks)
        gate = {}
        def publish(first, toks): bar(first - 9, toks); gate[first] = first - 9
        st_issue = self.stats_issue(WS_ST1[L], 's92', SR)
        items = [dict(e=0, need=sl(8), make=lambda: [st_issue[:2]] + [[y] for y in st_issue[2:]])]
        publish(16, atok[(0, 1, None)])
        pubs = []
        def aitem(rb, s, ar_, e, first):
            items.append(dict(e=sl(e), need=sl(first - 9), chain='A', make=lambda: adma(rb, s, ar_))); pubs.append((first, (rb, s, ar_)))
        aitem(1, 0, None, 0, 32); aitem(1, 1, None, 0, 48); aitem(2, 0, None, 0, 64); aitem(2, 1, None, 0, 64 if L else 80)
        if L == 1:
            aitem(3, 0, None, 0, 96); aitem(3, 1, None, 0, 96)
        else:
            aitem(3, 0, 0, 40, 96); aitem(3, 1, 0, 40, 112)
            bar(39, rds[20:32])
            SLOT = [98304, 114688, 131072]
            iss = {8: 8, 9: 8, 10: 24, 11: 56, 12: 56, 13: 72, 14: 104, 15: 104}
            rd_at = {7: 7, 8: 39, 9: 39, 10: 55, 11: 87, 12: 87, 13: 103, 14: 135, 15: 135}
            for q in range(8, 16): items.append(dict(e=sl(iss[q]), need=sl(rd_at[q] - 8), chain='W', make=lambda q=q: self.w3_quad(q, SLOT[(q - 7) % 3])))
        self.edf(S, items, self.o.get('sg3%d' % L, 1.4 if L == 0 else 1.8), f'p3 L{L}')
        for first, key in pubs: publish(first, atok[key])
        if L == 0:
            for q in range(7, 16):
                at = rd_at[q]
                r = sum((self.w3_reads(n) for n in range(4*q, 4*q + 4)), [])
                bar(at, self.w3tok[q])
                if q < 14: bar(at + 16, r)
                S.add('w3r', r, e=sl(at), d=sl(min(at + 14, CS1 - 3 if q >= 14 else 999, CS0 - 3 if q == 7 else 999)))
                if q == 14: self.w3_last = list(r)
                if q == 15: self.w3_last += r
            S.add('w3c', self.w3_cs_store(0) + csreads(0)[0], e=sl(CS0) + 3, d=sl(29))
            S.add('w3c', self.w3_cs_store(1) + csreads(1)[0], e=sl(CS1) + 3, d=sl(157))
        for m in range(8, 256):
            e = max(m - NR + 1, max([v for k_, v in gate.items() if k_ <= m], default=-1))
            S.add('ar', [rds[m]], e=sl(e), d=sl(max(e, (m & ~3) - 3)), step=0)
        x = self.stats_reduce(SR) + self.stats_final(f'v{SR}', f'v{SR+1}', f'v{SR+2}') + lines(f"""v_mul_f32 v{SR+3}, {f2u(-LOG2E)}, v{SR+1}
v_cvt_pk_bf16_f32 v{SR}, v{SR}, v{SR}
v_mov_b32 v{SR+1}, v{SR}
v_and_b32 v{SR+4}, 15, {vL}
v_lshlrev_b32 v{SR+4}, 5, v{SR+4}
v_bfe_u32 v{SR+5}, {vL}, 4, 1
v_lshl_add_u32 v{SR+4}, v{SR+5}, 4, v{SR+4}
s_lshl_b32 s88, {sW}, 9
s_add_u32 s88, s88, {L_T3}
v_add_u32 v{SR+4}, s88, v{SR+4}""")
        tw = Ins(f'ds_write_b128 v{SR+4}, {vr(SR,4)}', lds=(L_T3, L_T3 + 2048))
        S.add('epi', x + [tw], e=sl(10), d=sl(21))
        bar(23, [tw])
        if L == 1: S.add('w3c', csreads(0)[0] + csreads(1)[0], e=2, d=20)
        def rd4(k):
            s, w = divmod(k, 4)
            b = self.W4SLOT[s]*16384 + w*2048
            va, vb = [('v200', 'v201'), ('v202', 'v203'), ('v204', 'v205')][b >> 16]
            return self.wfrag_reads(k, b & 65535, va, vb, [(b + h*8192, b + h*8192 + 2048) for h in range(2)])
        def stage(s):
            x_, tk = self.w4_stage(s); w4[s] = tk
            return sum((self.split_dma(y) for y in x_), [])
        NWP = self.NWP if self.big else 0
        allreads = {}
        if self.o_touch and self.o.get('th3', 3) >> L & 1:
            S.add('misc', lines(f'v_and_b32 v127, 7, {vL}\nv_lshlrev_b32 v127, 7, v127\nv_and_b32 v34, 8, {vL}\nv_lshl_add_u32 v127, v34, 9, v127'), e=sl(24), d=sl(30))
        S.add('misc', self.p4_setup(L), e=sl(36), d=sl(52))
        if self.o_touch and self.o.get('th3', 3) >> L & 1:
            for rb in range(4): S.add('misc', [f's_add_u32 s89, {sH0}, {rb*114688}', self.touch('v127', 's89')], e=sl(54 + 22*rb), d=sl(58 + 22*rb))
        sts = []
        for ti in range(8):
            c, rb = tiles[ti]
            S.add('epi', [Ins(f'ds_read_b128 {vr(TK+4*(ti&1),4)}, v125 offset:{rb*512}', lds=(L_T3, L_T3+2048))], e=sl(32*ti + 25), d=sl(32*ti + 28))
            e, st = epilogue(ti); sts.append(st)
            if ti < 7: S.add('epi', e, e=sl(32*ti + 35), d=sl(32*ti + 56), early=False)
            else: S.add('epi', e, e=B4 + 2, d=B4 + self.o.get('e7', 12))
            if ti >= 5:
                bar(32*ti + 1, rds[32*ti-12:32*ti] + (self.w3_last if L == 0 else []))
            if ti == 4 and L == 0:
                fr = CS1 - 1
                bar(fr, self.w3_last)
                S.add('dma', stage(0) + adma(0, 0, 3) + adma(0, 1, 3), e=sl(fr), d=sl(160), split=True)
                bar(193, atok[(0, 0, 3)] + atok[(0, 1, 3)] + w4[0])
            if ti == 1 and L == 1:
                plan = {0: [(100, None)], 1: [(56, 87), (100, None)], 2: [(56, 87), (98, 129), (140, None)], 3: [(56, 87), (97, 120), (130, 152), (162, None)]}[NWP]
                prev = []
                for s, (e0, pub) in enumerate(plan):
                    if s: bar(e0 - 1, prev)
                    S.add('dma', stage(s), e=sl(e0), d=sl(e0 + 8), step=1.5, split=True)
                    if pub:
                        bar(pub, w4[s])
                        prev = sum((rd4(k) for k in range(4*s, 4*s + 4)), [])
                        S.add('wpre', prev, e=sl(pub), d=sl(plan[s+1][0] - 3))
                bar(193, w4[NWP])
        if L == 0:
            S.add('misc', [self.code_touch()], e=sl(CS1) - 28, d=sl(CS1) - 2)
        S.add('misc', [self.cap(lambda: self.post_flag(3 + 5*L, sum(sts[:4], [])))], e=sl(163), d=sl(164))
        pc = self.o.get('pc', 192)
        S.add('misc', [self.poll_issue(vT0)], e=sl(pc - 14), d=sl(pc - 12))
        S.add('misc', [self.poll_check(vT0, 3 + 5*L, sMK4)], e=sl(pc), d=sl(pc + 1))
        if L == 0: S.add('misc', self.touches_x2('v127'), e=sl(pc + 2), d=sl(pc + 20))
        K0 = 0 if self.big else 2
        for k in range(K0):
            r = rd4(k); allreads.setdefault(0, []).extend(r)
            S.add('wr', r, e=sl(247 + 2*k), d=sl(254), step=0.5)
        for n, toks in sorted(bars.items()):
            lo_, hi_ = self.o.get('blo', 0), self.o.get('bhi', 70)
            f = (lambda nm: self.fts(f'b3{L}', nm)) if lo_ <= n < hi_ else (lambda nm: [])
            S.at(sl(n), f(f'x{n}') + [WaitTok(toks)] + f(f'w{n}') + ['s_barrier'] + f(f'b{n}'), 'bar')

        lj = self.lab('p3join')
        S.before[B4] = self.cap(lambda: self.ts(f'p3_mm{L}')) + [Ins(f'{lj}:')] + S.before.get(B4, [])
        dac = self.o.get('dac', 9)
        self.add_exchange(S, B4, 56)
        S.add('epi2', self.res_unpack(), e=sl(250), d=sl(255))
        pre = {}
        fl = self.o.get('fl4', 19)
        S.add('misc', [self.cap(lambda: self.post_flag(4 + 5*L, sum(sts[4:], [])))], e=B4 + fl, d=B4 + fl + 1, needs=[sts[7][0]])
        pk = 2*(28 - dac)
        pos = self.tile_pos(56)
        bstep = self.o.get('bstep', 1)
        BS = list(range(NWP + 3, 14, bstep))
        bsl = lambda s: min(2*(4*s - 3), pos[4*s][0] - 6)
        items = []
        for m in range(56):
            e = sl(pc + 2) if m < 28 else B4 + pk + 2
            if not self.big and m >= 22: e = max(e, B4 + pos[m-22][1] + 1)
            items.append(dict(kind='a', i=m, e=e, need=B4 + pos[m][0], n=1))
        for ns in range(NWP + 1, 14):
            j = ns - NWP - 1
            if j < 6: e = sl(161 + 32*(j // 2)) + 1
            elif j < 8: e = B4 + 1
            else:
                prev = max(x for x in range(NWP, ns) if self.W4SLOT[x] == self.W4SLOT[ns])
                e = B4 + bsl(min(b for b in BS if b >= prev + 2)) + 1
            nb = [b for b in BS if b <= ns]
            items.append(dict(kind='w', i=ns, e=e, need=B4 + (bsl(max(nb)) if nb else 0), n=4))
        items.append(dict(kind='p', i=0, e=B4 + pk - self.o.get('plead', 12), need=B4 + pk - 60, n=1))
        if L == 0:
            for i in range(self.o.get('nw1', 4)): items.append(dict(kind='q', i=i, e=B4 + max(self.o.get('w1e', 76), bsl(10 if i < 2 else 11) + 1), need=B4 + 200 + i, n=3))
        sigma = self.o.get('sig%d' % L, 1.5)
        t_ = float(min(x['e'] for x in items)); left = list(items); plan = []
        while left:
            el = [x for x in left if x['e'] <= t_ and not (x['kind'] == 'a' and any(y['kind'] == 'a' and y['i'] < x['i'] for y in left))]
            if not el: t_ = float(min(x['e'] for x in left if x['e'] > t_)); continue
            x = min(el, key=lambda y: y['need'])
            if t_ < B4 <= t_ + sigma*(x['n'] - 1) + 0.99: t_ = float(B4 + 1)
            x['t'] = t_; plan.append(x); left.remove(x); t_ += sigma*x['n']
        print('   edf min slack', sorted((x['need'] - x['t'] - sigma*(x['n']-1), x['kind'], x['i']) for x in plan if x['kind'] in 'aw')[:4], 'end', t_ - B4)
        NPRE = sum(1 for x in plan if x['kind'] == 'a' and x['t'] < B4)
        prew = [x['i'] for x in plan if x['kind'] == 'w' and x['t'] < B4]
        nlds = NWP + 1 + len(prew)
        assert prew == list(range(NWP + 1, nlds))
        for x in plan:
            if x['kind'] == 'a':
                gq = [self.p4_aload(x['i'])]
                if x['i'] == 52: need52 = gq[0][0]
            elif x['kind'] == 'w': gq = stage(x['i'])
            elif x['kind'] == 'p': gq = [[self.poll_issue('v127')]]
            else:
                y, tk = self.w1_stage(x['i'], seq=(x['i'] > 0)); pre[x['i']] = tk; gq = self.split_dma(y[0])
            for j, y in enumerate(gq):
                tt = min(int(x['t'] + sigma*j), len(spine) - 1)
                if len(y) > 1: S.add('vm', [y[:-1]], e=tt - 2 if tt - 2 >= B4 or tt < B4 else tt, d=tt, split=True, step=0)
                S.add('vm', [y[-1:]], e=tt, d=tt, step=0)
            if x['kind'] == 'p': S.add('pchk', [self.poll_check('v127', 4 + 5*L, sMK4)], e=B4 + pk, d=B4 + pk + 1)
        S.at(B4, [WaitTok(rds[244:256] + sum((w4[s] for s in range(min(nlds, NWP + 3))), [])), 's_barrier'], 'bar4')
        bslot = {s: min(2*(4*s - 3), self.tile_pos(56)[4*s][0] - 6) for s in BS}
        self.add_wreads(S, B4, 56, max(K0, 4*NWP), rd4, gate=lambda m: max([1] + [v for s_, v in bslot.items() if s_ <= m // 4]), note=lambda m, r: allreads.setdefault(m // 4, []).extend(r))
        for s in BS: S.at(B4 + bslot[s], [WaitTok(sum((w4[x_] for x_ in range(s, min(14, s + bstep))), []) + allreads.get(s-2, [])), 's_barrier'], 'bar4')
        for k in range(4, 56, 4): S.before[B4 + 2*k] = self.fts(f'p4{L}', f's{k//4}') + S.before.get(B4 + 2*k, [])
        S.add('misc', self.epi_pre(), e=B4 + 70, d=B4 + 90)
        if L == 0: S.add('misc', [f's_add_u32 {sX}, {sROW}, {WS_X2}'] + self.st_addr(WS_ST2, sY) + self.p1_setup(), e=B4 + 86, d=B4 + 108, needs=[need52])
        self.win(S, f'3{L}')
        S.emit(p, f'p3+p4 L{L}')
        sv = self.p; q = self.p = Prog(check_lds=False)
        q(f'{lskip}:')
        if L == 0: q(self.touches_x2('v127'))
        q(self.p4_setup(L))
        if self.o.get('pfs', True): self.idle_prefetch([(SWD, 2, 'slow')])
        for s in range(NWP):
            q(self.w4_stage(s)[0]); q('s_waitcnt vmcnt(0)\ns_barrier')
            for k in range(4*s, 4*s + 4): q(rd4(k))
            q('s_waitcnt lgkmcnt(0)\ns_barrier')
        for s in range(NWP, nlds): q(self.w4_stage(s)[0])
        if L == 1: self.idle_prefetch([(SWD, self.o.get('pfe', 7), 'down')])
        if L == 0: self.idle_prefetch([(SWD, self.o.get('pfa', 0), 'down')])
        self.poll(3 + 5*L, sMK4)
        if L == 0: self.idle_prefetch(([(SWQKV, 2, 'slow'), (SWO, 1, 'slow')] if self.o.get('pfs', True) else []) + [(SWD, self.o.get('pfd', 0), 'down')])
        for k in range(NPRE): q(self.p4_aload(k))
        q('s_waitcnt vmcnt(0)\ns_barrier')
        for k in range(K0): q(rd4(k))
        q(self.res_unpack())
        q(f's_waitcnt lgkmcnt(0)\ns_branch {lj}')
        self.p = sv
        self.slow.append(q.finalize())
        self.ts(f'p4_mm{L}')
        st = self.tile_epilogue('x2' if L == 0 else 'out', L)
        self.big = False
        self.ts(f'p4_epi{L}')
        if L == 0:
            self.post_flag(5, st)
            for st_ in range(len(pre), self.o.get('nw2', 5)):
                gq, tk = self.w1_stage(st_, seq=True); pre[st_] = tk; p(gq)
        self.ts(f'p4_end{L}')
        return pre

    def idle_prefetch(self, jobs):
        if not self.o.get('pf', True): return
        q = self.p
        q(f"""s_and_b32 s88, {sG16}, 1
s_lshl_b32 s88, s88, 1
s_add_u32 s88, s88, {sM16}
s_sub_u32 s88, s88, 14
s_lshl_b32 s88, s88, 2
s_add_u32 s88, s88, {sW}
v_lshlrev_b32 v40, 7, {vL}
v_lshlrev_b32 v42, 10, {vL}
v_add_u32 v42, 384, v42""")
        for srd, n, kind in jobs:
            for i in range(n):
                va = 'v40'
                if kind.startswith('down'):
                    q(f's_mul_i32 s89, s88, 7\ns_add_u32 s89, s89, {i}\ns_lshr_b32 s90, s89, 3\ns_lshl_b32 s90, s90, 17\ns_and_b32 s89, s89, 7\ns_lshl_b32 s89, s89, 13\ns_add_u32 s89, s89, s90\ns_add_u32 s89, s89, {0 if kind == "down0" else 65536}')
                else:
                    q(f's_lshl_b32 s89, s88, 16\ns_add_u32 s89, s89, {i << 20}'); va = 'v42'
                x = Ins(f'buffer_load_dword v41, {va}, {srd}, s89 offen'); x.wr = set(); q(x)
                q('s_waitcnt vmcnt(1)')

    def p4_setup(self, L):
        return lines(f"""s_lshr_b32 s88, {sW}, 1
s_lshl_b32 s89, s88, 13
v_add_u32 v200, s89, {vWown}
v_add_u32 v201, s89, {vWoth}
v_add_u32 v202, 65536, v200
v_add_u32 v203, 65536, v201
v_add_u32 v204, 131072, v200
v_add_u32 v205, 131072, v201
s_mul_i32 s88, s88, 57344
s_mul_i32 {sX}, {sRB}, 114688
s_add_u32 {sX}, {sX}, s88
s_add_u32 {sX}, {sX}, {WS_H[L]}
s_add_u32 {sY}, {sX}, 4096""")
    def p4_aload(self, k):
        s, w = divmod(k, 4); c, j = divmod(s, 7)
        o = []
        if w == 0: o.append(Ins(f's_add_u32 {sH1}, {sY if c else sX}, {sJ[j]}'))
        o.append(Ins(f'buffer_load_dwordx4 {self.areg(k)}, {vL16}, {SWS}, {sH1} offen offset:{w*1024} sc1'))
        return o
    def build(self):
        p = self.p
        self.prologue_a()
        pre = {}
        for L in range(2):
            p(f'; PH 1{L}')
            w2 = self.p1_first() if L == 0 else self.p1_second(pre)
            if self.o_stop == f'p1_{L}': break
            p(f'; PH 2{L}')
            self.p2(L, w2)
            if self.o_stop == f'p2_{L}': break
            p(f'; PH 3{L}')
            pre = self.p3(L)
            if self.o_stop == f'p4_{L}': break
        p(self.bump_epoch())
        self.ts('end')
        if self.o_amp:
            p('s_waitcnt vmcnt(0)')
            p(Raw(f"""s_memrealtime s[62:63]
s_sub_u32 s96, s98, s96
s_mul_i32 s96, s96, {self.o_amp[2]}
s_min_u32 s96, s96, 100000
s_waitcnt lgkmcnt(0)
Lamp:
s_memrealtime s[98:99]
s_waitcnt lgkmcnt(0)
s_sub_u32 s98, s98, s62
s_cmp_lt_u32 s98, s96
s_cbranch_scc1 Lamp"""))
        if self.o_ts:
            p(f's_lshl_b32 s88, s2, 2\ns_add_u32 s88, s88, {sW}\ns_lshl_b32 s88, s88, 8\ns_add_u32 s88, s88, {WS_TS}\nv_lshlrev_b32 v40, 2, {vL}')
            p('s_memrealtime s[62:63]'); p(f'v_writelane_b32 {vTS}, s62, 62')
            p(f'buffer_store_dword {vTS}, v40, {SWS}, s88 offen')
            if self.o_dbg:
                sel = [self.tsn.index(n) for n in self.o_dbg] + [62, 63]
                l = self.lab('dbg')
                p(f's_lshl_b32 s88, s2, 2\ns_add_u32 s88, s88, {sW}\ns_cmp_lg_u32 s88, 0\ns_cbranch_scc1 {l}')
                p(f'v_readlane_b32 s89, {vTS}, 0')
                for i, s in enumerate(sel):
                    p(f'v_readlane_b32 s88, {vTS}, {s}')
                    if s < 62: p('s_sub_u32 s88, s88, s89')
                    p(f'v_writelane_b32 v41, s88, {i}')
                p(f's_mov_b64 exec, 0xffff\nbuffer_store_dword v41, v40, {SDBG}, 0 offen sc1\ns_mov_b64 exec, -1\n{l}:')
        kill = str(self.o.get('kill', '')).split('+')
        if kill != ['']:
            p.check_lds = False
            import re as _re
            inp3 = None
            for it in p.items:
                t = getattr(it, 'text', '')
                if t.startswith('; PH'): inp3 = t[5:]
                lst = [it] if it.kind != 'alt' else it.a
                for x in lst:
                    t = getattr(x, 'text', '')
                    tag = None
                    if x.kind == 'dma' and SW3 in t: tag = 'w3'
                    elif x.kind == 'dma' and SWD in t: tag = 'w4'
                    elif x.kind == 'dma' and SWQKV in t: tag = 'w1'
                    elif x.kind == 'dma' and SWO in t: tag = 'w2'
                    elif x.kind == 'dma': tag = 'adma'
                    elif x.kind == 'vmld' and 'x4' in t and SWS in t: tag = 'ald'
                    elif x.kind == 'vmld' and 'v34' in t: tag = 'touch'
                    elif x.kind == 'vmst' and 'x4' in t: tag = 'st'
                    elif x.kind == 'dsrd' and 'b128' in t and int(_re.search(r'offset:(\d+)', t).group(1)) & 1024: tag = 'half'
                    elif x.kind == 'dsrd' and 'tr_b16' in t: tag = 'tr'
                    elif x.kind == 'dsrd' and 'b128' in t: tag = 'half2'
                    elif x.kind == 'barrier': tag = 'bar'
                    elif x.kind == 'trans': tag = 'trans'
                    elif x.kind == 'valu': tag = 'valu'
                    if tag and f'{inp3}{tag}' in kill:
                        x.text = '; killed'; x.kind = 'dir'; x.ops = ['0']; x.rd = set(); x.wr = set(); x.lds = None
                        if it.kind == 'alt':
                            for y in it.b: y.kind = 'dir'
        body = p.finalize()
        head = open('cdna_kernels/' + NAME + '.s.ref').read().split('; Override launch')[0]
        txt = head + '; @launch grid=(256,1,1) block=(256,1,1) lds=163840\n'
        txt += f'.amdgcn_target "amdgcn-amd-amdhsa--gfx950"\n.text\n.globl {NAME}_kernel\n.p2align 8\n.type {NAME}_kernel,@function\n{NAME}_kernel:\n'
        txt += body + 'L_end:\ns_endpgm\n' + '\n'.join(getattr(p, 'tail', [])) + '\n' + '\n'.join(self.slow) + '\nL_last:\ns_endpgm\n'
        txt += f""".section .rodata,"a"
.p2align 6
.amdhsa_kernel {NAME}_kernel
  .amdhsa_next_free_vgpr 512
  .amdhsa_next_free_sgpr 102
  .amdhsa_accum_offset 256
  .amdhsa_group_segment_fixed_size 0
  .amdhsa_kernarg_size 80
  .amdhsa_user_sgpr_count 2
  .amdhsa_user_sgpr_kernarg_segment_ptr 1
  .amdhsa_system_sgpr_workgroup_id_x 1
  .amdhsa_float_denorm_mode_32 3
.end_amdhsa_kernel
"""
        return txt

if __name__ == '__main__':
    out = sys.argv[1]
    kw = {}
    for a in sys.argv[2:]:
        k, _, v = a.partition('=')
        if k in ('amp', 'dbg', 'win'): kw[k] = v.split(',')
        elif v in ('0', '1', ''): kw[k] = (v != '0')
        elif v.replace('.', '').isdigit(): kw[k] = float(v) if '.' in v else int(v)
        else: kw[k] = v
    if kw.pop('reuse', False):
        WS_O[1] = WS_O[0]; WS_X1[1] = WS_X1[0]; WS_ST1[1] = WS_ST1[0]; WS_H[1] = WS_H[0]
    g = Gen(**kw)
    open(out, 'w').write(g.build())
    if g.o_ts: open(out + '.ts', 'w').write('\n'.join(g.tsn))
    print(out, g.p.stats)
```

```python
import sys, struct
from asmlib import *

NAME = 'interleave_layers__sliding_local_dilated__glu_gated_glu__prompt'
MB = 1 << 20
WS_O = [0, 2*MB]; WS_X1 = [4*MB, 6*MB]; WS_X2 = 8*MB
WS_ST1 = [10*MB, 10*MB + (256 << 10)]; WS_ST2 = 10*MB + (512 << 10)
WS_HB = 11*MB; WS_HS = 11*MB + (512 << 10); WS_FL = 11*MB + (768 << 10); WS_EP = WS_FL + 8192; WS_XC = WS_FL + 16384; WS_TS = 14*MB
WS_H = [16*MB, 24*MB]

SX, SWQKV, SWO, SW3, SWD, SOUT, SWS, SDBG = 's[4:7]', 's[8:11]', 's[12:15]', 's[16:19]', 's[20:23]', 's[24:27]', 's[28:31]', 's[32:35]'
sW, sMODE, sT, sROW, sHALO, sG, sG16, sM16, sCB, sW1K, sW4K, sHASP, sPG, sIDLE = ['s%d' % i for i in range(36, 50)]
sMK2, sMK4, sMK1 = 's[50:51]', 's[52:53]', 's[54:55]'
sA1, sRB, sSPIN, sV, sXCC, sW2K = 's56', 's57', 's58', 's59', 's60', 's61'
sW3K, sR8, sRG, sR3 = 's84', 's85', 's86', 's87'
sR8s, sU = 's3', 's95'
sCODE = 's[100:101]'
SW3F = SW3
sA2 = ['s40', 's67', 's68', 's77']
sWd4 = 's64'; sA3 = ['s65', 's66', 's67', 's68']; sJ = ['s%d' % i for i in range(69, 76)]
sH0, sH1, sHB, sX, sY, sE, sES, sSG = 's76', 's77', 's78', 's79', 's80', 's81', 's82', 's83'
vL, vL16, vA1e, vA1o, vW1d, vW1r0, vW1r1, vA1r0, vA1r1, vW2d, vCT, vWown, vWoth, vRM, vFLp, vFLo = ['v%d' % i for i in range(16)]
RES = 16
CSQ, CSK, CSV = 24, 28, 32
vW3d, vW3r, vT0, vTS = 'v36', 'v37', 'v38', 'v39'
vW4 = ['v208', 'v209', 'v210', 'v211']
vW3q = ['v36', 'v252', 'v253', 'v254']
L_A1H = 65536; L_R1 = 73728; L_TAB = 159744
L_W2 = L_TAB - 65536
L_XB = 0
L_NM = L_TAB; L_RS = L_TAB + 320
L_T3 = L_TAB
L_CS3 = L_TAB + 2048
LOG2E = 1.4426950408889634
def f2u(x): return '0x%08x' % struct.unpack('<I', struct.pack('<f', x))[0]
def vr(a, n): return f'v[{a}:{a+n-1}]' if n > 1 else f'v{a}'
def ar(a, n): return f'a[{a}:{a+n-1}]'
def lines(s): return [x.strip() for x in s.strip().split('\n') if x.strip()]
def last(x): return x[-1]

class Gen:
    def __init__(self, **kw):
        self.p = Prog(); self.nts = 0; self.tsn = []; self.slow = []; self.nlab = 0; self.w3tok = {}; self.w3stg = {}
        self.o = dict(ts=False, mimic=True, stop=None, glob=False, fine=None, amp=None, dbg=None, touch=True, rot=True, ctouch=True, wb=False)
        self.o.update(kw)
        self.alias = self.o.get('alias', True)
        if self.alias:
            global WS_ST2
            WS_X1[1] = WS_X1[0]; WS_ST1[1] = WS_ST1[0]; WS_H[1] = WS_H[0]; WS_ST2 = WS_ST1[0]
        for k, v in self.o.items(): setattr(self, 'o_' + k, v)

    def cap(self, fn):
        sv = self.p; self.p = Prog(); fn(); items = self.p.items; self.p = sv
        return items
    def lab(self, s):
        self.nlab += 1; return f'L{s}{self.nlab}'
    def ts(self, name):
        if self.o_amp and name == self.o_amp[0]: self.p('s_memrealtime s[96:97]\ns_waitcnt lgkmcnt(0)')
        if self.o_amp and name == self.o_amp[1]: self.p('s_memrealtime s[98:99]\ns_waitcnt lgkmcnt(0)')
        if not self.o_ts: return
        if self.o_fine and self.o_fine[0] == 'b' and name[0] == 'p' and name[:3] != 'p3_': return
        if self.o.get('win') and name[0] != 'n' and name not in ('start', 'end') and not name.startswith('p' + self.o['win'][0][0]): return
        if self.o.get('rt'):
            if name not in ('start', 'a1_landed', 'p1_loop0', 'p1_end0', 'p2_end0', 'p3_go0', 'p3_end0', 'p4_mm0', 'p1_stats1', 'p1_halo1', 'p1_end1', 'p3_go1', 'p3_end1', 'p4_mm1', 'end'): return
            self.p('s_memrealtime s[62:63]'); self.p(f'v_writelane_b32 {vTS}, s62, {self.nts + 31}')
        self.p('s_memtime s[62:63]'); self.p(f'v_writelane_b32 {vTS}, s62, {self.nts}')
        self.tsn.append(name); self.nts += 1
    def win(self, S, key):
        w = self.o.get('win')
        if not w or w[0] != key: return
        for n in range(int(w[1]), int(w[2]), int(w[3])):
            S.before[n] = self.cap(lambda: self.ts(f'n{n}')) + S.before.get(n, [])
    def fts(self, key, name):
        return self.cap(lambda: self.ts(name)) if self.o_fine == key else []

    def stores(self, texts):
        a = [Ins(t) for t in texts]; b = [Ins(t + ' sc1') for t in texts]
        return Alt(sMODE, a, b), a
    def post_flag(self, val, toks):
        p = self.p
        p(f's_add_u32 s91, {sE}, {val}\nv_mov_b32 {vT0}, s91'); p(WaitTok(toks))
        alt, a = self.stores([f'buffer_store_dword {vT0}, {vFLo}, {SWS}, 0 offen'])
        p(alt)
    def spin(self, load, cmp_, mask, pre=''):
        ls, lb = self.lab('s'), self.lab('b')
        items = [Ins(x) for x in lines(cmp_)] + [Ins(f's_and_b64 vcc, vcc, {mask}'), Ins(f's_cbranch_scc1 {ls}'), Ins(f'{lb}:')]
        self.slow.append(f"""{ls}:
s_mov_b32 {sSPIN}, 0
{ls}_l:
{load}
s_add_u32 {sSPIN}, {sSPIN}, 1
s_cmp_gt_u32 {sSPIN}, 30000
s_cbranch_scc1 {ls}_x
s_waitcnt vmcnt(0)
{pre}
{cmp_}
s_nop 0
s_and_b64 vcc, vcc, {mask}
s_cbranch_scc1 {ls}_l
{ls}_x:
s_waitcnt vmcnt(0) lgkmcnt(0)
s_branch {lb}""")
        return items
    def poll_issue(self, vf): return Ins(f'buffer_load_dword {vf}, {vFLp}, {SWS}, 0 offen sc1')
    def poll_check(self, vf, val, mask):
        return self.spin(f'buffer_load_dword {vf}, {vFLp}, {SWS}, 0 offen sc1', f's_add_u32 s91, {sE}, {val}\nv_subrev_u32 v33, s91, {vf}\nv_cmp_lt_u32 vcc, 7, v33', mask)
    def poll(self, val, mask):
        l = self.lab('pl')
        ld = lambda r: f'buffer_load_dword {r}, {vFLp}, {SWS}, 0 offen sc1'
        chk = lambda r: f"""v_subrev_u32 v33, s91, {r}
v_cmp_lt_u32 vcc, 7, v33
s_nop 0
s_and_b64 vcc, vcc, s[88:89]"""
        if not self.o.get('pp', False):
            body = f"""{l}:
{ld(vT0)}
s_sub_u32 {sSPIN}, {sSPIN}, 1
s_cmp_eq_u32 {sSPIN}, 0
s_cselect_b64 s[88:89], 0, {mask}
s_waitcnt vmcnt(0)
{chk(vT0)}
s_cbranch_scc1 {l}"""
        else:
            body = f"""{ld(vT0)}
s_mov_b64 s[88:89], {mask}
s_nop 7
s_nop 7
{l}:
{ld('v35')}
s_waitcnt vmcnt(1)
{chk(vT0)}
s_cbranch_scc0 {l}x
{ld(vT0)}
s_sub_u32 {sSPIN}, {sSPIN}, 1
s_cmp_eq_u32 {sSPIN}, 0
s_cselect_b64 s[88:89], 0, {mask}
s_waitcnt vmcnt(1)
{chk('v35')}
s_cbranch_scc1 {l}
{l}x:"""
        self.p(f's_add_u32 s91, {sE}, {val}\ns_mov_b32 {sSPIN}, 30000')
        self.p(Raw(body, rd=[vT0, 's91'], wr=[vT0, 'v33', 'v35', 's88', 's89', 'vcc'], drains_vm=True, states=6))
        if self.o.get('pp', False):
            x = Ins(f'buffer_load_dword {vT0}, {vFLp}, {SWS}, 0 offen sc1'); x.phantom = True; x.wr |= {('v', 35)}
            self.p(x)
    def touch(self, voff, soff, mask=None):
        if not self.o_touch: return []
        i = Ins(f'buffer_load_dword v34, {voff}, {SWS}, {soff} offen sc1'); i.wr = set()
        return [f's_mov_b64 exec, {mask}', i, 's_mov_b64 exec, -1'] if mask else [i]
    def warm_touch(self, t):
        if not self.o.get('warm', False): return []
        o = lines(f"""s_lshl_b32 s88, s2, 1
s_lshr_b32 s89, {sW}, 1
s_add_u32 s88, s88, s89
s_mul_i32 s88, s88, {28*128}
s_lshl_b32 s89, s2, 2
s_add_u32 s89, s89, {sW}
s_mul_i32 s90, s89, {14*128}
s_lshl_b32 s89, s89, 9
v_lshlrev_b32 {t}, 7, {vL}""")
        for srd, so, m in ((SW3F, 's88', 0xfffffff), (SWD, 's90', 0x3fff), (SWO, 's89', 0xf)):
            i = Ins(f'buffer_load_dword v34, {t}, {srd}, {so} offen'); i.wr = set()
            o.append([f's_mov_b64 exec, {m}', i, 's_mov_b64 exec, -1'])
        return o
    def pf_touch(self, srd, per, idx, t, lanes=16, base=0, half=False):
        o = [f's_mul_i32 s90, {idx}, {per*128}']
        if half: o += ['s_lshr_b32 s89, s90, 16', 's_lshl_b32 s89, s89, 16', 's_add_u32 s90, s90, s89', 's_add_u32 s90, s90, 65536']
        o += [f'v_lshlrev_b32 {t}, 7, {vL}']
        pre = o; o = []
        for i in range(per // lanes):
            x = Ins(f'buffer_load_dword v34, {t}, {srd}, s90 offen offset:{(i*lanes*128) % 4096}'); x.wr = set()
            gq = [f's_mov_b64 exec, {hex((1 << lanes) - 1)}', x, 's_mov_b64 exec, -1']
            if i and (i*lanes*128) % 4096 == 0: gq = ['s_add_u32 s90, s90, 4096'] + gq
            o.append(gq)
        return pre, o
    def code_touch(self):
        if not self.o_ctouch: return []
        i = Ins(f'global_load_dword v35, {vCT}, {sCODE}'); i.wr = set()
        return [i]

    def prologue_a(self):
        p = self.p
        if self.o_amp and self.o_amp[0] == 'entry': p('s_memrealtime s[96:97]')
        p('s_cmp_ge_u32 s2, 256'); p('s_cbranch_scc1 L_end')
        p('s_load_dwordx16 s[64:79], s[0:1], 0'); p('s_load_dwordx4 s[80:83], s[0:1], 64')
        p(f"""s_getpc_b64 {sCODE}
Lpc:
v_lshrrev_b32 v1, 6, v0
v_and_b32 {vL}, 63, v0
s_lshr_b32 s89, s2, 3
s_xor_b32 s89, s89, {int(self.o.get('idxx', 0))}
v_readfirstlane_b32 {sW}, v1
s_lshl_b32 s90, s89, 11
v_and_b32 {vCT}, 3, {vL}
v_lshl_add_u32 {vCT}, v1, 2, {vCT}
v_lshl_add_u32 {vCT}, {vCT}, 7, s90
v_min_u32 {vCT}, L_last-Lpc-4, {vCT}""")
        p(self.code_touch())
        if self.o_ts:
            p(f'v_mov_b32 {vTS}, 0'); p('s_memrealtime s[62:63]'); p(f'v_writelane_b32 {vTS}, s62, 63')
        self.ts('start')
        t = [f'v{i}' for i in range(40, 56)]
        p(f"""s_and_b32 s88, s2, 7
s_lshr_b32 {sRG}, s89, 3
s_and_b32 {sCB}, s89, 7
s_lshr_b32 s90, s88, 1
s_lshl_b32 s90, s90, 2
s_add_u32 s90, s90, {sRG}
s_and_b32 s91, s88, 1
s_lshl_b32 {sR8}, {sRG}, 1
s_add_u32 {sR8}, {sR8}, s91""")
        if not self.o_rot: p(f's_mov_b32 {sR8}, 0')
        if self.o.get('rotx', 1) & 1:
            p(f's_lshl_b32 {sR8}, {sRG}, 1\ns_cmp_eq_u32 {sCB}, {int(self.o.get("slowcb", 3))}\ns_cselect_b32 {sR8}, {sR8}, 0\ns_xor_b32 {sR8}, {sR8}, s88')
        p(f"""s_lshl_b32 {sR8s}, {sR8}, 7
s_lshl_b32 {sROW}, s90, 17
s_lshl_b32 s91, s91, 10
s_add_u32 {sROW}, {sROW}, s91
s_cmp_eq_u32 s90, 0
s_cselect_b32 {sHASP}, 0, 1
s_cselect_b32 s91, 0, 16384
s_sub_u32 {sHALO}, {sROW}, s91
s_lshl_b32 {sA1}, {sW}, 15
s_add_u32 {sA1}, {sA1}, {sROW}
s_lshl_b32 {sW2K}, {sW}, 11
s_mul_i32 {sW3K}, {sW}, 3072
v_lshrrev_b32 {t[0]}, 3, {vL}
v_and_b32 {t[1]}, 7, {vL}
v_lshrrev_b32 {t[2]}, 1, {t[0]}
v_xor_b32 {t[3]}, {t[1]}, {t[2]}
v_lshlrev_b32 {t[3]}, 4, {t[3]}
v_lshl_add_u32 {vA1e}, {t[0]}, 11, {t[3]}
v_xor_b32 v124, 64, {vA1e}
v_add_u32 {vA1o}, {16384-1024}, v124
v_and_b32 {t[4]}, 1, {t[2]}
s_and_b32 s91, {sW}, 1
s_lshl_b32 s91, s91, 2
v_lshl_add_u32 {t[5]}, {t[4]}, 1, s91
v_xor_b32 {t[5]}, {t[5]}, {t[1]}
v_lshlrev_b32 {t[5]}, 4, {t[5]}
s_mul_i32 s91, {sW}, 24576
s_lshl_b32 s92, {sCB}, 7
s_add_u32 s91, s91, s92
v_mul_u32_u24 {t[6]}, 3072, {t[0]}
v_add3_u32 {vW1d}, {t[5]}, {t[6]}, s91""")
        self.srd(4, 64, 2*MB); self.srd(8, 66, 512*3072)
    def srd(self, base, lo, size):
        self.p(f's_mov_b32 s{base}, s{lo}\ns_and_b32 s{base+1}, s{lo+1}, 0xffff\ns_mov_b32 s{base+2}, {size}\ns_mov_b32 s{base+3}, 0x20000')
    def prologue_b(self):
        p = self.p
        t = [f'v{i}' for i in range(40, 56)]
        p(f"""s_getreg_b32 {sXCC}, hwreg(HW_REG_XCC_ID)
s_and_b32 {sXCC}, {sXCC}, 15
s_add_u32 {sXCC}, {sXCC}, 1
s_and_b32 {sM16}, s89, 15
s_lshl_b32 {sG}, s88, 2
s_add_u32 {sG}, {sG}, {sRG}
s_lshr_b32 {sG16}, {sG}, 1
s_cmp_eq_u32 {sRG}, 0
s_cselect_b32 s91, 5, 1
s_sub_u32 {sPG}, {sG}, s91
s_cmp_eq_u32 s90, 0
s_cselect_b32 {sPG}, {sG}, {sPG}
s_lshl_b32 {sW1K}, {sW}, 10
s_lshl_b32 {sW4K}, {sW}, 12
s_and_b32 s91, {sW}, 1
s_lshl_b32 {sRB}, {sG}, 1
s_add_u32 {sRB}, {sRB}, s91
s_and_b32 s91, {sG16}, 1
s_and_b32 {sR3}, s88, 3
s_lshl_b32 {sR3}, {sR3}, 1
s_add_u32 {sR3}, {sR3}, s91
v_lshlrev_b32 {vL16}, 4, {vL}""")
        self.srd(12, 68, 512*1024)
        p(f's_bitcmp1_b32 {sW}, 0\ns_cselect_b32 s72, s74, s72\ns_cselect_b32 s73, s75, s73')
        self.srd(16, 72, 512*3584); self.srd(20, 76, 1792*1024); self.srd(24, 78, 2*MB); self.srd(28, 82, 256*MB)
        if self.o_dbg: self.srd(32, 80, 256)
        else: p('s_mov_b32 s32, 0xff00ff00\ns_mov_b32 s33, 0xff00ff00')
        p(f"""s_cmp_ge_u32 {sM16}, 14
s_cselect_b32 {sIDLE}, 1, 0""")
        if not self.o_rot: p(f's_mov_b32 {sR3}, 0')
        if self.o.get('rotx', 1) & 2: p(f's_mov_b32 {sR3}, s88')
        p(f"""s_lshr_b32 s93, {sW}, 1
s_and_b32 s94, {sRG}, 1
s_lshl_b32 s94, s94, 5
s_mov_b32 s62, -1
s_mov_b32 s63, 0
s_lshl_b64 {sMK1}, s[62:63], s94
s_lshl_b32 s91, s93, 4
s_add_u32 s91, s91, s94
s_mov_b32 s62, 0xffff
s_lshl_b64 {sMK2}, s[62:63], s91
s_mul_i32 s91, s93, 28
s_mov_b32 s62, 0xfffffff
s_lshl_b64 {sMK4}, s[62:63], s91""")
        p(f"""s_mul_i32 s91, s93, 28672
s_lshl_b32 s94, {sM16}, 8
s_add_u32 s91, s91, s94
v_mul_u32_u24 {t[6]}, 3584, {t[0]}
v_add3_u32 {vW3d}, {t[5]}, {t[6]}, s91
v_lshlrev_b32 {t[5]}, 2, {t[4]}
v_xor_b32 {t[5]}, {t[5]}, {t[1]}
v_lshlrev_b32 {t[5]}, 4, {t[5]}
v_lshl_add_u32 {t[5]}, {t[0]}, 10, {t[5]}
s_lshl_b32 s91, {sW}, 13
s_add_u32 s94, s91, s92
v_add_u32 {vW2d}, s94, {t[5]}
s_mul_i32 {sWd4}, s93, {7*128*1024}
s_and_b32 s94, {sW}, 1
s_lshl_b32 s94, s94, 15
s_add_u32 {sWd4}, {sWd4}, s94
s_sub_u32 {sWd4}, {sWd4}, s91""")
        p(f"""v_lshrrev_b32 {t[0]}, 4, {vL}
v_and_b32 {t[1]}, 15, {vL}
v_lshrrev_b32 {t[2]}, 2, {t[1]}
v_and_b32 {t[3]}, 3, {vL}
v_lshrrev_b32 {t[4]}, 1, {t[2]}
v_and_b32 {t[5]}, 1, {t[0]}
v_lshl_add_u32 {t[6]}, {t[5]}, 1, {t[4]}
v_xor_b32 {t[6]}, {sW}, {t[6]}
v_lshlrev_b32 {t[6]}, 5, {t[6]}
v_lshl_add_u32 {t[6]}, {t[3]}, 3, {t[6]}
v_lshl_add_u32 {t[6]}, {t[2]}, 7, {t[6]}
v_mul_u32_u24 {t[7]}, 3072, {t[0]}
v_add_u32 {t[6]}, {t[6]}, {t[7]}
v_add_u32 {vW1r0}, {L_R1}, {t[6]}
v_add_u32 {vW1r1}, {L_R1 + 49152}, {t[6]}
v_lshrrev_b32 {t[6]}, 1, {t[1]}
v_xor_b32 {t[6]}, {t[6]}, {t[0]}
v_lshlrev_b32 {t[6]}, 4, {t[6]}
v_lshl_add_u32 {vA1r0}, {t[1]}, 7, {t[6]}
v_xor_b32 {vA1r1}, 64, {vA1r0}
v_lshrrev_b32 {t[7]}, 1, {t[0]}
v_lshrrev_b32 {t[8]}, 1, {t[3]}
v_and_b32 {t[9]}, 1, {t[3]}
v_lshl_add_u32 {t[10]}, {t[9]}, 1, {t[8]}
v_lshl_add_u32 {t[10]}, {t[5]}, 2, {t[10]}
v_lshlrev_b32 {t[10]}, 3, {t[10]}
v_xor_b32 {t[11]}, s93, {t[4]}
v_lshl_add_u32 {t[10]}, {t[11]}, 6, {t[10]}
v_lshl_add_u32 {t[10]}, {t[2]}, 7, {t[10]}
v_lshl_add_u32 {vWown}, {t[7]}, 10, {t[10]}
v_xor_b32 {vWoth}, 64, {vWown}
v_lshl_add_u32 {t[10]}, {t[9]}, 1, {t[5]}
v_lshlrev_b32 {t[10]}, 3, {t[10]}
v_lshl_add_u32 {t[11]}, {t[8]}, 1, {t[4]}
v_xor_b32 {t[11]}, {sW}, {t[11]}
v_lshl_add_u32 {t[10]}, {t[11]}, 5, {t[10]}
v_lshl_add_u32 {t[10]}, {t[2]}, 7, {t[10]}
v_lshl_add_u32 {t[10]}, {t[8]}, 12, {t[10]}
v_lshl_add_u32 {vW3r}, {t[7]}, 13, {t[10]}
v_and_b32 {t[0]}, 31, {vL}
v_lshrrev_b32 {t[1]}, 5, {vL}
v_lshlrev_b32 {t[1]}, 4, {t[1]}
v_lshl_add_u32 {t[0]}, {t[0]}, 11, {t[1]}
s_and_b32 s91, {sW}, 1
s_lshl_b32 s91, s91, 16
s_lshl_b32 s94, s93, 6
s_add_u32 s91, s91, s94
s_add_u32 s91, s91, s92
v_add_u32 {vRM}, s91, {t[0]}
s_lshl_b32 s91, {sG16}, 8
s_add_u32 s91, s91, {WS_FL}
v_lshl_add_u32 {vFLp}, {vL}, 2, s91
s_lshl_b32 s94, {sM16}, 2
s_add_u32 s94, s94, {sW}
s_lshl_b32 s94, s94, 2
s_add_u32 s91, s91, s94
v_mov_b32 {vFLo}, s91
v_mov_b32 {t[0]}, 0x7ff00000
v_cmp_eq_u32 vcc, 0, {vL}
v_cndmask_b32 {vFLo}, {t[0]}, {vFLo}, vcc""")
        for s in range(2):
            p(f"""s_add_u32 s91, {sW}, {4*s}
s_xor_b32 s91, s91, {sR3}
s_lshl_b32 s91, s91, 12
s_lshl_b32 s94, {sG16}, 17
s_add_u32 {sA3[s]}, s91, s94""")
        p(f's_cmp_eq_u32 {sR8}, 7\ns_cselect_b32 s91, 3, {sR8}\ns_lshl_b32 {sJ[0]}, s91, 13')
        for j in range(1, 7):
            p(f's_add_u32 {sJ[j]}, {sJ[j-1]}, 8192\ns_cmp_eq_u32 {sJ[j]}, {7*8192}\ns_cselect_b32 {sJ[j]}, 0, {sJ[j]}')
        p(f"""s_cmp_eq_u32 {sRG}, 3
s_cselect_b32 s91, 5, 1
s_add_u32 {sSG}, {sG}, s91
s_cmp_eq_u32 s90, 15
s_cselect_b32 {sSG}, {sG}, {sSG}
s_lshr_b32 s91, {sSG}, 1
v_mov_b32 v252, {sG16}
v_mov_b32 v253, s91
v_cmp_eq_u32 vcc, 0, {vL}
v_cndmask_b32 v252, v253, v252, vcc
v_lshlrev_b32 v252, 7, v252
s_mov_b32 s91, {WS_EP}
buffer_load_dword v253, v252, {SWS}, s91 offen sc1""")
        c = 40
        p(f"""v_mov_b32 v{c}, -1
v_mov_b32 v{c+1}, -1
v_mov_b32 v{c+2}, -1
v_mov_b32 v{c+3}, -1
v_mov_b32 v{c+4}, 0
v_lshrrev_b32 v{c+5}, 3, {vL}
v_and_b32 v{c+6}, 7, {vL}
v_lshlrev_b32 v{c+6}, 4, v{c+6}
v_lshl_add_u32 v{c+5}, v{c+5}, 11, v{c+6}
s_lshl_b32 s88, {sG}, 14
s_add_u32 s88, s88, s92
s_add_u32 s88, s88, {sW4K}
s_add_u32 s88, s88, {WS_HB}
s_lshl_b32 s91, {sG}, 7
s_lshl_b32 s94, {sW}, 4
s_add_u32 s91, s91, s94
s_add_u32 s91, s91, {WS_HS}
s_cmp_eq_u32 {sCB}, 0
s_cselect_b32 s91, s91, 0x7ff00000
v_mov_b32 v{c+6}, s91
s_mov_b64 exec, 0xffff""")
        self.clr = [p(f'buffer_store_dwordx4 {vr(c,4)}, v{c+5}, {SWS}, s88 offen sc1')]
        p('s_mov_b64 exec, 1')
        self.clr.append(p(f'buffer_store_dwordx4 {vr(c,4)}, v{c+6}, {SWS}, 0 offen sc1'))
        p('s_mov_b64 exec, -1')
        if not self.o_rot: p(f's_mov_b32 {sRG}, 0')
        if self.o.get('rotx', 1) & 4: p(f's_and_b32 {sRG}, s2, 3')

    def publish_xcc(self):
        l = self.lab('px')
        return [f'v_readlane_b32 {sE}, v253, 0', f'v_readlane_b32 {sES}, v253, 1', Raw(f"""s_cmp_lg_u32 {sW}, 0
s_cbranch_scc1 {l}
s_lshl_b32 s88, {sG}, 3
s_add_u32 s88, s88, {sCB}
s_lshl_b32 s88, s88, 8
s_add_u32 s88, s88, {WS_XC}
v_sub_u32 v252, 15, {vL}
v_add_u32 v252, v252, v253
v_mov_b32 v253, {sXCC}
v_lshlrev_b32 v254, 7, {vL}
s_mov_b64 exec, 3
buffer_store_dwordx2 v[252:253], v254, {SWS}, s88 offen sc1
s_mov_b64 exec, -1
{l}:""", rd=['v253', sE, sES], wr=['v252', 'v253', 'v254', 's88'], states=2)]
    def mode_issue(self, va, vd):
        return lines(f"""s_lshl_b32 s88, {sG16}, 12
s_lshl_b32 s89, {sPG}, 11
s_sub_u32 s89, s89, {16*256 - 128}
v_lshlrev_b32 {va}, 8, {vL}
v_add_u32 v{vd}, s89, {va}
v_add_u32 {va}, s88, {va}
v_cmp_gt_u32 vcc, 16, {vL}
v_cndmask_b32 {va}, v{vd}, {va}, vcc
v_mov_b32 v{vd}, s88
v_cmp_gt_u32 vcc, 24, {vL}
v_cndmask_b32 {va}, v{vd}, {va}, vcc
v_add_u32 {va}, {WS_XC}, {va}
buffer_load_dwordx2 {vr(vd,2)}, {va}, {SWS}, 0 offen sc1""")
    def mode_check(self, va, vd):
        o = lines(f"""s_cmp_eq_u32 {sHASP}, 0
s_mov_b32 s92, 0xffffff
s_cselect_b32 s92, 0xffff, s92
s_mov_b32 s93, 0
v_lshrrev_b32 v33, 4, {vL}
v_sub_u32 v33, 15, v33
v_add_u32 v33, {sE}, v33""")
        o += self.spin(f'buffer_load_dwordx2 {vr(vd,2)}, {va}, {SWS}, 0 offen sc1', f'v_cmp_ne_u32 vcc, v33, v{vd}', 's[92:93]')
        o += lines(f'v_cmp_ne_u32 vcc, {sXCC}, v{vd+1}\ns_and_b32 {sMODE}, vcc_lo, 0xffff')
        if self.o_glob: o.append(f's_mov_b32 {sMODE}, 1')
        return o
    def bump_epoch(self):
        l = self.lab('ep')
        return Raw(f"""s_add_u32 s88, {sM16}, {sW}
s_cmp_lg_u32 s88, 0
s_cbranch_scc1 {l}
s_lshl_b32 s88, {sG16}, 7
s_add_u32 s88, s88, {WS_EP}
s_add_u32 s89, {sE}, 16
v_mov_b32 v33, s89
v_mov_b32 v34, 0
s_mov_b64 exec, 1
buffer_store_dword v33, v34, {SWS}, s88 offen
s_mov_b64 exec, -1
{l}:""", wr=['v33', 'v34', 's88', 's89'], states=2)

    def stats_final(self, S, Q, t):
        o = [f'v_mul_f32 {S}, {f2u(-1/512)}, {S}', f'v_mul_f32 {Q}, {f2u(1/512)}, {Q}', f'v_fma_f32 {Q}, -{S}, {S}, {Q}', f'v_max_f32 {Q}, 0, {Q}']
        rnd = lambda x: [f'v_cvt_pk_bf16_f32 {x}, {x}, {x}', f'v_and_b32 {x}, 0xffff0000, {x}']
        if self.o_mimic:
            o += rnd(Q) + [f'v_add_f32 {Q}, {f2u(1e-5)}, {Q}'] + rnd(Q) + [f'v_sqrt_f32 {t}, {Q}'] + rnd(S) + rnd(t) + [f'v_rcp_f32 {Q}, {t}']
        else:
            o += [f'v_add_f32 {Q}, {f2u(1e-5)}, {Q}', f'v_sqrt_f32 {t}, {Q}', f'v_rcp_f32 {Q}, {t}']
        return o
    def stats_issue(self, base, sbase, r):
        o = [Ins(f's_add_u32 {sT}, {sbase}, {base}')]
        for i in range(4): o.append(Ins(f'buffer_load_dwordx4 {vr(r+4*i,4)}, {vL16}, {SWS}, {sT} offen offset:{1024*i} sc1'))
        return o
    def stats_reduce(self, r):
        o = []
        for j in range(4): o.append(f'v_add_f32 v{r+j}, v{r+j}, v{r+4+j}')
        for j in range(4): o.append(f'v_add_f32 v{r+8+j}, v{r+8+j}, v{r+12+j}')
        for j in range(4): o.append(f'v_add_f32 v{r+j}, v{r+j}, v{r+8+j}')
        o += [f'v_permlane16_swap_b32 v{r}, v{r+2}', f'v_permlane16_swap_b32 v{r+1}, v{r+3}',
              f'v_add_f32 v{r}, v{r}, v{r+2}', f'v_add_f32 v{r+1}, v{r+1}, v{r+3}',
              f'v_permlane32_swap_b32 v{r}, v{r+1}', f'v_add_f32 v{r}, v{r}, v{r+1}', f'v_mov_b32 v{r+1}, v{r}',
              f'v_permlane32_swap_b32 v{r}, v{r+1}']
        return o

    w1off = 0
    def w1_stage(self, s, seq=False):
        slot = L_R1 + ((s + self.w1off) % 7) * 12288
        pre = []
        if not (seq and s & 1):
            pre += [Ins(f's_xor_b32 {sV}, {sR8}, {s >> 1}'), Ins(f's_mul_i32 {sV}, {sV}, 196608')]
        if s & 1: pre.append(Ins(f's_add_u32 {sV}, {sV}, 98304'))
        out = []
        for part in range(3):
            g = ([Ins(f's_add_u32 m0, {sW3K}, {slot}')] + pre) if part == 0 else []
            g.append(Ins(f'buffer_load_dwordx4 {vW1d}, {SWQKV}, {sV} offen offset:{part*1024} lds', lds=[(slot + q*3072 + part*1024, slot + q*3072 + part*1024 + 1024) for q in range(4)]))
            out.append(g)
        return [sum(out, [])], [last(g) for g in out]
    def a1_chunk(self, L, kc):
        srd = SX if L == 0 else SWS; fl = ' sc1' if L else ''
        rng = lambda o: [(kc*8192 + q*2048 + o*1024, kc*8192 + q*2048 + o*1024 + 1024) for q in range(4)]
        a = Ins(f'buffer_load_dwordx4 {vA1e}, {srd}, {sT} offen{fl} lds', lds=rng(0))
        b = Ins(f'buffer_load_dwordx4 {vA1o}, {srd}, {sT} offen offset:1024{fl} lds', lds=rng(1))
        return [Ins(f's_add_u32 m0, {sW2K}, {kc*8192}'), Ins(f's_xor_b32 {sT}, {sR8s}, {kc*128}'), Ins(f's_add_u32 {sT}, {sT}, {sA1}'), a, b], [a, b]
    def halo_dma(self, L, va, sT=sT):
        srd = SX if L == 0 else SWS; fl = ' sc1' if L else ''
        o = []; tk = []
        for u in range(2):
            d = Ins(f'buffer_load_dwordx4 {va}, {srd}, {sT} offen{fl} lds', lds=[(L_A1H + q*2048 + u*1024, L_A1H + q*2048 + u*1024 + 1024) for q in range(4)])
            o += [Ins(f's_add_u32 m0, {sW2K}, {L_A1H + u*1024}'), Ins(f's_lshl_b32 {sT}, {sW}, 8'), Ins(f's_add_u32 {sT}, {sT}, {u*128}'),
                  Ins(f's_xor_b32 {sT}, {sT}, {sR8s}'), Ins(f's_add_u32 {sT}, {sT}, {sHB if L else sHALO}'), d]
            tk.append(d)
        return o, tk
    def w2_piece(self, i):
        q = (i >> 1) & 3; c = (i & 1)*32768 + (i >> 3)*262144
        o = [Ins(f's_add_u32 m0, {sW1K}, {L_W2 + i*4096}'), Ins(f's_xor_b32 {sT}, {sRG}, {q}'), Ins(f's_lshl_b32 {sT}, {sT}, 16')]
        if c: o.append(Ins(f's_add_u32 {sT}, {sT}, {c}'))
        o.append(Ins(f'buffer_load_dwordx4 {vW2d}, {SWO}, {sT} offen lds', lds=(L_W2 + i*4096, L_W2 + i*4096 + 4096)))
        return o
    def w2_quads(self, t):
        pre = [f's_mul_i32 s93, {sW}, {131072 - 8192}', f'v_add_u32 {t[0]}, s93, {vW2d}'] + [f'v_add_u32 {t[i]}, {7168*i}, {t[0]}' for i in range(1, 4)] + [f's_lshl_b32 s93, {sW}, 14']
        out = []; tk = []
        for i in range(4):
            o = L_W2 + i*4096
            d = [Ins(f'buffer_load_dwordx4 {t[u]}, {SWO}, {sT} offen offset:{u*1024} lds', lds=[(o + w*16384 + u*1024, o + w*16384 + u*1024 + 1024) for w in range(4)]) for u in range(4)]
            out += self.split_dma([Ins(f's_add_u32 m0, s93, {o}'), Ins(f's_mov_b32 {sT}, {i*32768}')] + d); tk += d
        return pre, out, tk
    W4SLOTS = [[8, 2, 3, 4, 5, 0, 1, 6, 7, 8, 2, 3, 4, 5], [8, 8, 8, 8, 0, 1, 2, 3, 4, 5, 6, 7, 8, 1]]
    @property
    def W4SLOT(self):
        if self.layer == 0: return self.W4SLOTS[0]
        n = self.o.get('nwp', 2)
        return ([8]*(n + 1) + list(range(8)) + [8, 1, 2, 3, 4])[:14]
    def w4_setup(self):
        return [f'v_add_u32 {vW4[0]}, {sWd4}, {vW2d}'] + [f'v_add_u32 {vW4[i]}, {7168*i}, {vW4[0]}' for i in range(1, 4)]
    def w4_stage(self, s):
        c, j = divmod(s, 7)
        slot = self.W4SLOT[s] * 16384
        out = []; tk = []
        for h in range(2):
            g = [Ins(f's_add_u32 m0, {sW4K}, {slot}'), Ins(f's_lshl4_add_u32 {sT}, {sJ[j]}, {c*65536}')]
            for i in (2*h, 2*h+1):
                d = Ins(f'buffer_load_dwordx4 {vW4[i]}, {SWD}, {sT} offen offset:{i*1024} lds', lds=[(slot + q*4096 + i*1024, slot + q*4096 + i*1024 + 1024) for q in range(4)])
                g.append(d); tk.append(d)
            out.append(g)
        return out, tk
    def w3_quad(self, q, stg):
        c, kq = divmod(q, 8)
        o = [Ins(f's_add_u32 m0, {sW4K}, {stg}'), Ins(f's_xor_b32 {sU}, {sR3}, {kq}'), Ins(f's_mul_i32 {sU}, {sU}, {4*57344}')]
        if c: o.append(Ins(f's_add_u32 {sU}, {sU}, 128'))
        tk = [Ins(f'buffer_load_dwordx4 {vW3q[i]}, {SW3}, {sU} offen offset:{i*1024} lds', lds=[(stg + w*4096 + i*1024, stg + w*4096 + i*1024 + 1024) for w in range(4)]) for i in range(4)]
        self.w3tok[q] = tk; self.w3stg[q] = stg
        return self.split_dma(o + tk)
    def w3_reads(self, n):
        stg = self.w3stg[n >> 2]; i = n & 3
        va, off = [(vW3r, 0), ('v212', 49152), ('v213', 98304)][min(2, stg // 49152)]
        return [Ins(f'ds_read_b64_tr_b16 {ar(4*n+2*r,2)}, {va} offset:{stg - off + i*1024 + r*512}', lds=[(stg + w*4096 + i*1024, stg + w*4096 + i*1024 + 1024) for w in range(4)]) for r in range(2)]
    def w3_cs(self, n):
        return f'v_mfma_f32_16x16x32_bf16 v[216:219], v[220:223], {ar(4*n,4)}, {0 if n % 32 == 0 else "v[216:219]"}'
    def w3_setup(self):
        return [f'v_add_u32 v212, 49152, {vW3r}', f'v_add_u32 v213, 98304, {vW3r}']
    def w3_take(self, ns):
        p = self.p
        rs = [self.w3_reads(n) for n in ns]
        for i, n in enumerate(ns):
            p(rs[i])
            if i >= 3: p(self.w3_cs(ns[i-3]))
        for n in ns[-3:]: p(self.w3_cs(n))
        return sum(rs, [])
    def w3_sel(self):
        return lines(f"""v_lshrrev_b32 v220, 2, {vL}
v_lshrrev_b32 v221, 4, {vL}
v_xor_b32 v220, v220, v221
v_and_b32 v220, 1, v220
v_cmp_eq_u32 vcc, 0, v220
v_mov_b32 v221, 0x3f803f80
v_cndmask_b32 v220, 0, v221, vcc
v_mov_b32 v221, v220
v_mov_b32 v222, v220
v_mov_b32 v223, v220""")
    CSW = [34, 34]
    def w3_cs_store(self, c):
        o = lines(f"""v_cvt_pk_bf16_f32 v217, v216, v216
v_and_b32 v218, 0xffff0000, v217
v_sub_f32 v216, v216, v218
v_cvt_pk_bf16_f32 v218, v216, v216
v_and_b32 v219, 0xffff0000, v218
v_sub_f32 v216, v216, v219
v_and_b32 v217, 0xffff, v217
v_or_b32 v218, v219, v217
v_cvt_pk_bf16_f32 v219, v216, 0
v_lshlrev_b32 v217, 3, {vL}
s_lshl_b32 s90, {sW}, 9
s_add_u32 s90, s90, {L_CS3 + c*256}
v_add_u32 v217, s90, v217""")
        o.append(['s_mov_b64 exec, 0xffffffff', Ins('ds_write_b64 v217, v[218:219]', lds=(L_CS3, L_CS3 + 2048), private=True), 's_mov_b64 exec, -1'])
        return o

    ATT = dict(ST=144, VS=154, CQ=194, QB=202, KB=210, VB=220, CA=128, CB=132, CB0=136, MA=140, SB=96, PP=230, OA=56, T=246)
    def att_masks(self, T):
        A = self.ATT; CA, CB, CB0, MA = A['CA'], A['CB'], A['CB0'], A['MA']
        o = lines(f"""v_and_b32 v{T}, 15, {vL}
v_lshrrev_b32 v{T+1}, 4, {vL}
v_lshlrev_b32 v142, 2, v{T}
v_add_u32 v142, {L_NM}, v142
v_lshlrev_b32 v143, 4, v{T+1}
v_add_u32 v143, {L_NM}, v143
v_lshlrev_b32 v{T+1}, 2, v{T+1}
v_sub_u32 v{T}, v{T}, v{T+1}
v_mov_b32 v{T+4}, 0xff800000
v_mov_b32 v{T+5}, 0xffff
v_mov_b32 v{T+6}, 0xffff0000
s_cmp_eq_u32 {sHASP}, 0
s_cselect_b64 s[88:89], 0, -1""")
        for j in range(4):
            o += lines(f"""v_subrev_u32 v{T+1}, {j}, v{T}
v_add_u32 v{T+7}, 16, v{T+1}
v_cmp_gt_u32 vcc, 8, v{T+1}
v_cmp_gt_u32 s[90:91], 8, v{T+7}
v_cndmask_b32 v{CA+j}, v{T+4}, 0, vcc
v_cndmask_b32 v{T+8+j}, 0, v{T+5+(j&1)}, vcc
v_cndmask_b32 v{CB+j}, v{T+4}, 0, s[90:91]
v_cndmask_b32 v{CB0+j}, v{T+4}, v{CB+j}, s[88:89]""")
        o += [f'v_or_b32 v{MA}, v{T+8}, v{T+9}', f'v_or_b32 v{MA+1}, v{T+10}, v{T+11}']
        return o
    def att_ones(self): return [f'v_mov_b32 v{112+i}, 0x3f803f80' for i in range(4)]
    def att_tabreads(self):
        A = self.ATT; tab = (L_NM, L_NM + 640)
        o = [Ins(f'ds_read2_b32 {vr(A["ST"]+2*u,2)}, v142 offset0:{16*u} offset1:{80+16*u}', lds=tab) for u in range(5)]
        for u in range(5):
            o.append(Ins(f'ds_read_b128 {vr(A["VS"]+8*u,4)}, v143 offset:{64*u}', lds=tab))
            o.append(Ins(f'ds_read_b128 {vr(A["VS"]+8*u+4,4)}, v143 offset:{64*u+320}', lds=tab))
        return o
    def attention(self, L, extra):
        p = self.p
        QA, KA, VA = 40, 56, 76
        A = self.ATT
        ST, VS, CQ, QB, KB, VB, CA, CB, CB0, MA, SB, PP, OA, T = [A[k] for k in 'ST VS CQ QB KB VB CA CB CB0 MA SB PP OA T'.split()]
        lo, hi = 'op_sel_hi:[1,0,1]', 'op_sel:[0,1] op_sel_hi:[1,1]'
        ONES = 112
        for u in range(5):
            st = vr(ST + 2*u, 2)
            for j in (0, 2): p(f'v_pk_fma_f32 {vr(KA+4*u+j,2)}, {vr(CSK+j,2)}, {st}, {vr(KA+4*u+j,2)} {lo}')
            if u:
                for j in (0, 2): p(f'v_pk_fma_f32 {vr(QA+4*u-4+j,2)}, {vr(CSQ+j,2)}, {st}, {vr(QA+4*u-4+j,2)} {lo}')
            for j in (0, 2): p(f'v_pk_mul_f32 {vr(KA+4*u+j,2)}, {vr(KA+4*u+j,2)}, {st} {hi}')
            if u:
                for j in range(2): p(f'v_cvt_pk_bf16_f32 v{QB+2*u-2+j}, v{QA+4*u-4+2*j}, v{QA+4*u-4+2*j+1}')
            for j in range(2): p(f'v_cvt_pk_bf16_f32 v{KB+2*u+j}, v{KA+4*u+2*j}, v{KA+4*u+2*j+1}')
        p(extra.get('a', []))
        for t in range(4):
            p(f'v_mfma_f32_16x16x16_bf16 {vr(QA+4*t,4)}, {vr(KB+2*(t+1),2)}, {vr(QB+2*t,2)}, {vr(CA,4)}')
            p(f'v_mul_f32 v{CQ+2*t}, {f2u(0.25*LOG2E)}, v{ST+2*t+3}')
            p(f'v_mfma_f32_16x16x16_bf16 {vr(SB+4*t,4)}, {vr(KB+2*t,2)}, {vr(QB+2*t,2)}, {vr(CB0 if t == 0 else CB,4)}')
        p(self.att_ones()); p(extra.get('b', []))
        for u in range(5):
            for j in (0, 2): p(f'v_pk_fma_f32 {vr(VA+4*u+j,2)}, {vr(VS+8*u+j,2)}, {vr(CSV,2)}, {vr(VA+4*u+j,2)} {lo}')
            for j in (0, 2): p(f'v_pk_mul_f32 {vr(VA+4*u+j,2)}, {vr(VA+4*u+j,2)}, {vr(VS+8*u+4+j,2)}')
            for j in range(2): p(f'v_cvt_pk_bf16_f32 v{VB+2*u+j}, v{VA+4*u+2*j}, v{VA+4*u+2*j+1}')
        for t in range(4):
            for j in range(4): p(f'v_max_f32 v{QA+4*t+j}, v{QA+4*t+j}, v{SB+4*t+j}')
        for t in range(4): p(f'v_max3_f32 v{T+t}, v{QA+4*t}, v{QA+4*t+1}, v{QA+4*t+2}')
        for t in range(4): p(f'v_max_f32 v{T+t}, v{T+t}, v{QA+4*t+3}')
        def reduce4(op, ex=None):
            p(f"""v_permlane16_swap_b32 v{T}, v{T+1}
v_permlane16_swap_b32 v{T+2}, v{T+3}
{op} v{T}, v{T}, v{T+1}
{op} v{T+2}, v{T+2}, v{T+3}
v_permlane32_swap_b32 v{T}, v{T+2}
{op} v{T}, v{T}, v{T+2}""")
            if ex: p(ex)
            p(f"""v_mov_b32 v{T+2}, v{T}
v_permlane32_swap_b32 v{T}, v{T+2}
v_mov_b32 v{T+1}, v{T}
v_mov_b32 v{T+3}, v{T+2}
v_permlane16_swap_b32 v{T}, v{T+1}
v_permlane16_swap_b32 v{T+2}, v{T+3}""")
        reduce4('v_max_f32')
        for t in range(4): p(f'v_mul_f32 v{CQ+2*t+1}, v{T+t}, v{CQ+2*t}')
        for t in range(4):
            for j in (0, 2): p(f'v_pk_fma_f32 {vr(QA+4*t+j,2)}, {vr(QA+4*t+j,2)}, {vr(CQ+2*t,2)}, {vr(CQ+2*t,2)} op_sel:[0,0,1] op_sel_hi:[1,0,1] neg_lo:[0,0,1] neg_hi:[0,0,1]')
        for t in range(4):
            for j in range(4): p(f'v_exp_f32 v{QA+4*t+j}, v{QA+4*t+j}')
        for t in range(4):
            p(f"""v_cvt_pk_bf16_f32 v{PP+4*t}, v{QA+4*t}, v{QA+4*t+1}
v_cvt_pk_bf16_f32 v{PP+4*t+1}, v{QA+4*t+2}, v{QA+4*t+3}
v_and_b32 v{PP+4*t+2}, v{MA}, v{PP+4*t}
v_and_b32 v{PP+4*t+3}, v{MA+1}, v{PP+4*t+1}
v_xor_b32 v{PP+4*t}, v{PP+4*t}, v{PP+4*t+2}
v_xor_b32 v{PP+4*t+1}, v{PP+4*t+1}, v{PP+4*t+3}""")
            if t: p(f'v_mfma_f32_16x16x32_bf16 {vr(SB+4*t-4,4)}, {vr(ONES,4)}, {vr(PP+4*t-4,4)}, 0')
            if t: p(f'v_mfma_f32_16x16x32_bf16 {vr(OA+4*t-4,4)}, {vr(VB+2*t-2,4)}, {vr(PP+4*t-4,4)}, 0')
        p(f'v_rcp_f32 v{SB}, v{SB}')
        p(f'v_mfma_f32_16x16x32_bf16 {vr(SB+12,4)}, {vr(ONES,4)}, {vr(PP+12,4)}, 0')
        p(f'v_mfma_f32_16x16x32_bf16 {vr(OA+12,4)}, {vr(VB+6,4)}, {vr(PP+12,4)}, 0')
        for t in range(4):
            if t: p(f'v_rcp_f32 v{SB+4*t}, v{SB+4*t}')
            if t:
                for j in range(4): p(f'v_mul_f32 v{OA+4*t-4+j}, v{SB+4*t-4}, v{OA+4*t-4+j}')
        for j in range(4): p(f'v_mul_f32 v{OA+12+j}, v{SB+12}, v{OA+12+j}')
        for tp in range(2):
            b = PP + 4*tp
            for h in range(2):
                t = 2*tp + h
                for j in range(2): p(f'v_cvt_pk_bf16_f32 v{b+2*h+j}, v{OA+4*t+2*j}, v{OA+4*t+2*j+1}')
        for tp in range(2):
            b = PP + 4*tp
            p(f'v_permlane16_swap_b32 v{b}, v{b+2}\nv_permlane16_swap_b32 v{b+1}, v{b+3}')
        alt, st = self.stores([f'buffer_store_dwordx4 {vr(PP,4)}, {vL16}, {SWS}, {sX} offen', f'buffer_store_dwordx4 {vr(PP+4,4)}, {vL16}, {SWS}, {sY} offen'])
        p(alt)
        return st
    def o_addr(self, L):
        if self.alias:
            return lines(f"""s_mul_i32 {sX}, {sG}, {2*114688}
s_lshl_b32 {sY}, {sCB}, 12
s_add_u32 {sX}, {sX}, {sY}
s_add_u32 {sX}, {sX}, {sW1K}
s_add_u32 {sX}, {sX}, {WS_H[L]}
s_add_u32 {sY}, {sX}, 114688""")
        return lines(f"""s_lshl_b32 {sX}, {sG}, 16
s_lshl_b32 {sY}, {sCB}, 12
s_add_u32 {sX}, {sX}, {sY}
s_add_u32 {sX}, {sX}, {sW1K}
s_add_u32 {sX}, {sX}, {WS_O[L]}
s_add_u32 {sY}, {sX}, 32768""")
    def x1_addr(self, L, d):
        return lines(f"""s_lshl_b32 {d}, {sRB}, 15
s_lshl_b32 s89, {sCB}, 12
s_add_u32 {d}, {d}, s89
s_and_b32 s89, {sW1K}, 2048
s_add_u32 {d}, {d}, s89
s_add_u32 {d}, {d}, {WS_X1[L]}""")
    def st_addr(self, base, d):
        return lines(f"""s_lshl_b32 {d}, {sRB}, 12
s_lshl_b32 s89, {sCB}, 9
s_add_u32 {d}, {d}, s89
s_lshr_b32 s89, {sW}, 1
s_lshl_b32 s89, s89, 8
s_add_u32 {d}, {d}, s89
s_add_u32 {d}, {d}, {base}""")
    def h_addr(self, L):
        return lines(f"""s_mul_i32 {sH0}, {sG16}, {4*114688}
s_lshl_b32 s88, {sM16}, 13
s_add_u32 {sH0}, {sH0}, s88
s_add_u32 {sH0}, {sH0}, {sW1K}
s_add_u32 {sH0}, {sH0}, {WS_H[L]}
s_cmp_lg_u32 {sIDLE}, 0
s_cselect_b32 {sH0}, 0x7fe00000, {sH0}""")
    def touches_p1(self, L, t):
        if not self.o_touch or (self.alias and L == 1 and not self.o.get('t1', True)): return self.o_addr(L)
        o = self.o_addr(L) + [f'v_and_b32 {t}, 7, {vL}', f'v_lshlrev_b32 {t}, 7, {t}', f'v_bfe_u32 v34, {vL}, 3, 1', f'v_mul_u32_u24 v34, {114688 if self.alias else 32768}, v34', f'v_add_u32 {t}, {t}, v34']
        o.append(self.touch(t, sX, 0xffff))
        o += self.x1_addr(L, 's88') + [f'v_lshlrev_b32 {t}, 7, {vL}']
        o.append(self.touch(t, 's88', 0xffff))
        o += self.st_addr(WS_ST1[L], 's88')
        o.append(self.touch(t, 's88', 3))
        if L == 0: o.append(self.touch(vFLp, 0))
        return o
    def touches_h(self, L, t):
        if not self.o_touch or (self.alias and L == 1 and not self.o.get('th1', True)): return []
        o = self.h_addr(L) + lines(f"""v_and_b32 {t}, 7, {vL}
v_lshlrev_b32 {t}, 7, {t}
v_bfe_u32 v34, {vL}, 3, 1
v_lshl_add_u32 {t}, v34, 12, {t}
v_lshrrev_b32 v34, 4, {vL}
v_mul_u32_u24 v34, 114688, v34
v_add_u32 {t}, {t}, v34""")
        o.append(self.touch(t, sH0))
        return o
    def touches_x2(self, t):
        if not self.o_touch: return []
        if self.alias:
            if not self.o.get('tx2', True): return []
            o = self.x1_addr(0, 's88') + [f'v_lshlrev_b32 {t}, 7, {vL}', self.touch(t, 's88', 0xffff)]
            return o + self.st_addr(WS_ST2, 's88') + [self.touch(t, 's88', 3)]
        o = [f's_add_u32 s88, {sROW}, {WS_X2}', self.touch(vRM, 's88', 0xffffffff)]
        o += self.st_addr(WS_ST2, 's88') + [f'v_lshlrev_b32 {t}, 7, {vL}', self.touch(t, 's88', 3)]
        return o

    def p1_wreads(self, s, dq, dk, dv):
        slot = (s + self.w1off) % 7
        va, off = (vW1r0, slot*12288) if slot < 4 else (vW1r1, slot*12288 - 49152)
        lo = L_R1 + slot*12288
        return [Ins(f'ds_read_b64_tr_b16 {vr(dst+2*rd,2)}, {va} offset:{off + part*1024 + rd*512}', lds=[(lo + q*3072 + part*1024, lo + q*3072 + part*1024 + 1024) for q in range(4)])
                for part, dst in ((0, dq), (1, dk), (2, dv)) for rd in range(2)]
    def p1_aread(self, s, t, dst):
        o = (s >> 1)*8192 + t*2048
        return Ins(f'ds_read_b128 {vr(dst,4)}, {vA1r1 if s & 1 else vA1r0} offset:{o}', lds=(o, o+2048))
    def halo_addr(self, a, b):
        return lines(f"""v_and_b32 {a}, 1023, {vA1r0}
v_not_b32 {b}, {vL}
v_and_b32 {b}, 8, {b}
v_lshlrev_b32 {b}, 3, {b}
v_xor_b32 {a}, {a}, {b}
v_add_u32 {a}, {L_A1H}, {a}
v_xor_b32 {b}, 64, {a}""")
    def halo_read(self, s, dst, a, b):
        o = (s >> 1)*1024
        return Ins(f'ds_read_b128 {vr(dst,4)}, {b if s & 1 else a} offset:{o}', lds=(L_A1H + o, L_A1H + o + 1024))
    W2AT = {9: [1, 2, 3], 10: [4, 5, 6], 11: [7, 8, 9], 12: [10, 11, 12], 13: [13, 14, 15], 15: [0]}

    def edf(self, S, items, sigma, name, stream='dma', lead=2):
        t = float(min(x['e'] for x in items)); left = list(items); plan = []
        while left:
            seen = set(); el = []
            for x in left:
                c = x.get('chain')
                if c in seen: continue
                if c is not None: seen.add(c)
                if x['e'] <= t: el.append(x)
            if not el: t = float(min(x['e'] for x in left if x['e'] > t)); continue
            x = min(el, key=lambda y: y['need'])
            gq = x['make']()
            x['t'] = t; x['n'] = len(gq); plan.append(x); left.remove(x)
            for j, y in enumerate(gq):
                tt = min(int(t + sigma*j), len(S.spine) - 1)
                if len(y) > 1: S.add(stream, [y[:-1]], e=max(tt - lead, 0), d=tt, split=True, step=0)
                S.add(stream, [y[-1:]], e=tt, d=tt, step=0)
            t += sigma*len(gq)
        print(f'   edf {name}: min slack', sorted(round(x['need'] - x['t'] - sigma*(x['n']-1), 1) for x in plan)[:5], 'end', round(t, 1))
    def split_dma(self, g):
        out = []; cur = []
        for i in g:
            cur.append(i)
            if i.kind in ('dma', 'vmld'): out.append(cur); cur = []
        assert not cur
        return out

    def p1_first(self):
        p = self.p
        QA, KA, VA, AF, ONE, WB, SA = 40, 56, 76, 96, 120, 224, 152
        wtok = {}; atok = {}
        def A(kc):
            o, tk = self.a1_chunk(0, kc); atok[kc] = tk; return self.split_dma(o)
        def W(s):
            o, tk = self.w1_stage(s, seq=True); wtok[s] = tk; return self.split_dma(o[0])
        p(A(0))
        hd, htok = self.halo_dma(0, 'v124'); p(hd)
        p(W(0)); p(W(1)); p(A(1))
        self.prologue_b()
        for i2 in range(2): p(f'buffer_load_dwordx4 {vr(RES+4*i2,4)}, {vRM}, {SX}, {sROW} offen offset:{32*i2}')
        if self.o.get('tlb'):
            p(f'v_mov_b32 v198, 0\ns_mul_i32 s88, {sG16}, {4*114688}\ns_add_u32 s88, s88, {WS_H[0]}\ns_lshl_b32 s89, {sG}, 16\ns_add_u32 s89, s89, {WS_X1[0]}\ns_mov_b32 s91, {WS_ST1[0]}')
            for srd, so in ((SWO, '0'), (SW3, '0'), (SWD, '0'), (SOUT, sROW), (SWS, 's88'), (SWS, 's89'), (SWS, 's91')):
                x = Ins(f'buffer_load_dword v34, v198, {srd}, {so} offen'); x.wr = set(); p(x)
        p(self.halo_addr('v124', 'v125'))
        p(f'v_add_u32 v126, {sW2K}, {vA1r0}\nv_xor_b32 v127, 64, v126')
        for b_ in (ONE, AF + 16, 172, 180):
            for i in range(4): p(f'v_mov_b32 v{b_+i}, 0x3f803f80')
        hm = lambda x: ['s_mov_b64 exec, s[32:33]', x, 's_mov_b64 exec, -1']
        p(W(2)); p(W(3))
        self.ts('p1_go0')
        plan = {0: ['A2', 'W4'], 1: ['A3', 'W5'], 2: ['A4', 'W6'], 3: ['A5', 'W7'], 4: ['A6', 'W8'], 5: ['A7', 'W9'], 6: ['W10', 'W11'], 7: ['W12', 'W13'], 8: ['W14', 'W15']}
        wb = lambda s: WB + 12*(s & 1)
        one = vr(ONE, 4)
        p(WaitTok(wtok[0] + atok[0] + htok)); p('s_barrier')
        self.ts('a1_landed')
        wr = self.p1_wreads(0, wb(0), wb(0)+4, wb(0)+8); p(wr)
        p(hm(self.halo_read(0, AF+16, 'v124', 'v125')))
        for t in range(4): p(self.p1_aread(0, t, AF + 4*t))
        spine = []; base = []
        for s in range(16):
            base.append(len(spine))
            z = (s == 0)
            wq, wk, wv = vr(wb(s), 4), vr(wb(s)+4, 4), vr(wb(s)+8, 4)
            mm = lambda d, x, y, zz=z: f'v_mfma_f32_16x16x32_bf16 {vr(d,4)}, {x}, {y}, {0 if zz else vr(d,4)}'
            h = vr(AF + 16, 4)
            spine += [mm(CSQ, wq, one), mm(KA, wk, h), mm(VA, h, wv)]
            for t in range(4):
                a = vr(AF + 4*t, 4)
                spine += [mm(QA + 4*t, wq, a), mm(KA + 4 + 4*t, wk, a), mm(VA + 4 + 4*t, a, wv)]
            kc = s - 2
            if 0 <= kc < 8:
                for hh in range(2):
                    fa, fh = vr(168 + 8*hh, 4), vr(172 + 8*hh, 4); zz = (kc == 0 and hh == 0)
                    spine += [mm(SA, one, fa, zz), mm(SA+4, fa, fa, zz), mm(SA+12, fh, fh, zz)]
        base.append(len(spine))
        S = Sched(spine)
        w2tok = []
        items = []
        B2 = self.o.get('b20', True)
        ev = (lambda x: x & ~1) if B2 else (lambda x: x)
        nx = (lambda x: (x + 1) & ~1) if B2 else (lambda x: x)
        for kc in range(2, 8): items.append(dict(e=1, need=min(base[ev(2*kc - 1)], base[ev(kc + 2)]), chain='A', make=lambda kc=kc: A(kc)))
        for s in range(4, 16): items.append(dict(e=base[nx(s-7)] + 1 if s >= 7 else 1, need=base[ev(s-1)], chain='W', make=lambda s=s: W(s)))
        def w2mk(i):
            x = self.w2_piece(i); w2tok.append(last(x)); return [x]
        for s, lst in self.W2AT.items():
            for i in lst: items.append(dict(e=base[min(15, nx(s))] + 1, need=base[16] + 40, chain='W2', make=lambda i=i: w2mk(i)))
        for q, s in ((0, 11), (1, 12)): items.append(dict(e=base[nx(s)] + 1, need=base[16] + 30 + q, chain='W3', make=lambda q=q: self.w3_quad(q, 16384 + 16384*q)))
        self.edf(S, items, self.o.get('sg10', 3.2), 'p1 L0')
        tabw = [Ins(f'ds_write2_b32 v169, v{SA}, v{SA+4} offset0:16 offset1:96', lds=(L_NM, L_NM+640)), Ins(f'ds_write2_b32 v168, v{SA+8}, v{SA+12} offset0:0 offset1:80', lds=(L_NM, L_NM+640))]
        ard = None
        for s in range(16):
            b, nb = base[s], base[s+1]
            S.before[b] = self.fts('p10', f'k{s}')
            if ard:
                S.before[b] += [WaitTok(wr + ard[:1])]; S.before[b + 3] = [WaitTok(ard[1:3])]; S.before[b + 9] = [WaitTok(ard[3:])]
            kc = s - 2
            if not B2 or s % 2 == 0 or s == 15:
                toks = list(wr)
                for u in ((s + 1, s + 2) if B2 else (s + 1,)):
                    if u < 16: toks += wtok[u] + atok[u >> 1]
                for u in ((kc, kc + 1) if B2 else (kc,)):
                    if 0 <= u < 8: toks += atok[u]
                if s == (4 if B2 else 3): toks += self.clr
                if s == 15: toks += tabw
                S.at(b, [WaitTok(toks), 's_barrier'])
            if 0 <= kc < 8:
                x = []; tk = []
                for hh in range(2):
                    r1 = Ins(f'ds_read_b128 {vr(168+8*hh,4)}, {"v127" if hh else "v126"} offset:{kc*8192}', lds=(kc*8192, kc*8192 + 8192))
                    r2 = self.halo_read(2*kc + hh, 172 + 8*hh, 'v124', 'v125')
                    x += [r1, hm(r2)]; tk += [r1, r2]
                S.add('sr', x, e=b+1, d=b+11)
                S.before[b + 15] = [WaitTok(tk)]
            if s < 15:
                wr = self.p1_wreads(s+1, wb(s+1), wb(s+1)+4, wb(s+1)+8)
                S.add('wr', wr, e=b+1, d=nb-5, step=1)
                ard = [self.halo_read(s+1, AF+16, 'v124', 'v125')] + [self.p1_aread(s+1, t, AF + 4*t) for t in range(4)]
                S.add('ar', [hm(ard[0])], e=b+3, d=nb-4)
                for t in range(4): S.add('ar', [ard[t+1]], e=b+6+3*t, d=nb+(-3, -1, 3, 4)[t], step=0)
        x = lines(f"""v_and_b32 v168, 3, {vL}
v_cmp_eq_u32 vcc, 1, v168
v_cmp_eq_u32 s[88:89], 2, v168
v_cmp_eq_u32 s[90:91], 3, v168""")
        x += [f'v_mov_b32 v{SA+8}, v{SA+12}', f'v_mov_b32 v{SA+9}, v{SA+12}', f'v_permlane32_swap_b32 v{SA+8}, v{SA+9}']
        for bb in (SA+4, SA+12):
            x += [f'v_cndmask_b32 v{bb}, v{bb}, v{bb+1}, vcc', f'v_cndmask_b32 v{bb}, v{bb}, v{bb+2}, s[88:89]', f'v_cndmask_b32 v{bb}, v{bb}, v{bb+3}, s[90:91]']
        x += self.stats_final(f'v{SA}', f'v{SA+4}', f'v{SA+1}') + self.stats_final(f'v{SA+8}', f'v{SA+12}', f'v{SA+9}')
        x += lines(f"""v_and_b32 v168, 15, {vL}
v_lshlrev_b32 v168, 2, v168
v_add_u32 v168, {L_NM}, v168
s_lshl_b32 s88, {sW}, 6
v_add_u32 v169, s88, v168""")
        x.append(['s_mov_b32 exec_lo, 0x00f0000f', 's_mov_b32 exec_hi, 0xf0000f00'] + tabw + ['s_mov_b64 exec, -1'])
        wt = self.o.get('wat', 0)
        S.add('misc', self.warm_touch('v196') + [[f's_cmp_lg_u32 {sIDLE}, 0', 's_cselect_b32 s18, 0, s18']], e=base[wt]+1, d=base[wt+1]-1)
        S.add('misc', self.att_masks(184), e=base[1]+1, d=base[3]-1)
        S.add('misc', self.publish_xcc(), e=base[4 if B2 else 3]+1, d=base[5 if B2 else 4])
        S.add('misc', self.touches_p1(0, 'v196'), e=base[6], d=base[9])
        S.add('misc', self.mode_issue('v197', 198), e=base[9], d=base[10]+1)
        S.add('misc', [f'v_add_u32 {vW3q[i]}, {i*(57344-1024)}, {vW3d}' for i in range(1, 4)], e=base[10], d=base[11] - 3)
        if self.o.get('ct2', False): S.add('misc', [self.code_touch()], e=base[10], d=base[11])
        S.add('misc', x, e=base[10]+2, d=base[14])
        th0 = self.touches_h(0, 'v200') if not self.o.get('th3', 3) & 1 else []; thi0 = th0[-1:]
        self.th0 = thi0
        S.add('misc', th0[:-1] + (thi0 if self.o.get('tha', 0) == 1 else []), e=base[12], d=base[13])
        S.add('misc', self.p2_setup(0), e=base[13], d=base[14])
        S.add('misc', [self.mode_check('v197', 198)], e=base[14], d=base[15]-1)
        S.add('misc', self.att_tabreads(), e=base[15]+1, d=base[16]-2)
        self.win(S, '10')
        S.emit(p, 'p1 L0')
        self.ts('p1_loop0')
        for j in range(4): p(f'v_mov_b32_dpp v{CSK+j}, v{KA+j} row_newbcast:0 row_mask:0xf bank_mask:0xf')
        p(f'v_mov_b32 v{CSV}, v{VA}\nv_mov_b32 v33, v{VA}\nv_permlane32_swap_b32 v{CSV}, v33')
        p('s_waitcnt lgkmcnt(0)'); p('s_barrier')
        nq = self.o.get('nqa', 2); tha = self.o.get('tha', 0)
        if nq >= 1: p(self.w3_quad(2, 49152))
        if tha == 0 and not self.o.get('th3', 3) & 1: p(thi0)
        st = self.attention(0, {'a': self.w3_quad(3, 65536) if nq >= 2 else []})
        self.nq1 = 2 + nq
        self.ts('p1_attn0')
        self.post_flag(1, st)
        self.ts('p1_end0')
        return w2tok

    def p1_second(self, pre):
        p = self.p
        QA, KA, VA, AF, WQ, WK, WV = 40, 56, 76, 96, 112, 128, 192
        wtok = dict(pre); atok = {}
        def A(kc):
            o, tk = self.a1_chunk(1, kc); atok[kc] = tk; return self.split_dma(o)
        p('v_mov_b32 v120, v127')
        dst = lambda s: (WQ + 4*(s & 1), WK + 4*s, WV + 4*s)
        p(WaitTok(wtok[0])); p('s_barrier')
        wr = self.p1_wreads(0, *dst(0)); p(wr)
        self.poll(5, sMK1)
        self.ts('p1_go1')
        p(A(0)); p(A(1))
        p(self.stats_issue(WS_ST2, 's92', 240))
        p(A(2))
        p(WaitTok(atok[0])); p('s_barrier')
        for t in range(4): p(self.p1_aread(0, t, AF + 4*t))
        self.ts('p1_stats1')
        spine = []
        for s in range(16):
            z = (s == 0)
            dq, dk, dv = dst(s)
            mm = lambda d, x, y: f'v_mfma_f32_16x16x32_bf16 {vr(d,4)}, {x}, {y}, {0 if z else vr(d,4)}'
            for t in range(4):
                a = vr(AF + 4*t, 4)
                spine += [mm(QA + 4*t, vr(dq,4), a), mm(KA + 4 + 4*t, vr(dk,4), a), mm(VA + 4 + 4*t, a, vr(dv,4))]
        hb = len(spine)
        for s in range(16):
            a = vr(AF + 4*(s & 3), 4); k, v = vr(KA, 4), vr(VA, 4)
            spine.append(f'v_mfma_f32_16x16x32_bf16 {k}, {vr(WK+4*s,4)}, {a}, {0 if s == 0 else k}')
            spine.append(f'v_mfma_f32_16x16x32_bf16 {v}, {a}, {vr(WV+4*s,4)}, {0 if s == 0 else v}')
        S = Sched(spine)
        w2tok = []
        hd, htok = self.halo_dma(1, 'v120')
        items = []
        def W(s):
            o, tk = self.w1_stage(s, seq=True); wtok[s] = tk; return self.split_dma(o[0])
        B2 = self.o.get('b2', True)
        ev = (lambda x: x & ~1) if B2 else (lambda x: x)
        nx = (lambda x: (x + 1) & ~1) if B2 else (lambda x: x)
        for kc in range(3, 8): items.append(dict(e=0, need=12*ev(2*kc - 1), chain='A', make=lambda kc=kc: A(kc)))
        for s in range(16):
            if s not in wtok: items.append(dict(e=12*nx(s - 7) + 1 if s >= 7 else 0, need=12*ev(s - 1), chain='W', make=lambda s=s: W(s)))
        items.append(dict(e=12*self.o.get('hat', 9), need=12*11, make=lambda: self.split_dma(hd)))
        self.edf(S, items, self.o.get('sg11', 2.7), 'p1 L1', lead=3)
        w2pre, w2, w2tok = self.w2_quads(['v36', 'v37', 'v10', 'v121'])
        NW2 = self.o.get('nw2h', 12)
        S.add('dma', w2[:NW2], e=12*15+1, d=hb+30, split=True)
        tabw = [Ins('ds_write2_b32 v125, v240, v241 offset0:16 offset1:96', lds=(L_NM, L_NM+640)), Ins('ds_write_b32 v126, v125', lds=[(L_NM, L_NM+64), (L_RS, L_RS+64)])]
        ard = None
        for s in range(16):
            b = 12*s
            S.before[b] = self.fts('p11', f'k{s}')
            if ard:
                S.before[b] += [WaitTok(wr + ard[:2])]; S.before[b + 6] = [WaitTok(ard[2:])]
            if not B2 or s % 2 == 0 or s == 15:
                toks = list(wr)
                for u in ((s + 1, s + 2) if B2 else (s + 1,)):
                    if u < 16: toks += wtok[u] + atok[u >> 1]
                if s == 15: toks += tabw + htok
                S.at(b, [WaitTok(toks), 's_barrier'])
            if s < 15:
                wr = self.p1_wreads(s+1, *dst(s+1))
                S.add('wr', wr, e=b+1, d=b+9, step=1)
                ard = [self.p1_aread(s+1, t, AF + 4*t) for t in range(4)]
                for t in range(4): S.add('ar', [ard[t]], e=b+3+3*t, d=b+(7, 9, 13, 14)[t], step=0)
        S.before[hb] = self.cap(lambda: self.ts('p1_loop1'))
        for s in range(16):
            e = 12*15 + 3 + 3*s if s < 4 else hb + 2*(s-4) + 2
            S.add('ar', [self.halo_read(s, AF + 4*(s & 3), 'v122', 'v123')], e=e, d=max(e, hb + 2*s - 4))
        lh = self.lab('hs')
        S.add('misc', [Raw(f"""s_bitcmp1_b32 {sW}, 0
s_cbranch_scc0 {lh}
s_lshl_b32 s88, {sG}, 14
s_add_u32 s88, s88, {WS_HB - 56*2048}
s_mov_b32 exec_lo, 0xff000000
s_mov_b32 exec_hi, 0xff000000
buffer_store_dwordx4 {vr(RES,4)}, {vRM}, {SWS}, s88 offen sc1
buffer_store_dwordx4 {vr(RES+4,4)}, {vRM}, {SWS}, s88 offen offset:32 sc1
s_mov_b64 exec, -1
{lh}:""", rd=[vr(RES, 8)], wr=['s88'], states=2)], e=10, d=11)
        x = self.stats_reduce(240) + self.stats_final('v240', 'v241', 'v242') + lines(f"""v_and_b32 v124, 15, {vL}
v_lshlrev_b32 v124, 3, v124
v_bfe_u32 v125, {vL}, 4, 1
v_lshl_add_u32 v124, v125, 2, v124
s_and_b32 s88, {sW}, 1
s_lshl_b32 s88, s88, 7
s_add_u32 s88, s88, {L_NM}
v_add_u32 v125, s88, v124""")
        x.append(tabw[0])
        lh = self.lab('ht')
        x.append(Raw(f"""s_lshl_b32 s88, {sCB}, 2
s_add_u32 s88, s88, {sW}
s_cmp_lg_u32 s88, 1
s_cbranch_scc1 {lh}
s_lshl_b32 s88, {sG}, 7
s_add_u32 s88, s88, {WS_HS - 96}
s_mov_b32 exec_lo, 0xf000f000
s_mov_b32 exec_hi, 0
buffer_store_dword v240, v124, {SWS}, s88 offen sc1
buffer_store_dword v241, v124, {SWS}, s88 offen offset:32 sc1
s_mov_b64 exec, -1
{lh}:""", rd=['v240', 'v241', 'v124'], wr=['s88'], states=2))
        S.add('misc', x, e=12, d=12*5, step=0.8)
        S.add('misc', self.touches_p1(1, 'v121') + ([self.code_touch()] if self.o.get('ct2', False) else []), e=12*9, d=12*10 - 1)
        S.add('misc', [f's_lshl_b32 s88, {sPG}, 7', f's_add_u32 s94, s88, {WS_HS}', [f's_cmp_eq_u32 {sHASP}, 0', 's_cselect_b32 s94, 0x7ff00000, s94'], f'v_and_b32 v124, 15, {vL}', 'v_lshlrev_b32 v124, 2, v124',
                       f'buffer_load_dword v125, v124, {SWS}, s94 offen sc1', f's_add_u32 s88, {sW2K}, {L_A1H}', f'v_add_u32 v121, s88, {vL16}'], e=12*10, d=12*12, step=1)
        S.add('misc', lines(f"""v_and_b32 v126, 7, {vL}
v_lshlrev_b32 v126, 2, v126
v_bfe_u32 v127, {vL}, 3, 1
v_mul_u32_u24 v127, 320, v127
v_add_u32 v126, v126, v127
v_bfe_u32 v127, {vL}, 4, 1
v_lshl_add_u32 v126, v127, 5, v126
v_add_u32 v126, {L_NM}, v126"""), e=12*11, d=12*14, step=1)
        r = [Ins(f'ds_read_b32 v{122+u}, v121 offset:{u*1024}', lds=(L_A1H, L_A1H + 8192), private=True) for u in range(2)]
        for d in htok: d.private = True
        hd2, _ = self.halo_dma(1, 'v120', 's90')
        S.add('misc', [[WaitTok(htok)] + r], e=12*14, d=12*14+1)
        S.add('misc', [self.spin('s_mov_b32 s93, m0\n' + '\n'.join(i.text for i in hd2) + '\ns_mov_b32 m0, s93', 'v_max_u32 v122, v122, v123\nv_cmp_eq_u32 vcc, -1, v122', 'exec',
                                 pre='ds_read_b32 v122, v121\nds_read_b32 v123, v121 offset:1024\ns_waitcnt lgkmcnt(0)')], e=12*14+5, d=12*14+5)
        S.add('misc', [self.spin(f'buffer_load_dword v125, v124, {SWS}, s94 offen sc1', 'v_cmp_eq_u32 vcc, -1, v125', 'exec'), tabw[1]], e=12*14+7, d=12*14+10)
        S.add('misc', self.halo_addr('v122', 'v123') + w2pre, e=12*14+8, d=12*15)
        th = self.touches_h(1, 'v120') if not self.o.get('th3', 3) & 2 else []; thi = th[-1:]
        S.add('misc', self.p2_setup(1, rot=False) + th[:-1], e=12*15+2, d=hb+7)
        S.add('misc', self.att_masks(192), e=hb+8, d=hb+29)
        tr = self.att_tabreads()
        S.add('tab', tr[:5], e=hb+20, d=hb+30); S.add('tab', tr[5:], e=hb+31)
        self.win(S, '11')
        S.emit(p, 'p1 L1')
        self.ts('p1_halo1')
        st = self.attention(1, {'a': w2[NW2:], 'b': thi})
        self.ts('p1_attn1')
        self.post_flag(6, st)
        self.ts('p1_end1')
        return w2tok

    def epi_pre(self):
        o = [f'v_add_u32 v122, {sW4K}, {vL16}', 'v_xor_b32 v123, 8192, v122']
        o += lines(f"""v_and_b32 v240, 31, {vL}
v_lshlrev_b32 v240, 3, v240
v_lshrrev_b32 v241, 5, {vL}
v_lshl_add_u32 v240, v241, 2, v240""")
        return o
    def tile_spine(self, n):
        D = self.o.get('dsk', 5)
        sp = sum((self.tile_mfmas(k, k == 0) for k in range(n - D)), [])
        tail = [self.tile_mfmas(k, False) for k in range(n - D, n)]
        return sp + [t[0] for t in tail] + [t[1] for t in tail]
    def xwrites(self):
        rng = lambda q: [(L_XB + w*4096 + q*1024, L_XB + w*4096 + q*1024 + 1024) for w in range(4)]
        return [Ins(f'ds_write_b128 v122, {vr(104+4*q,4)} offset:{L_XB + q*1024}', lds=rng(q)) for q in range(4)]
    def tile_epilogue(self, kind, L):
        p = self.p
        OWN, X = 40, 56
        for q in range(4):
            for i in (4*q, 4*q+2): p(f'v_pk_add_f32 {vr(OWN+i,2)}, {vr(OWN+i,2)}, {vr(X+i,2)}')
            for i in (2*q, 2*q+1): p(f'v_cvt_pk_bf16_f32 v{RES+i}, v{OWN+2*i}, v{OWN+2*i+1}')
        if kind == 'out':
            p(f'buffer_store_dwordx4 {vr(RES,4)}, {vRM}, {SOUT}, {sROW} offen')
            p(f'buffer_store_dwordx4 {vr(RES+4,4)}, {vRM}, {SOUT}, {sROW} offen offset:32')
            return None
        if kind == 'x1': alt, st = self.stores([f'buffer_store_dwordx4 {vr(RES,4)}, {vL16}, {SWS}, {sX} offen', f'buffer_store_dwordx4 {vr(RES+4,4)}, {vL16}, {SWS}, {sX} offen offset:1024'])
        else:
            va = 'v242' if self.alias else vRM
            alt, st = self.stores([f'buffer_store_dwordx4 {vr(RES,4)}, {va}, {SWS}, {sX} offen', f'buffer_store_dwordx4 {vr(RES+4,4)}, {va}, {SWS}, {sX} offen offset:32'])
        p(alt)
        p(f'v_pk_add_f32 v[88:89], {vr(OWN,2)}, {vr(OWN+2,2)}\nv_pk_mul_f32 v[90:91], {vr(OWN,2)}, {vr(OWN,2)}\nv_pk_fma_f32 v[90:91], {vr(OWN+2,2)}, {vr(OWN+2,2)}, v[90:91]')
        for i in range(4, 16, 2):
            p(f'v_pk_add_f32 v[88:89], v[88:89], {vr(OWN+i,2)}\nv_pk_fma_f32 v[90:91], {vr(OWN+i,2)}, {vr(OWN+i,2)}, v[90:91]')
        p("""v_add_f32 v88, v88, v89
v_add_f32 v90, v90, v91
v_permlane32_swap_b32 v88, v90
v_add_f32 v88, v88, v90""")
        alt2, st2 = self.stores([f'buffer_store_dword v88, v240, {SWS}, {sY} offen'])
        p(alt2)
        return st + st2
    ARING = [128 + 4*i for i in range(16)] + [224, 228, 232, 236, 248, 252]
    WPRE = [128 + 4*i for i in range(16)] + [212, 216, 220, 224, 228, 232, 236, 248]
    big = False
    def wregs(self, k):
        if self.big and k < 4*self.NWP: return self.WPRE[2*k], self.WPRE[2*k+1]
        r = 72 + 8*((k + 2) % 4)
        return r, r + 4
    def areg(self, k):
        if self.big: return ar(4*k if k < 28 else 128 + 4*(k - 28), 4)
        return vr(self.ARING[k % 22], 4)
    def wfrag_reads(self, k, base, va, vb, lo):
        own, oth = self.wregs(k)
        return [Ins(f'ds_read_b64_tr_b16 {vr(r+2*rd,2)}, {ad} offset:{base + rd*512}', lds=lo) for r, ad in ((oth, vb), (own, va)) for rd in range(2)]
    def tile_mfmas(self, k, z):
        own, oth = self.wregs(k); a = self.areg(k)
        return [f'v_mfma_f32_32x32x16_bf16 {vr(104,16)}, {vr(oth,4)}, {a}, {0 if z else vr(104,16)}',
                f'v_mfma_f32_32x32x16_bf16 {vr(40,16)}, {vr(own,4)}, {a}, {vr(40,16)}']
    def res_unpack(self):
        return sum(([f'v_lshlrev_b32 v{40+2*i}, 16, v{RES+i}', f'v_and_b32 v{41+2*i}, 0xffff0000, v{RES+i}'] for i in range(8)), [])
    def tile_pos(self, n):
        D = self.o.get('dsk', 5)
        return [(2*k, 2*k + 1) if k < n - D else (2*(n - D) + (k - (n - D)), 2*(n - D) + D + (k - (n - D))) for k in range(n)]
    def add_wreads(self, S, B, n, k0, rd, gate=None, note=None):
        pos = self.tile_pos(n)
        for m in range(k0, n):
            r = rd(m)
            if note: note(m, r)
            if pos[m][1] == pos[m][0] + 1: S.before[B + pos[m][0]] = S.before.get(B + pos[m][0], []) + [WaitTok(r)]
            for h in range(2):
                e = pos[m-4][h] + 1 if m >= 4 else 0
                e = max(e, pos[m][h] - 8, gate(m) if gate else 0)
                S.add('wr%d' % h, r[2*h:2*h+2], e=B + e, d=B + max(e, min(pos[m][h] - 3, pos[m][0] - 2 if pos[m][1] == pos[m][0] + 1 else 999)), step=0.5)
    def add_exchange(self, S, B, n):
        D = self.o.get('dsk', 5)
        rng = lambda q: [(L_XB + w*4096 + q*1024, L_XB + w*4096 + q*1024 + 1024) for w in range(4)]
        ws = self.xwrites(); last_oth = B + 2*n - D - 1
        S.add('xw', ws, e=last_oth + 2, d=last_oth + 5, step=0.9)
        rs = [Ins(f'ds_read_b128 {vr(56+4*q,4)}, v123 offset:{L_XB + q*1024}', lds=rng(q)) for q in range(4)]
        at = min(last_oth + 6, B + 2*n - 1)
        S.add('xw', [[WaitTok(ws), 's_barrier']] + rs, e=at, d=B + 2*n - 1, step=0)

    def p2_setup(self, L, rot=True):
        o = lines(f"""s_lshr_b32 s88, {sW}, 1
s_lshl_b32 s89, s88, 15
s_add_u32 s89, s89, {L_W2}
v_add_u32 v126, s89, {vWown}
v_add_u32 v127, s89, {vWoth}
s_lshl_b32 s88, s88, 14
s_mul_i32 s89, {sRB}, {114688 if self.alias else 32768}
s_add_u32 s89, s89, s88
s_add_u32 s89, s89, {WS_H[L] if self.alias else WS_O[L]}""")
        if not rot: return o + [f's_add_u32 {sA2[q]}, s89, {q*4096}' for q in range(4)]
        for q in range(4): o += lines(f's_xor_b32 {sA2[q]}, {sRG}, {q}\ns_lshl_b32 {sA2[q]}, {sA2[q]}, 12\ns_add_u32 {sA2[q]}, {sA2[q]}, s89')
        return o
    def p3_setup(self, L):
        return self.w4_setup() + lines(f"""v_add_u32 v124, 65536, {vL16}
v_and_b32 v125, 31, {vL}
v_lshlrev_b32 v125, 4, v125
v_add_u32 v125, {L_T3}, v125
v_lshlrev_b32 v206, 3, {vL}
s_lshl_b32 s88, {sW}, 9
s_add_u32 s88, s88, {L_CS3}
v_add_u32 v206, s88, v206
s_lshl_b32 s92, {sG16}, 2
s_add_u32 s92, s92, {sW}
s_lshl_b32 s92, s92, 12""") + self.h_addr(L)
    def p1_setup(self):
        if self.alias:
            return lines(f"""s_lshl_b32 {sX}, {sG}, 16
s_add_u32 {sX}, {sX}, {WS_X1[0]}
s_lshl_b32 {sA1}, {sW}, 14
s_add_u32 {sA1}, {sA1}, {sX}
s_lshl_b32 {sHB}, {sPG}, 14
s_add_u32 {sHB}, {sHB}, {WS_HB}
s_cmp_eq_u32 {sHASP}, 0
s_cselect_b32 {sHB}, {sX}, {sHB}
s_lshl_b32 s92, {sRB}, 12
v_xor_b32 v127, 64, {vA1e}
v_lshrrev_b32 v242, 11, {vA1e}
v_and_b32 {vA1e}, 127, {vA1e}
v_lshl_add_u32 {vA1e}, v242, 10, {vA1e}
v_xor_b32 {vA1o}, 64, {vA1e}
v_add_u32 {vA1o}, {8192 - 1024}, {vA1o}
v_lshrrev_b32 v242, 11, {vRM}
v_and_b32 v243, 1023, {vRM}
v_lshl_add_u32 v242, v242, 10, v243""")
        return lines(f"""s_add_u32 {sA1}, {sA1}, {WS_X2}
s_lshl_b32 {sHB}, {sPG}, 14
s_add_u32 {sHB}, {sHB}, {WS_HB}
s_add_u32 s88, {sROW}, {WS_X2}
s_cmp_eq_u32 {sHASP}, 0
s_cselect_b32 {sHB}, s88, {sHB}
s_lshl_b32 s92, {sRB}, 12
v_xor_b32 v127, 64, {vA1e}""")
    def p2(self, L, w2tok):
        p = self.p
        p(WaitTok(w2tok + sum(self.w3tok.values(), []))); p('s_barrier')
        rd = lambda k: self.wfrag_reads(k, k*2048, 'v126', 'v127', [(L_W2 + h*32768 + k*2048, L_W2 + h*32768 + k*2048 + 2048) for h in range(2)])
        for k in range(3): p(rd(k))
        p(self.res_unpack())
        if L == 0:
            p(self.w3_setup()); p(self.w3_sel())
            rs = self.w3_take(list(range(4*self.nq1)))
            p(WaitTok(rs)); p('s_barrier')
        self.poll(1 + 5*L, sMK2)
        self.ts(f'p2_go{L}')
        al = [f'buffer_load_dwordx4 {vr(128+4*k,4)}, {vL16}, {SWS}, {sA2[k >> 2]} offen offset:{(k%4)*1024} sc1' for k in range(16)]
        NP = 10
        p(al[:NP])
        S = Sched(self.tile_spine(16))
        self.add_exchange(S, 0, 16)
        S.add('a', al[NP:], e=0, d=12, step=1, split=True)
        self.add_wreads(S, 0, 16, 3, rd)
        if L == 0:
            nq2 = min(7, self.nq1 + 4)
            self.nq2 = nq2
            S.add('dma', sum((self.w3_quad(q, 16384*(q - self.nq1 + 1)) for q in range(self.nq1, nq2)), []), e=8, d=31, step=self.o.get('q2s', 1.9) if nq2 - self.nq1 == 3 else 1.4, split=True)
            if self.o.get('tha', 0) == 2: S.add('misc', self.th0, e=26, d=30)
        S.add('misc', self.p3_setup(L) + self.x1_addr(L, sX) + self.st_addr(WS_ST1[L], sY) + self.epi_pre(), e=2, d=22)
        self.win(S, f'2{L}')
        S.emit(p, f'p2 L{L}')
        self.ts(f'p2_mm{L}')
        st = self.tile_epilogue('x1', L)
        self.ts(f'p2_epi{L}')
        if L == 0:
            p(self.w3_quad(7, 98304))
        self.post_flag(2 + 5*L, st)
        self.ts(f'p2_end{L}')

    def p3(self, L):
        p = self.p
        ACC, AF, CS, TK, HO, SR = 40, 72, 120, 240, 192, 224
        lskip = self.lab('p3skip')
        w4 = {}
        self.layer = L
        self.w1off = 2
        if L == 0:
            assert self.nq2 == 7
            p(WaitTok(sum((self.w3tok[q] for q in range(self.nq1, 7)), []))); p('s_barrier')
            self.w3_take(list(range(4*self.nq1, 28)))
        p('s_waitcnt lgkmcnt(0)'); p('s_barrier')
        p(f's_cmp_lg_u32 {sIDLE}, 0\ns_cbranch_scc1 {lskip}')
        self.poll(2 + 5*L, 'exec')
        self.ts(f'p3_go{L}')
        atok = {}
        def adma(rb, s, area=None):
            o = (rb if area is None else area)*32768 + s*16384
            d = [Ins(f'buffer_load_dwordx4 {vL16}, {SWS}, {sT} offen offset:{u*1024} sc1 lds', lds=[(o + q*4096 + u*1024, o + q*4096 + u*1024 + 1024) for q in range(4)]) for u in range(4)]
            atok[(rb, s, area)] = d
            return self.split_dma([Ins(f's_add_u32 m0, {sW4K}, {o}'), Ins(f's_add_u32 {sT}, {sA3[s]}, {WS_X1[L] + rb*32768}')] + d)
        for s in range(2): p(adma(0, s))
        if L == 0:
            tiles = [(0, 0), (0, 1), (0, 2), (0, 3), (1, 1), (1, 2), (1, 3), (1, 0)]; area = [0, 1, 2, 0, 1, 2, 0, 3]
        else:
            tiles = [(c, rb) for c in range(2) for rb in range(4)]; area = [0, 1, 2, 3, 0, 1, 2, 3]
        NR = 12
        def aread(n):
            ti, ks = divmod(n, 32)
            o = area[ti]*32768 + ks*1024
            return Ins(f'ds_read_b128 {vr(AF+4*(n % NR),4)}, {"v124" if o >= 65536 else vL16} offset:{o % 65536}', lds=(o, o+1024))
        def epilogue(ti):
            c, rb = tiles[ti]
            A = ACC + 16*(ti & 1); tk = TK + 4*(ti & 1); ho = HO + 4*(ti & 1)
            o = []
            gi = lambda i: (i >> 2)*8 + (i & 3)
            for i in range(9):
                if i < 8: o.append(f'v_mul_f32 v{A+gi(i)}, v{tk+3}, v{A+gi(i)}')
                if i: o.append(f'v_exp_f32 v{A+gi(i-1)}, v{A+gi(i-1)}')
            for i in range(8): o.append(f'v_fma_f32 v{A+gi(i)}, v{A+gi(i)}, v{tk+2}, v{tk+2}')
            for i in range(8):
                o.append(f'v_rcp_f32 v{A+gi(i)}, v{A+gi(i)}')
                if i: o.append(f'v_mul_f32 v{A+gi(i-1)}, v{A+gi(i-1)}, v{A+gi(i-1)+4}')
            o.append(f's_add_u32 s94, {sH0}, {rb*114688 + c*4096}')
            o.append(f'v_mul_f32 v{A+gi(7)}, v{A+gi(7)}, v{A+gi(7)+4}')
            for i in range(4): o.append(f'v_cvt_pk_bf16_f32 v{ho+i}, v{A+gi(2*i)}, v{A+gi(2*i+1)}')
            alt, st = self.stores([f'buffer_store_dwordx4 {vr(ho,4)}, {vL16}, {SWS}, s94 offen'])
            o.append(alt)
            return o, st
        def csreads(c):
            r = Ins(f'ds_read_b64 {vr(CS+2*c,2)}, v206 offset:{c*256}', lds=(L_CS3, L_CS3+2048), private=True)
            return [[f'v_mov_b32 v{CS+2*c}, 0', f'v_mov_b32 v{CS+2*c+1}, 0', 's_mov_b64 exec, 0xffffffff', r, 's_mov_b64 exec, -1']], r
        p(self.fts(f'p3{L}', 'issued'))
        p(WaitTok(atok[(0, 0, None)])); p('s_barrier')
        rds = [aread(n) for n in range(256)]
        for n in range(8): p(rds[n])
        CS0, CS1 = 20, self.o.get('cs1', 148)
        spine = []; slot = []
        for n in range(256):
            if L == 0 and n == CS0: spine += [self.w3_cs(x) for x in range(28, 32)]
            if L == 0 and n == CS1: spine += [self.w3_cs(x) for x in range(32, 64)]
            ti, ks = divmod(n, 32); c, rb = tiles[ti]
            A = vr(ACC + 16*(ti & 1), 16)
            slot.append(len(spine))
            spine.append(f'v_mfma_f32_32x32x16_bf16 {A}, {ar(c*128+4*ks,4)}, {vr(AF+4*(n % NR),4)}, {0 if ks == 0 else A}')
            if ks == 31: spine.append(f'v_mfma_f32_32x32x8_bf16 {A}, {vr(CS+2*c,2)}, {vr(TK+4*(ti&1),2)}, {A}')
        sl = lambda n: slot[max(0, min(int(n), 255))]
        self.big = (L == 1); self.NWP = self.o.get('nwp', 2)
        B4 = len(spine)
        spine += self.tile_spine(56)
        S = Sched(spine)
        for n in range(0, 256, 4): S.before[sl(n)] = [WaitTok(rds[n:n+4])]
        for ti in range(8): S.before[sl(32*ti)] = self.fts(f'p3{L}', f't{ti}') + S.before[sl(32*ti)]
        bars = {}
        def bar(n, toks): bars.setdefault(n, []).extend(toks)
        gate = {}
        def publish(first, toks): bar(first - 9, toks); gate[first] = first - 9
        st_issue = self.stats_issue(WS_ST1[L], 's92', SR)
        items = [dict(e=0, need=sl(8), make=lambda: [st_issue[:2]] + [[y] for y in st_issue[2:]])]
        publish(16, atok[(0, 1, None)])
        pubs = []
        def aitem(rb, s, ar_, e, first):
            items.append(dict(e=sl(e), need=sl(first - 9), chain='A', make=lambda: adma(rb, s, ar_))); pubs.append((first, (rb, s, ar_)))
        aitem(1, 0, None, 0, 32); aitem(1, 1, None, 0, 48); aitem(2, 0, None, 0, 64); aitem(2, 1, None, 0, 64 if L else 80)
        if L == 1:
            aitem(3, 0, None, 0, 96); aitem(3, 1, None, 0, 96)
        else:
            aitem(3, 0, 0, 40, 96); aitem(3, 1, 0, 40, 112)
            bar(39, rds[20:32])
            SLOT = [98304, 114688, 131072]
            iss = {8: 8, 9: 8, 10: 24, 11: 56, 12: 56, 13: 72, 14: 104, 15: 104}
            rd_at = {7: 7, 8: 39, 9: 39, 10: 55, 11: 87, 12: 87, 13: 103, 14: 135, 15: 135}
            for q in range(8, 16): items.append(dict(e=sl(iss[q]), need=sl(rd_at[q] - 8), chain='W', make=lambda q=q: self.w3_quad(q, SLOT[(q - 7) % 3])))
        self.edf(S, items, self.o.get('sg3%d' % L, 1.4 if L == 0 else 1.8), f'p3 L{L}')
        for first, key in pubs: publish(first, atok[key])
        if L == 0:
            for q in range(7, 16):
                at = rd_at[q]
                r = sum((self.w3_reads(n) for n in range(4*q, 4*q + 4)), [])
                bar(at, self.w3tok[q])
                if q < 14: bar(at + 16, r)
                S.add('w3r', r, e=sl(at), d=sl(min(at + 14, CS1 - 3 if q >= 14 else 999, CS0 - 3 if q == 7 else 999)))
                if q == 14: self.w3_last = list(r)
                if q == 15: self.w3_last += r
            S.add('w3c', self.w3_cs_store(0) + csreads(0)[0], e=sl(CS0) + 3, d=sl(29))
            S.add('w3c', self.w3_cs_store(1) + csreads(1)[0], e=sl(CS1) + 3, d=sl(157))
        for m in range(8, 256):
            e = max(m - NR + 1, max([v for k_, v in gate.items() if k_ <= m], default=-1))
            S.add('ar', [rds[m]], e=sl(e), d=sl(max(e, (m & ~3) - 3)), step=0)
        x = self.stats_reduce(SR) + self.stats_final(f'v{SR}', f'v{SR+1}', f'v{SR+2}') + lines(f"""v_mul_f32 v{SR+3}, {f2u(-LOG2E)}, v{SR+1}
v_cvt_pk_bf16_f32 v{SR}, v{SR}, v{SR}
v_mov_b32 v{SR+1}, v{SR}
v_and_b32 v{SR+4}, 15, {vL}
v_lshlrev_b32 v{SR+4}, 5, v{SR+4}
v_bfe_u32 v{SR+5}, {vL}, 4, 1
v_lshl_add_u32 v{SR+4}, v{SR+5}, 4, v{SR+4}
s_lshl_b32 s88, {sW}, 9
s_add_u32 s88, s88, {L_T3}
v_add_u32 v{SR+4}, s88, v{SR+4}""")
        tw = Ins(f'ds_write_b128 v{SR+4}, {vr(SR,4)}', lds=(L_T3, L_T3 + 2048))
        S.add('epi', x + [tw], e=sl(10), d=sl(21))
        bar(23, [tw])
        if L == 1: S.add('w3c', csreads(0)[0] + csreads(1)[0], e=2, d=20)
        def rd4(k):
            s, w = divmod(k, 4)
            b = self.W4SLOT[s]*16384 + w*2048
            va, vb = [('v200', 'v201'), ('v202', 'v203'), ('v204', 'v205')][b >> 16]
            return self.wfrag_reads(k, b & 65535, va, vb, [(b + h*8192, b + h*8192 + 2048) for h in range(2)])
        def stage(s):
            x_, tk = self.w4_stage(s); w4[s] = tk
            return sum((self.split_dma(y) for y in x_), [])
        NWP = self.NWP if self.big else 0
        allreads = {}
        if self.o_touch and self.o.get('th3', 3) >> L & 1:
            S.add('misc', lines(f'v_and_b32 v127, 7, {vL}\nv_lshlrev_b32 v127, 7, v127\nv_and_b32 v34, 8, {vL}\nv_lshl_add_u32 v127, v34, 9, v127'), e=sl(24), d=sl(30))
        S.add('misc', self.p4_setup(L), e=sl(36), d=sl(52))
        if self.o_touch and self.o.get('th3', 3) >> L & 1:
            for rb in range(4): S.add('misc', [f's_add_u32 s89, {sH0}, {rb*114688}', self.touch('v127', 's89')], e=sl(54 + 22*rb), d=sl(58 + 22*rb))
        sts = []
        for ti in range(8):
            c, rb = tiles[ti]
            S.add('epi', [Ins(f'ds_read_b128 {vr(TK+4*(ti&1),4)}, v125 offset:{rb*512}', lds=(L_T3, L_T3+2048))], e=sl(32*ti + 25), d=sl(32*ti + 28))
            e, st = epilogue(ti); sts.append(st)
            if ti < 7: S.add('epi', e, e=sl(32*ti + 35), d=sl(32*ti + 56), early=False)
            else: S.add('epi', e, e=B4 + 2, d=B4 + self.o.get('e7', 12))
            if ti >= 5:
                bar(32*ti + 1, rds[32*ti-12:32*ti] + (self.w3_last if L == 0 else []))
            if ti == 4 and L == 0:
                fr = CS1 - 1
                bar(fr, self.w3_last)
                S.add('dma', stage(0) + adma(0, 0, 3) + adma(0, 1, 3), e=sl(fr), d=sl(160), split=True)
                bar(193, atok[(0, 0, 3)] + atok[(0, 1, 3)] + w4[0])
            if ti == 1 and L == 1:
                plan = {0: [(100, None)], 1: [(56, 87), (100, None)], 2: [(56, 87), (98, 129), (140, None)], 3: [(56, 87), (97, 120), (130, 152), (162, None)]}[NWP]
                prev = []
                for s, (e0, pub) in enumerate(plan):
                    if s: bar(e0 - 1, prev)
                    S.add('dma', stage(s), e=sl(e0), d=sl(e0 + 8), step=1.5, split=True)
                    if pub:
                        bar(pub, w4[s])
                        prev = sum((rd4(k) for k in range(4*s, 4*s + 4)), [])
                        S.add('wpre', prev, e=sl(pub), d=sl(plan[s+1][0] - 3))
                bar(193, w4[NWP])
        if L == 0:
            S.add('misc', [self.code_touch()], e=sl(CS1) - 28, d=sl(CS1) - 2)
        S.add('misc', [self.cap(lambda: self.post_flag(3 + 5*L, sum(sts[:4], [])))], e=sl(163), d=sl(164))
        pc = self.o.get('pc', 192)
        S.add('misc', [self.poll_issue(vT0)], e=sl(pc - 14), d=sl(pc - 12))
        S.add('misc', [self.poll_check(vT0, 3 + 5*L, sMK4)], e=sl(pc), d=sl(pc + 1))
        if L == 0: S.add('misc', self.touches_x2('v127'), e=sl(pc + 2), d=sl(pc + 20))
        K0 = 0 if self.big else 2
        for k in range(K0):
            r = rd4(k); allreads.setdefault(0, []).extend(r)
            S.add('wr', r, e=sl(247 + 2*k), d=sl(254), step=0.5)
        for n, toks in sorted(bars.items()):
            lo_, hi_ = self.o.get('blo', 0), self.o.get('bhi', 70)
            f = (lambda nm: self.fts(f'b3{L}', nm)) if lo_ <= n < hi_ else (lambda nm: [])
            S.at(sl(n), f(f'x{n}') + [WaitTok(toks)] + f(f'w{n}') + ['s_barrier'] + f(f'b{n}'), 'bar')

        lj = self.lab('p3join')
        S.before[B4] = self.cap(lambda: self.ts(f'p3_mm{L}')) + [Ins(f'{lj}:')] + S.before.get(B4, [])
        dac = self.o.get('dac', 9)
        self.add_exchange(S, B4, 56)
        S.add('epi2', self.res_unpack(), e=sl(250), d=sl(255))
        pre = {}
        fl = self.o.get('fl4', 19)
        S.add('misc', [self.cap(lambda: self.post_flag(4 + 5*L, sum(sts[4:], [])))], e=B4 + fl, d=B4 + fl + 1, needs=[sts[7][0]])
        pk = 2*(28 - dac)
        pos = self.tile_pos(56)
        bstep = self.o.get('bstep', 1)
        BS = list(range(NWP + 3, 14, bstep))
        bsl = lambda s: min(2*(4*s - 3), pos[4*s][0] - 6)
        items = []
        for m in range(56):
            e = sl(pc + 2) if m < 28 else B4 + pk + 2
            if not self.big and m >= 22: e = max(e, B4 + pos[m-22][1] + 1)
            items.append(dict(kind='a', i=m, e=e, need=B4 + pos[m][0], n=1))
        for ns in range(NWP + 1, 14):
            j = ns - NWP - 1
            if j < 6: e = sl(161 + 32*(j // 2)) + 1
            elif j < 8: e = B4 + 1
            else:
                prev = max(x for x in range(NWP, ns) if self.W4SLOT[x] == self.W4SLOT[ns])
                e = B4 + bsl(min(b for b in BS if b >= prev + 2)) + 1
            nb = [b for b in BS if b <= ns]
            items.append(dict(kind='w', i=ns, e=e, need=B4 + (bsl(max(nb)) if nb else 0), n=4))
        items.append(dict(kind='p', i=0, e=B4 + pk - self.o.get('plead', 12), need=B4 + pk - 60, n=1))
        if L == 0:
            for i in range(self.o.get('nw1', 4)): items.append(dict(kind='q', i=i, e=B4 + max(self.o.get('w1e', 76), bsl(10 if i < 2 else 11) + 1), need=B4 + 200 + i, n=3))
        sigma = self.o.get('sig%d' % L, 1.5)
        t_ = float(min(x['e'] for x in items)); left = list(items); plan = []
        while left:
            el = [x for x in left if x['e'] <= t_ and not (x['kind'] == 'a' and any(y['kind'] == 'a' and y['i'] < x['i'] for y in left))]
            if not el: t_ = float(min(x['e'] for x in left if x['e'] > t_)); continue
            x = min(el, key=lambda y: y['need'])
            if t_ < B4 <= t_ + sigma*(x['n'] - 1) + 0.99: t_ = float(B4 + 1)
            x['t'] = t_; plan.append(x); left.remove(x); t_ += sigma*x['n']
        print('   edf min slack', sorted((x['need'] - x['t'] - sigma*(x['n']-1), x['kind'], x['i']) for x in plan if x['kind'] in 'aw')[:4], 'end', t_ - B4)
        NPRE = sum(1 for x in plan if x['kind'] == 'a' and x['t'] < B4)
        prew = [x['i'] for x in plan if x['kind'] == 'w' and x['t'] < B4]
        nlds = NWP + 1 + len(prew)
        assert prew == list(range(NWP + 1, nlds))
        for x in plan:
            if x['kind'] == 'a':
                gq = [self.p4_aload(x['i'])]
                if x['i'] == 52: need52 = gq[0][0]
            elif x['kind'] == 'w': gq = stage(x['i'])
            elif x['kind'] == 'p': gq = [[self.poll_issue('v127')]]
            else:
                y, tk = self.w1_stage(x['i'], seq=(x['i'] > 0)); pre[x['i']] = tk; gq = self.split_dma(y[0])
            for j, y in enumerate(gq):
                tt = min(int(x['t'] + sigma*j), len(spine) - 1)
                if len(y) > 1: S.add('vm', [y[:-1]], e=tt - 2 if tt - 2 >= B4 or tt < B4 else tt, d=tt, split=True, step=0)
                S.add('vm', [y[-1:]], e=tt, d=tt, step=0)
            if x['kind'] == 'p': S.add('pchk', [self.poll_check('v127', 4 + 5*L, sMK4)], e=B4 + pk, d=B4 + pk + 1)
        S.at(B4, [WaitTok(rds[244:256] + sum((w4[s] for s in range(min(nlds, NWP + 3))), [])), 's_barrier'], 'bar4')
        bslot = {s: min(2*(4*s - 3), self.tile_pos(56)[4*s][0] - 6) for s in BS}
        self.add_wreads(S, B4, 56, max(K0, 4*NWP), rd4, gate=lambda m: max([1] + [v for s_, v in bslot.items() if s_ <= m // 4]), note=lambda m, r: allreads.setdefault(m // 4, []).extend(r))
        for s in BS: S.at(B4 + bslot[s], [WaitTok(sum((w4[x_] for x_ in range(s, min(14, s + bstep))), []) + allreads.get(s-2, [])), 's_barrier'], 'bar4')
        for k in range(4, 56, 4): S.before[B4 + 2*k] = self.fts(f'p4{L}', f's{k//4}') + S.before.get(B4 + 2*k, [])
        S.add('misc', self.epi_pre(), e=B4 + 70, d=B4 + 90)
        if L == 0: S.add('misc', [f's_add_u32 {sX}, {sROW}, {WS_X2}'] + self.st_addr(WS_ST2, sY) + self.p1_setup(), e=B4 + 86, d=B4 + 108, needs=[need52])
        self.win(S, f'3{L}')
        S.emit(p, f'p3+p4 L{L}')
        sv = self.p; q = self.p = Prog(check_lds=False)
        q(f'{lskip}:')
        if L == 0: q(self.touches_x2('v127'))
        q(self.p4_setup(L))
        if self.o.get('pfs', True): self.idle_prefetch([(SWD, 2, 'slow')])
        for s in range(NWP):
            q(self.w4_stage(s)[0]); q('s_waitcnt vmcnt(0)\ns_barrier')
            for k in range(4*s, 4*s + 4): q(rd4(k))
            q('s_waitcnt lgkmcnt(0)\ns_barrier')
        for s in range(NWP, nlds): q(self.w4_stage(s)[0])
        if L == 1: self.idle_prefetch([(SWD, self.o.get('pfe', 7), 'down')])
        if L == 0: self.idle_prefetch([(SWD, self.o.get('pfa', 0), 'down')])
        self.poll(3 + 5*L, sMK4)
        if L == 0: self.idle_prefetch(([(SWQKV, 2, 'slow'), (SWO, 1, 'slow')] if self.o.get('pfs', True) else []) + [(SWD, self.o.get('pfd', 0), 'down')])
        for k in range(NPRE): q(self.p4_aload(k))
        q('s_waitcnt vmcnt(0)\ns_barrier')
        for k in range(K0): q(rd4(k))
        q(self.res_unpack())
        q(f's_waitcnt lgkmcnt(0)\ns_branch {lj}')
        self.p = sv
        self.slow.append(q.finalize())
        self.ts(f'p4_mm{L}')
        st = self.tile_epilogue('x2' if L == 0 else 'out', L)
        self.big = False
        self.ts(f'p4_epi{L}')
        if L == 0:
            self.post_flag(5, st)
            for st_ in range(len(pre), self.o.get('nw2', 5)):
                gq, tk = self.w1_stage(st_, seq=True); pre[st_] = tk; p(gq)
        self.ts(f'p4_end{L}')
        return pre

    def idle_prefetch(self, jobs):
        if not self.o.get('pf', True): return
        q = self.p
        q(f"""s_and_b32 s88, {sG16}, 1
s_lshl_b32 s88, s88, 1
s_add_u32 s88, s88, {sM16}
s_sub_u32 s88, s88, 14
s_lshl_b32 s88, s88, 2
s_add_u32 s88, s88, {sW}
v_lshlrev_b32 v40, 7, {vL}
v_lshlrev_b32 v42, 10, {vL}
v_add_u32 v42, 384, v42""")
        for srd, n, kind in jobs:
            for i in range(n):
                va = 'v40'
                if kind.startswith('down'):
                    q(f's_mul_i32 s89, s88, 7\ns_add_u32 s89, s89, {i}\ns_lshr_b32 s90, s89, 3\ns_lshl_b32 s90, s90, 17\ns_and_b32 s89, s89, 7\ns_lshl_b32 s89, s89, 13\ns_add_u32 s89, s89, s90\ns_add_u32 s89, s89, {0 if kind == "down0" else 65536}')
                else:
                    q(f's_lshl_b32 s89, s88, 16\ns_add_u32 s89, s89, {i << 20}'); va = 'v42'
                x = Ins(f'buffer_load_dword v41, {va}, {srd}, s89 offen'); x.wr = set(); q(x)
                q('s_waitcnt vmcnt(1)')

    def p4_setup(self, L):
        return lines(f"""s_lshr_b32 s88, {sW}, 1
s_lshl_b32 s89, s88, 13
v_add_u32 v200, s89, {vWown}
v_add_u32 v201, s89, {vWoth}
v_add_u32 v202, 65536, v200
v_add_u32 v203, 65536, v201
v_add_u32 v204, 131072, v200
v_add_u32 v205, 131072, v201
s_mul_i32 s88, s88, 57344
s_mul_i32 {sX}, {sRB}, 114688
s_add_u32 {sX}, {sX}, s88
s_add_u32 {sX}, {sX}, {WS_H[L]}
s_add_u32 {sY}, {sX}, 4096""")
    def p4_aload(self, k):
        s, w = divmod(k, 4); c, j = divmod(s, 7)
        o = []
        if w == 0: o.append(Ins(f's_add_u32 {sH1}, {sY if c else sX}, {sJ[j]}'))
        o.append(Ins(f'buffer_load_dwordx4 {self.areg(k)}, {vL16}, {SWS}, {sH1} offen offset:{w*1024} sc1'))
        return o
    def build(self):
        p = self.p
        self.prologue_a()
        pre = {}
        for L in range(2):
            p(f'; PH 1{L}')
            w2 = self.p1_first() if L == 0 else self.p1_second(pre)
            if self.o_stop == f'p1_{L}': break
            p(f'; PH 2{L}')
            self.p2(L, w2)
            if self.o_stop == f'p2_{L}': break
            p(f'; PH 3{L}')
            pre = self.p3(L)
            if self.o_stop == f'p4_{L}': break
        p(self.bump_epoch())
        self.ts('end')
        if self.o_amp:
            p('s_waitcnt vmcnt(0)')
            p(Raw(f"""s_memrealtime s[62:63]
s_sub_u32 s96, s98, s96
s_mul_i32 s96, s96, {self.o_amp[2]}
s_min_u32 s96, s96, 100000
s_waitcnt lgkmcnt(0)
Lamp:
s_memrealtime s[98:99]
s_waitcnt lgkmcnt(0)
s_sub_u32 s98, s98, s62
s_cmp_lt_u32 s98, s96
s_cbranch_scc1 Lamp"""))
        if self.o_ts:
            p(f's_lshl_b32 s88, s2, 2\ns_add_u32 s88, s88, {sW}\ns_lshl_b32 s88, s88, 8\ns_add_u32 s88, s88, {WS_TS}\nv_lshlrev_b32 v40, 2, {vL}')
            p('s_memrealtime s[62:63]'); p(f'v_writelane_b32 {vTS}, s62, 62')
            p(f'buffer_store_dword {vTS}, v40, {SWS}, s88 offen')
            if self.o_dbg:
                sel = [self.tsn.index(n) for n in self.o_dbg] + [62, 63]
                l = self.lab('dbg')
                p(f's_lshl_b32 s88, s2, 2\ns_add_u32 s88, s88, {sW}\ns_cmp_lg_u32 s88, 0\ns_cbranch_scc1 {l}')
                p(f'v_readlane_b32 s89, {vTS}, 0')
                for i, s in enumerate(sel):
                    p(f'v_readlane_b32 s88, {vTS}, {s}')
                    if s < 62: p('s_sub_u32 s88, s88, s89')
                    p(f'v_writelane_b32 v41, s88, {i}')
                p(f's_mov_b64 exec, 0xffff\nbuffer_store_dword v41, v40, {SDBG}, 0 offen sc1\ns_mov_b64 exec, -1\n{l}:')
        kill = str(self.o.get('kill', '')).split('+')
        if kill != ['']:
            p.check_lds = False
            import re as _re
            inp3 = None
            for it in p.items:
                t = getattr(it, 'text', '')
                if t.startswith('; PH'): inp3 = t[5:]
                lst = [it] if it.kind != 'alt' else it.a
                for x in lst:
                    t = getattr(x, 'text', '')
                    tag = None
                    if x.kind == 'dma' and SW3 in t: tag = 'w3'
                    elif x.kind == 'dma' and SWD in t: tag = 'w4'
                    elif x.kind == 'dma' and SWQKV in t: tag = 'w1'
                    elif x.kind == 'dma' and SWO in t: tag = 'w2'
                    elif x.kind == 'dma': tag = 'adma'
                    elif x.kind == 'vmld' and 'x4' in t and SWS in t: tag = 'ald'
                    elif x.kind == 'vmld' and 'v34' in t: tag = 'touch'
                    elif x.kind == 'vmst' and 'x4' in t: tag = 'st'
                    elif x.kind == 'dsrd' and 'b128' in t and int(_re.search(r'offset:(\d+)', t).group(1)) & 1024: tag = 'half'
                    elif x.kind == 'dsrd' and 'tr_b16' in t: tag = 'tr'
                    elif x.kind == 'dsrd' and 'b128' in t: tag = 'half2'
                    elif x.kind == 'barrier': tag = 'bar'
                    elif x.kind == 'trans': tag = 'trans'
                    elif x.kind == 'valu': tag = 'valu'
                    if tag and f'{inp3}{tag}' in kill:
                        x.text = '; killed'; x.kind = 'dir'; x.ops = ['0']; x.rd = set(); x.wr = set(); x.lds = None
                        if it.kind == 'alt':
                            for y in it.b: y.kind = 'dir'
        body = p.finalize()
        head = open('cdna_kernels/' + NAME + '.s.ref').read().split('; Override launch')[0]
        txt = head + '; @launch grid=(256,1,1) block=(256,1,1) lds=163840\n'
        txt += f'.amdgcn_target "amdgcn-amd-amdhsa--gfx950"\n.text\n.globl {NAME}_kernel\n.p2align 8\n.type {NAME}_kernel,@function\n{NAME}_kernel:\n'
        txt += body + 'L_end:\ns_endpgm\n' + '\n'.join(getattr(p, 'tail', [])) + '\n' + '\n'.join(self.slow) + '\nL_last:\ns_endpgm\n'
        txt += f""".section .rodata,"a"
.p2align 6
.amdhsa_kernel {NAME}_kernel
  .amdhsa_next_free_vgpr 512
  .amdhsa_next_free_sgpr 102
  .amdhsa_accum_offset 256
  .amdhsa_group_segment_fixed_size 0
  .amdhsa_kernarg_size 80
  .amdhsa_user_sgpr_count 2
  .amdhsa_user_sgpr_kernarg_segment_ptr 1
  .amdhsa_system_sgpr_workgroup_id_x 1
  .amdhsa_float_denorm_mode_32 3
.end_amdhsa_kernel
"""
        return txt

if __name__ == '__main__':
    out = sys.argv[1]
    kw = {}
    for a in sys.argv[2:]:
        k, _, v = a.partition('=')
        if k in ('amp', 'dbg', 'win'): kw[k] = v.split(',')
        elif v in ('0', '1', ''): kw[k] = (v != '0')
        elif v.replace('.', '').isdigit(): kw[k] = float(v) if '.' in v else int(v)
        else: kw[k] = v
    if kw.pop('reuse', False):
        WS_O[1] = WS_O[0]; WS_X1[1] = WS_X1[0]; WS_ST1[1] = WS_ST1[0]; WS_H[1] = WS_H[0]
    g = Gen(**kw)
    open(out, 'w').write(g.build())
    if g.o_ts: open(out + '.ts', 'w').write('\n'.join(g.tsn))
    print(out, g.p.stats)
```

```python
import sys, struct
from asmlib import *

NAME = 'interleave_layers__sliding_local_dilated__glu_gated_glu__prompt'
MB = 1 << 20
WS_O = [0, 2*MB]; WS_X1 = [4*MB, 6*MB]; WS_X2 = 8*MB
WS_ST1 = [10*MB, 10*MB + (256 << 10)]; WS_ST2 = 10*MB + (512 << 10)
WS_HB = 11*MB; WS_HS = 11*MB + (512 << 10); WS_FL = 11*MB + (768 << 10); WS_EP = WS_FL + 8192; WS_XC = WS_FL + 16384; WS_TS = 14*MB
WS_H = [16*MB, 24*MB]

SX, SWQKV, SWO, SW3, SWD, SOUT, SWS, SDBG = 's[4:7]', 's[8:11]', 's[12:15]', 's[16:19]', 's[20:23]', 's[24:27]', 's[28:31]', 's[32:35]'
sW, sMODE, sT, sROW, sHALO, sG, sG16, sM16, sCB, sW1K, sW4K, sHASP, sPG, sIDLE = ['s%d' % i for i in range(36, 50)]
sMK2, sMK4, sMK1 = 's[50:51]', 's[52:53]', 's[54:55]'
sA1, sRB, sSPIN, sV, sXCC, sW2K = 's56', 's57', 's58', 's59', 's60', 's61'
sW3K, sR8, sRG, sR3 = 's84', 's85', 's86', 's87'
sR8s, sU = 's3', 's95'
sCODE = 's[100:101]'
SW3F = SW3
sA2 = ['s40', 's67', 's68', 's77']
sWd4 = 's64'; sA3 = ['s65', 's66', 's67', 's68']; sJ = ['s%d' % i for i in range(69, 76)]
sH0, sH1, sHB, sX, sY, sE, sES, sSG = 's76', 's77', 's78', 's79', 's80', 's81', 's82', 's83'
vL, vL16, vA1e, vA1o, vW1d, vW1r0, vW1r1, vA1r0, vA1r1, vW2d, vCT, vWown, vWoth, vRM, vFLp, vFLo = ['v%d' % i for i in range(16)]
RES = 16
CSQ, CSK, CSV = 24, 28, 32
vW3d, vW3r, vT0, vTS = 'v36', 'v37', 'v38', 'v39'
vW4 = ['v208', 'v209', 'v210', 'v211']
vW3q = ['v36', 'v252', 'v253', 'v254']
L_A1H = 65536; L_R1 = 73728; L_TAB = 159744
L_W2 = L_TAB - 65536
L_XB = 0
L_NM = L_TAB; L_RS = L_TAB + 320
L_T3 = L_TAB
L_CS3 = L_TAB + 2048
LOG2E = 1.4426950408889634
def f2u(x): return '0x%08x' % struct.unpack('<I', struct.pack('<f', x))[0]
def vr(a, n): return f'v[{a}:{a+n-1}]' if n > 1 else f'v{a}'
def ar(a, n): return f'a[{a}:{a+n-1}]'
def lines(s): return [x.strip() for x in s.strip().split('\n') if x.strip()]
def last(x): return x[-1]

class Gen:
    def __init__(self, **kw):
        self.p = Prog(); self.nts = 0; self.tsn = []; self.slow = []; self.nlab = 0; self.w3tok = {}; self.w3stg = {}
        self.o = dict(ts=False, mimic=True, stop=None, glob=False, fine=None, amp=None, dbg=None, touch=True, rot=True, ctouch=True, wb=False)
        self.o.update(kw)
        self.alias = self.o.get('alias', True)
        if self.alias:
            global WS_ST2
            WS_X1[1] = WS_X1[0]; WS_ST1[1] = WS_ST1[0]; WS_H[1] = WS_H[0]; WS_ST2 = WS_ST1[0]
        for k, v in self.o.items(): setattr(self, 'o_' + k, v)

    def cap(self, fn):
        sv = self.p; self.p = Prog(); fn(); items = self.p.items; self.p = sv
        return items
    def lab(self, s):
        self.nlab += 1; return f'L{s}{self.nlab}'
    def ts(self, name):
        if self.o_amp and name == self.o_amp[0]: self.p('s_memrealtime s[96:97]\ns_waitcnt lgkmcnt(0)')
        if self.o_amp and name == self.o_amp[1]: self.p('s_memrealtime s[98:99]\ns_waitcnt lgkmcnt(0)')
        if not self.o_ts: return
        if self.o_fine and self.o_fine[0] == 'b' and name[0] == 'p' and name[:3] != 'p3_': return
        if self.o.get('win') and name[0] != 'n' and name not in ('start', 'end') and not name.startswith('p' + self.o['win'][0][0]): return
        if self.o.get('rt'):
            if name not in ('start', 'a1_landed', 'p1_loop0', 'p1_end0', 'p2_end0', 'p3_go0', 'p3_end0', 'p4_mm0', 'p1_stats1', 'p1_halo1', 'p1_end1', 'p3_go1', 'p3_end1', 'p4_mm1', 'end'): return
            self.p('s_memrealtime s[62:63]'); self.p(f'v_writelane_b32 {vTS}, s62, {self.nts + 31}')
        self.p('s_memtime s[62:63]'); self.p(f'v_writelane_b32 {vTS}, s62, {self.nts}')
        self.tsn.append(name); self.nts += 1
    def win(self, S, key):
        w = self.o.get('win')
        if not w or w[0] != key: return
        for n in range(int(w[1]), int(w[2]), int(w[3])):
            S.before[n] = self.cap(lambda: self.ts(f'n{n}')) + S.before.get(n, [])
    def fts(self, key, name):
        return self.cap(lambda: self.ts(name)) if self.o_fine == key else []

    def stores(self, texts):
        a = [Ins(t) for t in texts]; b = [Ins(t + ' sc1') for t in texts]
        return Alt(sMODE, a, b), a
    def post_flag(self, val, toks):
        p = self.p
        p(f's_add_u32 s91, {sE}, {val}\nv_mov_b32 {vT0}, s91'); p(WaitTok(toks))
        alt, a = self.stores([f'buffer_store_dword {vT0}, {vFLo}, {SWS}, 0 offen'])
        p(alt)
    def spin(self, load, cmp_, mask, pre=''):
        ls, lb = self.lab('s'), self.lab('b')
        items = [Ins(x) for x in lines(cmp_)] + [Ins(f's_and_b64 vcc, vcc, {mask}'), Ins(f's_cbranch_scc1 {ls}'), Ins(f'{lb}:')]
        self.slow.append(f"""{ls}:
s_mov_b32 {sSPIN}, 0
{ls}_l:
{load}
s_add_u32 {sSPIN}, {sSPIN}, 1
s_cmp_gt_u32 {sSPIN}, 30000
s_cbranch_scc1 {ls}_x
s_waitcnt vmcnt(0)
{pre}
{cmp_}
s_nop 0
s_and_b64 vcc, vcc, {mask}
s_cbranch_scc1 {ls}_l
{ls}_x:
s_waitcnt vmcnt(0) lgkmcnt(0)
s_branch {lb}""")
        return items
    def poll_issue(self, vf): return Ins(f'buffer_load_dword {vf}, {vFLp}, {SWS}, 0 offen sc1')
    def poll_check(self, vf, val, mask):
        return self.spin(f'buffer_load_dword {vf}, {vFLp}, {SWS}, 0 offen sc1', f's_add_u32 s91, {sE}, {val}\nv_subrev_u32 v33, s91, {vf}\nv_cmp_lt_u32 vcc, 7, v33', mask)
    def poll(self, val, mask):
        l = self.lab('pl')
        ld = lambda r: f'buffer_load_dword {r}, {vFLp}, {SWS}, 0 offen sc1'
        chk = lambda r: f"""v_subrev_u32 v33, s91, {r}
v_cmp_lt_u32 vcc, 7, v33
s_nop 0
s_and_b64 vcc, vcc, s[88:89]"""
        if not self.o.get('pp', False):
            body = f"""{l}:
{ld(vT0)}
s_sub_u32 {sSPIN}, {sSPIN}, 1
s_cmp_eq_u32 {sSPIN}, 0
s_cselect_b64 s[88:89], 0, {mask}
s_waitcnt vmcnt(0)
{chk(vT0)}
s_cbranch_scc1 {l}"""
        else:
            body = f"""{ld(vT0)}
s_mov_b64 s[88:89], {mask}
s_nop 7
s_nop 7
{l}:
{ld('v35')}
s_waitcnt vmcnt(1)
{chk(vT0)}
s_cbranch_scc0 {l}x
{ld(vT0)}
s_sub_u32 {sSPIN}, {sSPIN}, 1
s_cmp_eq_u32 {sSPIN}, 0
s_cselect_b64 s[88:89], 0, {mask}
s_waitcnt vmcnt(1)
{chk('v35')}
s_cbranch_scc1 {l}
{l}x:"""
        self.p(f's_add_u32 s91, {sE}, {val}\ns_mov_b32 {sSPIN}, 30000')
        self.p(Raw(body, rd=[vT0, 's91'], wr=[vT0, 'v33', 'v35', 's88', 's89', 'vcc'], drains_vm=True, states=6))
        if self.o.get('pp', False):
            x = Ins(f'buffer_load_dword {vT0}, {vFLp}, {SWS}, 0 offen sc1'); x.phantom = True; x.wr |= {('v', 35)}
            self.p(x)
    def touch(self, voff, soff, mask=None):
        if not self.o_touch: return []
        i = Ins(f'buffer_load_dword v34, {voff}, {SWS}, {soff} offen sc1'); i.wr = set()
        return [f's_mov_b64 exec, {mask}', i, 's_mov_b64 exec, -1'] if mask else [i]
    def warm_touch(self, t):
        if not self.o.get('warm', False): return []
        o = lines(f"""s_lshl_b32 s88, s2, 1
s_lshr_b32 s89, {sW}, 1
s_add_u32 s88, s88, s89
s_mul_i32 s88, s88, {28*128}
s_lshl_b32 s89, s2, 2
s_add_u32 s89, s89, {sW}
s_mul_i32 s90, s89, {14*128}
s_lshl_b32 s89, s89, 9
v_lshlrev_b32 {t}, 7, {vL}""")
        for srd, so, m in ((SW3F, 's88', 0xfffffff), (SWD, 's90', 0x3fff), (SWO, 's89', 0xf)):
            i = Ins(f'buffer_load_dword v34, {t}, {srd}, {so} offen'); i.wr = set()
            o.append([f's_mov_b64 exec, {m}', i, 's_mov_b64 exec, -1'])
        return o
    def pf_touch(self, srd, per, idx, t, lanes=16, base=0, half=False):
        o = [f's_mul_i32 s90, {idx}, {per*128}']
        if half: o += ['s_lshr_b32 s89, s90, 16', 's_lshl_b32 s89, s89, 16', 's_add_u32 s90, s90, s89', 's_add_u32 s90, s90, 65536']
        o += [f'v_lshlrev_b32 {t}, 7, {vL}']
        pre = o; o = []
        for i in range(per // lanes):
            x = Ins(f'buffer_load_dword v34, {t}, {srd}, s90 offen offset:{(i*lanes*128) % 4096}'); x.wr = set()
            gq = [f's_mov_b64 exec, {hex((1 << lanes) - 1)}', x, 's_mov_b64 exec, -1']
            if i and (i*lanes*128) % 4096 == 0: gq = ['s_add_u32 s90, s90, 4096'] + gq
            o.append(gq)
        return pre, o
    def code_touch(self):
        if not self.o_ctouch: return []
        i = Ins(f'global_load_dword v35, {vCT}, {sCODE}'); i.wr = set()
        return [i]

    def prologue_a(self):
        p = self.p
        if self.o_amp and self.o_amp[0] == 'entry': p('s_memrealtime s[96:97]')
        p('s_cmp_ge_u32 s2, 256'); p('s_cbranch_scc1 L_end')
        p('s_load_dwordx16 s[64:79], s[0:1], 0'); p('s_load_dwordx4 s[80:83], s[0:1], 64')
        p(f"""s_getpc_b64 {sCODE}
Lpc:
v_lshrrev_b32 v1, 6, v0
v_and_b32 {vL}, 63, v0
s_lshr_b32 s89, s2, 3
s_xor_b32 s89, s89, {int(self.o.get('idxx', 0))}
v_readfirstlane_b32 {sW}, v1
s_lshl_b32 s90, s89, 11
v_and_b32 {vCT}, 3, {vL}
v_lshl_add_u32 {vCT}, v1, 2, {vCT}
v_lshl_add_u32 {vCT}, {vCT}, 7, s90
v_min_u32 {vCT}, L_last-Lpc-4, {vCT}""")
        p(self.code_touch())
        if self.o.get('early'):
            p(f'v_lshlrev_b32 v40, 7, {vL}')
            for sp in ('s[64:65]', 's[66:67]', 's[82:83]')[:self.o.get('early')]:
                x = Ins(f'global_load_dword v35, v40, {sp}'); x.wr = set(); p(x)
        if self.o_ts:
            p(f'v_mov_b32 {vTS}, 0'); p('s_memrealtime s[62:63]'); p(f'v_writelane_b32 {vTS}, s62, 63')
        self.ts('start')
        t = [f'v{i}' for i in range(40, 56)]
        p(f"""s_and_b32 s88, s2, 7
s_lshr_b32 {sRG}, s89, 3
s_and_b32 {sCB}, s89, 7
s_lshr_b32 s90, s88, 1
s_lshl_b32 s90, s90, 2
s_add_u32 s90, s90, {sRG}
s_and_b32 s91, s88, 1
s_lshl_b32 {sR8}, {sRG}, 1
s_add_u32 {sR8}, {sR8}, s91""")
        if not self.o_rot: p(f's_mov_b32 {sR8}, 0')
        if self.o.get('rotx', 1) & 1:
            p(f's_lshl_b32 {sR8}, {sRG}, 1\ns_cmp_eq_u32 {sCB}, {int(self.o.get("slowcb", 3))}\ns_cselect_b32 {sR8}, {sR8}, 0\ns_xor_b32 {sR8}, {sR8}, s88')
        p(f"""s_lshl_b32 {sR8s}, {sR8}, 7
s_lshl_b32 {sROW}, s90, 17
s_lshl_b32 s91, s91, 10
s_add_u32 {sROW}, {sROW}, s91
s_cmp_eq_u32 s90, 0
s_cselect_b32 {sHASP}, 0, 1
s_cselect_b32 s91, 0, 16384
s_sub_u32 {sHALO}, {sROW}, s91
s_lshl_b32 {sA1}, {sW}, 15
s_add_u32 {sA1}, {sA1}, {sROW}
s_lshl_b32 {sW2K}, {sW}, 11
s_mul_i32 {sW3K}, {sW}, 3072
v_lshrrev_b32 {t[0]}, 3, {vL}
v_and_b32 {t[1]}, 7, {vL}
v_lshrrev_b32 {t[2]}, 1, {t[0]}
v_xor_b32 {t[3]}, {t[1]}, {t[2]}
v_lshlrev_b32 {t[3]}, 4, {t[3]}
v_lshl_add_u32 {vA1e}, {t[0]}, 11, {t[3]}
v_xor_b32 v124, 64, {vA1e}
v_add_u32 {vA1o}, {16384-1024}, v124
v_and_b32 {t[4]}, 1, {t[2]}
s_and_b32 s91, {sW}, 1
s_lshl_b32 s91, s91, 2
v_lshl_add_u32 {t[5]}, {t[4]}, 1, s91
v_xor_b32 {t[5]}, {t[5]}, {t[1]}
v_lshlrev_b32 {t[5]}, 4, {t[5]}
s_mul_i32 s91, {sW}, 24576
s_lshl_b32 s92, {sCB}, 7
s_add_u32 s91, s91, s92
v_mul_u32_u24 {t[6]}, 3072, {t[0]}
v_add3_u32 {vW1d}, {t[5]}, {t[6]}, s91""")
        self.srd(4, 64, 2*MB); self.srd(8, 66, 512*3072)
    def srd(self, base, lo, size):
        self.p(f's_mov_b32 s{base}, s{lo}\ns_and_b32 s{base+1}, s{lo+1}, 0xffff\ns_mov_b32 s{base+2}, {size}\ns_mov_b32 s{base+3}, 0x20000')
    def prologue_b(self):
        p = self.p
        t = [f'v{i}' for i in range(40, 56)]
        p(f"""s_getreg_b32 {sXCC}, hwreg(HW_REG_XCC_ID)
s_and_b32 {sXCC}, {sXCC}, 15
s_add_u32 {sXCC}, {sXCC}, 1
s_and_b32 {sM16}, s89, 15
s_lshl_b32 {sG}, s88, 2
s_add_u32 {sG}, {sG}, {sRG}
s_lshr_b32 {sG16}, {sG}, 1
s_cmp_eq_u32 {sRG}, 0
s_cselect_b32 s91, 5, 1
s_sub_u32 {sPG}, {sG}, s91
s_cmp_eq_u32 s90, 0
s_cselect_b32 {sPG}, {sG}, {sPG}
s_lshl_b32 {sW1K}, {sW}, 10
s_lshl_b32 {sW4K}, {sW}, 12
s_and_b32 s91, {sW}, 1
s_lshl_b32 {sRB}, {sG}, 1
s_add_u32 {sRB}, {sRB}, s91
s_and_b32 s91, {sG16}, 1
s_and_b32 {sR3}, s88, 3
s_lshl_b32 {sR3}, {sR3}, 1
s_add_u32 {sR3}, {sR3}, s91
v_lshlrev_b32 {vL16}, 4, {vL}""")
        self.srd(12, 68, 512*1024)
        p(f's_bitcmp1_b32 {sW}, 0\ns_cselect_b32 s72, s74, s72\ns_cselect_b32 s73, s75, s73')
        self.srd(16, 72, 512*3584); self.srd(20, 76, 1792*1024); self.srd(24, 78, 2*MB); self.srd(28, 82, 256*MB)
        if self.o_dbg: self.srd(32, 80, 256)
        else: p('s_mov_b32 s32, 0xff00ff00\ns_mov_b32 s33, 0xff00ff00')
        p(f"""s_cmp_ge_u32 {sM16}, 14
s_cselect_b32 {sIDLE}, 1, 0""")
        if not self.o_rot: p(f's_mov_b32 {sR3}, 0')
        if self.o.get('rotx', 1) & 2: p(f's_mov_b32 {sR3}, s88')
        p(f"""s_lshr_b32 s93, {sW}, 1
s_and_b32 s94, {sRG}, 1
s_lshl_b32 s94, s94, 5
s_mov_b32 s62, -1
s_mov_b32 s63, 0
s_lshl_b64 {sMK1}, s[62:63], s94
s_lshl_b32 s91, s93, 4
s_add_u32 s91, s91, s94
s_mov_b32 s62, 0xffff
s_lshl_b64 {sMK2}, s[62:63], s91
s_mul_i32 s91, s93, 28
s_mov_b32 s62, 0xfffffff
s_lshl_b64 {sMK4}, s[62:63], s91""")
        p(f"""s_mul_i32 s91, s93, 28672
s_lshl_b32 s94, {sM16}, 8
s_add_u32 s91, s91, s94
v_mul_u32_u24 {t[6]}, 3584, {t[0]}
v_add3_u32 {vW3d}, {t[5]}, {t[6]}, s91
v_lshlrev_b32 {t[5]}, 2, {t[4]}
v_xor_b32 {t[5]}, {t[5]}, {t[1]}
v_lshlrev_b32 {t[5]}, 4, {t[5]}
v_lshl_add_u32 {t[5]}, {t[0]}, 10, {t[5]}
s_lshl_b32 s91, {sW}, 13
s_add_u32 s94, s91, s92
v_add_u32 {vW2d}, s94, {t[5]}
s_mul_i32 {sWd4}, s93, {7*128*1024}
s_and_b32 s94, {sW}, 1
s_lshl_b32 s94, s94, 15
s_add_u32 {sWd4}, {sWd4}, s94
s_sub_u32 {sWd4}, {sWd4}, s91""")
        p(f"""v_lshrrev_b32 {t[0]}, 4, {vL}
v_and_b32 {t[1]}, 15, {vL}
v_lshrrev_b32 {t[2]}, 2, {t[1]}
v_and_b32 {t[3]}, 3, {vL}
v_lshrrev_b32 {t[4]}, 1, {t[2]}
v_and_b32 {t[5]}, 1, {t[0]}
v_lshl_add_u32 {t[6]}, {t[5]}, 1, {t[4]}
v_xor_b32 {t[6]}, {sW}, {t[6]}
v_lshlrev_b32 {t[6]}, 5, {t[6]}
v_lshl_add_u32 {t[6]}, {t[3]}, 3, {t[6]}
v_lshl_add_u32 {t[6]}, {t[2]}, 7, {t[6]}
v_mul_u32_u24 {t[7]}, 3072, {t[0]}
v_add_u32 {t[6]}, {t[6]}, {t[7]}
v_add_u32 {vW1r0}, {L_R1}, {t[6]}
v_add_u32 {vW1r1}, {L_R1 + 49152}, {t[6]}
v_lshrrev_b32 {t[6]}, 1, {t[1]}
v_xor_b32 {t[6]}, {t[6]}, {t[0]}
v_lshlrev_b32 {t[6]}, 4, {t[6]}
v_lshl_add_u32 {vA1r0}, {t[1]}, 7, {t[6]}
v_xor_b32 {vA1r1}, 64, {vA1r0}
v_lshrrev_b32 {t[7]}, 1, {t[0]}
v_lshrrev_b32 {t[8]}, 1, {t[3]}
v_and_b32 {t[9]}, 1, {t[3]}
v_lshl_add_u32 {t[10]}, {t[9]}, 1, {t[8]}
v_lshl_add_u32 {t[10]}, {t[5]}, 2, {t[10]}
v_lshlrev_b32 {t[10]}, 3, {t[10]}
v_xor_b32 {t[11]}, s93, {t[4]}
v_lshl_add_u32 {t[10]}, {t[11]}, 6, {t[10]}
v_lshl_add_u32 {t[10]}, {t[2]}, 7, {t[10]}
v_lshl_add_u32 {vWown}, {t[7]}, 10, {t[10]}
v_xor_b32 {vWoth}, 64, {vWown}
v_lshl_add_u32 {t[10]}, {t[9]}, 1, {t[5]}
v_lshlrev_b32 {t[10]}, 3, {t[10]}
v_lshl_add_u32 {t[11]}, {t[8]}, 1, {t[4]}
v_xor_b32 {t[11]}, {sW}, {t[11]}
v_lshl_add_u32 {t[10]}, {t[11]}, 5, {t[10]}
v_lshl_add_u32 {t[10]}, {t[2]}, 7, {t[10]}
v_lshl_add_u32 {t[10]}, {t[8]}, 12, {t[10]}
v_lshl_add_u32 {vW3r}, {t[7]}, 13, {t[10]}
v_and_b32 {t[0]}, 31, {vL}
v_lshrrev_b32 {t[1]}, 5, {vL}
v_lshlrev_b32 {t[1]}, 4, {t[1]}
v_lshl_add_u32 {t[0]}, {t[0]}, 11, {t[1]}
s_and_b32 s91, {sW}, 1
s_lshl_b32 s91, s91, 16
s_lshl_b32 s94, s93, 6
s_add_u32 s91, s91, s94
s_add_u32 s91, s91, s92
v_add_u32 {vRM}, s91, {t[0]}
s_lshl_b32 s91, {sG16}, 8
s_add_u32 s91, s91, {WS_FL}
v_lshl_add_u32 {vFLp}, {vL}, 2, s91
s_lshl_b32 s94, {sM16}, 2
s_add_u32 s94, s94, {sW}
s_lshl_b32 s94, s94, 2
s_add_u32 s91, s91, s94
v_mov_b32 {vFLo}, s91
v_mov_b32 {t[0]}, 0x7ff00000
v_cmp_eq_u32 vcc, 0, {vL}
v_cndmask_b32 {vFLo}, {t[0]}, {vFLo}, vcc""")
        for s in range(2):
            p(f"""s_add_u32 s91, {sW}, {4*s}
s_xor_b32 s91, s91, {sR3}
s_lshl_b32 s91, s91, 12
s_lshl_b32 s94, {sG16}, 17
s_add_u32 {sA3[s]}, s91, s94""")
        p(f's_cmp_eq_u32 {sR8}, 7\ns_cselect_b32 s91, 3, {sR8}\ns_lshl_b32 {sJ[0]}, s91, 13')
        for j in range(1, 7):
            p(f's_add_u32 {sJ[j]}, {sJ[j-1]}, 8192\ns_cmp_eq_u32 {sJ[j]}, {7*8192}\ns_cselect_b32 {sJ[j]}, 0, {sJ[j]}')
        p(f"""s_cmp_eq_u32 {sRG}, 3
s_cselect_b32 s91, 5, 1
s_add_u32 {sSG}, {sG}, s91
s_cmp_eq_u32 s90, 15
s_cselect_b32 {sSG}, {sG}, {sSG}
s_lshr_b32 s91, {sSG}, 1
v_mov_b32 v252, {sG16}
v_mov_b32 v253, s91
v_cmp_eq_u32 vcc, 0, {vL}
v_cndmask_b32 v252, v253, v252, vcc
v_lshlrev_b32 v252, 7, v252
s_mov_b32 s91, {WS_EP}
buffer_load_dword v253, v252, {SWS}, s91 offen sc1""")
        c = 40
        p(f"""v_mov_b32 v{c}, -1
v_mov_b32 v{c+1}, -1
v_mov_b32 v{c+2}, -1
v_mov_b32 v{c+3}, -1
v_mov_b32 v{c+4}, 0
v_lshrrev_b32 v{c+5}, 3, {vL}
v_and_b32 v{c+6}, 7, {vL}
v_lshlrev_b32 v{c+6}, 4, v{c+6}
v_lshl_add_u32 v{c+5}, v{c+5}, 11, v{c+6}
s_lshl_b32 s88, {sG}, 14
s_add_u32 s88, s88, s92
s_add_u32 s88, s88, {sW4K}
s_add_u32 s88, s88, {WS_HB}
s_lshl_b32 s91, {sG}, 7
s_lshl_b32 s94, {sW}, 4
s_add_u32 s91, s91, s94
s_add_u32 s91, s91, {WS_HS}
s_cmp_eq_u32 {sCB}, 0
s_cselect_b32 s91, s91, 0x7ff00000
v_mov_b32 v{c+6}, s91
s_mov_b64 exec, 0xffff""")
        self.clr = [p(f'buffer_store_dwordx4 {vr(c,4)}, v{c+5}, {SWS}, s88 offen sc1')]
        p('s_mov_b64 exec, 1')
        self.clr.append(p(f'buffer_store_dwordx4 {vr(c,4)}, v{c+6}, {SWS}, 0 offen sc1'))
        p('s_mov_b64 exec, -1')
        if not self.o_rot: p(f's_mov_b32 {sRG}, 0')
        if self.o.get('rotx', 1) & 4: p(f's_and_b32 {sRG}, s2, 3')

    def publish_xcc(self):
        l = self.lab('px')
        return [f'v_readlane_b32 {sE}, v253, 0', f'v_readlane_b32 {sES}, v253, 1', Raw(f"""s_cmp_lg_u32 {sW}, 0
s_cbranch_scc1 {l}
s_lshl_b32 s88, {sG}, 3
s_add_u32 s88, s88, {sCB}
s_lshl_b32 s88, s88, 8
s_add_u32 s88, s88, {WS_XC}
v_sub_u32 v252, 15, {vL}
v_add_u32 v252, v252, v253
v_mov_b32 v253, {sXCC}
v_lshlrev_b32 v254, 7, {vL}
s_mov_b64 exec, 3
buffer_store_dwordx2 v[252:253], v254, {SWS}, s88 offen sc1
s_mov_b64 exec, -1
{l}:""", rd=['v253', sE, sES], wr=['v252', 'v253', 'v254', 's88'], states=2)]
    def mode_issue(self, va, vd):
        return lines(f"""s_lshl_b32 s88, {sG16}, 12
s_lshl_b32 s89, {sPG}, 11
s_sub_u32 s89, s89, {16*256 - 128}
v_lshlrev_b32 {va}, 8, {vL}
v_add_u32 v{vd}, s89, {va}
v_add_u32 {va}, s88, {va}
v_cmp_gt_u32 vcc, 16, {vL}
v_cndmask_b32 {va}, v{vd}, {va}, vcc
v_mov_b32 v{vd}, s88
v_cmp_gt_u32 vcc, 24, {vL}
v_cndmask_b32 {va}, v{vd}, {va}, vcc
v_add_u32 {va}, {WS_XC}, {va}
buffer_load_dwordx2 {vr(vd,2)}, {va}, {SWS}, 0 offen sc1""")
    def mode_check(self, va, vd):
        o = lines(f"""s_cmp_eq_u32 {sHASP}, 0
s_mov_b32 s92, 0xffffff
s_cselect_b32 s92, 0xffff, s92
s_mov_b32 s93, 0
v_lshrrev_b32 v33, 4, {vL}
v_sub_u32 v33, 15, v33
v_add_u32 v33, {sE}, v33""")
        o += self.spin(f'buffer_load_dwordx2 {vr(vd,2)}, {va}, {SWS}, 0 offen sc1', f'v_cmp_ne_u32 vcc, v33, v{vd}', 's[92:93]')
        o += lines(f'v_cmp_ne_u32 vcc, {sXCC}, v{vd+1}\ns_and_b32 {sMODE}, vcc_lo, 0xffff')
        if self.o_glob: o.append(f's_mov_b32 {sMODE}, 1')
        return o
    def bump_epoch(self):
        l = self.lab('ep')
        return Raw(f"""s_add_u32 s88, {sM16}, {sW}
s_cmp_lg_u32 s88, 0
s_cbranch_scc1 {l}
s_lshl_b32 s88, {sG16}, 7
s_add_u32 s88, s88, {WS_EP}
s_add_u32 s89, {sE}, 16
v_mov_b32 v33, s89
v_mov_b32 v34, 0
s_mov_b64 exec, 1
buffer_store_dword v33, v34, {SWS}, s88 offen
s_mov_b64 exec, -1
{l}:""", wr=['v33', 'v34', 's88', 's89'], states=2)

    def stats_final(self, S, Q, t):
        o = [f'v_mul_f32 {S}, {f2u(-1/512)}, {S}', f'v_mul_f32 {Q}, {f2u(1/512)}, {Q}', f'v_fma_f32 {Q}, -{S}, {S}, {Q}', f'v_max_f32 {Q}, 0, {Q}']
        rnd = lambda x: [f'v_cvt_pk_bf16_f32 {x}, {x}, {x}', f'v_and_b32 {x}, 0xffff0000, {x}']
        if self.o_mimic:
            o += rnd(Q) + [f'v_add_f32 {Q}, {f2u(1e-5)}, {Q}'] + rnd(Q) + [f'v_sqrt_f32 {t}, {Q}'] + rnd(S) + rnd(t) + [f'v_rcp_f32 {Q}, {t}']
        else:
            o += [f'v_add_f32 {Q}, {f2u(1e-5)}, {Q}', f'v_sqrt_f32 {t}, {Q}', f'v_rcp_f32 {Q}, {t}']
        return o
    def stats_issue(self, base, sbase, r):
        o = [Ins(f's_add_u32 {sT}, {sbase}, {base}')]
        for i in range(4): o.append(Ins(f'buffer_load_dwordx4 {vr(r+4*i,4)}, {vL16}, {SWS}, {sT} offen offset:{1024*i} sc1'))
        return o
    def stats_reduce(self, r):
        o = []
        for j in range(4): o.append(f'v_add_f32 v{r+j}, v{r+j}, v{r+4+j}')
        for j in range(4): o.append(f'v_add_f32 v{r+8+j}, v{r+8+j}, v{r+12+j}')
        for j in range(4): o.append(f'v_add_f32 v{r+j}, v{r+j}, v{r+8+j}')
        o += [f'v_permlane16_swap_b32 v{r}, v{r+2}', f'v_permlane16_swap_b32 v{r+1}, v{r+3}',
              f'v_add_f32 v{r}, v{r}, v{r+2}', f'v_add_f32 v{r+1}, v{r+1}, v{r+3}',
              f'v_permlane32_swap_b32 v{r}, v{r+1}', f'v_add_f32 v{r}, v{r}, v{r+1}', f'v_mov_b32 v{r+1}, v{r}',
              f'v_permlane32_swap_b32 v{r}, v{r+1}']
        return o

    w1off = 0
    def w1_stage(self, s, seq=False):
        slot = L_R1 + ((s + self.w1off) % 7) * 12288
        pre = []
        if not (seq and s & 1):
            pre += [Ins(f's_xor_b32 {sV}, {sR8}, {s >> 1}'), Ins(f's_mul_i32 {sV}, {sV}, 196608')]
        if s & 1: pre.append(Ins(f's_add_u32 {sV}, {sV}, 98304'))
        out = []
        for part in range(3):
            g = ([Ins(f's_add_u32 m0, {sW3K}, {slot}')] + pre) if part == 0 else []
            g.append(Ins(f'buffer_load_dwordx4 {vW1d}, {SWQKV}, {sV} offen offset:{part*1024} lds', lds=[(slot + q*3072 + part*1024, slot + q*3072 + part*1024 + 1024) for q in range(4)]))
            out.append(g)
        return [sum(out, [])], [last(g) for g in out]
    def a1_chunk(self, L, kc):
        srd = SX if L == 0 else SWS; fl = ' sc1' if L else ''
        rng = lambda o: [(kc*8192 + q*2048 + o*1024, kc*8192 + q*2048 + o*1024 + 1024) for q in range(4)]
        a = Ins(f'buffer_load_dwordx4 {vA1e}, {srd}, {sT} offen{fl} lds', lds=rng(0))
        b = Ins(f'buffer_load_dwordx4 {vA1o}, {srd}, {sT} offen offset:1024{fl} lds', lds=rng(1))
        return [Ins(f's_add_u32 m0, {sW2K}, {kc*8192}'), Ins(f's_xor_b32 {sT}, {sR8s}, {kc*128}'), Ins(f's_add_u32 {sT}, {sT}, {sA1}'), a, b], [a, b]
    def halo_dma(self, L, va, sT=sT):
        srd = SX if L == 0 else SWS; fl = ' sc1' if L else ''
        o = []; tk = []
        for u in range(2):
            d = Ins(f'buffer_load_dwordx4 {va}, {srd}, {sT} offen{fl} lds', lds=[(L_A1H + q*2048 + u*1024, L_A1H + q*2048 + u*1024 + 1024) for q in range(4)])
            o += [Ins(f's_add_u32 m0, {sW2K}, {L_A1H + u*1024}'), Ins(f's_lshl_b32 {sT}, {sW}, 8'), Ins(f's_add_u32 {sT}, {sT}, {u*128}'),
                  Ins(f's_xor_b32 {sT}, {sT}, {sR8s}'), Ins(f's_add_u32 {sT}, {sT}, {sHB if L else sHALO}'), d]
            tk.append(d)
        return o, tk
    def w2_piece(self, i):
        q = (i >> 1) & 3; c = (i & 1)*32768 + (i >> 3)*262144
        o = [Ins(f's_add_u32 m0, {sW1K}, {L_W2 + i*4096}'), Ins(f's_xor_b32 {sT}, {sRG}, {q}'), Ins(f's_lshl_b32 {sT}, {sT}, 16')]
        if c: o.append(Ins(f's_add_u32 {sT}, {sT}, {c}'))
        o.append(Ins(f'buffer_load_dwordx4 {vW2d}, {SWO}, {sT} offen lds', lds=(L_W2 + i*4096, L_W2 + i*4096 + 4096)))
        return o
    def w2_quads(self, t):
        pre = [f's_mul_i32 s93, {sW}, {131072 - 8192}', f'v_add_u32 {t[0]}, s93, {vW2d}'] + [f'v_add_u32 {t[i]}, {7168*i}, {t[0]}' for i in range(1, 4)] + [f's_lshl_b32 s93, {sW}, 14']
        out = []; tk = []
        for i in range(4):
            o = L_W2 + i*4096
            d = [Ins(f'buffer_load_dwordx4 {t[u]}, {SWO}, {sT} offen offset:{u*1024} lds', lds=[(o + w*16384 + u*1024, o + w*16384 + u*1024 + 1024) for w in range(4)]) for u in range(4)]
            out += self.split_dma([Ins(f's_add_u32 m0, s93, {o}'), Ins(f's_mov_b32 {sT}, {i*32768}')] + d); tk += d
        return pre, out, tk
    W4SLOTS = [[8, 2, 3, 4, 5, 0, 1, 6, 7, 8, 2, 3, 4, 5], [8, 8, 8, 8, 0, 1, 2, 3, 4, 5, 6, 7, 8, 1]]
    @property
    def W4SLOT(self):
        if self.layer == 0: return self.W4SLOTS[0]
        n = self.o.get('nwp', 2)
        return ([8]*(n + 1) + list(range(8)) + [8, 1, 2, 3, 4])[:14]
    def w4_setup(self):
        return [f'v_add_u32 {vW4[0]}, {sWd4}, {vW2d}'] + [f'v_add_u32 {vW4[i]}, {7168*i}, {vW4[0]}' for i in range(1, 4)]
    def w4_stage(self, s):
        c, j = divmod(s, 7)
        slot = self.W4SLOT[s] * 16384
        out = []; tk = []
        for h in range(2):
            g = [Ins(f's_add_u32 m0, {sW4K}, {slot}'), Ins(f's_lshl4_add_u32 {sT}, {sJ[j]}, {c*65536}')]
            for i in (2*h, 2*h+1):
                d = Ins(f'buffer_load_dwordx4 {vW4[i]}, {SWD}, {sT} offen offset:{i*1024} lds', lds=[(slot + q*4096 + i*1024, slot + q*4096 + i*1024 + 1024) for q in range(4)])
                g.append(d); tk.append(d)
            out.append(g)
        return out, tk
    def w3_quad(self, q, stg):
        c, kq = divmod(q, 8)
        o = [Ins(f's_add_u32 m0, {sW4K}, {stg}'), Ins(f's_xor_b32 {sU}, {sR3}, {kq}'), Ins(f's_mul_i32 {sU}, {sU}, {4*57344}')]
        if c: o.append(Ins(f's_add_u32 {sU}, {sU}, 128'))
        tk = [Ins(f'buffer_load_dwordx4 {vW3q[i]}, {SW3}, {sU} offen offset:{i*1024} lds', lds=[(stg + w*4096 + i*1024, stg + w*4096 + i*1024 + 1024) for w in range(4)]) for i in range(4)]
        self.w3tok[q] = tk; self.w3stg[q] = stg
        return self.split_dma(o + tk)
    def w3_reads(self, n):
        stg = self.w3stg[n >> 2]; i = n & 3
        va, off = [(vW3r, 0), ('v212', 49152), ('v213', 98304)][min(2, stg // 49152)]
        return [Ins(f'ds_read_b64_tr_b16 {ar(4*n+2*r,2)}, {va} offset:{stg - off + i*1024 + r*512}', lds=[(stg + w*4096 + i*1024, stg + w*4096 + i*1024 + 1024) for w in range(4)]) for r in range(2)]
    def w3_cs(self, n):
        return f'v_mfma_f32_16x16x32_bf16 v[216:219], v[220:223], {ar(4*n,4)}, {0 if n % 32 == 0 else "v[216:219]"}'
    def w3_setup(self):
        return [f'v_add_u32 v212, 49152, {vW3r}', f'v_add_u32 v213, 98304, {vW3r}']
    def w3_take(self, ns):
        p = self.p
        rs = [self.w3_reads(n) for n in ns]
        for i, n in enumerate(ns):
            p(rs[i])
            if i >= 3: p(self.w3_cs(ns[i-3]))
        for n in ns[-3:]: p(self.w3_cs(n))
        return sum(rs, [])
    def w3_sel(self):
        return lines(f"""v_lshrrev_b32 v220, 2, {vL}
v_lshrrev_b32 v221, 4, {vL}
v_xor_b32 v220, v220, v221
v_and_b32 v220, 1, v220
v_cmp_eq_u32 vcc, 0, v220
v_mov_b32 v221, 0x3f803f80
v_cndmask_b32 v220, 0, v221, vcc
v_mov_b32 v221, v220
v_mov_b32 v222, v220
v_mov_b32 v223, v220""")
    CSW = [34, 34]
    def w3_cs_store(self, c):
        o = lines(f"""v_cvt_pk_bf16_f32 v217, v216, v216
v_and_b32 v218, 0xffff0000, v217
v_sub_f32 v216, v216, v218
v_cvt_pk_bf16_f32 v218, v216, v216
v_and_b32 v219, 0xffff0000, v218
v_sub_f32 v216, v216, v219
v_and_b32 v217, 0xffff, v217
v_or_b32 v218, v219, v217
v_cvt_pk_bf16_f32 v219, v216, 0
v_lshlrev_b32 v217, 3, {vL}
s_lshl_b32 s90, {sW}, 9
s_add_u32 s90, s90, {L_CS3 + c*256}
v_add_u32 v217, s90, v217""")
        o.append(['s_mov_b64 exec, 0xffffffff', Ins('ds_write_b64 v217, v[218:219]', lds=(L_CS3, L_CS3 + 2048), private=True), 's_mov_b64 exec, -1'])
        return o

    ATT = dict(ST=144, VS=154, CQ=194, QB=202, KB=210, VB=220, CA=128, CB=132, CB0=136, MA=140, SB=96, PP=230, OA=56, T=246)
    def att_masks(self, T):
        A = self.ATT; CA, CB, CB0, MA = A['CA'], A['CB'], A['CB0'], A['MA']
        o = lines(f"""v_and_b32 v{T}, 15, {vL}
v_lshrrev_b32 v{T+1}, 4, {vL}
v_lshlrev_b32 v142, 2, v{T}
v_add_u32 v142, {L_NM}, v142
v_lshlrev_b32 v143, 4, v{T+1}
v_add_u32 v143, {L_NM}, v143
v_lshlrev_b32 v{T+1}, 2, v{T+1}
v_sub_u32 v{T}, v{T}, v{T+1}
v_mov_b32 v{T+4}, 0xff800000
v_mov_b32 v{T+5}, 0xffff
v_mov_b32 v{T+6}, 0xffff0000
s_cmp_eq_u32 {sHASP}, 0
s_cselect_b64 s[88:89], 0, -1""")
        for j in range(4):
            o += lines(f"""v_subrev_u32 v{T+1}, {j}, v{T}
v_add_u32 v{T+7}, 16, v{T+1}
v_cmp_gt_u32 vcc, 8, v{T+1}
v_cmp_gt_u32 s[90:91], 8, v{T+7}
v_cndmask_b32 v{CA+j}, v{T+4}, 0, vcc
v_cndmask_b32 v{T+8+j}, 0, v{T+5+(j&1)}, vcc
v_cndmask_b32 v{CB+j}, v{T+4}, 0, s[90:91]
v_cndmask_b32 v{CB0+j}, v{T+4}, v{CB+j}, s[88:89]""")
        o += [f'v_or_b32 v{MA}, v{T+8}, v{T+9}', f'v_or_b32 v{MA+1}, v{T+10}, v{T+11}']
        return o
    def att_ones(self): return [f'v_mov_b32 v{112+i}, 0x3f803f80' for i in range(4)]
    def att_tabreads(self):
        A = self.ATT; tab = (L_NM, L_NM + 640)
        o = [Ins(f'ds_read2_b32 {vr(A["ST"]+2*u,2)}, v142 offset0:{16*u} offset1:{80+16*u}', lds=tab) for u in range(5)]
        for u in range(5):
            o.append(Ins(f'ds_read_b128 {vr(A["VS"]+8*u,4)}, v143 offset:{64*u}', lds=tab))
            o.append(Ins(f'ds_read_b128 {vr(A["VS"]+8*u+4,4)}, v143 offset:{64*u+320}', lds=tab))
        return o
    def attention(self, L, extra):
        p = self.p
        QA, KA, VA = 40, 56, 76
        A = self.ATT
        ST, VS, CQ, QB, KB, VB, CA, CB, CB0, MA, SB, PP, OA, T = [A[k] for k in 'ST VS CQ QB KB VB CA CB CB0 MA SB PP OA T'.split()]
        lo, hi = 'op_sel_hi:[1,0,1]', 'op_sel:[0,1] op_sel_hi:[1,1]'
        ONES = 112
        for u in range(5):
            st = vr(ST + 2*u, 2)
            for j in (0, 2): p(f'v_pk_fma_f32 {vr(KA+4*u+j,2)}, {vr(CSK+j,2)}, {st}, {vr(KA+4*u+j,2)} {lo}')
            if u:
                for j in (0, 2): p(f'v_pk_fma_f32 {vr(QA+4*u-4+j,2)}, {vr(CSQ+j,2)}, {st}, {vr(QA+4*u-4+j,2)} {lo}')
            for j in (0, 2): p(f'v_pk_mul_f32 {vr(KA+4*u+j,2)}, {vr(KA+4*u+j,2)}, {st} {hi}')
            if u:
                for j in range(2): p(f'v_cvt_pk_bf16_f32 v{QB+2*u-2+j}, v{QA+4*u-4+2*j}, v{QA+4*u-4+2*j+1}')
            for j in range(2): p(f'v_cvt_pk_bf16_f32 v{KB+2*u+j}, v{KA+4*u+2*j}, v{KA+4*u+2*j+1}')
        p(extra.get('a', []))
        for t in range(4):
            p(f'v_mfma_f32_16x16x16_bf16 {vr(QA+4*t,4)}, {vr(KB+2*(t+1),2)}, {vr(QB+2*t,2)}, {vr(CA,4)}')
            p(f'v_mul_f32 v{CQ+2*t}, {f2u(0.25*LOG2E)}, v{ST+2*t+3}')
            p(f'v_mfma_f32_16x16x16_bf16 {vr(SB+4*t,4)}, {vr(KB+2*t,2)}, {vr(QB+2*t,2)}, {vr(CB0 if t == 0 else CB,4)}')
        p(self.att_ones()); p(extra.get('b', []))
        for u in range(5):
            for j in (0, 2): p(f'v_pk_fma_f32 {vr(VA+4*u+j,2)}, {vr(VS+8*u+j,2)}, {vr(CSV,2)}, {vr(VA+4*u+j,2)} {lo}')
            for j in (0, 2): p(f'v_pk_mul_f32 {vr(VA+4*u+j,2)}, {vr(VA+4*u+j,2)}, {vr(VS+8*u+4+j,2)}')
            for j in range(2): p(f'v_cvt_pk_bf16_f32 v{VB+2*u+j}, v{VA+4*u+2*j}, v{VA+4*u+2*j+1}')
        for t in range(4):
            for j in range(4): p(f'v_max_f32 v{QA+4*t+j}, v{QA+4*t+j}, v{SB+4*t+j}')
        for t in range(4): p(f'v_max3_f32 v{T+t}, v{QA+4*t}, v{QA+4*t+1}, v{QA+4*t+2}')
        for t in range(4): p(f'v_max_f32 v{T+t}, v{T+t}, v{QA+4*t+3}')
        def reduce4(op, ex=None):
            p(f"""v_permlane16_swap_b32 v{T}, v{T+1}
v_permlane16_swap_b32 v{T+2}, v{T+3}
{op} v{T}, v{T}, v{T+1}
{op} v{T+2}, v{T+2}, v{T+3}
v_permlane32_swap_b32 v{T}, v{T+2}
{op} v{T}, v{T}, v{T+2}""")
            if ex: p(ex)
            p(f"""v_mov_b32 v{T+2}, v{T}
v_permlane32_swap_b32 v{T}, v{T+2}
v_mov_b32 v{T+1}, v{T}
v_mov_b32 v{T+3}, v{T+2}
v_permlane16_swap_b32 v{T}, v{T+1}
v_permlane16_swap_b32 v{T+2}, v{T+3}""")
        reduce4('v_max_f32')
        for t in range(4): p(f'v_mul_f32 v{CQ+2*t+1}, v{T+t}, v{CQ+2*t}')
        for t in range(4):
            for j in (0, 2): p(f'v_pk_fma_f32 {vr(QA+4*t+j,2)}, {vr(QA+4*t+j,2)}, {vr(CQ+2*t,2)}, {vr(CQ+2*t,2)} op_sel:[0,0,1] op_sel_hi:[1,0,1] neg_lo:[0,0,1] neg_hi:[0,0,1]')
        for t in range(4):
            for j in range(4): p(f'v_exp_f32 v{QA+4*t+j}, v{QA+4*t+j}')
        for t in range(4):
            p(f"""v_cvt_pk_bf16_f32 v{PP+4*t}, v{QA+4*t}, v{QA+4*t+1}
v_cvt_pk_bf16_f32 v{PP+4*t+1}, v{QA+4*t+2}, v{QA+4*t+3}
v_and_b32 v{PP+4*t+2}, v{MA}, v{PP+4*t}
v_and_b32 v{PP+4*t+3}, v{MA+1}, v{PP+4*t+1}
v_xor_b32 v{PP+4*t}, v{PP+4*t}, v{PP+4*t+2}
v_xor_b32 v{PP+4*t+1}, v{PP+4*t+1}, v{PP+4*t+3}""")
            if t: p(f'v_mfma_f32_16x16x32_bf16 {vr(SB+4*t-4,4)}, {vr(ONES,4)}, {vr(PP+4*t-4,4)}, 0')
            if t: p(f'v_mfma_f32_16x16x32_bf16 {vr(OA+4*t-4,4)}, {vr(VB+2*t-2,4)}, {vr(PP+4*t-4,4)}, 0')
        p(f'v_rcp_f32 v{SB}, v{SB}')
        p(f'v_mfma_f32_16x16x32_bf16 {vr(SB+12,4)}, {vr(ONES,4)}, {vr(PP+12,4)}, 0')
        p(f'v_mfma_f32_16x16x32_bf16 {vr(OA+12,4)}, {vr(VB+6,4)}, {vr(PP+12,4)}, 0')
        for t in range(4):
            if t: p(f'v_rcp_f32 v{SB+4*t}, v{SB+4*t}')
            if t:
                for j in range(4): p(f'v_mul_f32 v{OA+4*t-4+j}, v{SB+4*t-4}, v{OA+4*t-4+j}')
        for j in range(4): p(f'v_mul_f32 v{OA+12+j}, v{SB+12}, v{OA+12+j}')
        for tp in range(2):
            b = PP + 4*tp
            for h in range(2):
                t = 2*tp + h
                for j in range(2): p(f'v_cvt_pk_bf16_f32 v{b+2*h+j}, v{OA+4*t+2*j}, v{OA+4*t+2*j+1}')
        for tp in range(2):
            b = PP + 4*tp
            p(f'v_permlane16_swap_b32 v{b}, v{b+2}\nv_permlane16_swap_b32 v{b+1}, v{b+3}')
        alt, st = self.stores([f'buffer_store_dwordx4 {vr(PP,4)}, {vL16}, {SWS}, {sX} offen', f'buffer_store_dwordx4 {vr(PP+4,4)}, {vL16}, {SWS}, {sY} offen'])
        p(alt)
        return st
    def o_addr(self, L):
        if self.alias:
            return lines(f"""s_mul_i32 {sX}, {sG}, {2*114688}
s_lshl_b32 {sY}, {sCB}, 12
s_add_u32 {sX}, {sX}, {sY}
s_add_u32 {sX}, {sX}, {sW1K}
s_add_u32 {sX}, {sX}, {WS_H[L]}
s_add_u32 {sY}, {sX}, 114688""")
        return lines(f"""s_lshl_b32 {sX}, {sG}, 16
s_lshl_b32 {sY}, {sCB}, 12
s_add_u32 {sX}, {sX}, {sY}
s_add_u32 {sX}, {sX}, {sW1K}
s_add_u32 {sX}, {sX}, {WS_O[L]}
s_add_u32 {sY}, {sX}, 32768""")
    def x1_addr(self, L, d):
        return lines(f"""s_lshl_b32 {d}, {sRB}, 15
s_lshl_b32 s89, {sCB}, 12
s_add_u32 {d}, {d}, s89
s_and_b32 s89, {sW1K}, 2048
s_add_u32 {d}, {d}, s89
s_add_u32 {d}, {d}, {WS_X1[L]}""")
    def st_addr(self, base, d):
        return lines(f"""s_lshl_b32 {d}, {sRB}, 12
s_lshl_b32 s89, {sCB}, 9
s_add_u32 {d}, {d}, s89
s_lshr_b32 s89, {sW}, 1
s_lshl_b32 s89, s89, 8
s_add_u32 {d}, {d}, s89
s_add_u32 {d}, {d}, {base}""")
    def h_addr(self, L):
        return lines(f"""s_mul_i32 {sH0}, {sG16}, {4*114688}
s_lshl_b32 s88, {sM16}, 13
s_add_u32 {sH0}, {sH0}, s88
s_add_u32 {sH0}, {sH0}, {sW1K}
s_add_u32 {sH0}, {sH0}, {WS_H[L]}
s_cmp_lg_u32 {sIDLE}, 0
s_cselect_b32 {sH0}, 0x7fe00000, {sH0}""")
    def touches_p1(self, L, t):
        if not self.o_touch or (self.alias and L == 1 and not self.o.get('t1', True)): return self.o_addr(L)
        o = self.o_addr(L) + [f'v_and_b32 {t}, 7, {vL}', f'v_lshlrev_b32 {t}, 7, {t}', f'v_bfe_u32 v34, {vL}, 3, 1', f'v_mul_u32_u24 v34, {114688 if self.alias else 32768}, v34', f'v_add_u32 {t}, {t}, v34']
        o.append(self.touch(t, sX, 0xffff))
        o += self.x1_addr(L, 's88') + [f'v_lshlrev_b32 {t}, 7, {vL}']
        o.append(self.touch(t, 's88', 0xffff))
        o += self.st_addr(WS_ST1[L], 's88')
        o.append(self.touch(t, 's88', 3))
        if L == 0: o.append(self.touch(vFLp, 0))
        return o
    def touches_h(self, L, t):
        if not self.o_touch or (self.alias and L == 1 and not self.o.get('th1', True)): return []
        o = self.h_addr(L) + lines(f"""v_and_b32 {t}, 7, {vL}
v_lshlrev_b32 {t}, 7, {t}
v_bfe_u32 v34, {vL}, 3, 1
v_lshl_add_u32 {t}, v34, 12, {t}
v_lshrrev_b32 v34, 4, {vL}
v_mul_u32_u24 v34, 114688, v34
v_add_u32 {t}, {t}, v34""")
        o.append(self.touch(t, sH0))
        return o
    def touches_x2(self, t):
        if not self.o_touch: return []
        if self.alias:
            if not self.o.get('tx2', True): return []
            o = self.x1_addr(0, 's88') + [f'v_lshlrev_b32 {t}, 7, {vL}', self.touch(t, 's88', 0xffff)]
            return o + self.st_addr(WS_ST2, 's88') + [self.touch(t, 's88', 3)]
        o = [f's_add_u32 s88, {sROW}, {WS_X2}', self.touch(vRM, 's88', 0xffffffff)]
        o += self.st_addr(WS_ST2, 's88') + [f'v_lshlrev_b32 {t}, 7, {vL}', self.touch(t, 's88', 3)]
        return o

    def p1_wreads(self, s, dq, dk, dv):
        slot = (s + self.w1off) % 7
        va, off = (vW1r0, slot*12288) if slot < 4 else (vW1r1, slot*12288 - 49152)
        lo = L_R1 + slot*12288
        return [Ins(f'ds_read_b64_tr_b16 {vr(dst+2*rd,2)}, {va} offset:{off + part*1024 + rd*512}', lds=[(lo + q*3072 + part*1024, lo + q*3072 + part*1024 + 1024) for q in range(4)])
                for part, dst in ((0, dq), (1, dk), (2, dv)) for rd in range(2)]
    def p1_aread(self, s, t, dst):
        o = (s >> 1)*8192 + t*2048
        return Ins(f'ds_read_b128 {vr(dst,4)}, {vA1r1 if s & 1 else vA1r0} offset:{o}', lds=(o, o+2048))
    def halo_addr(self, a, b):
        return lines(f"""v_and_b32 {a}, 1023, {vA1r0}
v_not_b32 {b}, {vL}
v_and_b32 {b}, 8, {b}
v_lshlrev_b32 {b}, 3, {b}
v_xor_b32 {a}, {a}, {b}
v_add_u32 {a}, {L_A1H}, {a}
v_xor_b32 {b}, 64, {a}""")
    def halo_read(self, s, dst, a, b):
        o = (s >> 1)*1024
        return Ins(f'ds_read_b128 {vr(dst,4)}, {b if s & 1 else a} offset:{o}', lds=(L_A1H + o, L_A1H + o + 1024))
    W2AT = {9: [1, 2, 3], 10: [4, 5, 6], 11: [7, 8, 9], 12: [10, 11, 12], 13: [13, 14, 15], 15: [0]}

    def edf(self, S, items, sigma, name, stream='dma', lead=2):
        t = float(min(x['e'] for x in items)); left = list(items); plan = []
        while left:
            seen = set(); el = []
            for x in left:
                c = x.get('chain')
                if c in seen: continue
                if c is not None: seen.add(c)
                if x['e'] <= t: el.append(x)
            if not el: t = float(min(x['e'] for x in left if x['e'] > t)); continue
            x = min(el, key=lambda y: y['need'])
            gq = x['make']()
            x['t'] = t; x['n'] = len(gq); plan.append(x); left.remove(x)
            for j, y in enumerate(gq):
                tt = min(int(t + sigma*j), len(S.spine) - 1)
                if len(y) > 1: S.add(stream, [y[:-1]], e=max(tt - lead, 0), d=tt, split=True, step=0)
                S.add(stream, [y[-1:]], e=tt, d=tt, step=0)
            t += sigma*len(gq)
        print(f'   edf {name}: min slack', sorted(round(x['need'] - x['t'] - sigma*(x['n']-1), 1) for x in plan)[:5], 'end', round(t, 1))
    def split_dma(self, g):
        out = []; cur = []
        for i in g:
            cur.append(i)
            if i.kind in ('dma', 'vmld'): out.append(cur); cur = []
        assert not cur
        return out

    def p1_first(self):
        p = self.p
        QA, KA, VA, AF, ONE, WB, SA = 40, 56, 76, 96, 120, 224, 152
        wtok = {}; atok = {}
        def A(kc):
            o, tk = self.a1_chunk(0, kc); atok[kc] = tk; return self.split_dma(o)
        def W(s):
            o, tk = self.w1_stage(s, seq=True); wtok[s] = tk; return self.split_dma(o[0])
        self.ts('first')
        p(A(0))
        hd, htok = self.halo_dma(0, 'v124'); p(hd)
        p(W(0)); p(W(1)); p(A(1))
        self.ts('batch1')
        self.prologue_b()
        self.ts('prob')
        for i2 in range(2): p(f'buffer_load_dwordx4 {vr(RES+4*i2,4)}, {vRM}, {SX}, {sROW} offen offset:{32*i2}')
        if self.o.get('tlb'):
            p(f'v_mov_b32 v198, 0\ns_mul_i32 s88, {sG16}, {4*114688}\ns_add_u32 s88, s88, {WS_H[0]}\ns_lshl_b32 s89, {sG}, 16\ns_add_u32 s89, s89, {WS_X1[0]}\ns_mov_b32 s91, {WS_ST1[0]}')
            for srd, so in ((SWO, '0'), (SW3, '0'), (SWD, '0'), (SOUT, sROW), (SWS, 's88'), (SWS, 's89'), (SWS, 's91')):
                x = Ins(f'buffer_load_dword v34, v198, {srd}, {so} offen'); x.wr = set(); p(x)
        p(self.halo_addr('v124', 'v125'))
        p(f'v_add_u32 v126, {sW2K}, {vA1r0}\nv_xor_b32 v127, 64, v126')
        for b_ in (ONE, AF + 16, 172, 180):
            for i in range(4): p(f'v_mov_b32 v{b_+i}, 0x3f803f80')
        hm = lambda x: ['s_mov_b64 exec, s[32:33]', x, 's_mov_b64 exec, -1']
        p(W(2)); p(W(3))
        self.ts('p1_go0')
        plan = {0: ['A2', 'W4'], 1: ['A3', 'W5'], 2: ['A4', 'W6'], 3: ['A5', 'W7'], 4: ['A6', 'W8'], 5: ['A7', 'W9'], 6: ['W10', 'W11'], 7: ['W12', 'W13'], 8: ['W14', 'W15']}
        wb = lambda s: WB + 12*(s & 1)
        one = vr(ONE, 4)
        p(WaitTok(wtok[0] + atok[0] + htok)); p('s_barrier')
        self.ts('a1_landed')
        wr = self.p1_wreads(0, wb(0), wb(0)+4, wb(0)+8); p(wr)
        p(hm(self.halo_read(0, AF+16, 'v124', 'v125')))
        for t in range(4): p(self.p1_aread(0, t, AF + 4*t))
        spine = []; base = []
        for s in range(16):
            base.append(len(spine))
            z = (s == 0)
            wq, wk, wv = vr(wb(s), 4), vr(wb(s)+4, 4), vr(wb(s)+8, 4)
            mm = lambda d, x, y, zz=z: f'v_mfma_f32_16x16x32_bf16 {vr(d,4)}, {x}, {y}, {0 if zz else vr(d,4)}'
            h = vr(AF + 16, 4)
            spine += [mm(CSQ, wq, one), mm(KA, wk, h), mm(VA, h, wv)]
            for t in range(4):
                a = vr(AF + 4*t, 4)
                spine += [mm(QA + 4*t, wq, a), mm(KA + 4 + 4*t, wk, a), mm(VA + 4 + 4*t, a, wv)]
            kc = s - 2
            if 0 <= kc < 8:
                for hh in range(2):
                    fa, fh = vr(168 + 8*hh, 4), vr(172 + 8*hh, 4); zz = (kc == 0 and hh == 0)
                    spine += [mm(SA, one, fa, zz), mm(SA+4, fa, fa, zz), mm(SA+12, fh, fh, zz)]
        base.append(len(spine))
        S = Sched(spine)
        w2tok = []
        items = []
        B2 = self.o.get('b20', True)
        ev = (lambda x: x & ~1) if B2 else (lambda x: x)
        nx = (lambda x: (x + 1) & ~1) if B2 else (lambda x: x)
        for kc in range(2, 8): items.append(dict(e=1, need=min(base[ev(2*kc - 1)], base[ev(kc + 2)]), chain='A', make=lambda kc=kc: A(kc)))
        for s in range(4, 16): items.append(dict(e=base[nx(s-7)] + 1 if s >= 7 else 1, need=base[ev(s-1)], chain='W', make=lambda s=s: W(s)))
        def w2mk(i):
            x = self.w2_piece(i); w2tok.append(last(x)); return [x]
        for s, lst in self.W2AT.items():
            for i in lst: items.append(dict(e=base[min(15, nx(s))] + 1, need=base[16] + 40, chain='W2', make=lambda i=i: w2mk(i)))
        for q, s in ((0, 11), (1, 12)): items.append(dict(e=base[nx(s)] + 1, need=base[16] + 30 + q, chain='W3', make=lambda q=q: self.w3_quad(q, 16384 + 16384*q)))
        self.edf(S, items, self.o.get('sg10', 3.2), 'p1 L0')
        tabw = [Ins(f'ds_write2_b32 v169, v{SA}, v{SA+4} offset0:16 offset1:96', lds=(L_NM, L_NM+640)), Ins(f'ds_write2_b32 v168, v{SA+8}, v{SA+12} offset0:0 offset1:80', lds=(L_NM, L_NM+640))]
        ard = None
        for s in range(16):
            b, nb = base[s], base[s+1]
            S.before[b] = self.fts('p10', f'k{s}')
            if ard:
                S.before[b] += [WaitTok(wr + ard[:1])]; S.before[b + 3] = [WaitTok(ard[1:3])]; S.before[b + 9] = [WaitTok(ard[3:])]
            kc = s - 2
            if not B2 or s % 2 == 0 or s == 15:
                toks = list(wr)
                for u in ((s + 1, s + 2) if B2 else (s + 1,)):
                    if u < 16: toks += wtok[u] + atok[u >> 1]
                for u in ((kc, kc + 1) if B2 else (kc,)):
                    if 0 <= u < 8: toks += atok[u]
                if s == (4 if B2 else 3): toks += self.clr
                if s == 15: toks += tabw
                S.at(b, [WaitTok(toks), 's_barrier'])
            if 0 <= kc < 8:
                x = []; tk = []
                for hh in range(2):
                    r1 = Ins(f'ds_read_b128 {vr(168+8*hh,4)}, {"v127" if hh else "v126"} offset:{kc*8192}', lds=(kc*8192, kc*8192 + 8192))
                    r2 = self.halo_read(2*kc + hh, 172 + 8*hh, 'v124', 'v125')
                    x += [r1, hm(r2)]; tk += [r1, r2]
                S.add('sr', x, e=b+1, d=b+11)
                S.before[b + 15] = [WaitTok(tk)]
            if s < 15:
                wr = self.p1_wreads(s+1, wb(s+1), wb(s+1)+4, wb(s+1)+8)
                S.add('wr', wr, e=b+1, d=nb-5, step=1)
                ard = [self.halo_read(s+1, AF+16, 'v124', 'v125')] + [self.p1_aread(s+1, t, AF + 4*t) for t in range(4)]
                S.add('ar', [hm(ard[0])], e=b+3, d=nb-4)
                for t in range(4): S.add('ar', [ard[t+1]], e=b+6+3*t, d=nb+(-3, -1, 3, 4)[t], step=0)
        x = lines(f"""v_and_b32 v168, 3, {vL}
v_cmp_eq_u32 vcc, 1, v168
v_cmp_eq_u32 s[88:89], 2, v168
v_cmp_eq_u32 s[90:91], 3, v168""")
        x += [f'v_mov_b32 v{SA+8}, v{SA+12}', f'v_mov_b32 v{SA+9}, v{SA+12}', f'v_permlane32_swap_b32 v{SA+8}, v{SA+9}']
        for bb in (SA+4, SA+12):
            x += [f'v_cndmask_b32 v{bb}, v{bb}, v{bb+1}, vcc', f'v_cndmask_b32 v{bb}, v{bb}, v{bb+2}, s[88:89]', f'v_cndmask_b32 v{bb}, v{bb}, v{bb+3}, s[90:91]']
        x += self.stats_final(f'v{SA}', f'v{SA+4}', f'v{SA+1}') + self.stats_final(f'v{SA+8}', f'v{SA+12}', f'v{SA+9}')
        x += lines(f"""v_and_b32 v168, 15, {vL}
v_lshlrev_b32 v168, 2, v168
v_add_u32 v168, {L_NM}, v168
s_lshl_b32 s88, {sW}, 6
v_add_u32 v169, s88, v168""")
        x.append(['s_mov_b32 exec_lo, 0x00f0000f', 's_mov_b32 exec_hi, 0xf0000f00'] + tabw + ['s_mov_b64 exec, -1'])
        wt = self.o.get('wat', 0)
        S.add('misc', self.warm_touch('v196') + [[f's_cmp_lg_u32 {sIDLE}, 0', 's_cselect_b32 s18, 0, s18']], e=base[wt]+1, d=base[wt+1]-1)
        S.add('misc', self.att_masks(184), e=base[1]+1, d=base[3]-1)
        S.add('misc', self.publish_xcc(), e=base[4 if B2 else 3]+1, d=base[5 if B2 else 4])
        S.add('misc', self.touches_p1(0, 'v196'), e=base[6], d=base[9])
        S.add('misc', self.mode_issue('v197', 198), e=base[9], d=base[10]+1)
        S.add('misc', [f'v_add_u32 {vW3q[i]}, {i*(57344-1024)}, {vW3d}' for i in range(1, 4)], e=base[10], d=base[11] - 3)
        if self.o.get('ct2', False): S.add('misc', [self.code_touch()], e=base[10], d=base[11])
        S.add('misc', x, e=base[10]+2, d=base[14])
        th0 = self.touches_h(0, 'v200') if not self.o.get('th3', 3) & 1 else []; thi0 = th0[-1:]
        self.th0 = thi0
        S.add('misc', th0[:-1] + (thi0 if self.o.get('tha', 0) == 1 else []), e=base[12], d=base[13])
        S.add('misc', self.p2_setup(0), e=base[13], d=base[14])
        S.add('misc', [self.mode_check('v197', 198)], e=base[14], d=base[15]-1)
        S.add('misc', self.att_tabreads(), e=base[15]+1, d=base[16]-2)
        self.win(S, '10')
        S.emit(p, 'p1 L0')
        self.ts('p1_loop0')
        for j in range(4): p(f'v_mov_b32_dpp v{CSK+j}, v{KA+j} row_newbcast:0 row_mask:0xf bank_mask:0xf')
        p(f'v_mov_b32 v{CSV}, v{VA}\nv_mov_b32 v33, v{VA}\nv_permlane32_swap_b32 v{CSV}, v33')
        p('s_waitcnt lgkmcnt(0)'); p('s_barrier')
        nq = self.o.get('nqa', 2); tha = self.o.get('tha', 0)
        if nq >= 1: p(self.w3_quad(2, 49152))
        if tha == 0 and not self.o.get('th3', 3) & 1: p(thi0)
        st = self.attention(0, {'a': self.w3_quad(3, 65536) if nq >= 2 else []})
        self.nq1 = 2 + nq
        self.ts('p1_attn0')
        self.post_flag(1, st)
        self.ts('p1_end0')
        return w2tok

    def p1_second(self, pre):
        p = self.p
        QA, KA, VA, AF, WQ, WK, WV = 40, 56, 76, 96, 112, 128, 192
        wtok = dict(pre); atok = {}
        def A(kc):
            o, tk = self.a1_chunk(1, kc); atok[kc] = tk; return self.split_dma(o)
        p('v_mov_b32 v120, v127')
        dst = lambda s: (WQ + 4*(s & 1), WK + 4*s, WV + 4*s)
        p(WaitTok(wtok[0])); p('s_barrier')
        wr = self.p1_wreads(0, *dst(0)); p(wr)
        self.poll(5, sMK1)
        self.ts('p1_go1')
        p(A(0)); p(A(1))
        p(self.stats_issue(WS_ST2, 's92', 240))
        p(A(2))
        p(WaitTok(atok[0])); p('s_barrier')
        for t in range(4): p(self.p1_aread(0, t, AF + 4*t))
        self.ts('p1_stats1')
        spine = []
        for s in range(16):
            z = (s == 0)
            dq, dk, dv = dst(s)
            mm = lambda d, x, y: f'v_mfma_f32_16x16x32_bf16 {vr(d,4)}, {x}, {y}, {0 if z else vr(d,4)}'
            for t in range(4):
                a = vr(AF + 4*t, 4)
                spine += [mm(QA + 4*t, vr(dq,4), a), mm(KA + 4 + 4*t, vr(dk,4), a), mm(VA + 4 + 4*t, a, vr(dv,4))]
        hb = len(spine)
        for s in range(16):
            a = vr(AF + 4*(s & 3), 4); k, v = vr(KA, 4), vr(VA, 4)
            spine.append(f'v_mfma_f32_16x16x32_bf16 {k}, {vr(WK+4*s,4)}, {a}, {0 if s == 0 else k}')
            spine.append(f'v_mfma_f32_16x16x32_bf16 {v}, {a}, {vr(WV+4*s,4)}, {0 if s == 0 else v}')
        S = Sched(spine)
        w2tok = []
        hd, htok = self.halo_dma(1, 'v120')
        items = []
        def W(s):
            o, tk = self.w1_stage(s, seq=True); wtok[s] = tk; return self.split_dma(o[0])
        B2 = self.o.get('b2', True)
        ev = (lambda x: x & ~1) if B2 else (lambda x: x)
        nx = (lambda x: (x + 1) & ~1) if B2 else (lambda x: x)
        for kc in range(3, 8): items.append(dict(e=0, need=12*ev(2*kc - 1), chain='A', make=lambda kc=kc: A(kc)))
        for s in range(16):
            if s not in wtok: items.append(dict(e=12*nx(s - 7) + 1 if s >= 7 else 0, need=12*ev(s - 1), chain='W', make=lambda s=s: W(s)))
        items.append(dict(e=12*self.o.get('hat', 9), need=12*11, make=lambda: self.split_dma(hd)))
        self.edf(S, items, self.o.get('sg11', 2.7), 'p1 L1', lead=3)
        w2pre, w2, w2tok = self.w2_quads(['v36', 'v37', 'v10', 'v121'])
        NW2 = self.o.get('nw2h', 12)
        S.add('dma', w2[:NW2], e=12*15+1, d=hb+30, split=True)
        tabw = [Ins('ds_write2_b32 v125, v240, v241 offset0:16 offset1:96', lds=(L_NM, L_NM+640)), Ins('ds_write_b32 v126, v125', lds=[(L_NM, L_NM+64), (L_RS, L_RS+64)])]
        ard = None
        for s in range(16):
            b = 12*s
            S.before[b] = self.fts('p11', f'k{s}')
            if ard:
                S.before[b] += [WaitTok(wr + ard[:2])]; S.before[b + 6] = [WaitTok(ard[2:])]
            if not B2 or s % 2 == 0 or s == 15:
                toks = list(wr)
                for u in ((s + 1, s + 2) if B2 else (s + 1,)):
                    if u < 16: toks += wtok[u] + atok[u >> 1]
                if s == 15: toks += tabw + htok
                S.at(b, [WaitTok(toks), 's_barrier'])
            if s < 15:
                wr = self.p1_wreads(s+1, *dst(s+1))
                S.add('wr', wr, e=b+1, d=b+9, step=1)
                ard = [self.p1_aread(s+1, t, AF + 4*t) for t in range(4)]
                for t in range(4): S.add('ar', [ard[t]], e=b+3+3*t, d=b+(7, 9, 13, 14)[t], step=0)
        S.before[hb] = self.cap(lambda: self.ts('p1_loop1'))
        for s in range(16):
            e = 12*15 + 3 + 3*s if s < 4 else hb + 2*(s-4) + 2
            S.add('ar', [self.halo_read(s, AF + 4*(s & 3), 'v122', 'v123')], e=e, d=max(e, hb + 2*s - 4))
        lh = self.lab('hs')
        S.add('misc', [Raw(f"""s_bitcmp1_b32 {sW}, 0
s_cbranch_scc0 {lh}
s_lshl_b32 s88, {sG}, 14
s_add_u32 s88, s88, {WS_HB - 56*2048}
s_mov_b32 exec_lo, 0xff000000
s_mov_b32 exec_hi, 0xff000000
buffer_store_dwordx4 {vr(RES,4)}, {vRM}, {SWS}, s88 offen sc1
buffer_store_dwordx4 {vr(RES+4,4)}, {vRM}, {SWS}, s88 offen offset:32 sc1
s_mov_b64 exec, -1
{lh}:""", rd=[vr(RES, 8)], wr=['s88'], states=2)], e=10, d=11)
        x = self.stats_reduce(240) + self.stats_final('v240', 'v241', 'v242') + lines(f"""v_and_b32 v124, 15, {vL}
v_lshlrev_b32 v124, 3, v124
v_bfe_u32 v125, {vL}, 4, 1
v_lshl_add_u32 v124, v125, 2, v124
s_and_b32 s88, {sW}, 1
s_lshl_b32 s88, s88, 7
s_add_u32 s88, s88, {L_NM}
v_add_u32 v125, s88, v124""")
        x.append(tabw[0])
        lh = self.lab('ht')
        x.append(Raw(f"""s_lshl_b32 s88, {sCB}, 2
s_add_u32 s88, s88, {sW}
s_cmp_lg_u32 s88, 1
s_cbranch_scc1 {lh}
s_lshl_b32 s88, {sG}, 7
s_add_u32 s88, s88, {WS_HS - 96}
s_mov_b32 exec_lo, 0xf000f000
s_mov_b32 exec_hi, 0
buffer_store_dword v240, v124, {SWS}, s88 offen sc1
buffer_store_dword v241, v124, {SWS}, s88 offen offset:32 sc1
s_mov_b64 exec, -1
{lh}:""", rd=['v240', 'v241', 'v124'], wr=['s88'], states=2))
        S.add('misc', x, e=12, d=12*5, step=0.8)
        S.add('misc', self.touches_p1(1, 'v121') + ([self.code_touch()] if self.o.get('ct2', False) else []), e=12*9, d=12*10 - 1)
        S.add('misc', [f's_lshl_b32 s88, {sPG}, 7', f's_add_u32 s94, s88, {WS_HS}', [f's_cmp_eq_u32 {sHASP}, 0', 's_cselect_b32 s94, 0x7ff00000, s94'], f'v_and_b32 v124, 15, {vL}', 'v_lshlrev_b32 v124, 2, v124',
                       f'buffer_load_dword v125, v124, {SWS}, s94 offen sc1', f's_add_u32 s88, {sW2K}, {L_A1H}', f'v_add_u32 v121, s88, {vL16}'], e=12*10, d=12*12, step=1)
        S.add('misc', lines(f"""v_and_b32 v126, 7, {vL}
v_lshlrev_b32 v126, 2, v126
v_bfe_u32 v127, {vL}, 3, 1
v_mul_u32_u24 v127, 320, v127
v_add_u32 v126, v126, v127
v_bfe_u32 v127, {vL}, 4, 1
v_lshl_add_u32 v126, v127, 5, v126
v_add_u32 v126, {L_NM}, v126"""), e=12*11, d=12*14, step=1)
        r = [Ins(f'ds_read_b32 v{122+u}, v121 offset:{u*1024}', lds=(L_A1H, L_A1H + 8192), private=True) for u in range(2)]
        for d in htok: d.private = True
        hd2, _ = self.halo_dma(1, 'v120', 's90')
        S.add('misc', [[WaitTok(htok)] + r], e=12*14, d=12*14+1)
        S.add('misc', [self.spin('s_mov_b32 s93, m0\n' + '\n'.join(i.text for i in hd2) + '\ns_mov_b32 m0, s93', 'v_max_u32 v122, v122, v123\nv_cmp_eq_u32 vcc, -1, v122', 'exec',
                                 pre='ds_read_b32 v122, v121\nds_read_b32 v123, v121 offset:1024\ns_waitcnt lgkmcnt(0)')], e=12*14+5, d=12*14+5)
        S.add('misc', [self.spin(f'buffer_load_dword v125, v124, {SWS}, s94 offen sc1', 'v_cmp_eq_u32 vcc, -1, v125', 'exec'), tabw[1]], e=12*14+7, d=12*14+10)
        S.add('misc', self.halo_addr('v122', 'v123') + w2pre, e=12*14+8, d=12*15)
        th = self.touches_h(1, 'v120') if not self.o.get('th3', 3) & 2 else []; thi = th[-1:]
        S.add('misc', self.p2_setup(1, rot=False) + th[:-1], e=12*15+2, d=hb+7)
        S.add('misc', self.att_masks(192), e=hb+8, d=hb+29)
        tr = self.att_tabreads()
        S.add('tab', tr[:5], e=hb+20, d=hb+30); S.add('tab', tr[5:], e=hb+31)
        self.win(S, '11')
        S.emit(p, 'p1 L1')
        self.ts('p1_halo1')
        st = self.attention(1, {'a': w2[NW2:], 'b': thi})
        self.ts('p1_attn1')
        self.post_flag(6, st)
        self.ts('p1_end1')
        return w2tok

    def epi_pre(self):
        o = [f'v_add_u32 v122, {sW4K}, {vL16}', 'v_xor_b32 v123, 8192, v122']
        o += lines(f"""v_and_b32 v240, 31, {vL}
v_lshlrev_b32 v240, 3, v240
v_lshrrev_b32 v241, 5, {vL}
v_lshl_add_u32 v240, v241, 2, v240""")
        return o
    def tile_spine(self, n):
        D = self.o.get('dsk', 5)
        sp = sum((self.tile_mfmas(k, k == 0) for k in range(n - D)), [])
        tail = [self.tile_mfmas(k, False) for k in range(n - D, n)]
        return sp + [t[0] for t in tail] + [t[1] for t in tail]
    def xwrites(self):
        rng = lambda q: [(L_XB + w*4096 + q*1024, L_XB + w*4096 + q*1024 + 1024) for w in range(4)]
        return [Ins(f'ds_write_b128 v122, {vr(104+4*q,4)} offset:{L_XB + q*1024}', lds=rng(q)) for q in range(4)]
    def tile_epilogue(self, kind, L):
        p = self.p
        OWN, X = 40, 56
        for q in range(4):
            for i in (4*q, 4*q+2): p(f'v_pk_add_f32 {vr(OWN+i,2)}, {vr(OWN+i,2)}, {vr(X+i,2)}')
            for i in (2*q, 2*q+1): p(f'v_cvt_pk_bf16_f32 v{RES+i}, v{OWN+2*i}, v{OWN+2*i+1}')
        if kind == 'out':
            p(f'buffer_store_dwordx4 {vr(RES,4)}, {vRM}, {SOUT}, {sROW} offen')
            p(f'buffer_store_dwordx4 {vr(RES+4,4)}, {vRM}, {SOUT}, {sROW} offen offset:32')
            return None
        if kind == 'x1': alt, st = self.stores([f'buffer_store_dwordx4 {vr(RES,4)}, {vL16}, {SWS}, {sX} offen', f'buffer_store_dwordx4 {vr(RES+4,4)}, {vL16}, {SWS}, {sX} offen offset:1024'])
        else:
            va = 'v242' if self.alias else vRM
            alt, st = self.stores([f'buffer_store_dwordx4 {vr(RES,4)}, {va}, {SWS}, {sX} offen', f'buffer_store_dwordx4 {vr(RES+4,4)}, {va}, {SWS}, {sX} offen offset:32'])
        p(alt)
        p(f'v_pk_add_f32 v[88:89], {vr(OWN,2)}, {vr(OWN+2,2)}\nv_pk_mul_f32 v[90:91], {vr(OWN,2)}, {vr(OWN,2)}\nv_pk_fma_f32 v[90:91], {vr(OWN+2,2)}, {vr(OWN+2,2)}, v[90:91]')
        for i in range(4, 16, 2):
            p(f'v_pk_add_f32 v[88:89], v[88:89], {vr(OWN+i,2)}\nv_pk_fma_f32 v[90:91], {vr(OWN+i,2)}, {vr(OWN+i,2)}, v[90:91]')
        p("""v_add_f32 v88, v88, v89
v_add_f32 v90, v90, v91
v_permlane32_swap_b32 v88, v90
v_add_f32 v88, v88, v90""")
        alt2, st2 = self.stores([f'buffer_store_dword v88, v240, {SWS}, {sY} offen'])
        p(alt2)
        return st + st2
    ARING = [128 + 4*i for i in range(16)] + [224, 228, 232, 236, 248, 252]
    WPRE = [128 + 4*i for i in range(16)] + [212, 216, 220, 224, 228, 232, 236, 248]
    big = False
    def wregs(self, k):
        if self.big and k < 4*self.NWP: return self.WPRE[2*k], self.WPRE[2*k+1]
        r = 72 + 8*((k + 2) % 4)
        return r, r + 4
    def areg(self, k):
        if self.big: return ar(4*k if k < 28 else 128 + 4*(k - 28), 4)
        return vr(self.ARING[k % 22], 4)
    def wfrag_reads(self, k, base, va, vb, lo):
        own, oth = self.wregs(k)
        return [Ins(f'ds_read_b64_tr_b16 {vr(r+2*rd,2)}, {ad} offset:{base + rd*512}', lds=lo) for r, ad in ((oth, vb), (own, va)) for rd in range(2)]
    def tile_mfmas(self, k, z):
        own, oth = self.wregs(k); a = self.areg(k)
        return [f'v_mfma_f32_32x32x16_bf16 {vr(104,16)}, {vr(oth,4)}, {a}, {0 if z else vr(104,16)}',
                f'v_mfma_f32_32x32x16_bf16 {vr(40,16)}, {vr(own,4)}, {a}, {vr(40,16)}']
    def res_unpack(self):
        return sum(([f'v_lshlrev_b32 v{40+2*i}, 16, v{RES+i}', f'v_and_b32 v{41+2*i}, 0xffff0000, v{RES+i}'] for i in range(8)), [])
    def tile_pos(self, n):
        D = self.o.get('dsk', 5)
        return [(2*k, 2*k + 1) if k < n - D else (2*(n - D) + (k - (n - D)), 2*(n - D) + D + (k - (n - D))) for k in range(n)]
    def add_wreads(self, S, B, n, k0, rd, gate=None, note=None):
        pos = self.tile_pos(n)
        for m in range(k0, n):
            r = rd(m)
            if note: note(m, r)
            if pos[m][1] == pos[m][0] + 1: S.before[B + pos[m][0]] = S.before.get(B + pos[m][0], []) + [WaitTok(r)]
            for h in range(2):
                e = pos[m-4][h] + 1 if m >= 4 else 0
                e = max(e, pos[m][h] - 8, gate(m) if gate else 0)
                S.add('wr%d' % h, r[2*h:2*h+2], e=B + e, d=B + max(e, min(pos[m][h] - 3, pos[m][0] - 2 if pos[m][1] == pos[m][0] + 1 else 999)), step=0.5)
    def add_exchange(self, S, B, n):
        D = self.o.get('dsk', 5)
        rng = lambda q: [(L_XB + w*4096 + q*1024, L_XB + w*4096 + q*1024 + 1024) for w in range(4)]
        ws = self.xwrites(); last_oth = B + 2*n - D - 1
        S.add('xw', ws, e=last_oth + 2, d=last_oth + 5, step=0.9)
        rs = [Ins(f'ds_read_b128 {vr(56+4*q,4)}, v123 offset:{L_XB + q*1024}', lds=rng(q)) for q in range(4)]
        at = min(last_oth + 6, B + 2*n - 1)
        S.add('xw', [[WaitTok(ws), 's_barrier']] + rs, e=at, d=B + 2*n - 1, step=0)

    def p2_setup(self, L, rot=True):
        o = lines(f"""s_lshr_b32 s88, {sW}, 1
s_lshl_b32 s89, s88, 15
s_add_u32 s89, s89, {L_W2}
v_add_u32 v126, s89, {vWown}
v_add_u32 v127, s89, {vWoth}
s_lshl_b32 s88, s88, 14
s_mul_i32 s89, {sRB}, {114688 if self.alias else 32768}
s_add_u32 s89, s89, s88
s_add_u32 s89, s89, {WS_H[L] if self.alias else WS_O[L]}""")
        if not rot: return o + [f's_add_u32 {sA2[q]}, s89, {q*4096}' for q in range(4)]
        for q in range(4): o += lines(f's_xor_b32 {sA2[q]}, {sRG}, {q}\ns_lshl_b32 {sA2[q]}, {sA2[q]}, 12\ns_add_u32 {sA2[q]}, {sA2[q]}, s89')
        return o
    def p3_setup(self, L):
        return self.w4_setup() + lines(f"""v_add_u32 v124, 65536, {vL16}
v_and_b32 v125, 31, {vL}
v_lshlrev_b32 v125, 4, v125
v_add_u32 v125, {L_T3}, v125
v_lshlrev_b32 v206, 3, {vL}
s_lshl_b32 s88, {sW}, 9
s_add_u32 s88, s88, {L_CS3}
v_add_u32 v206, s88, v206
s_lshl_b32 s92, {sG16}, 2
s_add_u32 s92, s92, {sW}
s_lshl_b32 s92, s92, 12""") + self.h_addr(L)
    def p1_setup(self):
        if self.alias:
            return lines(f"""s_lshl_b32 {sX}, {sG}, 16
s_add_u32 {sX}, {sX}, {WS_X1[0]}
s_lshl_b32 {sA1}, {sW}, 14
s_add_u32 {sA1}, {sA1}, {sX}
s_lshl_b32 {sHB}, {sPG}, 14
s_add_u32 {sHB}, {sHB}, {WS_HB}
s_cmp_eq_u32 {sHASP}, 0
s_cselect_b32 {sHB}, {sX}, {sHB}
s_lshl_b32 s92, {sRB}, 12
v_xor_b32 v127, 64, {vA1e}
v_lshrrev_b32 v242, 11, {vA1e}
v_and_b32 {vA1e}, 127, {vA1e}
v_lshl_add_u32 {vA1e}, v242, 10, {vA1e}
v_xor_b32 {vA1o}, 64, {vA1e}
v_add_u32 {vA1o}, {8192 - 1024}, {vA1o}
v_lshrrev_b32 v242, 11, {vRM}
v_and_b32 v243, 1023, {vRM}
v_lshl_add_u32 v242, v242, 10, v243""")
        return lines(f"""s_add_u32 {sA1}, {sA1}, {WS_X2}
s_lshl_b32 {sHB}, {sPG}, 14
s_add_u32 {sHB}, {sHB}, {WS_HB}
s_add_u32 s88, {sROW}, {WS_X2}
s_cmp_eq_u32 {sHASP}, 0
s_cselect_b32 {sHB}, s88, {sHB}
s_lshl_b32 s92, {sRB}, 12
v_xor_b32 v127, 64, {vA1e}""")
    def p2(self, L, w2tok):
        p = self.p
        p(WaitTok(w2tok + sum(self.w3tok.values(), []))); p('s_barrier')
        rd = lambda k: self.wfrag_reads(k, k*2048, 'v126', 'v127', [(L_W2 + h*32768 + k*2048, L_W2 + h*32768 + k*2048 + 2048) for h in range(2)])
        for k in range(3): p(rd(k))
        p(self.res_unpack())
        if L == 0:
            p(self.w3_setup()); p(self.w3_sel())
            rs = self.w3_take(list(range(4*self.nq1)))
            p(WaitTok(rs)); p('s_barrier')
        self.poll(1 + 5*L, sMK2)
        self.ts(f'p2_go{L}')
        al = [f'buffer_load_dwordx4 {vr(128+4*k,4)}, {vL16}, {SWS}, {sA2[k >> 2]} offen offset:{(k%4)*1024} sc1' for k in range(16)]
        NP = 10
        p(al[:NP])
        S = Sched(self.tile_spine(16))
        self.add_exchange(S, 0, 16)
        S.add('a', al[NP:], e=0, d=12, step=1, split=True)
        self.add_wreads(S, 0, 16, 3, rd)
        if L == 0:
            nq2 = min(7, self.nq1 + 4)
            self.nq2 = nq2
            S.add('dma', sum((self.w3_quad(q, 16384*(q - self.nq1 + 1)) for q in range(self.nq1, nq2)), []), e=8, d=31, step=self.o.get('q2s', 1.9) if nq2 - self.nq1 == 3 else 1.4, split=True)
            if self.o.get('tha', 0) == 2: S.add('misc', self.th0, e=26, d=30)
        S.add('misc', self.p3_setup(L) + self.x1_addr(L, sX) + self.st_addr(WS_ST1[L], sY) + self.epi_pre(), e=2, d=22)
        self.win(S, f'2{L}')
        S.emit(p, f'p2 L{L}')
        self.ts(f'p2_mm{L}')
        st = self.tile_epilogue('x1', L)
        self.ts(f'p2_epi{L}')
        if L == 0:
            p(self.w3_quad(7, 98304))
        self.post_flag(2 + 5*L, st)
        self.ts(f'p2_end{L}')

    def p3(self, L):
        p = self.p
        ACC, AF, CS, TK, HO, SR = 40, 72, 120, 240, 192, 224
        lskip = self.lab('p3skip')
        w4 = {}
        self.layer = L
        self.w1off = 2
        if L == 0:
            assert self.nq2 == 7
            p(WaitTok(sum((self.w3tok[q] for q in range(self.nq1, 7)), []))); p('s_barrier')
            self.w3_take(list(range(4*self.nq1, 28)))
        p('s_waitcnt lgkmcnt(0)'); p('s_barrier')
        p(f's_cmp_lg_u32 {sIDLE}, 0\ns_cbranch_scc1 {lskip}')
        self.poll(2 + 5*L, 'exec')
        self.ts(f'p3_go{L}')
        atok = {}
        def adma(rb, s, area=None):
            o = (rb if area is None else area)*32768 + s*16384
            d = [Ins(f'buffer_load_dwordx4 {vL16}, {SWS}, {sT} offen offset:{u*1024} sc1 lds', lds=[(o + q*4096 + u*1024, o + q*4096 + u*1024 + 1024) for q in range(4)]) for u in range(4)]
            atok[(rb, s, area)] = d
            return self.split_dma([Ins(f's_add_u32 m0, {sW4K}, {o}'), Ins(f's_add_u32 {sT}, {sA3[s]}, {WS_X1[L] + rb*32768}')] + d)
        for s in range(2): p(adma(0, s))
        if L == 0:
            tiles = [(0, 0), (0, 1), (0, 2), (0, 3), (1, 1), (1, 2), (1, 3), (1, 0)]; area = [0, 1, 2, 0, 1, 2, 0, 3]
        else:
            tiles = [(c, rb) for c in range(2) for rb in range(4)]; area = [0, 1, 2, 3, 0, 1, 2, 3]
        NR = 12
        def aread(n):
            ti, ks = divmod(n, 32)
            o = area[ti]*32768 + ks*1024
            return Ins(f'ds_read_b128 {vr(AF+4*(n % NR),4)}, {"v124" if o >= 65536 else vL16} offset:{o % 65536}', lds=(o, o+1024))
        def epilogue(ti):
            c, rb = tiles[ti]
            A = ACC + 16*(ti & 1); tk = TK + 4*(ti & 1); ho = HO + 4*(ti & 1)
            o = []
            gi = lambda i: (i >> 2)*8 + (i & 3)
            for i in range(9):
                if i < 8: o.append(f'v_mul_f32 v{A+gi(i)}, v{tk+3}, v{A+gi(i)}')
                if i: o.append(f'v_exp_f32 v{A+gi(i-1)}, v{A+gi(i-1)}')
            for i in range(8): o.append(f'v_fma_f32 v{A+gi(i)}, v{A+gi(i)}, v{tk+2}, v{tk+2}')
            for i in range(8):
                o.append(f'v_rcp_f32 v{A+gi(i)}, v{A+gi(i)}')
                if i: o.append(f'v_mul_f32 v{A+gi(i-1)}, v{A+gi(i-1)}, v{A+gi(i-1)+4}')
            o.append(f's_add_u32 s94, {sH0}, {rb*114688 + c*4096}')
            o.append(f'v_mul_f32 v{A+gi(7)}, v{A+gi(7)}, v{A+gi(7)+4}')
            for i in range(4): o.append(f'v_cvt_pk_bf16_f32 v{ho+i}, v{A+gi(2*i)}, v{A+gi(2*i+1)}')
            alt, st = self.stores([f'buffer_store_dwordx4 {vr(ho,4)}, {vL16}, {SWS}, s94 offen'])
            o.append(alt)
            return o, st
        def csreads(c):
            r = Ins(f'ds_read_b64 {vr(CS+2*c,2)}, v206 offset:{c*256}', lds=(L_CS3, L_CS3+2048), private=True)
            return [[f'v_mov_b32 v{CS+2*c}, 0', f'v_mov_b32 v{CS+2*c+1}, 0', 's_mov_b64 exec, 0xffffffff', r, 's_mov_b64 exec, -1']], r
        p(self.fts(f'p3{L}', 'issued'))
        p(WaitTok(atok[(0, 0, None)])); p('s_barrier')
        rds = [aread(n) for n in range(256)]
        for n in range(8): p(rds[n])
        CS0, CS1 = 20, self.o.get('cs1', 148)
        spine = []; slot = []
        for n in range(256):
            if L == 0 and n == CS0: spine += [self.w3_cs(x) for x in range(28, 32)]
            if L == 0 and n == CS1: spine += [self.w3_cs(x) for x in range(32, 64)]
            ti, ks = divmod(n, 32); c, rb = tiles[ti]
            A = vr(ACC + 16*(ti & 1), 16)
            slot.append(len(spine))
            spine.append(f'v_mfma_f32_32x32x16_bf16 {A}, {ar(c*128+4*ks,4)}, {vr(AF+4*(n % NR),4)}, {0 if ks == 0 else A}')
            if ks == 31: spine.append(f'v_mfma_f32_32x32x8_bf16 {A}, {vr(CS+2*c,2)}, {vr(TK+4*(ti&1),2)}, {A}')
        sl = lambda n: slot[max(0, min(int(n), 255))]
        self.big = (L == 1); self.NWP = self.o.get('nwp', 2)
        B4 = len(spine)
        spine += self.tile_spine(56)
        S = Sched(spine)
        for n in range(0, 256, 4): S.before[sl(n)] = [WaitTok(rds[n:n+4])]
        for ti in range(8): S.before[sl(32*ti)] = self.fts(f'p3{L}', f't{ti}') + S.before[sl(32*ti)]
        bars = {}
        def bar(n, toks): bars.setdefault(n, []).extend(toks)
        gate = {}
        def publish(first, toks): bar(first - 9, toks); gate[first] = first - 9
        st_issue = self.stats_issue(WS_ST1[L], 's92', SR)
        items = [dict(e=0, need=sl(8), make=lambda: [st_issue[:2]] + [[y] for y in st_issue[2:]])]
        publish(16, atok[(0, 1, None)])
        pubs = []
        def aitem(rb, s, ar_, e, first):
            items.append(dict(e=sl(e), need=sl(first - 9), chain='A', make=lambda: adma(rb, s, ar_))); pubs.append((first, (rb, s, ar_)))
        aitem(1, 0, None, 0, 32); aitem(1, 1, None, 0, 48); aitem(2, 0, None, 0, 64); aitem(2, 1, None, 0, 64 if L else 80)
        if L == 1:
            aitem(3, 0, None, 0, 96); aitem(3, 1, None, 0, 96)
        else:
            aitem(3, 0, 0, 40, 96); aitem(3, 1, 0, 40, 112)
            bar(39, rds[20:32])
            SLOT = [98304, 114688, 131072]
            iss = {8: 8, 9: 8, 10: 24, 11: 56, 12: 56, 13: 72, 14: 104, 15: 104}
            rd_at = {7: 7, 8: 39, 9: 39, 10: 55, 11: 87, 12: 87, 13: 103, 14: 135, 15: 135}
            for q in range(8, 16): items.append(dict(e=sl(iss[q]), need=sl(rd_at[q] - 8), chain='W', make=lambda q=q: self.w3_quad(q, SLOT[(q - 7) % 3])))
        self.edf(S, items, self.o.get('sg3%d' % L, 1.4 if L == 0 else 1.8), f'p3 L{L}')
        for first, key in pubs: publish(first, atok[key])
        if L == 0:
            for q in range(7, 16):
                at = rd_at[q]
                r = sum((self.w3_reads(n) for n in range(4*q, 4*q + 4)), [])
                bar(at, self.w3tok[q])
                if q < 14: bar(at + 16, r)
                S.add('w3r', r, e=sl(at), d=sl(min(at + 14, CS1 - 3 if q >= 14 else 999, CS0 - 3 if q == 7 else 999)))
                if q == 14: self.w3_last = list(r)
                if q == 15: self.w3_last += r
            S.add('w3c', self.w3_cs_store(0) + csreads(0)[0], e=sl(CS0) + 3, d=sl(29))
            S.add('w3c', self.w3_cs_store(1) + csreads(1)[0], e=sl(CS1) + 3, d=sl(157))
        for m in range(8, 256):
            e = max(m - NR + 1, max([v for k_, v in gate.items() if k_ <= m], default=-1))
            S.add('ar', [rds[m]], e=sl(e), d=sl(max(e, (m & ~3) - 3)), step=0)
        x = self.stats_reduce(SR) + self.stats_final(f'v{SR}', f'v{SR+1}', f'v{SR+2}') + lines(f"""v_mul_f32 v{SR+3}, {f2u(-LOG2E)}, v{SR+1}
v_cvt_pk_bf16_f32 v{SR}, v{SR}, v{SR}
v_mov_b32 v{SR+1}, v{SR}
v_and_b32 v{SR+4}, 15, {vL}
v_lshlrev_b32 v{SR+4}, 5, v{SR+4}
v_bfe_u32 v{SR+5}, {vL}, 4, 1
v_lshl_add_u32 v{SR+4}, v{SR+5}, 4, v{SR+4}
s_lshl_b32 s88, {sW}, 9
s_add_u32 s88, s88, {L_T3}
v_add_u32 v{SR+4}, s88, v{SR+4}""")
        tw = Ins(f'ds_write_b128 v{SR+4}, {vr(SR,4)}', lds=(L_T3, L_T3 + 2048))
        S.add('epi', x + [tw], e=sl(10), d=sl(21))
        bar(23, [tw])
        if L == 1: S.add('w3c', csreads(0)[0] + csreads(1)[0], e=2, d=20)
        def rd4(k):
            s, w = divmod(k, 4)
            b = self.W4SLOT[s]*16384 + w*2048
            va, vb = [('v200', 'v201'), ('v202', 'v203'), ('v204', 'v205')][b >> 16]
            return self.wfrag_reads(k, b & 65535, va, vb, [(b + h*8192, b + h*8192 + 2048) for h in range(2)])
        def stage(s):
            x_, tk = self.w4_stage(s); w4[s] = tk
            return sum((self.split_dma(y) for y in x_), [])
        NWP = self.NWP if self.big else 0
        allreads = {}
        if self.o_touch and self.o.get('th3', 3) >> L & 1:
            S.add('misc', lines(f'v_and_b32 v127, 7, {vL}\nv_lshlrev_b32 v127, 7, v127\nv_and_b32 v34, 8, {vL}\nv_lshl_add_u32 v127, v34, 9, v127'), e=sl(24), d=sl(30))
        S.add('misc', self.p4_setup(L), e=sl(36), d=sl(52))
        if self.o_touch and self.o.get('th3', 3) >> L & 1:
            for rb in range(4): S.add('misc', [f's_add_u32 s89, {sH0}, {rb*114688}', self.touch('v127', 's89')], e=sl(54 + 22*rb), d=sl(58 + 22*rb))
        sts = []
        for ti in range(8):
            c, rb = tiles[ti]
            S.add('epi', [Ins(f'ds_read_b128 {vr(TK+4*(ti&1),4)}, v125 offset:{rb*512}', lds=(L_T3, L_T3+2048))], e=sl(32*ti + 25), d=sl(32*ti + 28))
            e, st = epilogue(ti); sts.append(st)
            if ti < 7: S.add('epi', e, e=sl(32*ti + 35), d=sl(32*ti + 56), early=False)
            else: S.add('epi', e, e=B4 + 2, d=B4 + self.o.get('e7', 12))
            if ti >= 5:
                bar(32*ti + 1, rds[32*ti-12:32*ti] + (self.w3_last if L == 0 else []))
            if ti == 4 and L == 0:
                fr = CS1 - 1
                bar(fr, self.w3_last)
                S.add('dma', stage(0) + adma(0, 0, 3) + adma(0, 1, 3), e=sl(fr), d=sl(160), split=True)
                bar(193, atok[(0, 0, 3)] + atok[(0, 1, 3)] + w4[0])
            if ti == 1 and L == 1:
                plan = {0: [(100, None)], 1: [(56, 87), (100, None)], 2: [(56, 87), (98, 129), (140, None)], 3: [(56, 87), (97, 120), (130, 152), (162, None)]}[NWP]
                prev = []
                for s, (e0, pub) in enumerate(plan):
                    if s: bar(e0 - 1, prev)
                    S.add('dma', stage(s), e=sl(e0), d=sl(e0 + 8), step=1.5, split=True)
                    if pub:
                        bar(pub, w4[s])
                        prev = sum((rd4(k) for k in range(4*s, 4*s + 4)), [])
                        S.add('wpre', prev, e=sl(pub), d=sl(plan[s+1][0] - 3))
                bar(193, w4[NWP])
        if L == 0:
            S.add('misc', [self.code_touch()], e=sl(CS1) - 28, d=sl(CS1) - 2)
        S.add('misc', [self.cap(lambda: self.post_flag(3 + 5*L, sum(sts[:4], [])))], e=sl(163), d=sl(164))
        pc = self.o.get('pc', 192)
        S.add('misc', [self.poll_issue(vT0)], e=sl(pc - 14), d=sl(pc - 12))
        S.add('misc', [self.poll_check(vT0, 3 + 5*L, sMK4)], e=sl(pc), d=sl(pc + 1))
        if L == 0: S.add('misc', self.touches_x2('v127'), e=sl(pc + 2), d=sl(pc + 20))
        K0 = 0 if self.big else 2
        for k in range(K0):
            r = rd4(k); allreads.setdefault(0, []).extend(r)
            S.add('wr', r, e=sl(247 + 2*k), d=sl(254), step=0.5)
        for n, toks in sorted(bars.items()):
            lo_, hi_ = self.o.get('blo', 0), self.o.get('bhi', 70)
            f = (lambda nm: self.fts(f'b3{L}', nm)) if lo_ <= n < hi_ else (lambda nm: [])
            S.at(sl(n), f(f'x{n}') + [WaitTok(toks)] + f(f'w{n}') + ['s_barrier'] + f(f'b{n}'), 'bar')

        lj = self.lab('p3join')
        S.before[B4] = self.cap(lambda: self.ts(f'p3_mm{L}')) + [Ins(f'{lj}:')] + S.before.get(B4, [])
        dac = self.o.get('dac', 9)
        self.add_exchange(S, B4, 56)
        S.add('epi2', self.res_unpack(), e=sl(250), d=sl(255))
        pre = {}
        fl = self.o.get('fl4', 19)
        S.add('misc', [self.cap(lambda: self.post_flag(4 + 5*L, sum(sts[4:], [])))], e=B4 + fl, d=B4 + fl + 1, needs=[sts[7][0]])
        pk = 2*(28 - dac)
        pos = self.tile_pos(56)
        bstep = self.o.get('bstep', 1)
        BS = list(range(NWP + 3, 14, bstep))
        bsl = lambda s: min(2*(4*s - 3), pos[4*s][0] - 6)
        items = []
        for m in range(56):
            e = sl(pc + 2) if m < 28 else B4 + pk + 2
            if not self.big and m >= 22: e = max(e, B4 + pos[m-22][1] + 1)
            items.append(dict(kind='a', i=m, e=e, need=B4 + pos[m][0], n=1))
        for ns in range(NWP + 1, 14):
            j = ns - NWP - 1
            if j < 6: e = sl(161 + 32*(j // 2)) + 1
            elif j < 8: e = B4 + 1
            else:
                prev = max(x for x in range(NWP, ns) if self.W4SLOT[x] == self.W4SLOT[ns])
                e = B4 + bsl(min(b for b in BS if b >= prev + 2)) + 1
            nb = [b for b in BS if b <= ns]
            items.append(dict(kind='w', i=ns, e=e, need=B4 + (bsl(max(nb)) if nb else 0), n=4))
        items.append(dict(kind='p', i=0, e=B4 + pk - self.o.get('plead', 12), need=B4 + pk - 60, n=1))
        if L == 0:
            for i in range(self.o.get('nw1', 4)): items.append(dict(kind='q', i=i, e=B4 + max(self.o.get('w1e', 76), bsl(10 if i < 2 else 11) + 1), need=B4 + 200 + i, n=3))
        sigma = self.o.get('sig%d' % L, 1.5)
        t_ = float(min(x['e'] for x in items)); left = list(items); plan = []
        while left:
            el = [x for x in left if x['e'] <= t_ and not (x['kind'] == 'a' and any(y['kind'] == 'a' and y['i'] < x['i'] for y in left))]
            if not el: t_ = float(min(x['e'] for x in left if x['e'] > t_)); continue
            x = min(el, key=lambda y: y['need'])
            if t_ < B4 <= t_ + sigma*(x['n'] - 1) + 0.99: t_ = float(B4 + 1)
            x['t'] = t_; plan.append(x); left.remove(x); t_ += sigma*x['n']
        print('   edf min slack', sorted((x['need'] - x['t'] - sigma*(x['n']-1), x['kind'], x['i']) for x in plan if x['kind'] in 'aw')[:4], 'end', t_ - B4)
        NPRE = sum(1 for x in plan if x['kind'] == 'a' and x['t'] < B4)
        prew = [x['i'] for x in plan if x['kind'] == 'w' and x['t'] < B4]
        nlds = NWP + 1 + len(prew)
        assert prew == list(range(NWP + 1, nlds))
        for x in plan:
            if x['kind'] == 'a':
                gq = [self.p4_aload(x['i'])]
                if x['i'] == 52: need52 = gq[0][0]
            elif x['kind'] == 'w': gq = stage(x['i'])
            elif x['kind'] == 'p': gq = [[self.poll_issue('v127')]]
            else:
                y, tk = self.w1_stage(x['i'], seq=(x['i'] > 0)); pre[x['i']] = tk; gq = self.split_dma(y[0])
            for j, y in enumerate(gq):
                tt = min(int(x['t'] + sigma*j), len(spine) - 1)
                if len(y) > 1: S.add('vm', [y[:-1]], e=tt - 2 if tt - 2 >= B4 or tt < B4 else tt, d=tt, split=True, step=0)
                S.add('vm', [y[-1:]], e=tt, d=tt, step=0)
            if x['kind'] == 'p': S.add('pchk', [self.poll_check('v127', 4 + 5*L, sMK4)], e=B4 + pk, d=B4 + pk + 1)
        S.at(B4, [WaitTok(rds[244:256] + sum((w4[s] for s in range(min(nlds, NWP + 3))), [])), 's_barrier'], 'bar4')
        bslot = {s: min(2*(4*s - 3), self.tile_pos(56)[4*s][0] - 6) for s in BS}
        self.add_wreads(S, B4, 56, max(K0, 4*NWP), rd4, gate=lambda m: max([1] + [v for s_, v in bslot.items() if s_ <= m // 4]), note=lambda m, r: allreads.setdefault(m // 4, []).extend(r))
        for s in BS: S.at(B4 + bslot[s], [WaitTok(sum((w4[x_] for x_ in range(s, min(14, s + bstep))), []) + allreads.get(s-2, [])), 's_barrier'], 'bar4')
        for k in range(4, 56, 4): S.before[B4 + 2*k] = self.fts(f'p4{L}', f's{k//4}') + S.before.get(B4 + 2*k, [])
        S.add('misc', self.epi_pre(), e=B4 + 70, d=B4 + 90)
        if L == 0: S.add('misc', [f's_add_u32 {sX}, {sROW}, {WS_X2}'] + self.st_addr(WS_ST2, sY) + self.p1_setup(), e=B4 + 86, d=B4 + 108, needs=[need52])
        self.win(S, f'3{L}')
        S.emit(p, f'p3+p4 L{L}')
        sv = self.p; q = self.p = Prog(check_lds=False)
        q(f'{lskip}:')
        if L == 0: q(self.touches_x2('v127'))
        q(self.p4_setup(L))
        if self.o.get('pfs', True): self.idle_prefetch([(SWD, 2, 'slow')])
        for s in range(NWP):
            q(self.w4_stage(s)[0]); q('s_waitcnt vmcnt(0)\ns_barrier')
            for k in range(4*s, 4*s + 4): q(rd4(k))
            q('s_waitcnt lgkmcnt(0)\ns_barrier')
        for s in range(NWP, nlds): q(self.w4_stage(s)[0])
        if L == 1: self.idle_prefetch([(SWD, self.o.get('pfe', 7), 'down')])
        if L == 0: self.idle_prefetch([(SWD, self.o.get('pfa', 0), 'down')])
        self.poll(3 + 5*L, sMK4)
        if L == 0: self.idle_prefetch(([(SWQKV, 2, 'slow'), (SWO, 1, 'slow')] if self.o.get('pfs', True) else []) + [(SWD, self.o.get('pfd', 0), 'down')])
        for k in range(NPRE): q(self.p4_aload(k))
        q('s_waitcnt vmcnt(0)\ns_barrier')
        for k in range(K0): q(rd4(k))
        q(self.res_unpack())
        q(f's_waitcnt lgkmcnt(0)\ns_branch {lj}')
        self.p = sv
        self.slow.append(q.finalize())
        self.ts(f'p4_mm{L}')
        st = self.tile_epilogue('x2' if L == 0 else 'out', L)
        self.big = False
        self.ts(f'p4_epi{L}')
        if L == 0:
            self.post_flag(5, st)
            for st_ in range(len(pre), self.o.get('nw2', 5)):
                gq, tk = self.w1_stage(st_, seq=True); pre[st_] = tk; p(gq)
        self.ts(f'p4_end{L}')
        return pre

    def idle_prefetch(self, jobs):
        if not self.o.get('pf', True): return
        q = self.p
        q(f"""s_and_b32 s88, {sG16}, 1
s_lshl_b32 s88, s88, 1
s_add_u32 s88, s88, {sM16}
s_sub_u32 s88, s88, 14
s_lshl_b32 s88, s88, 2
s_add_u32 s88, s88, {sW}
v_lshlrev_b32 v40, 7, {vL}
v_lshlrev_b32 v42, 10, {vL}
v_add_u32 v42, 384, v42""")
        for srd, n, kind in jobs:
            for i in range(n):
                va = 'v40'
                if kind.startswith('down'):
                    q(f's_mul_i32 s89, s88, 7\ns_add_u32 s89, s89, {i}\ns_lshr_b32 s90, s89, 3\ns_lshl_b32 s90, s90, 17\ns_and_b32 s89, s89, 7\ns_lshl_b32 s89, s89, 13\ns_add_u32 s89, s89, s90\ns_add_u32 s89, s89, {0 if kind == "down0" else 65536}')
                else:
                    q(f's_lshl_b32 s89, s88, 16\ns_add_u32 s89, s89, {i << 20}'); va = 'v42'
                x = Ins(f'buffer_load_dword v41, {va}, {srd}, s89 offen'); x.wr = set(); q(x)
                q('s_waitcnt vmcnt(1)')

    def p4_setup(self, L):
        return lines(f"""s_lshr_b32 s88, {sW}, 1
s_lshl_b32 s89, s88, 13
v_add_u32 v200, s89, {vWown}
v_add_u32 v201, s89, {vWoth}
v_add_u32 v202, 65536, v200
v_add_u32 v203, 65536, v201
v_add_u32 v204, 131072, v200
v_add_u32 v205, 131072, v201
s_mul_i32 s88, s88, 57344
s_mul_i32 {sX}, {sRB}, 114688
s_add_u32 {sX}, {sX}, s88
s_add_u32 {sX}, {sX}, {WS_H[L]}
s_add_u32 {sY}, {sX}, 4096""")
    def p4_aload(self, k):
        s, w = divmod(k, 4); c, j = divmod(s, 7)
        o = []
        if w == 0: o.append(Ins(f's_add_u32 {sH1}, {sY if c else sX}, {sJ[j]}'))
        o.append(Ins(f'buffer_load_dwordx4 {self.areg(k)}, {vL16}, {SWS}, {sH1} offen offset:{w*1024} sc1'))
        return o
    def build(self):
        p = self.p
        self.prologue_a()
        pre = {}
        for L in range(2):
            p(f'; PH 1{L}')
            w2 = self.p1_first() if L == 0 else self.p1_second(pre)
            if self.o_stop == f'p1_{L}': break
            p(f'; PH 2{L}')
            self.p2(L, w2)
            if self.o_stop == f'p2_{L}': break
            p(f'; PH 3{L}')
            pre = self.p3(L)
            if self.o_stop == f'p4_{L}': break
        p(self.bump_epoch())
        self.ts('end')
        if self.o_amp:
            p('s_waitcnt vmcnt(0)')
            p(Raw(f"""s_memrealtime s[62:63]
s_sub_u32 s96, s98, s96
s_mul_i32 s96, s96, {self.o_amp[2]}
s_min_u32 s96, s96, 100000
s_waitcnt lgkmcnt(0)
Lamp:
s_memrealtime s[98:99]
s_waitcnt lgkmcnt(0)
s_sub_u32 s98, s98, s62
s_cmp_lt_u32 s98, s96
s_cbranch_scc1 Lamp"""))
        if self.o_ts:
            p(f's_lshl_b32 s88, s2, 2\ns_add_u32 s88, s88, {sW}\ns_lshl_b32 s88, s88, 8\ns_add_u32 s88, s88, {WS_TS}\nv_lshlrev_b32 v40, 2, {vL}')
            p('s_memrealtime s[62:63]'); p(f'v_writelane_b32 {vTS}, s62, 62')
            p(f'buffer_store_dword {vTS}, v40, {SWS}, s88 offen')
            if self.o_dbg:
                sel = [self.tsn.index(n) for n in self.o_dbg] + [62, 63]
                l = self.lab('dbg')
                p(f's_lshl_b32 s88, s2, 2\ns_add_u32 s88, s88, {sW}\ns_cmp_lg_u32 s88, 0\ns_cbranch_scc1 {l}')
                p(f'v_readlane_b32 s89, {vTS}, 0')
                for i, s in enumerate(sel):
                    p(f'v_readlane_b32 s88, {vTS}, {s}')
                    if s < 62: p('s_sub_u32 s88, s88, s89')
                    p(f'v_writelane_b32 v41, s88, {i}')
                p(f's_mov_b64 exec, 0xffff\nbuffer_store_dword v41, v40, {SDBG}, 0 offen sc1\ns_mov_b64 exec, -1\n{l}:')
        kill = str(self.o.get('kill', '')).split('+')
        if kill != ['']:
            p.check_lds = False
            import re as _re
            inp3 = None
            for it in p.items:
                t = getattr(it, 'text', '')
                if t.startswith('; PH'): inp3 = t[5:]
                lst = [it] if it.kind != 'alt' else it.a
                for x in lst:
                    t = getattr(x, 'text', '')
                    tag = None
                    if x.kind == 'dma' and SW3 in t: tag = 'w3'
                    elif x.kind == 'dma' and SWD in t: tag = 'w4'
                    elif x.kind == 'dma' and SWQKV in t: tag = 'w1'
                    elif x.kind == 'dma' and SWO in t: tag = 'w2'
                    elif x.kind == 'dma': tag = 'adma'
                    elif x.kind == 'vmld' and 'x4' in t and SWS in t: tag = 'ald'
                    elif x.kind == 'vmld' and 'v34' in t: tag = 'touch'
                    elif x.kind == 'vmst' and 'x4' in t: tag = 'st'
                    elif x.kind == 'dsrd' and 'b128' in t and int(_re.search(r'offset:(\d+)', t).group(1)) & 1024: tag = 'half'
                    elif x.kind == 'dsrd' and 'tr_b16' in t: tag = 'tr'
                    elif x.kind == 'dsrd' and 'b128' in t: tag = 'half2'
                    elif x.kind == 'barrier': tag = 'bar'
                    elif x.kind == 'trans': tag = 'trans'
                    elif x.kind == 'valu': tag = 'valu'
                    if tag and f'{inp3}{tag}' in kill:
                        x.text = '; killed'; x.kind = 'dir'; x.ops = ['0']; x.rd = set(); x.wr = set(); x.lds = None
                        if it.kind == 'alt':
                            for y in it.b: y.kind = 'dir'
        body = p.finalize()
        head = open('cdna_kernels/' + NAME + '.s.ref').read().split('; Override launch')[0]
        txt = head + '; @launch grid=(256,1,1) block=(256,1,1) lds=163840\n'
        txt += f'.amdgcn_target "amdgcn-amd-amdhsa--gfx950"\n.text\n.globl {NAME}_kernel\n.p2align 8\n.type {NAME}_kernel,@function\n{NAME}_kernel:\n'
        txt += body + 'L_end:\ns_endpgm\n' + '\n'.join(getattr(p, 'tail', [])) + '\n' + '\n'.join(self.slow) + '\nL_last:\ns_endpgm\n'
        txt += f""".section .rodata,"a"
.p2align 6
.amdhsa_kernel {NAME}_kernel
  .amdhsa_next_free_vgpr 512
  .amdhsa_next_free_sgpr 102
  .amdhsa_accum_offset 256
  .amdhsa_group_segment_fixed_size 0
  .amdhsa_kernarg_size 80
  .amdhsa_user_sgpr_count 2
  .amdhsa_user_sgpr_kernarg_segment_ptr 1
  .amdhsa_system_sgpr_workgroup_id_x 1
  .amdhsa_float_denorm_mode_32 3
.end_amdhsa_kernel
"""
        return txt

if __name__ == '__main__':
    out = sys.argv[1]
    kw = {}
    for a in sys.argv[2:]:
        k, _, v = a.partition('=')
        if k in ('amp', 'dbg', 'win'): kw[k] = v.split(',')
        elif v in ('0', '1', ''): kw[k] = (v != '0')
        elif v.replace('.', '').isdigit(): kw[k] = float(v) if '.' in v else int(v)
        else: kw[k] = v
    if kw.pop('reuse', False):
        WS_O[1] = WS_O[0]; WS_X1[1] = WS_X1[0]; WS_ST1[1] = WS_ST1[0]; WS_H[1] = WS_H[0]
    g = Gen(**kw)
    open(out, 'w').write(g.build())
    if g.o_ts: open(out + '.ts', 'w').write('\n'.join(g.tsn))
    print(out, g.p.stats)
```
